```python
import torch

def _softmax(x, axis=-1):
    return torch.softmax(x, dim=axis)
def _gelu(x):
    return torch.nn.functional.gelu(x, approximate="tanh")
def _silu(x):
    return torch.nn.functional.silu(x)
def _sigmoid(x):
    return torch.sigmoid(x)
def _layernorm(x, axis=-1, eps=1e-5):
    m = x.mean(dim=axis, keepdim=True)
    v = x.var(dim=axis, keepdim=True, unbiased=False)
    return (x - m) / torch.sqrt(v + eps)
def _scatter_add(tgt, idx, src, axis=0):
    return tgt.clone().index_add_(axis, idx, src)
def _segment_sum(src, seg, n):
    out = torch.zeros((n,) + src.shape[1:], dtype=src.dtype)
    return out.index_add_(0, seg, src)
def _pad(x, pw):
    flat = tuple(v for pair in reversed(pw) for v in pair)
    return torch.nn.functional.pad(x, flat)

kernel_name = 'gated_mix__ssm_conv_s4__dense_activation_relu__prompt'

def setup_inputs():

    _w = (lambda a: (lambda t: t.to(torch.bfloat16) if t.is_floating_point() else t)(torch.as_tensor(a)))
    def _A_setup():
        B, L, D, N = 1, 2048, 512, 128
        A_re = -(lambda _x: torch.exp(torch.as_tensor(_x)))((lambda *s: torch.randn(*s, dtype=torch.bfloat16) * 3.2)(D, N))
        A_im = torch.pi * (lambda *s: torch.randn(*s, dtype=torch.bfloat16) * 0.2)(D, N)
        B_re = (lambda *s: torch.randn(*s, dtype=torch.bfloat16) * 0.4)(D, N)
        B_im = (lambda *s: torch.randn(*s, dtype=torch.bfloat16) * 0.4)(D, N)
        C_re = (lambda *s: torch.randn(*s, dtype=torch.bfloat16) * 0.4)(D, N)
        C_im = (lambda *s: torch.randn(*s, dtype=torch.bfloat16) * 0.4)(D, N)
        log_dt = (lambda *s: torch.randn(*s, dtype=torch.bfloat16) * 0.2)(D) * 0.5 - 4.0
        Dskip = (lambda *s: torch.randn(*s, dtype=torch.bfloat16) * 0.4)(D)
        return {
            "u": _w((lambda *s: torch.randn(*s, dtype=torch.bfloat16) * 0.05)(B, L, D)),
            "A_re": _w(A_re),
            "A_im": _w(A_im),
            "B_re": _w(B_re),
            "B_im": _w(B_im),
            "C_re": _w(C_re),
            "C_im": _w(C_im),
            "log_dt": _w(log_dt),
            "Dskip": _w(Dskip),
        }
    _A_in = _A_setup()

    def _B_setup():
        B, S, D, Dff = 1, 2048, 512, 1792
        return {
            "x": _w((lambda *s: torch.randn(*s, dtype=torch.bfloat16) * 0.05)(B, S, D)),
            "w1": _w((lambda *s: torch.randn(*s, dtype=torch.bfloat16) * 0.05)(D, Dff)),
            "w2": _w((lambda *s: torch.randn(*s, dtype=torch.bfloat16) * 0.05)(Dff, D)),
        }
    _B_in = _B_setup()

    return {
        "A_u": _A_in["u"],
        "A_A_re": _A_in["A_re"],
        "A_A_im": _A_in["A_im"],
        "A_B_re": _A_in["B_re"],
        "A_B_im": _A_in["B_im"],
        "A_C_re": _A_in["C_re"],
        "A_C_im": _A_in["C_im"],
        "A_log_dt": _A_in["log_dt"],
        "A_Dskip": _A_in["Dskip"],
        "B_x": _B_in["x"],
        "B_w1": _B_in["w1"],
        "B_w2": _B_in["w2"],
        "gate_w": _w((lambda *s: torch.randn(*s, dtype=torch.bfloat16) * 0.05)(512) * 16.0),
    }

def reference(A_u, A_A_re, A_A_im, A_B_re, A_B_im, A_C_re, A_C_im, A_log_dt, A_Dskip, B_x, B_w1, B_w2, gate_w):
    def _A_ref(u, A_re, A_im, B_re, B_im, C_re, C_im, log_dt, Dskip):
        Bsz, L, D = u.shape
        dt = torch.exp(log_dt)[:, None]
        A = A_re + 1j * A_im
        Bc = B_re + 1j * B_im
        Cc = C_re + 1j * C_im
        logdA = dt * A
        dB = dt * Bc
        l = (lambda x, dt: x.to(dt))(torch.arange(L), A_re.dtype)
        P = torch.exp(logdA[:, :, None] * l[None, None, :])
        K = torch.einsum("dn,dnl,dn->dl", Cc, P, dB).real
        L2 = 2 * L
        Kp = _pad(K, ((0, 0), (0, L)))
        up = (lambda x, *d: x.permute(*d))(u, 0, 2, 1)
        up = _pad(up, ((0, 0), (0, 0), (0, L)))
        Kf = (lambda x, axes=(-2,-1): torch.fft.rfft2(x.float(), dim=axes))(Kp[:, None, :], axes=(-2, -1))
        Uf = (lambda x, axes=(-2,-1): torch.fft.rfft2(x.float(), dim=axes))(up[:, :, None, :], axes=(-2, -1))
        Yf = Uf * Kf[None, :, :, :]
        y = (lambda x, s, axes=(-2,-1): torch.fft.irfft2(x, s=s, dim=axes).to(torch.bfloat16))(Yf, (1, L2), axes=(-2, -1))[:, :, 0, :L]
        y = (lambda x, *d: x.permute(*d))(y, 0, 2, 1) + u * Dskip[None, None, :]
        return y

    def _B_ref(x, w1, w2):
        h = torch.einsum("bsd,df->bsf", x, w1)
        zero = torch.zeros_like(h)
        h = torch.maximum(h, zero)
        return torch.einsum("bsf,fd->bsd", h, w2)

    x = A_u
    g = _sigmoid((x * gate_w).sum(-1, keepdims=True))
    a = _A_ref(x, A_A_re, A_A_im, A_B_re, A_B_im, A_C_re, A_C_im, A_log_dt, A_Dskip)
    b = _B_ref(x, B_w1, B_w2)
    return g * a + (1 - g) * b
```

```python
import re

TRANS = ("v_exp_f32", "v_log_f32", "v_rcp_f32", "v_rsq_f32", "v_sqrt_f32", "v_sin_f32", "v_cos_f32")


def _regs(tok):
    tok = tok.strip()
    neg = tok.lstrip("-")
    m = re.fullmatch(r"(?:abs\()?\|?([vas])(\d+)\)?\|?", neg)
    if m:
        return [(m.group(1), int(m.group(2)))]
    m = re.fullmatch(r"([vas])\[(\d+):(\d+)\]", neg)
    if m:
        return [(m.group(1), i) for i in range(int(m.group(2)), int(m.group(3)) + 1)]
    if neg == "vcc":
        return [("s", "vcc")]
    if neg == "m0":
        return [("s", "m0")]
    if neg == "exec":
        return [("s", "exec")]
    return []


class Ins:
    def __init__(self, text):
        self.text = text
        t = text.split(";")[0].strip()
        self.is_label = t.endswith(":") or t.startswith(".")
        self.op = t.split()[0] if t else ""
        rest = t[len(self.op):].strip()
        parts = [p.strip() for p in rest.split(",")] if rest else []
        ops = []
        depth_join = []
        buf = ""
        for p in parts:
            buf = p if not buf else buf + "," + p
            if buf.count("[") == buf.count("]"):
                depth_join.append(buf)
                buf = ""
        for p in depth_join:
            ops.append(p.split()[0] if p else p)
        self.mods = t
        self.ops = ops
        op = self.op
        self.kind = "other"
        self.dst, self.src = [], []
        self.srcC = []
        self.passes = 0
        R = [_regs(o) for o in ops]
        flat = lambda L: [r for x in L for r in x]
        if self.is_label or not op:
            self.kind = "label"
            return
        if op.startswith("v_mfma"):
            self.kind = "mfma"
            self.dst = R[0]
            self.src = R[1] + R[2]
            self.srcC = R[3]
            self.passes = 8 if "32x32x16" in op else 4
        elif op.startswith("v_"):
            self.kind = "valu"
            if op.startswith("v_cmp"):
                self.dst = R[0]
                self.src = flat(R[1:])
            elif op.startswith("v_permlane") and "swap" in op:
                self.dst = R[0] + R[1]
                self.src = R[0] + R[1]
            elif op.startswith("v_readfirstlane") or op.startswith("v_readlane"):
                self.dst = R[0]
                self.src = flat(R[1:])
            elif "_co_" in op:
                self.dst = R[0] + R[1]
                self.src = flat(R[2:])
            else:
                self.dst = R[0]
                self.src = flat(R[1:])
                if op.startswith("v_fmac") or op.startswith("v_dot2c") or "dpp" in op or op.startswith("v_writelane"):
                    self.src = self.src + R[0]
        elif op.startswith("buffer_") or op.startswith("global_"):
            self.kind = "vmem"
            if "_load" in op and not re.search(r"\blds\b", t):
                self.dst = R[0]
                self.src = flat(R[1:])
                if "d16" in op:
                    self.src = self.src + R[0]
            else:
                self.src = flat(R)
                if re.search(r"\blds\b", t):
                    self.src = self.src + [("s", "m0")]
        elif op.startswith("ds_"):
            self.kind = "ds"
            if op.startswith("ds_read") or op.startswith("ds_bpermute") or "_rtn_" in op:
                self.dst = R[0]
                self.src = flat(R[1:])
            else:
                self.src = flat(R)
            if "addtid" in op:
                self.src = self.src + [("s", "m0")]
        elif op.startswith("s_"):
            self.kind = "salu"
            if op in ("s_waitcnt", "s_barrier", "s_nop", "s_endpgm", "s_sleep", "s_setprio") or op.startswith("s_cbranch") or op == "s_branch":
                pass
            elif op.startswith("s_cmp") or op.startswith("s_atomic") or op.startswith("s_bitcmp"):
                self.src = flat(R)
            elif op.startswith("s_load") or op.startswith("s_mem"):
                self.kind = "smem"
                self.dst = R[0]
                self.src = flat(R[1:])
            else:
                self.dst = R[0]
                self.src = flat(R[1:])

    def states(self):
        if self.kind == "label":
            return 0
        if self.op == "s_nop":
            return int(self.ops[0], 0) + 1
        return 1


def need_states(p, c):
    n = 0
    pd = set(p.dst)
    vec = lambda S: {r for r in S if r[0] in "va"}
    sca = lambda S: {r for r in S if r[0] == "s"}
    if p.kind == "valu":
        if c.kind == "mfma" and vec(pd) & set(c.src + c.srcC):
            n = max(n, 2)
        if c.kind == "valu":
            cs = set(c.src)
            if p.op in TRANS and vec(pd) & cs:
                n = max(n, 1)
            if p.op.startswith("v_dot2") and vec(pd) & (cs | set(c.dst)):
                n = max(n, 3)
            if sca(pd) & cs:
                n = max(n, 4 if ("readlane" in c.op or "writelane" in c.op) else 2)
            if vec(pd) & cs:
                if c.op.startswith("v_readfirstlane") or c.op.startswith("v_readlane"):
                    n = max(n, 1)
                if c.op.startswith("v_permlane") or "dpp" in c.op:
                    n = max(n, 2)
        if c.kind in ("vmem",) and sca(pd) & set(c.src):
            n = max(n, 5)
        if c.kind in ("salu", "smem") and sca(pd) & set(c.src):
            n = max(n, 2)
        if p.op.startswith("v_dot2") and c.kind in ("vmem", "ds") and vec(pd) & set(c.src):
            n = max(n, 3)
    if p.kind == "mfma":
        big = {4: 8, 8: 12}[p.passes]
        if c.kind == "mfma":
            if pd & set(c.src):
                n = max(n, big)
            if pd & set(c.srcC):
                if not (p.dst == c.srcC and p.passes == c.passes):
                    n = max(n, {4: 6, 8: 10}[p.passes])
            elif pd & set(c.dst):
                n = max(n, big)
        elif c.kind in ("valu", "vmem", "ds"):
            if pd & (set(c.src) | set(c.dst)):
                n = max(n, big)
            if c.kind == "valu" and set(p.srcC) & set(c.dst):
                n = max(n, {4: 3, 8: 7}[p.passes])
    if p.kind == "salu" and ("s", "m0") in pd and c.kind in ("vmem", "ds") and ("s", "m0") in c.src:
        n = max(n, 1)
    if p.kind == "vmem" and ("store" in p.op) and ("x4" in p.op or "x3" in p.op):
        if c.kind in ("valu", "mfma") and vec(set(p.src)) & set(c.dst):
            n = max(n, 2)
        if c.kind in ("ds", "vmem") and vec(set(p.src)) & set(c.dst):
            n = max(n, 1)
    return n


class Asm:
    def __init__(self):
        self.ins = []
        self.vm = []
        self.lg = []
        self.nops = 0

    def raw(self, text):
        i = Ins(text)
        if i.kind != "label":
            dist = 0
            need = 0
            for p in reversed(self.ins):
                if dist >= 14:
                    break
                k = need_states(p, i) - dist
                need = max(need, k)
                dist += p.states()
            if need > 0:
                self.ins.append(Ins(f"s_nop {need-1}"))
                self.nops += 1
        self.ins.append(i)
        return i

    def e(self, text, tag=None):
        for line in text.strip().split("\n"):
            line = line.strip()
            if not line or line.startswith(";"):
                continue
            i = self.raw(line)
            if i.kind == "vmem":
                self.vm.append(tag)
            elif i.kind == "ds":
                self.lg.append(tag)

    def label(self, name):
        self.ins.append(Ins(name + ":"))

    def comment(self, text):
        pass

    def _count(self, L, tags):
        if isinstance(tags, str):
            tags = [tags]
        last = max((k for k, t in enumerate(L) if t in tags), default=None)
        assert last is not None, f"tag {tags} never issued"
        return len(L) - 1 - last

    def wait(self, vm=None, lg=None):
        parts = []
        if vm is not None:
            n = 0 if vm == 0 else min(63, self._count(self.vm, vm))
            parts.append(f"vmcnt({n})")
        if lg is not None:
            n = 0 if lg == 0 else min(15, self._count(self.lg, lg))
            parts.append(f"lgkmcnt({n})")
        self.raw("s_waitcnt " + " ".join(parts))

    def text(self):
        out = []
        for i in self.ins:
            out.append(i.text if i.kind == "label" else "    " + i.text)
        return "\n".join(out) + "\n"
```

```python
import sys
from emit import Asm

KNAME = "gated_mix__ssm_conv_s4__dense_activation_relu__prompt_kernel"

WS_TF = 0x1000
WS_WF = 0x5000
WS_HF = 0x9000
WS_AF = 0xE000
WS_G = 0x12000
WS_STAMP = 0x20000
WS_UT = 0x100000
WS_W2T = 0x300000
WS_AT = 0x500000
WS_H = 0x700000
WS_SIZE = 0xE00000

L_X = 0
L_W = 65536
TROW = 544
TCH = 63 * TROW
L_TAB = 0
L_KC = 69632
KCP = 4160
L_U = 131072
UP = 4608
L_EX = 0
L_RED = 16384
L_A = 65536
LDS_BYTES = 131072 + 2 * UP

sX, sI, sW, sEP = "s4", "s5", "s6", "s7"
P_U, P_ARE, P_AIM, P_BRE, P_BIM, P_CRE, P_CIM, P_LDT = [f"s[{16+2*i}:{17+2*i}]" for i in range(8)]
P_DSK, P_BX, P_W1, P_W2, P_GW, P_OUT, P_DBG, P_WS = [f"s[{32+2*i}:{33+2*i}]" for i in range(8)]
R_U, R_W1, R_W2, R_OUT, R_WS = "s[48:51]", "s[52:55]", "s[56:59]", "s[60:63]", "s[64:67]"


def v(a, n=1):
    return f"v{a}" if n == 1 else f"v[{a}:{a+n-1}]"


def acc(a, n=1):
    return f"a{a}" if n == 1 else f"a[{a}:{a+n-1}]"


class Gen:
    def __init__(self, stamps=False, opts=None):
        self.a = Asm()
        self.stamps = stamps
        self.nst = 0
        self.o = opts or {}
        self.npoll = 0

    def stamp(self):
        if self.stamps:
            k = self.nst
            assert k < 10
            self.a.e(f"s_memtime s[{80+2*k}:{81+2*k}]")
            self.nst += 1

    def publish(self, soff, lanes=1, voff="v3"):
        a = self.a
        a.e(f"s_mov_b64 exec, {(1 << lanes) - 1}")
        a.e(f"buffer_store_dword v2, {voff}, {R_WS}, {soff} offen sc1", tag="flag")
        a.e("s_mov_b64 exec, -1")

    def poll(self, voff, soff, tmp):
        a = self.a
        n = self.npoll
        self.npoll += 1
        a.e("s_mov_b32 s3, 0")
        a.label(f"L_poll{n}")
        a.e(f"buffer_load_dword {tmp}, {voff}, {R_WS}, {soff} offen sc1", tag="poll")
        a.e("s_add_u32 s3, s3, 1")
        a.wait(vm=0)
        a.e(f"v_cmp_ne_u32 vcc, {sEP}, {tmp}")
        a.e("s_cmp_gt_u32 s3, 3000")
        a.e(f"s_cbranch_scc1 L_pollx{n}")
        a.e(f"s_cbranch_vccz L_pollx{n}")
        a.e("s_sleep 2")
        a.e(f"s_branch L_poll{n}")
        a.label(f"L_pollx{n}")

    def prologue(self):
        a = self.a
        a.e(f"""
        s_cmp_ge_u32 s2, 256
        s_cbranch_scc1 L_end
        """)
        self.stamp()
        a.e(f"""
        s_load_dwordx16 s[16:31], s[0:1], 0
        s_load_dwordx16 s[32:47], s[0:1], 64
        v_and_b32 v1, 63, v0
        v_lshrrev_b32 v4, 6, v0
        s_and_b32 {sX}, s2, 7
        s_lshr_b32 {sI}, s2, 3
        v_readfirstlane_b32 {sW}, v4
        v_mov_b32 v3, 0
        v_lshlrev_b32 v5, 2, v0            ; tid*4
        v_lshlrev_b32 v6, 4, v0            ; tid*16
        v_lshlrev_b32 v7, 4, v1            ; lane*16
        s_mov_b32 s68, 0x05040100
        s_mov_b32 s69, 0x07060302
        s_lshl_b32 s8, {sX}, 5
        s_add_u32 s75, s8, {sI}
        s_lshl_b32 s8, s75, 13
        s_add_u32 s9, s8, 4096
        s_sub_u32 s76, 255, s2             ; phi
        s_lshr_b32 s10, s76, 1
        s_lshl_b32 s10, s10, 14            ; 16*s*1024
        s_and_b32 s11, s76, 1
        s_lshl_b32 s11, s11, 12            ; 4*g*1024
        s_add_u32 s10, s10, s11
        s_add_u32 s11, s10, 8192
        """)
        a.e(f"""
        s_mul_i32 s12, {sI}, 37
        s_lshr_b32 s12, s12, 8
        s_mul_i32 s13, s12, 7
        s_sub_u32 s13, {sI}, s13           ; ct
        s_mov_b32 s77, s12
        s_mov_b32 s78, s13
        s_lshr_b32 s14, {sX}, 1            ; R
        s_lshl_b32 s14, s14, 2
        s_add_u32 s14, s14, s12
        s_lshl_b32 s70, s14, 17
        s_and_b32 s14, {sX}, 1
        s_mul_i32 s14, s14, 7
        s_add_u32 s14, s14, s13
        s_lshl_b32 s71, s14, 8
        s_lshl_b32 s14, s12, 1
        s_add_u32 s72, s14, s13            ; rot
        s_lshl_b32 s73, {sW}, 12           ; wave*4096
        s_add_u32 s74, s73, {L_W}
        """)
        a.e(f"""
        v_lshrrev_b32 v8, 3, v1            ; l>>3
        v_lshl_add_u32 v8, v4, 5, v8       ; 32w + (l>>3)
        v_lshlrev_b32 v8, 10, v8           ; *1024
        v_lshrrev_b32 v9, 4, v1            ; l>>4
        v_and_b32 v10, 7, v1
        v_xor_b32 v10, v10, v9             ; pos ^ (l>>4)
        v_lshl_add_u32 v16, v10, 4, v8
        v_xor_b32 v10, 4, v10
        v_lshl_add_u32 v17, v10, 4, v8
        v_add_u32 v17, {8192-1024}, v17
        v_add_u32 v18, {2*(8192-1024)}, v16
        v_add_u32 v19, {2*(8192-1024)}, v17
        v_lshl_add_u32 v8, v4, 4, v9       ; 16w + (l>>4)
        v_mul_u32_u24 v8, 3584, v8
        v_and_b32 v10, 15, v1
        v_lshlrev_b32 v11, 2, v9
        v_xor_b32 v10, v10, v11
        v_lshl_add_u32 v20, v10, 4, v8
        v_add_u32 v21, {4*3584-1024}, v20
        v_add_u32 v22, {2*(4*3584-1024)}, v20
        v_add_u32 v23, {3*(4*3584-1024)}, v20
        s_waitcnt lgkmcnt(0)
        s_load_dword {sEP}, {P_WS}, 0
        s_mov_b32 s48, s16
        s_mov_b32 s49, s17
        s_mov_b32 s50, {2048*1024}
        s_mov_b32 s51, 0x00020000
        s_mov_b32 s56, s38
        s_mov_b32 s57, s39
        s_mov_b32 s58, {1792*1024}
        s_mov_b32 s59, 0x00020000
        """)
        for tt in range(8):
            a.e(f"buffer_load_dword v{32+tt}, v5, {R_U}, {'s8' if tt < 4 else 's9'} offen offset:{(tt%4)*1024}", tag="T")
        a.e(f"global_load_dword v48, v5, {P_GW}", tag="T")
        for e_ in range(8):
            a.e(f"buffer_load_dword v{40+e_}, v5, {R_W2}, {'s10' if e_ < 4 else 's11'} offen offset:{(e_%4)*1024}", tag="W")
        a.e(f"""
        s_mov_b32 s52, s36
        s_mov_b32 s53, s37
        s_mov_b32 s54, {512*3584}
        s_mov_b32 s55, 0x00020000
        s_mov_b32 s60, s42
        s_mov_b32 s61, s43
        s_mov_b32 s62, {2048*1024}
        s_mov_b32 s63, 0x00020000
        s_mov_b32 s64, s46
        s_mov_b32 s65, s47
        s_mov_b32 s66, {WS_SIZE}
        s_mov_b32 s67, 0x00020000
        """)

    def dma_setup(self, s):
        self.a.e(f"""
        s_add_u32 s14, s72, {s}
        s_and_b32 s14, s14, 7
        s_lshl_b32 s12, s14, 7
        s_add_u32 s12, s12, s70
        s_mul_i32 s13, s14, {64*3584}
        s_add_u32 s13, s13, s71
        """)

    def dma_ops(self, s):
        slot = s % 4
        ops = []
        for i in range(4):
            pre = f"s_add_u32 m0, s73, {L_X + slot*16384}\n" if i == 0 else ""
            ops.append(pre + f"buffer_load_dwordx4 v{16+i}, {R_U}, s12 offen offset:{i*1024} lds")
        for i in range(4):
            pre = f"s_add_u32 m0, s74, {slot*16384}\n" if i == 0 else ""
            ops.append(pre + f"buffer_load_dwordx4 v{20+i}, {R_W1}, s13 offen offset:{i*1024} lds")
        return ops

    def dma_stage(self, s):
        self.dma_setup(s)
        for o in self.dma_ops(s):
            self.a.e(o, tag=f"D{s}")

    def tw_job(self):
        a = self.a
        a.wait(vm="T")
        for h in range(2):
            for k in range(4):
                a.e(f"v_perm_b32 v{52+4*h+k}, v{33+2*k}, v{32+2*k}, s{68+h}")
        a.e(f"""
        s_lshl_b32 s8, s75, 13
        s_add_u32 s8, s8, {WS_UT}
        s_add_u32 s9, s8, 4096
        """)
        a.e(f"buffer_store_dwordx4 v[52:55], v6, {R_WS}, s8 offen sc1", tag="TWst")
        a.e(f"buffer_store_dwordx4 v[56:59], v6, {R_WS}, s9 offen sc1", tag="TWst")
        for tt in range(8):
            a.e(f"v_dot2_f32_bf16 v{68+tt}, v{32+tt}, v48, 0")
        a.wait(vm="W")
        for h in range(2):
            for k in range(4):
                a.e(f"v_perm_b32 v{60+4*h+k}, v{41+2*k}, v{40+2*k}, s{68+h}")
        a.e(f"""
        s_lshl_b32 s8, s76, 13
        s_add_u32 s8, s8, {WS_W2T}
        s_cmp_ge_u32 s76, 224
        s_cselect_b32 s8, {WS_SIZE}, s8
        s_add_u32 s9, s8, 4096
        """)
        a.e(f"buffer_store_dwordx4 v[60:63], v6, {R_WS}, s8 offen sc1", tag="TWst")
        a.e(f"buffer_store_dwordx4 v[64:67], v6, {R_WS}, s9 offen sc1", tag="TWst")
        for p, q in ((0, 2), (1, 3), (4, 6), (5, 7)):
            a.e(f"v_permlane32_swap_b32 v{68+p}, v{68+q}")
        for p, q in ((0, 2), (1, 3), (4, 6), (5, 7)):
            a.e(f"v_add_f32 v{68+p}, v{68+p}, v{68+q}")
        a.e("v_permlane16_swap_b32 v68, v69")
        a.e("v_permlane16_swap_b32 v72, v73")
        a.e("v_add_f32 v68, v68, v69")
        a.e("v_add_f32 v72, v72, v73")
        for r in (8, 4, 2, 1):
            a.e(f"v_add_f32_dpp v68, v68, v68 row_ror:{r} row_mask:0xf bank_mask:0xf")
            a.e(f"v_add_f32_dpp v72, v72, v72 row_ror:{r} row_mask:0xf bank_mask:0xf")
        a.e(f"""
        v_and_b32 v8, 1, v1
        v_cmp_eq_u32 vcc, 1, v8
        v_lshrrev_b32 v9, 4, v1
        v_lshlrev_b32 v9, 2, v9
        v_lshl_add_u32 v9, v8, 4, v9
        v_cndmask_b32 v68, v68, v72, vcc
        s_lshl_b32 s8, s75, 7
        s_lshl_b32 s9, {sW}, 5
        s_add_u32 s8, s8, s9
        s_add_u32 s8, s8, {WS_G}
        s_mov_b32 exec_lo, 0x00030003
        s_mov_b32 exec_hi, 0x00030003
        """)
        a.e(f"buffer_store_dword v68, v9, {R_WS}, s8 offen sc1", tag="TWst")
        a.e("s_mov_b64 exec, -1")

    def epoch_ready(self):
        a = self.a
        a.e(f"""
        s_waitcnt lgkmcnt(0)
        s_mul_i32 {sEP}, {sEP}, 1664525
        s_add_u32 {sEP}, {sEP}, 1013904223
        v_mov_b32 v2, {sEP}
        """)

    def publish_tw(self):
        a = self.a
        a.e(f"""
        s_lshl_b32 s8, s75, 4
        s_lshl_b32 s9, s76, 4
        s_add_u32 s9, s9, {WS_WF - WS_TF}
        s_sub_u32 s9, s9, s8
        v_mul_lo_u32 v8, s9, v1
        s_add_u32 s8, s8, s73
        s_add_u32 s8, s8, {WS_TF}
        v_add_u32 v8, s8, v8
        """)
        self.publish("0", lanes=2, voff="v8")

    def params_load(self):
        a = self.a
        a.e(f"""
        s_lshl_b32 s8, s75, 1
        s_lshr_b32 s9, {sW}, 1
        s_add_u32 s8, s8, s9               ; pi
        s_and_b32 s9, s8, 255
        s_lshl_b32 s9, s9, 1
        s_lshr_b32 s8, s8, 8
        s_add_u32 s79, s9, s8              ; d
        s_and_b32 s9, {sW}, 1
        s_lshl_b32 s9, s9, 7
        s_lshl_b32 s8, s79, 8
        s_add_u32 s8, s8, s9
        v_lshl_add_u32 v8, v1, 1, s8       ; d*256 + (64*(w&1)+l)*2
        s_lshl_b32 s8, s79, 1
        v_mov_b32 v9, s8
        """)
        for k in range(8):
            a.e(f"v_mov_b32 v{176+k}, 0")
        for k, p in enumerate((P_ARE, P_AIM, P_BRE, P_BIM, P_CRE, P_CIM)):
            a.e(f"global_load_short_d16_hi v{176+k}, v8, {p}", tag="P")
        a.e(f"global_load_short_d16_hi v182, v9, {P_LDT}", tag="P")
        a.e(f"global_load_short_d16_hi v183, v9, {P_DSK}", tag="P")

    def g1(self):
        a = self.a
        a.e(f"""
        v_and_b32 v8, 31, v1               ; t
        v_lshrrev_b32 v9, 5, v1            ; g
        v_lshrrev_b32 v10, 1, v8
        v_and_b32 v10, 7, v10
        v_xor_b32 v10, v10, v9             ; g ^ f
        s_lshr_b32 s8, {sW}, 1
        s_lshl_b32 s8, s8, 13              ; wm*64*128
        v_lshl_add_u32 v8, v8, 7, s8
        v_lshl_add_u32 v24, v10, 4, v8
        v_xor_b32 v25, 32, v24
        v_xor_b32 v26, 64, v24
        v_xor_b32 v27, 96, v24
        v_lshrrev_b32 v8, 2, v1
        v_and_b32 v8, 3, v8                ; r
        v_lshl_add_u32 v10, v9, 3, v8      ; 8*(G>>1) + r
        v_lshlrev_b32 v10, 8, v10          ; *256
        s_and_b32 s8, {sW}, 1
        s_lshl_b32 s8, s8, 1
        v_xor_b32 v8, s8, v8               ; (2wn) ^ r
        v_lshl_add_u32 v10, v8, 6, v10
        v_bfe_u32 v8, v1, 4, 1
        v_lshl_add_u32 v10, v8, 5, v10
        v_and_b32 v8, 3, v1
        v_lshl_add_u32 v10, v8, 3, v10
        v_add_u32 v28, {L_W}, v10
        v_xor_b32 v29, 64, v28
        """)

        def reads(kap):
            s, ks = divmod(kap, 4)
            slot = s % 4
            b = 80 + 16 * (kap % 2)
            L = []
            for fb in range(2):
                for hh in range(2):
                    L.append(f"ds_read_b64_tr_b16 {v(b+8+4*fb+2*hh,2)}, v{28+fb} offset:{slot*16384+ks*4096+hh*1024}")
                L.append(f"ds_read_b128 {v(b+4*fb,4)}, v{24+ks} offset:{slot*16384+fb*4096}")
            return L

        def mf(kap, fb, tb):
            b = 80 + 16 * (kap % 2)
            d = 112 + 16 * (2 * fb + tb)
            c = "0" if kap == 0 else v(d, 16)
            return f"v_mfma_f32_32x32x16_bf16 {v(d,16)}, {v(b+8+4*fb,4)}, {v(b+4*tb,4)}, {c}"

        a.wait(vm="D0")
        a.e("s_barrier")
        self.stamp()
        for r in reads(0):
            a.e(r, tag="R0")
        pend = []
        for kap in range(32):
            s, ks = divmod(kap, 4)
            nxt = []
            if kap + 1 < 32:
                if ks == 3:
                    a.wait(vm=f"D{s+1}", lg=0)
                    a.e("s_barrier")
                    if s == 1:
                        self.publish_tw()
                    if s + 4 < 8:
                        self.dma_setup(s + 4)
                        pend = [(o, f"D{s+4}") for o in self.dma_ops(s + 4)]
                    if s == 4:
                        self.params_load()
                nxt = reads(kap + 1)
            if ks != 3 or kap == 31:
                a.wait(lg=f"R{kap}")
            ms = [mf(kap, 0, 0), mf(kap, 0, 1), mf(kap, 1, 0), mf(kap, 1, 1)]
            per = [2, 2, 2, 0]
            for i, m in enumerate(ms):
                a.e(m)
                for _ in range(per[i]):
                    if nxt:
                        a.e(nxt.pop(0), tag=f"R{kap+1}")
                if i >= 2 and pend:
                    o, t = pend.pop(0)
                    a.e(o, tag=t)
        assert not pend
        self.stamp()
        a.e(f"""
        s_lshl_b32 s8, {sX}, 4
        s_lshl_b32 s9, s77, 2
        s_add_u32 s8, s8, s9
        s_and_b32 s9, {sW}, 2
        s_add_u32 s8, s8, s9
        s_mul_i32 s8, s8, 56
        s_lshl_b32 s9, s78, 3
        s_add_u32 s8, s8, s9
        s_and_b32 s9, {sW}, 1
        s_lshl_b32 s9, s9, 2
        s_add_u32 s8, s8, s9
        s_lshl_b32 s8, s8, 10
        s_add_u32 s8, s8, {WS_H}
        s_add_u32 s9, s8, {56*1024}
        """)
        k = 0
        for fb in range(2):
            for tb in range(2):
                d = 112 + 16 * (2 * fb + tb)
                for half in range(2):
                    t = 184 + 4 * k
                    k += 1
                    for j in range(4):
                        a.e(f"v_cvt_pk_bf16_f32 v{t+j}, v{d+8*half+2*j}, v{d+8*half+2*j+1}")
                    for j in range(4):
                        a.e(f"v_pk_max_i16 v{t+j}, v{t+j}, 0")
                    a.e(f"buffer_store_dwordx4 {v(t,4)}, v7, {R_WS}, {'s8' if tb == 0 else 's9'} offen offset:{(2*fb+half)*1024} sc1", tag="Hst")

    def publish_h(self):
        a = self.a
        a.e(f"""
        s_lshr_b32 s8, {sX}, 1
        s_lshl_b32 s8, s8, 2
        s_add_u32 s8, s8, s77
        s_lshl_b32 s8, s8, 1
        s_lshr_b32 s9, {sW}, 1
        s_add_u32 s8, s8, s9
        s_lshl_b32 s8, s8, 1
        s_and_b32 s9, {sX}, 1
        s_add_u32 s8, s8, s9
        s_lshl_b32 s8, s8, 8               ; *2 groups*128B
        s_lshl_b32 s9, s78, 1
        s_and_b32 s10, {sW}, 1
        s_add_u32 s9, s9, s10              ; 2ct+wn
        s_cmp_ge_u32 s9, 7
        s_cselect_b32 s10, {128-7*16}, 0
        s_lshl_b32 s9, s9, 4
        s_add_u32 s8, s8, s9
        s_add_u32 s8, s8, s10
        s_add_u32 s8, s8, {WS_HF}
        s_cmp_ge_u32 {sI}, 28
        s_cselect_b32 s8, {WS_SIZE}, s8
        """)
        self.publish("s8")

    def poll_tw(self):
        a = self.a
        a.e(f"""
        s_and_b32 s8, {sX}, 3
        s_lshl_b32 s8, s8, 12
        s_add_u32 s8, s8, {WS_TF}
        """)
        self.poll("v6", "s8", "v8")
        a.e(f"""
        s_and_b32 s8, {sI}, 7
        s_lshr_b32 s8, s8, 1
        s_lshl_b32 s8, s8, 12
        s_mul_i32 s9, {sW}, {56*16}
        s_add_u32 s8, s8, s9
        s_add_u32 s8, s8, {WS_WF}
        v_min_u32 v9, 55, v1
        v_lshlrev_b32 v9, 4, v9
        """)
        self.poll("v9", "s8", "v8")

    def ut_gather(self):
        a = self.a
        a.e(f"""
        v_lshrrev_b32 v8, 1, v1
        v_lshlrev_b32 v8, 13, v8
        v_and_b32 v9, 1, v1
        v_lshl_add_u32 v8, v9, 4, v8
        s_lshl_b32 s8, {sW}, 19            ; 64w*8192
        s_lshl_b32 s9, s75, 5
        s_add_u32 s8, s8, s9
        s_add_u32 s8, s8, {WS_UT}
        s_add_u32 s9, s8, {32*8192}
        """)
        a.e(f"buffer_load_dwordx4 v[216:219], v8, {R_WS}, s8 offen sc1", tag="UG")
        a.e(f"buffer_load_dwordx4 v[220:223], v8, {R_WS}, s9 offen sc1", tag="UG")

    def g2_setup(self):
        a = self.a
        a.e(f"""
        v_lshrrev_b32 v8, 5, v1
        v_and_b32 v9, 31, v1
        v_lshlrev_b32 v9, 4, v9
        v_lshl_add_u32 v10, v8, 13, v9
        v_add_u32 v11, 4096, v10
        s_and_b32 s8, {sI}, 7              ; n
        s_lshr_b32 s9, {sI}, 3             ; m
        s_mul_i32 s70, {sW}, {28*16384}
        s_lshl_b32 s10, s8, 9
        s_add_u32 s70, s70, s10
        s_add_u32 s70, s70, {WS_W2T}
        s_mul_i32 s10, s8, 7
        s_lshr_b32 s10, s10, 1
        s_mul_i32 s11, s9, 7
        s_add_u32 s10, s10, s11
        s_cmp_ge_u32 s10, 28
        s_cselect_b32 s11, 28, 0
        s_sub_u32 s72, s10, s11
        s_and_b32 s10, {sX}, 6
        s_lshr_b32 s11, {sW}, 1
        s_add_u32 s10, s10, s11
        s_lshl_b32 s10, s10, 4
        s_and_b32 s11, {sX}, 1
        s_lshl_b32 s11, s11, 3
        s_add_u32 s10, s10, s11
        s_lshl_b32 s11, s9, 1
        s_add_u32 s10, s10, s11            ; + 8(x&1) + 2m
        s_mul_i32 s10, s10, 56
        s_and_b32 s11, {sW}, 1
        s_mul_i32 s12, s11, 28
        s_add_u32 s10, s10, s12
        s_lshl_b32 s10, s10, 10
        s_add_u32 s71, s10, {WS_H}
        s_lshl_b32 s11, s11, 8
        v_xor_b32 v8, s11, v7              ; (l ^ 16(w&1))*16
        s_lshr_b32 s11, {sW}, 1
        s_mul_i32 s12, s11, {56*1024}
        v_add_u32 v12, s12, v8
        s_sub_u32 s12, {56*1024}, s12
        v_add_u32 v13, s12, v8
        s_mov_b32 s14, s72
        s_mov_b32 s15, s72
        """)

    def b_load(self, i):
        o0 = f"""
        s_lshl_b32 s3, s14, 14
        s_add_u32 s3, s3, s70
        buffer_load_dwordx4 {acc(8*i,4)}, v10, {R_WS}, s3 offen sc1
        """
        o1 = f"""
        s_lshl_b32 s3, s14, 14
        s_add_u32 s3, s3, s70
        buffer_load_dwordx4 {acc(8*i+4,4)}, v11, {R_WS}, s3 offen sc1
        s_add_u32 s14, s14, 1
        s_cmp_eq_u32 s14, 28
        s_cselect_b32 s14, 0, s14
        """
        return [o0, o1]

    def kgen(self, fill):
        a = self.a
        E = lambda k: 32 + 2 * (k - 1)
        F = lambda c: 64 + 2 * (c - 1)
        cnt = [0]

        def sprinkle():
            cnt[0] += 1
            if fill and cnt[0] % self.o.get("kfill", 3) == 0:
                c, t = fill.pop(0)
                a.e(c, tag=t)

        a.wait(vm="P")
        a.e(f"""
        v_mul_f32 v82, 0x3fb8aa3b, v182
        v_exp_f32 v82, v82
        s_lshr_b32 s8, {sW}, 1
        s_mul_i32 s8, s8, {TCH}
        s_and_b32 s9, {sW}, 1
        s_lshl_b32 s9, s9, 8
        s_add_u32 s8, s8, s9
        s_add_u32 m0, s8, {L_TAB}
        v_cvt_pk_bf16_f32 v82, v82, v82
        v_and_b32 v82, 0xffff0000, v82
        v_mul_f32 v83, v82, v176           ; zr
        v_mul_f32 v84, v82, v177           ; zi
        v_mul_f32 v83, 0x3fb8aa3b, v83     ; a2
        v_mul_f32 v84, 0.15915494, v84     ; revolutions
        v_pk_mul_f32 v[86:87], v[180:181], v[178:179] op_sel_hi:[1,0]
        v_pk_fma_f32 v[86:87], v[180:181], v[178:179], v[86:87] op_sel:[1,1,0] op_sel_hi:[0,1,1] neg_lo:[1,0,0]
        v_pk_mul_f32 v[78:79], v[86:87], v[82:83] op_sel_hi:[1,0]
        """)
        for dst, sc in ((E(1), None), (E(16), "0x41800000"), (F(1), "0x43800000")):
            if sc is None:
                a.e("v_exp_f32 v88, v83\nv_fract_f32 v89, v84")
            else:
                a.e(f"v_mul_f32 v88, {sc}, v83\nv_mul_f32 v89, {sc}, v84\nv_exp_f32 v88, v88\nv_fract_f32 v89, v89")
            a.e(f"""
            v_cos_f32 v{dst}, v89
            v_sin_f32 v{dst+1}, v89
            v_pk_mul_f32 {v(dst,2)}, {v(dst,2)}, v[88:89] op_sel_hi:[1,0]
            """)
        YB = {0: 16, 1: 32, 2: 41, 3: 46, 4: 51, 5: 54, 6: 57, 7: 60}
        jobs = []
        src = {2: (1, 1), 3: (2, 1), 4: (2, 2), 5: (4, 1), 6: (4, 2), 7: (4, 3), 8: (4, 4)}
        for k in range(9, 16):
            src[k] = (8, k - 8)
        ej = [(E(k), E(src[k][0]), E(src[k][1]), YB[0] + k, False) for k in range(2, 16)]
        fsrc = {2: (1, 1), 3: (2, 1), 4: (2, 2), 5: (4, 1), 6: (4, 2), 7: (4, 3)}
        fj = [(F(c), F(fsrc[c][0]), F(fsrc[c][1]), YB[c], False) for c in range(2, 8)]
        xj = [(78 + 2 * (k % 2), 78 + 2 * ((k - 1) % 2), E(16), k, True) for k in range(1, 16)]
        pj = []
        tmp = [90, 92, 94, 104]
        ti = 0
        for c in range(1, 8):
            step = {1: 2, 2: 4, 3: 4}.get(c, 8)
            for n_, rho in enumerate(range(step, 17, step)):
                pj.append((tmp[ti % 4], F(c), E(rho), YB[c] + 1 + n_, False))
                ti += 1
        others = []
        q1, q2 = list(ej), list(fj)
        while q1 or q2:
            if q1:
                others.append(q1.pop(0))
            if q2:
                others.append(q2.pop(0))
        others += pj
        order = []
        xs = list(xj)
        while others or xs:
            grp = []
            if xs:
                grp.append(xs.pop(0))
            while others and len(grp) < 3:
                j = others[0]
                if any(g[0] in (j[1], j[2]) or g[0] == j[0] for g in grp):
                    break
                grp.append(others.pop(0))
            order.append(grp)
        cv = [0]

        def put(reg, row, neg):
            t = 96 + (cv[0] % 8)
            cv[0] += 1
            a.e(f"v_cvt_pk_bf16_f32 v{t}, v{reg}, {'-' if neg else ''}v{reg+1}")
            a.e(f"ds_write_addtid_b32 v{t} offset:{row*TROW}", tag="TB")
            sprinkle()

        a.e("v_mov_b32 v103, 0x3f80")
        a.e(f"ds_write_addtid_b32 v103 offset:{YB[0]*TROW}", tag="TB")
        put(78, 0, True)
        put(E(1), YB[0] + 1, False)
        put(F(1), YB[1], False)
        for grp in order:
            for (d, x, y, row, neg) in grp:
                a.e(f"v_pk_mul_f32 {v(d,2)}, {v(x,2)}, {v(y,2)} op_sel_hi:[1,0]")
            for (d, x, y, row, neg) in grp:
                a.e(f"v_pk_fma_f32 {v(d,2)}, {v(x,2)}, {v(y,2)}, {v(d,2)} op_sel:[1,1,0] op_sel_hi:[0,1,1] neg_lo:[1,0,0]")
            for (d, x, y, row, neg) in grp:
                put(d, row, neg)

    def kmfma(self, fill):
        a = self.a
        a.e(f"""
        s_lshr_b32 s8, {sW}, 1
        s_mul_i32 s8, s8, {TCH}
        s_add_u32 s8, s8, {L_TAB}
        v_and_b32 v8, 15, v1
        v_lshrrev_b32 v9, 4, v1
        v_lshl_add_u32 v9, v9, 4, s8       ; base + g*16
        s_movk_i32 s9, {TROW}
        v_mad_u32_u24 v16, v8, s9, v9
        v_sub_u32 v8, 15, v8
        v_cvt_f32_u32 v8, v8               ; b
        s_mov_b32 s13, 0x3e000000
        s_and_b32 s10, {sW}, 1
        s_cmp_eq_u32 s10, 0
        """)
        YB = {0: 16, 1: 32, 2: 41, 3: 46, 4: 51, 5: 54, 6: 57, 7: 60}
        sc = {0: "1.0", 1: "0.5", 2: "0x3e800000", 3: "0x3e800000"}
        for c in range(4):
            a.e(f"""
            s_cselect_b32 s11, {sc[c]}, s13
            s_cselect_b32 s12, {YB[c]}, {YB[c+4]}
            v_mul_f32 v21, s11, v8
            v_rndne_f32 v21, v21
            v_cvt_u32_f32 v21, v21
            v_add_u32 v21, s12, v21
            v_mad_u32_u24 v{17+c}, v21, s9, v9
            """)
        a.e(f"""
        s_cselect_b32 s11, 48, 64
        v_cmp_eq_u32 vcc, s11, v1
        v_mov_b32 v128, 0
        v_mov_b32 v129, 0
        v_mov_b32 v130, 0
        v_cndmask_b32 v131, 0, v183, vcc
        """)
        a.e(f"""
        v_mov_b32 v144, 0
        v_mov_b32 v145, 0
        v_mov_b32 v146, 0
        v_mov_b32 v147, 0
        v_lshrrev_b32 v21, 2, v0
        s_movk_i32 s11, {KCP}
        v_and_b32 v22, 3, v0
        v_lshlrev_b32 v22, 4, v22
        v_mad_u32_u24 v21, v21, s11, v22
        v_add_u32 v21, {L_KC+4096}, v21
        v_subrev_u32 v22, 64, v0           ; tid-64
        v_lshrrev_b32 v23, 5, v22          ; channel
        v_and_b32 v22, 31, v22
        v_min_u32 v22, 29, v22
        v_lshlrev_b32 v22, 4, v22
        s_movk_i32 s11, {UP}
        v_mad_u32_u24 v22, v23, s11, v22
        v_add_u32 v22, {L_U}, v22
        v_cmp_gt_u32 vcc, 64, v0
        v_cndmask_b32 v21, v22, v21, vcc
        s_cmp_eq_u32 {sW}, 0
        s_cselect_b32 exec_hi, 0, -1
        s_cmp_ge_u32 {sW}, 2
        s_cbranch_scc1 L_nozero
        """)
        a.e("ds_write_b128 v21, v[144:147]", tag="Z")
        a.label("L_nozero")
        a.e("s_mov_b64 exec, -1")
        a.wait(lg=0)
        a.e("s_barrier")
        self.stamp()
        for ks in range(8):
            a.e(f"ds_read_b128 {v(32+4*ks,4)}, v16 offset:{64*ks}", tag=f"KX{ks}")
        seq = [(ks, c) for ks in range(8) for c in range(4)]
        DEPTH = 8
        for n_ in range(DEPTH):
            ks, c = seq[n_]
            a.e(f"ds_read_b128 {v(64+4*(n_%16),4)}, v{17+c} offset:{64*ks}", tag=f"KY{n_}")
        for n_, (ks, c) in enumerate(seq):
            if n_ + DEPTH < 32:
                k2, c2 = seq[n_ + DEPTH]
                a.e(f"ds_read_b128 {v(64+4*((n_+DEPTH)%16),4)}, v{17+c2} offset:{64*k2}", tag=f"KY{n_+DEPTH}")
            a.wait(lg=f"KY{n_}")
            d = 128 + 4 * c
            cc = "0" if (ks == 0 and c != 0) else v(d, 4)
            a.e(f"v_mfma_f32_16x16x32_bf16 {v(d,4)}, {v(64+4*(n_%16),4)}, {v(32+4*ks,4)}, {cc}")
            if fill and n_ % 4 == 3:
                c_, t_ = fill.pop(0)
                a.e(c_, tag=t_)
        a.e(f"""
        s_lshr_b32 s8, {sW}, 1
        s_mul_i32 s8, s8, {4*KCP}
        s_and_b32 s9, {sW}, 1
        s_lshl_b32 s9, s9, 11
        s_sub_u32 s8, s8, s9
        s_add_u32 s8, s8, {L_KC + 2*2032 - 3*512}
        v_and_b32 v8, 15, v1
        v_lshlrev_b32 v8, 5, v8
        v_sub_u32 v8, s8, v8
        v_lshrrev_b32 v9, 4, v1
        v_lshl_add_u32 v8, v9, 3, v8
        """)
        for c in range(4):
            a.e(f"v_cvt_pk_bf16_f32 v{148+2*c}, v{128+4*c}, v{129+4*c}")
            a.e(f"v_cvt_pk_bf16_f32 v{149+2*c}, v{130+4*c}, v{131+4*c}")
            a.e(f"ds_write_b64 v8, {v(148+2*c,2)} offset:{(3-c)*512}", tag="K0")

    def restage(self):
        a = self.a
        a.e(f"""
        v_and_b32 v8, 1, v1
        s_movk_i32 s8, {UP}
        v_lshrrev_b32 v9, 1, v1
        v_lshlrev_b32 v9, 4, v9
        v_mad_u32_u24 v8, v8, s8, v9
        s_lshl_b32 s8, {sW}, 10
        s_add_u32 s8, s8, {L_U + 480}
        v_add_u32 v8, s8, v8
        """)
        a.wait(vm="UG")
        a.e("ds_write_b128 v8, v[216:219]", tag="UW")
        a.e("ds_write_b128 v8, v[220:223] offset:512", tag="UW")
        a.e(f"""
        s_lshr_b32 s8, {sW}, 1
        s_mul_i32 s8, s8, {4*KCP}
        s_and_b32 s9, {sW}, 1
        s_lshl_b32 s9, s9, 11
        s_add_u32 s8, s8, s9
        s_add_u32 s8, s8, {L_KC}
        v_add_u32 v8, s8, v7
        """)
        a.wait(lg=0)
        a.e("s_barrier")
        for rd in range(2):
            b = 32 + 8 * rd
            a.e(f"ds_read_b128 {v(b,4)}, v8 offset:{1024*rd}", tag=f"S{rd}")
            a.e(f"ds_read_b64 {v(b+4,2)}, v8 offset:{1024*rd+16}", tag=f"S{rd}")
        for rd in range(2):
            b = 32 + 8 * rd
            o = 48 + 12 * rd
            a.wait(lg=f"S{rd}")
            for k in range(4):
                a.e(f"v_alignbit_b32 v{o+k}, v{b+k+1}, v{b+k}, 16")
            a.e(f"ds_write_b128 v8, {v(o,4)} offset:{1024*rd+KCP}", tag="SW")
            for k in range(4):
                a.e(f"v_mov_b32 v{o+4+k}, v{b+k+1}")
            a.e(f"ds_write_b128 v8, {v(o+4,4)} offset:{1024*rd+2*KCP}", tag="SW")
            for k in range(4):
                a.e(f"v_alignbit_b32 v{o+8+k}, v{b+k+2}, v{b+k+1}, 16")
            a.e(f"ds_write_b128 v8, {v(o+8,4)} offset:{1024*rd+3*KCP}", tag="SW")
        a.e(f"""
        v_and_b32 v8, 15, v1               ; i / j
        v_lshrrev_b32 v9, 4, v1            ; g
        v_sub_u32 v14, 15, v8              ; 15-i
        v_and_b32 v15, 3, v14              ; sigma = (3-i)&3
        v_and_b32 v14, 12, v14             ; (15-i) - sigma
        v_lshl_add_u32 v14, v9, 3, v14     ; + 8g
        v_lshlrev_b32 v14, 1, v14
        s_movk_i32 s8, {KCP}
        v_mad_u32_u24 v14, v15, s8, v14
        s_lshr_b32 s8, {sW}, 1
        s_mul_i32 s9, s8, {4*KCP}
        s_and_b32 s10, {sW}, 1
        s_xor_b32 s10, s10, 1
        s_lshl_b32 s10, s10, 8             ; hw=0 (q0 0..3) -> +256 B
        s_add_u32 s9, s9, s10
        s_add_u32 s9, s9, {L_KC}
        v_add_u32 v16, s9, v14
        v_lshlrev_b32 v8, 5, v8
        v_lshl_add_u32 v8, v9, 4, v8
        s_mul_i32 s9, s8, {UP}
        s_add_u32 s9, s9, s10
        s_add_u32 s9, s9, {L_U}
        v_add_u32 v17, s9, v8
        """)
        a.wait(lg=0)
        a.e("s_barrier")

    def conv(self, fill, mid=None):
        a = self.a

        def reads(st):
            A0 = 32 + 64 * (st % 2)
            B0 = 64 + 64 * (st % 2)
            L = []
            for k in range(8):
                offA = 512 * (7 - k) + 64 * (3 - st)
                offB = 512 * k + 64 * (3 - st)
                L.append((f"ds_read_b64 {v(A0+4*k,2)}, v16 offset:{offA}", f"C{st}_{k}"))
                L.append((f"ds_read_b64 {v(A0+4*k+2,2)}, v16 offset:{offA+8}", f"C{st}_{k}"))
                L.append((f"ds_read_b128 {v(B0+4*k,4)}, v17 offset:{offB}", f"C{st}_{k}"))
            return L

        first = set()
        for c_, t_ in reads(0):
            a.e(c_, tag=t_)
        for st in range(4):
            A0 = 32 + 64 * (st % 2)
            B0 = 64 + 64 * (st % 2)
            nxt = reads(st + 1) if st < 3 else []
            pairs = sorted([(q1, m) for q1 in range(8) for m in range(8) if q1 + m <= 7], key=lambda p: (max(p), p[0] + p[1]))
            have = -1
            for n_, (q1, m) in enumerate(pairs):
                if max(q1, m) > have:
                    have = max(q1, m)
                    a.wait(lg=f"C{st}_{have}")
                c = q1 + m
                d = 160 + 4 * c
                cc = v(d, 4) if c in first else "0"
                first.add(c)
                a.e(f"v_mfma_f32_16x16x32_bf16 {v(d,4)}, {v(A0+4*q1,4)}, {v(B0+4*m,4)}, {cc}")
                if nxt and n_ >= 8:
                    c_, t_ = nxt.pop(0)
                    a.e(c_, tag=t_)
                if fill and n_ % self.o.get("cfill", 4) == 1:
                    c_, t_ = fill.pop(0)
                    a.e(c_, tag=t_)
            assert not nxt
            if mid and st in mid:
                mid[st]()
        while fill:
            c_, t_ = fill.pop(0)
            a.e(c_, tag=t_)

    def conv_out(self):
        a = self.a
        a.e(f"""
        s_xor_b32 s8, {sW}, 1
        s_lshl_b32 s8, s8, 12
        v_add_u32 v8, s8, v7
        v_add_u32 v9, s73, v7
        s_and_b32 s8, {sW}, 1
        s_cmp_eq_u32 s8, 0
        s_nop 7
        s_cbranch_scc0 L_hw1
        """)
        for k in range(4):
            a.e(f"ds_write_b128 v8, {v(176+4*k,4)} offset:{L_EX+1024*k}", tag="EX")
        a.e("s_branch L_hwj")
        a.label("L_hw1")
        for k in range(4):
            a.e(f"ds_write_b128 v8, {v(160+4*k,4)} offset:{L_EX+1024*k}", tag="EX")
        a.wait(lg=0)
        for k in range(16):
            a.e(f"v_mov_b32 v{160+k}, v{176+k}")
        a.label("L_hwj")
        a.wait(lg=0)
        a.e("s_barrier")
        for k in range(4):
            a.e(f"ds_read_b128 {v(176+4*k,4)}, v9 offset:{L_EX+1024*k}", tag=f"EY{k}")
        a.e(f"""
        s_lshl_b32 s8, s79, 12
        s_and_b32 s9, {sW}, 1
        s_lshl_b32 s9, s9, 11
        s_add_u32 s8, s8, s9
        s_add_u32 s8, s8, {WS_AT}
        """)
        for cp in range(2):
            for cl in range(2):
                k = 2 * cp + cl
                a.wait(lg=f"EY{k}")
                a.e(f"v_pk_add_f32 {v(160+4*k,2)}, {v(160+4*k,2)}, {v(176+4*k,2)}")
                a.e(f"v_pk_add_f32 {v(162+4*k,2)}, {v(162+4*k,2)}, {v(178+4*k,2)}")
                a.e(f"v_cvt_pk_bf16_f32 v{20+4*cp+2*cl}, v{160+4*k}, v{161+4*k}")
                a.e(f"v_cvt_pk_bf16_f32 v{21+4*cp+2*cl}, v{162+4*k}, v{163+4*k}")
            a.e(f"v_permlane16_swap_b32 v{20+4*cp}, v{22+4*cp}")
            a.e(f"v_permlane16_swap_b32 v{21+4*cp}, v{23+4*cp}")
            a.e(f"buffer_store_dwordx4 {v(20+4*cp,4)}, v7, {R_WS}, s8 offen offset:{1024*cp} sc1", tag="Ast")

    def publish_a(self):
        a = self.a
        a.e(f"""
        s_and_b32 s8, {sW}, 1
        s_lshl_b32 s8, s8, 13
        s_lshl_b32 s9, s79, 4
        s_add_u32 s8, s8, s9
        s_add_u32 s8, s8, {WS_AF}
        """)
        self.publish("s8")

    def poll_h(self):
        a = self.a
        a.e(f"""
        s_lshl_b32 s8, {sX}, 2
        s_lshr_b32 s9, {sI}, 3
        s_add_u32 s8, s8, s9
        s_lshl_b32 s8, s8, 2
        s_add_u32 s8, s8, {sW}
        s_lshl_b32 s8, s8, 7
        s_add_u32 s8, s8, {WS_HF}
        v_min_u32 v9, 6, v1
        v_lshlrev_b32 v9, 4, v9
        """)
        self.poll("v9", "s8", "v8")

    def a_load(self, i, ring):
        r = 32 + 8 * (i % ring)
        return [f"""
        s_lshl_b32 s3, s15, 10
        s_add_u32 s3, s3, s71
        buffer_load_dwordx4 {v(r,4)}, v12, {R_WS}, s3 offen sc1
        buffer_load_dwordx4 {v(r+4,4)}, v13, {R_WS}, s3 offen sc1
        s_add_u32 s15, s15, 1
        s_cmp_eq_u32 s15, 28
        s_cselect_b32 s15, 0, s15
        """]

    def g2(self):
        a = self.a
        RING = 16
        PRE = self.o.get("g2pre", 6)
        for i in range(PRE):
            a.e(self.a_load(i, RING)[0], tag=f"A{i}")
        for i in range(28):
            if i + PRE < 28:
                a.e(self.a_load(i + PRE, RING)[0], tag=f"A{i+PRE}")
            a.wait(vm=f"A{i}")
            if i == 0:
                self.publish_a()
                self.stamp()
            r = 32 + 8 * (i % RING)
            for rb in range(2):
                for par in range(2):
                    d = 192 + 16 * (2 * rb + par)
                    c = "0" if i == 0 else v(d, 16)
                    a.e(f"v_mfma_f32_32x32x16_bf16 {v(d,16)}, {v(r+4*rb,4)}, {acc(8*i+4*par,4)}, {c}")

    def final(self):
        a = self.a
        self.stamp()
        for lam in range(1, 4):
            a.e(f"""
            s_xor_b32 s8, {sW}, {lam}
            s_mul_i32 s8, s8, {3*4096}
            v_add_u32 v{13+lam}, s8, v7
            """)
        for lam in range(1, 4):
            rb, hf = lam >> 1, lam & 1
            for par in range(2):
                for q in range(2):
                    d = 192 + 16 * (2 * rb + par) + 8 * hf + 4 * q
                    a.e(f"ds_write_b128 v{13+lam}, {v(d,4)} offset:{L_RED+(lam-1)*4096+(2*par+q)*1024}", tag="RW")
        a.e(f"""
        s_lshr_b32 s9, {sI}, 3             ; m
        s_lshl_b32 s10, {sX}, 5
        s_lshl_b32 s11, s9, 3
        s_add_u32 s10, s10, s11
        s_lshl_b32 s11, {sW}, 1
        s_add_u32 s10, s10, s11
        s_lshl_b32 s8, s10, 4
        s_add_u32 s8, s8, {WS_TF}
        v_and_b32 v8, 1, v1
        v_bfe_u32 v9, v1, 1, 2
        v_lshlrev_b32 v9, 12, v9
        v_lshl_add_u32 v9, v8, 4, v9
        """)
        self.poll("v9", "s8", "v8")
        a.e(f"""
        s_lshl_b32 s8, s10, 7
        s_add_u32 s8, s8, {WS_G}
        v_lshrrev_b32 v9, 5, v1
        v_lshlrev_b32 v9, 4, v9
        """)
        for aa in range(2):
            for pw in range(4):
                a.e(f"buffer_load_dwordx4 {v(32+16*aa+4*pw,4)}, v9, {R_WS}, s8 offen offset:{128*aa+32*pw} sc1", tag="GL")
        a.e(f"""
        s_and_b32 s11, {sI}, 7             ; n
        s_lshl_b32 s12, s11, 6
        s_lshl_b32 s13, {sW}, 4
        s_add_u32 s12, s12, s13
        s_lshr_b32 s8, {sX}, 2
        s_lshl_b32 s8, s8, 13
        s_lshl_b32 s13, s12, 4
        s_add_u32 s8, s8, s13
        s_add_u32 s8, s8, {WS_AF}
        v_and_b32 v9, 15, v1
        v_lshlrev_b32 v9, 4, v9
        """)
        self.poll("v9", "s8", "v8")
        self.stamp()
        a.e(f"""
        s_lshl_b32 s8, s12, 12
        s_lshr_b32 s13, {sX}, 1
        s_lshl_b32 s13, s13, 10
        s_add_u32 s8, s8, s13
        s_and_b32 s13, {sX}, 1
        s_lshl_b32 s13, s13, 8
        s_add_u32 s8, s8, s13
        s_lshl_b32 s13, s9, 6
        s_add_u32 s8, s8, s13
        s_add_u32 s8, s8, {WS_AT}
        s_add_u32 s13, s8, {8*4096}
        v_lshrrev_b32 v8, 3, v1            ; dl
        v_bfe_u32 v9, v1, 2, 1             ; hf
        v_and_b32 v17, 3, v1               ; jj
        v_lshlrev_b32 v18, 12, v8
        v_lshl_add_u32 v18, v9, 9, v18
        v_lshl_add_u32 v18, v17, 4, v18
        """)
        a.e(f"buffer_load_dwordx4 v[64:67], v18, {R_WS}, s8 offen sc1", tag="AL")
        a.e(f"buffer_load_dwordx4 v[68:71], v18, {R_WS}, s13 offen sc1", tag="AL")
        a.e(f"""
        v_and_b32 v19, 1, v8
        v_lshrrev_b32 v8, 1, v8
        v_lshl_add_u32 v8, v19, 5, v8
        s_lshl_b32 s3, {sW}, 3
        v_add_u32 v8, s3, v8
        v_mul_u32_u24 v8, 144, v8
        v_lshl_add_u32 v8, v17, 5, v8
        v_lshl_add_u32 v8, v9, 4, v8
        v_add_u32 v8, {L_A}, v8
        """)
        for aa in range(2):
            b = 32 + 16 * aa
            for h in range(2):
                a.e(f"v_pk_add_f32 {v(b+2*h,2)}, {v(b+2*h,2)}, {v(b+4+2*h,2)}")
                a.e(f"v_pk_add_f32 {v(b+8+2*h,2)}, {v(b+8+2*h,2)}, {v(b+12+2*h,2)}")
            for h in range(2):
                a.e(f"v_pk_add_f32 {v(b+2*h,2)}, {v(b+2*h,2)}, {v(b+8+2*h,2)}")
        G = [32, 33, 34, 35, 48, 49, 50, 51]
        for g in G:
            a.e(f"v_mul_f32 v{g}, 0xbfb8aa3b, v{g}")
        for g in G:
            a.e(f"v_exp_f32 v{g}, v{g}")
        for g in G:
            a.e(f"v_add_f32 v{g}, 1.0, v{g}")
        for g in G:
            a.e(f"v_rcp_f32 v{g}, v{g}")
        a.wait(vm="AL")
        a.e("ds_write_b128 v8, v[64:67]", tag="AW")
        a.e(f"ds_write_b128 v8, v[68:71] offset:{4*144}", tag="AW")
        a.e(f"""
        s_mul_i32 s8, {sW}, {3*4096}
        v_add_u32 v14, s8, v7
        v_and_b32 v8, 31, v1
        v_lshrrev_b32 v9, 5, v1
        v_mul_u32_u24 v15, 144, v8
        v_lshl_add_u32 v15, v9, 3, v15
        s_lshl_b32 s8, {sW}, 5
        s_add_u32 s8, s8, {L_A}
        v_add_u32 v15, s8, v15
        v_lshlrev_b32 v16, 12, v9
        v_lshl_add_u32 v16, v8, 2, v16
        s_lshl_b32 s8, s10, 13
        s_lshl_b32 s3, s11, 7
        s_add_u32 s8, s8, s3
        s_add_u32 s13, s8, 8192
        """)
        a.wait(lg=0)
        a.e("s_barrier")
        for par in range(2):
            for q in range(2):
                a.e(f"ds_read_b64 {v(72+4*par+2*q,2)}, v15 offset:{par*32*144+16*q}", tag="AR")
        for lam in range(3):
            for pq in range(4):
                a.e(f"ds_read_b128 {v(80+16*lam+4*pq,4)}, v14 offset:{L_RED+lam*4096+pq*1024}", tag=f"RR{lam}")
        a.wait(lg="AR")
        for par in range(2):
            for q in range(2):
                s_ = 72 + 4 * par + 2 * q
                d_ = 128 + 8 * par + 4 * q
                a.e(f"v_lshlrev_b32 v{d_}, 16, v{s_}")
                a.e(f"v_and_b32 v{d_+1}, 0xffff0000, v{s_}")
                a.e(f"v_lshlrev_b32 v{d_+2}, 16, v{s_+1}")
                a.e(f"v_and_b32 v{d_+3}, 0xffff0000, v{s_+1}")
        for lam in range(3):
            a.wait(lg=f"RR{lam}")
            for par in range(2):
                for h in range(4):
                    d = 192 + 16 * par + 2 * h
                    a.e(f"v_pk_add_f32 {v(d,2)}, {v(d,2)}, {v(80+16*lam+8*par+2*h,2)}")
        for par in range(2):
            for h in range(4):
                d = 192 + 16 * par + 2 * h
                s_ = 128 + 8 * par + 2 * h
                a.e(f"v_pk_add_f32 {v(s_,2)}, {v(s_,2)}, {v(d,2)} neg_lo:[0,1] neg_hi:[0,1]")
        for par in range(2):
            for h in range(4):
                d = 192 + 16 * par + 2 * h
                s_ = 128 + 8 * par + 2 * h
                g = G[2 * h]
                a.e(f"v_pk_fma_f32 {v(d,2)}, {v(s_,2)}, {v(g,2)}, {v(d,2)}")
        for r in range(8):
            a.e(f"v_cvt_pk_bf16_f32 v{144+r}, v{192+r}, v{208+r}")
            a.e(f"buffer_store_dword v{144+r}, v16, {R_OUT}, {'s8' if r < 4 else 's13'} offen offset:{(r%4)*1024}", tag="O")
        a.e(f"""
        s_or_b32 s3, s2, {sW}
        s_cmp_eq_u32 s3, 0
        s_cselect_b32 s8, 0, {WS_SIZE}
        """)
        self.publish("s8")

    def build(self):
        a = self.a
        self.prologue()
        a.e(f"s_cmp_ge_u32 {sI}, 28")
        a.e("s_cbranch_scc1 L_spare")
        vm0 = list(a.vm)
        self.dma_stage(0)
        self.tw_job()
        self.dma_stage(1)
        self.dma_stage(2)
        self.dma_stage(3)
        self.epoch_ready()
        self.g1()
        a.e("s_branch L_join")
        nst_join = self.nst
        a.label("L_spare")
        vm_main = list(a.vm)
        a.vm = vm0
        self.tw_job()
        self.params_load()
        self.epoch_ready()
        a.wait(vm=0)
        a.e("s_barrier")
        self.publish_tw()
        a.vm = vm_main
        a.label("L_join")
        self.g2_setup()
        self.poll_tw()
        self.publish_h()
        self.stamp()
        self.ut_gather()
        fill = []
        for i in range(28):
            o0, o1 = self.b_load(i)
            fill += [(o0, "B"), (o1, "B")]
        a.e("s_barrier")
        self.kgen(fill)
        self.kmfma(fill)
        self.restage()
        self.stamp()
        self.conv(fill)
        self.stamp()
        self.poll_h()
        self.conv_out()
        self.g2()
        self.final()
        if self.stamps:
            a.e("s_memtime s[100:101]")
            a.e("s_waitcnt lgkmcnt(0)")
            a.e(f"""
            s_lshl_b32 s3, s2, 2
            s_add_u32 s3, s3, {sW}
            s_lshl_b32 s3, s3, 6
            s_add_u32 s3, s3, {WS_STAMP}
            s_mov_b64 exec, 1
            """)
            for k in range(1, 11):
                a.e(f"s_sub_u32 s8, s{80+2*k}, s80\nv_mov_b32 v8, s8\nbuffer_store_dword v8, v3, {R_WS}, s3 offen offset:{4*k}")
        a.label("L_end")
        a.e("s_endpgm")
        hdr = open("gated_mix__ssm_conv_s4__dense_activation_relu__prompt.s.ref").read().split("; Override launch")[0]
        s = hdr + f"; @launch grid=(256,1,1) block=(256,1,1) lds={LDS_BYTES}\n"
        s += '.amdgcn_target "amdgcn-amd-amdhsa--gfx950"\n.text\n'
        s += f".globl {KNAME}\n.p2align 8\n.type {KNAME},@function\n{KNAME}:\n"
        s += a.text()
        s += f""".section .rodata,"a"
.p2align 6
.amdhsa_kernel {KNAME}
  .amdhsa_next_free_vgpr 512
  .amdhsa_next_free_sgpr 102
  .amdhsa_accum_offset 256
  .amdhsa_group_segment_fixed_size 0
  .amdhsa_kernarg_size 128
  .amdhsa_user_sgpr_count 2
  .amdhsa_user_sgpr_kernarg_segment_ptr 1
  .amdhsa_system_sgpr_workgroup_id_x 1
.end_amdhsa_kernel
"""
        return s


if __name__ == "__main__":
    out = sys.argv[1]
    stamps = "--stamps" in sys.argv
    g = Gen(stamps=stamps)
    s = g.build()
    open(out, "w").write(s)
    print("instructions", sum(1 for i in g.a.ins if i.kind != "label"), "auto nops", g.a.nops, "stamps", g.nst)
```

```python
import sys
from emit import Asm

KNAME = "gated_mix__ssm_conv_s4__dense_activation_relu__prompt_kernel"

WS_TF = 0x1000
WS_WF = 0x5000
WS_HF = 0x9000
WS_AF = 0xE000
WS_G = 0x12000
WS_STAMP = 0x20000
WS_UT = 0x100000
WS_W2T = 0x300000
WS_AT = 0x500000
WS_H = 0x700000
WS_SIZE = 0xE00000

L_X = 0
L_W = 65536
TROW = 544
TCH = 63 * TROW
L_TAB = 0
L_KC = 69632
KCP = 4160
L_U = 131072
UP = 4608
L_EX = 0
L_RED = 16384
L_A = 65536
LDS_BYTES = 131072 + 2 * UP

sX, sI, sW, sEP = "s4", "s5", "s6", "s7"
P_U, P_ARE, P_AIM, P_BRE, P_BIM, P_CRE, P_CIM, P_LDT = [f"s[{16+2*i}:{17+2*i}]" for i in range(8)]
P_DSK, P_BX, P_W1, P_W2, P_GW, P_OUT, P_DBG, P_WS = [f"s[{32+2*i}:{33+2*i}]" for i in range(8)]
R_U, R_W1, R_W2, R_OUT, R_WS = "s[48:51]", "s[52:55]", "s[56:59]", "s[60:63]", "s[64:67]"


def v(a, n=1):
    return f"v{a}" if n == 1 else f"v[{a}:{a+n-1}]"


def acc(a, n=1):
    return f"a{a}" if n == 1 else f"a[{a}:{a+n-1}]"


class Gen:
    def __init__(self, stamps=False, opts=None):
        self.a = Asm()
        self.stamps = stamps
        self.nst = 0
        self.names = []
        self.o = opts or {}
        self.npoll = 0

    def stamp(self, name="x"):
        if self.stamps and (name == "start" or name in self.stamps):
            self.names.append(name)
            k = self.nst
            assert k < 10
            self.a.e(f"{'s_memrealtime' if self.o.get('amp') else 's_memtime'} s[{80+2*k}:{81+2*k}]")
            self.nst += 1

    def publish(self, soff, lanes=1, voff="v3"):
        a = self.a
        a.e(f"s_mov_b64 exec, {(1 << lanes) - 1}")
        a.e(f"buffer_store_dword v2, {voff}, {R_WS}, {soff} offen sc1", tag="flag")
        a.e("s_mov_b64 exec, -1")

    def poll(self, voff, soff, tmp):
        a = self.a
        n = self.npoll
        self.npoll += 1
        a.e("s_mov_b32 s3, 0")
        a.label(f"L_poll{n}")
        a.e(f"buffer_load_dword {tmp}, {voff}, {R_WS}, {soff} offen sc1", tag="poll")
        a.e("s_add_u32 s3, s3, 1")
        a.wait(vm=0)
        a.e(f"v_cmp_ne_u32 vcc, {sEP}, {tmp}")
        a.e("s_cmp_gt_u32 s3, 3000")
        a.e(f"s_cbranch_scc1 L_pollx{n}")
        a.e(f"s_cbranch_vccz L_pollx{n}")
        a.e("s_sleep 2")
        a.e(f"s_branch L_poll{n}")
        a.label(f"L_pollx{n}")

    def prologue(self):
        a = self.a
        a.e(f"""
        s_cmp_ge_u32 s2, 256
        s_cbranch_scc1 L_end
        """)
        self.stamp("start")
        a.e(f"""
        s_load_dwordx16 s[16:31], s[0:1], 0
        s_load_dwordx16 s[32:47], s[0:1], 64
        v_and_b32 v1, 63, v0
        v_lshrrev_b32 v4, 6, v0
        s_and_b32 {sX}, s2, 7
        s_lshr_b32 {sI}, s2, 3
        v_readfirstlane_b32 {sW}, v4
        v_mov_b32 v3, 0
        v_lshlrev_b32 v5, 2, v0            ; tid*4
        v_lshlrev_b32 v6, 4, v0            ; tid*16
        v_lshlrev_b32 v7, 4, v1            ; lane*16
        s_mov_b32 s68, 0x05040100
        s_mov_b32 s69, 0x07060302
        s_lshl_b32 s8, {sX}, 5
        s_add_u32 s75, s8, {sI}
        s_lshl_b32 s8, s75, 13
        s_add_u32 s9, s8, 4096
        s_sub_u32 s76, 255, s2             ; phi
        s_lshr_b32 s10, s76, 1
        s_lshl_b32 s10, s10, 14            ; 16*s*1024
        s_and_b32 s11, s76, 1
        s_lshl_b32 s11, s11, 12            ; 4*g*1024
        s_add_u32 s10, s10, s11
        s_add_u32 s11, s10, 8192
        """)
        a.e(f"""
        s_mul_i32 s12, {sI}, 37
        s_lshr_b32 s12, s12, 8
        s_mul_i32 s13, s12, 7
        s_sub_u32 s13, {sI}, s13           ; ct
        s_mov_b32 s77, s12
        s_mov_b32 s78, s13
        s_lshr_b32 s14, {sX}, 1            ; R
        s_lshl_b32 s14, s14, 2
        s_add_u32 s14, s14, s12
        s_lshl_b32 s70, s14, 17
        s_and_b32 s14, {sX}, 1
        s_mul_i32 s14, s14, 7
        s_add_u32 s14, s14, s13
        s_lshl_b32 s71, s14, 8
        s_lshl_b32 s14, s12, 1
        s_add_u32 s72, s14, s13            ; rot
        s_lshl_b32 s73, {sW}, 12           ; wave*4096
        s_add_u32 s74, s73, {L_W}
        """)
        a.e(f"""
        v_lshrrev_b32 v8, 3, v1            ; l>>3
        v_lshl_add_u32 v8, v4, 5, v8       ; 32w + (l>>3)
        v_lshlrev_b32 v8, 10, v8           ; *1024
        v_lshrrev_b32 v9, 4, v1            ; l>>4
        v_and_b32 v10, 7, v1
        v_xor_b32 v10, v10, v9             ; pos ^ (l>>4)
        v_lshl_add_u32 v16, v10, 4, v8
        v_xor_b32 v10, 4, v10
        v_lshl_add_u32 v17, v10, 4, v8
        v_add_u32 v17, {8192-1024}, v17
        v_add_u32 v18, {2*(8192-1024)}, v16
        v_add_u32 v19, {2*(8192-1024)}, v17
        v_lshl_add_u32 v8, v4, 4, v9       ; 16w + (l>>4)
        v_mul_u32_u24 v8, 3584, v8
        v_and_b32 v10, 15, v1
        v_lshlrev_b32 v11, 2, v9
        v_xor_b32 v10, v10, v11
        v_lshl_add_u32 v20, v10, 4, v8
        v_add_u32 v21, {4*3584-1024}, v20
        v_add_u32 v22, {2*(4*3584-1024)}, v20
        v_add_u32 v23, {3*(4*3584-1024)}, v20
        s_waitcnt lgkmcnt(0)
        """)
        self.stamp("karg")
        a.e(f"""
        s_load_dword {sEP}, {P_WS}, 0
        s_mov_b32 s48, s16
        s_mov_b32 s49, s17
        s_mov_b32 s50, {2048*1024}
        s_mov_b32 s51, 0x00020000
        s_mov_b32 s56, s38
        s_mov_b32 s57, s39
        s_mov_b32 s58, {1792*1024}
        s_mov_b32 s59, 0x00020000
        """)
        for tt in range(8):
            a.e(f"buffer_load_dword v{32+tt}, v5, {R_U}, {'s8' if tt < 4 else 's9'} offen offset:{(tt%4)*1024}", tag="T")
        a.e(f"global_load_dword v48, v5, {P_GW}", tag="T")
        for e_ in range(8):
            a.e(f"buffer_load_dword v{40+e_}, v5, {R_W2}, {'s10' if e_ < 4 else 's11'} offen offset:{(e_%4)*1024}", tag="W")
        a.e(f"""
        s_mov_b32 s52, s36
        s_mov_b32 s53, s37
        s_mov_b32 s54, {512*3584}
        s_mov_b32 s55, 0x00020000
        s_mov_b32 s60, s42
        s_mov_b32 s61, s43
        s_mov_b32 s62, {2048*1024}
        s_mov_b32 s63, 0x00020000
        s_mov_b32 s64, s46
        s_mov_b32 s65, s47
        s_mov_b32 s66, {WS_SIZE}
        s_mov_b32 s67, 0x00020000
        """)

    def dma_setup(self, s):
        self.a.e(f"""
        s_add_u32 s14, s72, {s}
        s_and_b32 s14, s14, 7
        s_lshl_b32 s12, s14, 7
        s_add_u32 s12, s12, s70
        s_mul_i32 s13, s14, {64*3584}
        s_add_u32 s13, s13, s71
        """)

    def dma_ops(self, s):
        slot = s % 4
        ops = []
        for i in range(4):
            pre = f"s_add_u32 m0, s73, {L_X + slot*16384}\n" if i == 0 else ""
            ops.append(pre + f"buffer_load_dwordx4 v{16+i}, {R_U}, s12 offen offset:{i*1024} lds")
        for i in range(4):
            pre = f"s_add_u32 m0, s74, {slot*16384}\n" if i == 0 else ""
            ops.append(pre + f"buffer_load_dwordx4 v{20+i}, {R_W1}, s13 offen offset:{i*1024} lds")
        return ops

    def dma_stage(self, s):
        self.dma_setup(s)
        for o in self.dma_ops(s):
            self.a.e(o, tag=f"D{s}")

    def tw_job(self, st=False):
        a = self.a
        a.wait(vm="T")
        if st: self.stamp("tarr")
        for h in range(2):
            for k in range(4):
                a.e(f"v_perm_b32 v{52+4*h+k}, v{33+2*k}, v{32+2*k}, s{68+h}")
        a.e(f"""
        s_lshl_b32 s8, s75, 13
        s_add_u32 s8, s8, {WS_UT}
        s_add_u32 s9, s8, 4096
        """)
        a.e(f"buffer_store_dwordx4 v[52:55], v6, {R_WS}, s8 offen sc1", tag="TWst")
        a.e(f"buffer_store_dwordx4 v[56:59], v6, {R_WS}, s9 offen sc1", tag="TWst")
        for tt in range(8):
            a.e(f"v_dot2_f32_bf16 v{68+tt}, v{32+tt}, v48, 0")
        a.wait(vm="W")
        for h in range(2):
            for k in range(4):
                a.e(f"v_perm_b32 v{60+4*h+k}, v{41+2*k}, v{40+2*k}, s{68+h}")
        a.e(f"""
        s_lshl_b32 s8, s76, 13
        s_add_u32 s8, s8, {WS_W2T}
        s_cmp_ge_u32 s76, 224
        s_cselect_b32 s8, {WS_SIZE}, s8
        s_add_u32 s9, s8, 4096
        """)
        a.e(f"buffer_store_dwordx4 v[60:63], v6, {R_WS}, s8 offen sc1", tag="TWst")
        a.e(f"buffer_store_dwordx4 v[64:67], v6, {R_WS}, s9 offen sc1", tag="TWst")
        for p, q in ((0, 2), (1, 3), (4, 6), (5, 7)):
            a.e(f"v_permlane32_swap_b32 v{68+p}, v{68+q}")
        for p, q in ((0, 2), (1, 3), (4, 6), (5, 7)):
            a.e(f"v_add_f32 v{68+p}, v{68+p}, v{68+q}")
        a.e("v_permlane16_swap_b32 v68, v69")
        a.e("v_permlane16_swap_b32 v72, v73")
        a.e("v_add_f32 v68, v68, v69")
        a.e("v_add_f32 v72, v72, v73")
        for r in (8, 4, 2, 1):
            a.e(f"v_add_f32_dpp v68, v68, v68 row_ror:{r} row_mask:0xf bank_mask:0xf")
            a.e(f"v_add_f32_dpp v72, v72, v72 row_ror:{r} row_mask:0xf bank_mask:0xf")
        a.e(f"""
        v_and_b32 v8, 1, v1
        v_cmp_eq_u32 vcc, 1, v8
        v_lshrrev_b32 v9, 4, v1
        v_lshlrev_b32 v9, 2, v9
        v_lshl_add_u32 v9, v8, 4, v9
        v_cndmask_b32 v68, v68, v72, vcc
        s_lshl_b32 s8, s75, 7
        s_lshl_b32 s9, {sW}, 5
        s_add_u32 s8, s8, s9
        s_add_u32 s8, s8, {WS_G}
        s_mov_b32 exec_lo, 0x00030003
        s_mov_b32 exec_hi, 0x00030003
        """)
        a.e(f"buffer_store_dword v68, v9, {R_WS}, s8 offen sc1", tag="TWst")
        a.e("s_mov_b64 exec, -1")

    def epoch_ready(self):
        a = self.a
        a.e(f"""
        s_waitcnt lgkmcnt(0)
        s_mul_i32 {sEP}, {sEP}, 1664525
        s_add_u32 {sEP}, {sEP}, 1013904223
        v_mov_b32 v2, {sEP}
        """)

    def publish_tw(self):
        a = self.a
        a.e(f"""
        s_lshl_b32 s8, s75, 4
        s_lshl_b32 s9, s76, 4
        s_add_u32 s9, s9, {WS_WF - WS_TF}
        s_sub_u32 s9, s9, s8
        v_mul_lo_u32 v8, s9, v1
        s_add_u32 s8, s8, s73
        s_add_u32 s8, s8, {WS_TF}
        v_add_u32 v8, s8, v8
        """)
        self.publish("0", lanes=2, voff="v8")

    def params_load(self):
        a = self.a
        a.e(f"""
        s_lshl_b32 s8, s75, 1
        s_lshr_b32 s9, {sW}, 1
        s_add_u32 s8, s8, s9               ; pi
        s_and_b32 s9, s8, 255
        s_lshl_b32 s9, s9, 1
        s_lshr_b32 s8, s8, 8
        s_add_u32 s79, s9, s8              ; d
        s_and_b32 s9, {sW}, 1
        s_lshl_b32 s9, s9, 7
        s_lshl_b32 s8, s79, 8
        s_add_u32 s8, s8, s9
        v_lshl_add_u32 v8, v1, 1, s8       ; d*256 + (64*(w&1)+l)*2
        s_lshl_b32 s8, s79, 1
        v_mov_b32 v9, s8
        """)
        for k in range(8):
            a.e(f"v_mov_b32 v{176+k}, 0")
        for k, p in enumerate((P_ARE, P_AIM, P_BRE, P_BIM, P_CRE, P_CIM)):
            a.e(f"global_load_short_d16_hi v{176+k}, v8, {p}", tag="P")
        a.e(f"global_load_short_d16_hi v182, v9, {P_LDT}", tag="P")
        a.e(f"global_load_short_d16_hi v183, v9, {P_DSK}", tag="P")

    def g1(self):
        a = self.a
        a.e(f"""
        v_and_b32 v8, 31, v1               ; t
        v_lshrrev_b32 v9, 5, v1            ; g
        v_lshrrev_b32 v10, 1, v8
        v_and_b32 v10, 7, v10
        v_xor_b32 v10, v10, v9             ; g ^ f
        s_lshr_b32 s8, {sW}, 1
        s_lshl_b32 s8, s8, 13              ; wm*64*128
        v_lshl_add_u32 v8, v8, 7, s8
        v_lshl_add_u32 v24, v10, 4, v8
        v_xor_b32 v25, 32, v24
        v_xor_b32 v26, 64, v24
        v_xor_b32 v27, 96, v24
        v_lshrrev_b32 v8, 2, v1
        v_and_b32 v8, 3, v8                ; r
        v_lshl_add_u32 v10, v9, 3, v8      ; 8*(G>>1) + r
        v_lshlrev_b32 v10, 8, v10          ; *256
        s_and_b32 s8, {sW}, 1
        s_lshl_b32 s8, s8, 1
        v_xor_b32 v8, s8, v8               ; (2wn) ^ r
        v_lshl_add_u32 v10, v8, 6, v10
        v_bfe_u32 v8, v1, 4, 1
        v_lshl_add_u32 v10, v8, 5, v10
        v_and_b32 v8, 3, v1
        v_lshl_add_u32 v10, v8, 3, v10
        v_add_u32 v28, {L_W}, v10
        v_xor_b32 v29, 64, v28
        """)

        def reads(kap):
            s, ks = divmod(kap, 4)
            slot = s % 4
            b = 80 + 16 * (kap % 2)
            L = []
            for fb in range(2):
                for hh in range(2):
                    L.append(f"ds_read_b64_tr_b16 {v(b+8+4*fb+2*hh,2)}, v{28+fb} offset:{slot*16384+ks*4096+hh*1024}")
                L.append(f"ds_read_b128 {v(b+4*fb,4)}, v{24+ks} offset:{slot*16384+fb*4096}")
            return L

        def mf(kap, fb, tb):
            b = 80 + 16 * (kap % 2)
            d = 112 + 16 * (2 * fb + tb)
            c = "0" if kap == 0 else v(d, 16)
            return f"v_mfma_f32_32x32x16_bf16 {v(d,16)}, {v(b+8+4*fb,4)}, {v(b+4*tb,4)}, {c}"

        a.wait(vm="D0")
        a.e("s_barrier")
        self.stamp("g1s")
        for r in reads(0):
            a.e(r, tag="R0")
        pend = []
        for kap in range(32):
            s, ks = divmod(kap, 4)
            nxt = []
            if kap + 1 < 32:
                if ks == 3:
                    a.wait(vm=f"D{s+1}", lg=0)
                    a.e("s_barrier")
                    if s == 1:
                        self.publish_tw()
                    if s + 4 < 8:
                        self.dma_setup(s + 4)
                        pend = [(o, f"D{s+4}") for o in self.dma_ops(s + 4)]
                    if s == 4:
                        self.params_load()
                nxt = reads(kap + 1)
            if ks != 3 or kap == 31:
                a.wait(lg=f"R{kap}")
            ms = [mf(kap, 0, 0), mf(kap, 0, 1), mf(kap, 1, 0), mf(kap, 1, 1)]
            per = [2, 2, 2, 0]
            for i, m in enumerate(ms):
                a.e(m)
                for _ in range(per[i]):
                    if nxt:
                        a.e(nxt.pop(0), tag=f"R{kap+1}")
                if i >= 2 and pend:
                    o, t = pend.pop(0)
                    a.e(o, tag=t)
        assert not pend
        self.stamp("g1e")
        a.e(f"""
        s_lshl_b32 s8, {sX}, 4
        s_lshl_b32 s9, s77, 2
        s_add_u32 s8, s8, s9
        s_and_b32 s9, {sW}, 2
        s_add_u32 s8, s8, s9
        s_mul_i32 s8, s8, 56
        s_lshl_b32 s9, s78, 3
        s_add_u32 s8, s8, s9
        s_and_b32 s9, {sW}, 1
        s_lshl_b32 s9, s9, 2
        s_add_u32 s8, s8, s9
        s_lshl_b32 s8, s8, 10
        s_add_u32 s8, s8, {WS_H}
        s_add_u32 s9, s8, {56*1024}
        """)
        k = 0
        for fb in range(2):
            for tb in range(2):
                d = 112 + 16 * (2 * fb + tb)
                for half in range(2):
                    t = 184 + 4 * k
                    k += 1
                    for j in range(4):
                        a.e(f"v_cvt_pk_bf16_f32 v{t+j}, v{d+8*half+2*j}, v{d+8*half+2*j+1}")
                    for j in range(4):
                        a.e(f"v_pk_max_i16 v{t+j}, v{t+j}, 0")
                    a.e(f"buffer_store_dwordx4 {v(t,4)}, v7, {R_WS}, {'s8' if tb == 0 else 's9'} offen offset:{(2*fb+half)*1024} sc1", tag="Hst")

    def publish_h(self):
        a = self.a
        a.e(f"""
        s_lshr_b32 s8, {sX}, 1
        s_lshl_b32 s8, s8, 2
        s_add_u32 s8, s8, s77
        s_lshl_b32 s8, s8, 1
        s_lshr_b32 s9, {sW}, 1
        s_add_u32 s8, s8, s9
        s_lshl_b32 s8, s8, 1
        s_and_b32 s9, {sX}, 1
        s_add_u32 s8, s8, s9
        s_lshl_b32 s8, s8, 8               ; *2 groups*128B
        s_lshl_b32 s9, s78, 1
        s_and_b32 s10, {sW}, 1
        s_add_u32 s9, s9, s10              ; 2ct+wn
        s_cmp_ge_u32 s9, 7
        s_cselect_b32 s10, {128-7*16}, 0
        s_lshl_b32 s9, s9, 4
        s_add_u32 s8, s8, s9
        s_add_u32 s8, s8, s10
        s_add_u32 s8, s8, {WS_HF}
        s_cmp_ge_u32 {sI}, 28
        s_cselect_b32 s8, {WS_SIZE}, s8
        """)
        self.publish("s8")

    def poll_tw(self):
        a = self.a
        a.e(f"""
        s_and_b32 s8, {sX}, 3
        s_lshl_b32 s8, s8, 12
        s_add_u32 s8, s8, {WS_TF}
        """)
        self.poll("v6", "s8", "v8")
        a.e(f"""
        s_and_b32 s8, {sI}, 7
        s_lshr_b32 s8, s8, 1
        s_lshl_b32 s8, s8, 12
        s_mul_i32 s9, {sW}, {56*16}
        s_add_u32 s8, s8, s9
        s_add_u32 s8, s8, {WS_WF}
        v_min_u32 v9, 55, v1
        v_lshlrev_b32 v9, 4, v9
        """)
        self.poll("v9", "s8", "v8")

    def ut_gather(self):
        a = self.a
        a.e(f"""
        v_lshrrev_b32 v8, 1, v1
        v_lshlrev_b32 v8, 13, v8
        v_and_b32 v9, 1, v1
        v_lshl_add_u32 v8, v9, 4, v8
        s_lshl_b32 s8, {sW}, 19            ; 64w*8192
        s_lshl_b32 s9, s75, 5
        s_add_u32 s8, s8, s9
        s_add_u32 s8, s8, {WS_UT}
        s_add_u32 s9, s8, {32*8192}
        """)
        a.e(f"buffer_load_dwordx4 v[216:219], v8, {R_WS}, s8 offen sc1", tag="UG")
        a.e(f"buffer_load_dwordx4 v[220:223], v8, {R_WS}, s9 offen sc1", tag="UG")

    def g2_setup(self):
        a = self.a
        a.e(f"""
        v_lshrrev_b32 v8, 5, v1
        v_and_b32 v9, 31, v1
        v_lshlrev_b32 v9, 4, v9
        v_lshl_add_u32 v10, v8, 13, v9
        v_add_u32 v11, 4096, v10
        s_and_b32 s8, {sI}, 7              ; n
        s_lshr_b32 s9, {sI}, 3             ; m
        s_mul_i32 s70, {sW}, {28*16384}
        s_lshl_b32 s10, s8, 9
        s_add_u32 s70, s70, s10
        s_add_u32 s70, s70, {WS_W2T}
        s_mul_i32 s10, s8, 7
        s_lshr_b32 s10, s10, 1
        s_mul_i32 s11, s9, 7
        s_add_u32 s10, s10, s11
        s_cmp_ge_u32 s10, 28
        s_cselect_b32 s11, 28, 0
        s_sub_u32 s72, s10, s11
        s_and_b32 s10, {sX}, 6
        s_lshr_b32 s11, {sW}, 1
        s_add_u32 s10, s10, s11
        s_lshl_b32 s10, s10, 4
        s_and_b32 s11, {sX}, 1
        s_lshl_b32 s11, s11, 3
        s_add_u32 s10, s10, s11
        s_lshl_b32 s11, s9, 1
        s_add_u32 s10, s10, s11            ; + 8(x&1) + 2m
        s_mul_i32 s10, s10, 56
        s_and_b32 s11, {sW}, 1
        s_mul_i32 s12, s11, 28
        s_add_u32 s10, s10, s12
        s_lshl_b32 s10, s10, 10
        s_add_u32 s71, s10, {WS_H}
        s_lshl_b32 s11, s11, 8
        v_xor_b32 v8, s11, v7              ; (l ^ 16(w&1))*16
        s_lshr_b32 s11, {sW}, 1
        s_mul_i32 s12, s11, {56*1024}
        v_add_u32 v12, s12, v8
        s_sub_u32 s12, {56*1024}, s12
        v_add_u32 v13, s12, v8
        s_mov_b32 s14, s72
        s_mov_b32 s15, s72
        """)

    def b_load(self, i):
        o0 = f"""
        s_lshl_b32 s3, s14, 14
        s_add_u32 s3, s3, s70
        buffer_load_dwordx4 {acc(8*i,4)}, v10, {R_WS}, s3 offen sc1
        """
        o1 = f"""
        s_lshl_b32 s3, s14, 14
        s_add_u32 s3, s3, s70
        buffer_load_dwordx4 {acc(8*i+4,4)}, v11, {R_WS}, s3 offen sc1
        s_add_u32 s14, s14, 1
        s_cmp_eq_u32 s14, 28
        s_cselect_b32 s14, 0, s14
        """
        return [o0, o1]

    def kgen(self, fill):
        a = self.a
        E = lambda k: 32 + 2 * (k - 1)
        F = lambda c: 64 + 2 * (c - 1)
        cnt = [0]

        def sprinkle():
            cnt[0] += 1
            if fill and cnt[0] % self.o.get("kfill", 3) == 0:
                c, t = fill.pop(0)
                a.e(c, tag=t)

        a.wait(vm="P")
        a.e(f"""
        v_mul_f32 v82, 0x3fb8aa3b, v182
        v_exp_f32 v82, v82
        s_lshr_b32 s8, {sW}, 1
        s_mul_i32 s8, s8, {TCH}
        s_and_b32 s9, {sW}, 1
        s_lshl_b32 s9, s9, 8
        s_add_u32 s8, s8, s9
        s_add_u32 m0, s8, {L_TAB}
        v_cvt_pk_bf16_f32 v82, v82, v82
        v_and_b32 v82, 0xffff0000, v82
        v_mul_f32 v83, v82, v176           ; zr
        v_mul_f32 v84, v82, v177           ; zi
        v_mul_f32 v83, 0x3fb8aa3b, v83     ; a2
        v_mul_f32 v84, 0.15915494, v84     ; revolutions
        v_pk_mul_f32 v[86:87], v[180:181], v[178:179] op_sel_hi:[1,0]
        v_pk_fma_f32 v[86:87], v[180:181], v[178:179], v[86:87] op_sel:[1,1,0] op_sel_hi:[0,1,1] neg_lo:[1,0,0]
        v_pk_mul_f32 v[78:79], v[86:87], v[82:83] op_sel_hi:[1,0]
        """)
        for dst, sc in ((E(1), None), (E(16), "0x41800000"), (F(1), "0x43800000")):
            if sc is None:
                a.e("v_exp_f32 v88, v83\nv_fract_f32 v89, v84")
            else:
                a.e(f"v_mul_f32 v88, {sc}, v83\nv_mul_f32 v89, {sc}, v84\nv_exp_f32 v88, v88\nv_fract_f32 v89, v89")
            a.e(f"""
            v_cos_f32 v{dst}, v89
            v_sin_f32 v{dst+1}, v89
            v_pk_mul_f32 {v(dst,2)}, {v(dst,2)}, v[88:89] op_sel_hi:[1,0]
            """)
        YB = {0: 16, 1: 32, 2: 41, 3: 46, 4: 51, 5: 54, 6: 57, 7: 60}
        jobs = []
        src = {2: (1, 1), 3: (2, 1), 4: (2, 2), 5: (4, 1), 6: (4, 2), 7: (4, 3), 8: (4, 4)}
        for k in range(9, 16):
            src[k] = (8, k - 8)
        ej = [(E(k), E(src[k][0]), E(src[k][1]), YB[0] + k, False) for k in range(2, 16)]
        fsrc = {2: (1, 1), 3: (2, 1), 4: (2, 2), 5: (4, 1), 6: (4, 2), 7: (4, 3)}
        fj = [(F(c), F(fsrc[c][0]), F(fsrc[c][1]), YB[c], False) for c in range(2, 8)]
        xj = [(78 + 2 * (k % 2), 78 + 2 * ((k - 1) % 2), E(16), k, True) for k in range(1, 16)]
        pj = []
        tmp = [90, 92, 94, 104]
        ti = 0
        for c in range(1, 8):
            step = {1: 2, 2: 4, 3: 4}.get(c, 8)
            for n_, rho in enumerate(range(step, 17, step)):
                pj.append((tmp[ti % 4], F(c), E(rho), YB[c] + 1 + n_, False))
                ti += 1
        others = []
        q1, q2 = list(ej), list(fj)
        while q1 or q2:
            if q1:
                others.append(q1.pop(0))
            if q2:
                others.append(q2.pop(0))
        others += pj
        order = []
        xs = list(xj)
        while others or xs:
            grp = []
            if xs:
                grp.append(xs.pop(0))
            while others and len(grp) < 3:
                j = others[0]
                if any(g[0] in (j[1], j[2]) or g[0] == j[0] for g in grp):
                    break
                grp.append(others.pop(0))
            order.append(grp)
        cv = [0]

        def put(reg, row, neg):
            t = 96 + (cv[0] % 8)
            cv[0] += 1
            a.e(f"v_cvt_pk_bf16_f32 v{t}, v{reg}, {'-' if neg else ''}v{reg+1}")
            a.e(f"ds_write_addtid_b32 v{t} offset:{row*TROW}", tag="TB")
            sprinkle()

        a.e("v_mov_b32 v103, 0x3f80")
        a.e(f"ds_write_addtid_b32 v103 offset:{YB[0]*TROW}", tag="TB")
        put(78, 0, True)
        put(E(1), YB[0] + 1, False)
        put(F(1), YB[1], False)
        for grp in order:
            for (d, x, y, row, neg) in grp:
                a.e(f"v_pk_mul_f32 {v(d,2)}, {v(x,2)}, {v(y,2)} op_sel_hi:[1,0]")
            for (d, x, y, row, neg) in grp:
                a.e(f"v_pk_fma_f32 {v(d,2)}, {v(x,2)}, {v(y,2)}, {v(d,2)} op_sel:[1,1,0] op_sel_hi:[0,1,1] neg_lo:[1,0,0]")
            for (d, x, y, row, neg) in grp:
                put(d, row, neg)

    def kmfma(self, fill):
        a = self.a
        a.e(f"""
        s_lshr_b32 s8, {sW}, 1
        s_mul_i32 s8, s8, {TCH}
        s_add_u32 s8, s8, {L_TAB}
        v_and_b32 v8, 15, v1
        v_lshrrev_b32 v9, 4, v1
        v_lshl_add_u32 v9, v9, 4, s8       ; base + g*16
        s_movk_i32 s9, {TROW}
        v_mad_u32_u24 v16, v8, s9, v9
        v_sub_u32 v8, 15, v8
        v_cvt_f32_u32 v8, v8               ; b
        s_mov_b32 s13, 0x3e000000
        s_and_b32 s10, {sW}, 1
        s_cmp_eq_u32 s10, 0
        """)
        YB = {0: 16, 1: 32, 2: 41, 3: 46, 4: 51, 5: 54, 6: 57, 7: 60}
        sc = {0: "1.0", 1: "0.5", 2: "0x3e800000", 3: "0x3e800000"}
        for c in range(4):
            a.e(f"""
            s_cselect_b32 s11, {sc[c]}, s13
            s_cselect_b32 s12, {YB[c]}, {YB[c+4]}
            v_mul_f32 v21, s11, v8
            v_rndne_f32 v21, v21
            v_cvt_u32_f32 v21, v21
            v_add_u32 v21, s12, v21
            v_mad_u32_u24 v{17+c}, v21, s9, v9
            """)
        a.e(f"""
        s_cselect_b32 s11, 48, 64
        v_cmp_eq_u32 vcc, s11, v1
        v_mov_b32 v128, 0
        v_mov_b32 v129, 0
        v_mov_b32 v130, 0
        v_cndmask_b32 v131, 0, v183, vcc
        """)
        a.e(f"""
        v_mov_b32 v144, 0
        v_mov_b32 v145, 0
        v_mov_b32 v146, 0
        v_mov_b32 v147, 0
        v_lshrrev_b32 v21, 2, v0
        s_movk_i32 s11, {KCP}
        v_and_b32 v22, 3, v0
        v_lshlrev_b32 v22, 4, v22
        v_mad_u32_u24 v21, v21, s11, v22
        v_add_u32 v21, {L_KC+4096}, v21
        v_subrev_u32 v22, 64, v0           ; tid-64
        v_lshrrev_b32 v23, 5, v22          ; channel
        v_and_b32 v22, 31, v22
        v_min_u32 v22, 29, v22
        v_lshlrev_b32 v22, 4, v22
        s_movk_i32 s11, {UP}
        v_mad_u32_u24 v22, v23, s11, v22
        v_add_u32 v22, {L_U}, v22
        v_cmp_gt_u32 vcc, 64, v0
        v_cndmask_b32 v21, v22, v21, vcc
        s_cmp_eq_u32 {sW}, 0
        s_cselect_b32 exec_hi, 0, -1
        s_cmp_ge_u32 {sW}, 2
        s_cbranch_scc1 L_nozero
        """)
        a.e("ds_write_b128 v21, v[144:147]", tag="Z")
        a.label("L_nozero")
        a.e("s_mov_b64 exec, -1")
        a.wait(lg=0)
        a.e("s_barrier")
        self.stamp("kmf")
        for ks in range(8):
            a.e(f"ds_read_b128 {v(32+4*ks,4)}, v16 offset:{64*ks}", tag=f"KX{ks}")
        seq = [(ks, c) for ks in range(8) for c in range(4)]
        DEPTH = 8
        for n_ in range(DEPTH):
            ks, c = seq[n_]
            a.e(f"ds_read_b128 {v(64+4*(n_%16),4)}, v{17+c} offset:{64*ks}", tag=f"KY{n_}")
        for n_, (ks, c) in enumerate(seq):
            if n_ + DEPTH < 32:
                k2, c2 = seq[n_ + DEPTH]
                a.e(f"ds_read_b128 {v(64+4*((n_+DEPTH)%16),4)}, v{17+c2} offset:{64*k2}", tag=f"KY{n_+DEPTH}")
            a.wait(lg=f"KY{n_}")
            d = 128 + 4 * c
            cc = "0" if (ks == 0 and c != 0) else v(d, 4)
            a.e(f"v_mfma_f32_16x16x32_bf16 {v(d,4)}, {v(64+4*(n_%16),4)}, {v(32+4*ks,4)}, {cc}")
            if fill and n_ % 4 == 3:
                c_, t_ = fill.pop(0)
                a.e(c_, tag=t_)
        a.e(f"""
        s_lshr_b32 s8, {sW}, 1
        s_mul_i32 s8, s8, {4*KCP}
        s_and_b32 s9, {sW}, 1
        s_lshl_b32 s9, s9, 11
        s_sub_u32 s8, s8, s9
        s_add_u32 s8, s8, {L_KC + 2*2032 - 3*512}
        v_and_b32 v8, 15, v1
        v_lshlrev_b32 v8, 5, v8
        v_sub_u32 v8, s8, v8
        v_lshrrev_b32 v9, 4, v1
        v_lshl_add_u32 v8, v9, 3, v8
        """)
        for c in range(4):
            a.e(f"v_cvt_pk_bf16_f32 v{148+2*c}, v{128+4*c}, v{129+4*c}")
            a.e(f"v_cvt_pk_bf16_f32 v{149+2*c}, v{130+4*c}, v{131+4*c}")
            a.e(f"ds_write_b64 v8, {v(148+2*c,2)} offset:{(3-c)*512}", tag="K0")

    def restage(self):
        a = self.a
        a.e(f"""
        v_and_b32 v8, 1, v1
        s_movk_i32 s8, {UP}
        v_lshrrev_b32 v9, 1, v1
        v_lshlrev_b32 v9, 4, v9
        v_mad_u32_u24 v8, v8, s8, v9
        s_lshl_b32 s8, {sW}, 10
        s_add_u32 s8, s8, {L_U + 480}
        v_add_u32 v8, s8, v8
        """)
        a.wait(vm="UG")
        a.e("ds_write_b128 v8, v[216:219]", tag="UW")
        a.e("ds_write_b128 v8, v[220:223] offset:512", tag="UW")
        a.e(f"""
        s_lshr_b32 s8, {sW}, 1
        s_mul_i32 s8, s8, {4*KCP}
        s_and_b32 s9, {sW}, 1
        s_lshl_b32 s9, s9, 11
        s_add_u32 s8, s8, s9
        s_add_u32 s8, s8, {L_KC}
        v_add_u32 v8, s8, v7
        """)
        a.wait(lg=0)
        a.e("s_barrier")
        for rd in range(2):
            b = 32 + 8 * rd
            a.e(f"ds_read_b128 {v(b,4)}, v8 offset:{1024*rd}", tag=f"S{rd}")
            a.e(f"ds_read_b64 {v(b+4,2)}, v8 offset:{1024*rd+16}", tag=f"S{rd}")
        for rd in range(2):
            b = 32 + 8 * rd
            o = 48 + 12 * rd
            a.wait(lg=f"S{rd}")
            for k in range(4):
                a.e(f"v_alignbit_b32 v{o+k}, v{b+k+1}, v{b+k}, 16")
            a.e(f"ds_write_b128 v8, {v(o,4)} offset:{1024*rd+KCP}", tag="SW")
            for k in range(4):
                a.e(f"v_mov_b32 v{o+4+k}, v{b+k+1}")
            a.e(f"ds_write_b128 v8, {v(o+4,4)} offset:{1024*rd+2*KCP}", tag="SW")
            for k in range(4):
                a.e(f"v_alignbit_b32 v{o+8+k}, v{b+k+2}, v{b+k+1}, 16")
            a.e(f"ds_write_b128 v8, {v(o+8,4)} offset:{1024*rd+3*KCP}", tag="SW")
        a.e(f"""
        v_and_b32 v8, 15, v1               ; i / j
        v_lshrrev_b32 v9, 4, v1            ; g
        v_sub_u32 v14, 15, v8              ; 15-i
        v_and_b32 v15, 3, v14              ; sigma = (3-i)&3
        v_and_b32 v14, 12, v14             ; (15-i) - sigma
        v_lshl_add_u32 v14, v9, 3, v14     ; + 8g
        v_lshlrev_b32 v14, 1, v14
        s_movk_i32 s8, {KCP}
        v_mad_u32_u24 v14, v15, s8, v14
        s_lshr_b32 s8, {sW}, 1
        s_mul_i32 s9, s8, {4*KCP}
        s_and_b32 s10, {sW}, 1
        s_xor_b32 s10, s10, 1
        s_lshl_b32 s10, s10, 8             ; hw=0 (q0 0..3) -> +256 B
        s_add_u32 s9, s9, s10
        s_add_u32 s9, s9, {L_KC}
        v_add_u32 v16, s9, v14
        v_lshlrev_b32 v8, 5, v8
        v_lshl_add_u32 v8, v9, 4, v8
        s_mul_i32 s9, s8, {UP}
        s_add_u32 s9, s9, s10
        s_add_u32 s9, s9, {L_U}
        v_add_u32 v17, s9, v8
        """)
        a.wait(lg=0)
        a.e("s_barrier")

    def conv(self, fill, mid=None):
        a = self.a

        def reads(st):
            A0 = 32 + 64 * (st % 2)
            B0 = 64 + 64 * (st % 2)
            L = []
            for k in range(8):
                offA = 512 * (7 - k) + 64 * (3 - st)
                offB = 512 * k + 64 * (3 - st)
                L.append((f"ds_read_b64 {v(A0+4*k,2)}, v16 offset:{offA}", f"C{st}_{k}"))
                L.append((f"ds_read_b64 {v(A0+4*k+2,2)}, v16 offset:{offA+8}", f"C{st}_{k}"))
                L.append((f"ds_read_b128 {v(B0+4*k,4)}, v17 offset:{offB}", f"C{st}_{k}"))
            return L

        first = set()
        for c_, t_ in reads(0):
            a.e(c_, tag=t_)
        for st in range(4):
            A0 = 32 + 64 * (st % 2)
            B0 = 64 + 64 * (st % 2)
            nxt = reads(st + 1) if st < 3 else []
            pairs = sorted([(q1, m) for q1 in range(8) for m in range(8) if q1 + m <= 7], key=lambda p: (max(p), p[0] + p[1]))
            have = -1
            for n_, (q1, m) in enumerate(pairs):
                if max(q1, m) > have:
                    have = max(q1, m)
                    a.wait(lg=f"C{st}_{have}")
                c = q1 + m
                d = 160 + 4 * c
                cc = v(d, 4) if c in first else "0"
                first.add(c)
                a.e(f"v_mfma_f32_16x16x32_bf16 {v(d,4)}, {v(A0+4*q1,4)}, {v(B0+4*m,4)}, {cc}")
                if nxt and n_ >= 8:
                    c_, t_ = nxt.pop(0)
                    a.e(c_, tag=t_)
                if fill and n_ % self.o.get("cfill", 4) == 1:
                    c_, t_ = fill.pop(0)
                    a.e(c_, tag=t_)
            assert not nxt
            if mid and st in mid:
                mid[st]()
        while fill:
            c_, t_ = fill.pop(0)
            a.e(c_, tag=t_)

    def conv_out(self):
        a = self.a
        a.e(f"""
        s_xor_b32 s8, {sW}, 1
        s_lshl_b32 s8, s8, 12
        v_add_u32 v8, s8, v7
        v_add_u32 v9, s73, v7
        s_and_b32 s8, {sW}, 1
        s_cmp_eq_u32 s8, 0
        s_nop 7
        s_cbranch_scc0 L_hw1
        """)
        for k in range(4):
            a.e(f"ds_write_b128 v8, {v(176+4*k,4)} offset:{L_EX+1024*k}", tag="EX")
        a.e("s_branch L_hwj")
        a.label("L_hw1")
        for k in range(4):
            a.e(f"ds_write_b128 v8, {v(160+4*k,4)} offset:{L_EX+1024*k}", tag="EX")
        a.wait(lg=0)
        for k in range(16):
            a.e(f"v_mov_b32 v{160+k}, v{176+k}")
        a.label("L_hwj")
        a.wait(lg=0)
        a.e("s_barrier")
        for k in range(4):
            a.e(f"ds_read_b128 {v(176+4*k,4)}, v9 offset:{L_EX+1024*k}", tag=f"EY{k}")
        a.e(f"""
        s_lshl_b32 s8, s79, 12
        s_and_b32 s9, {sW}, 1
        s_lshl_b32 s9, s9, 11
        s_add_u32 s8, s8, s9
        s_add_u32 s8, s8, {WS_AT}
        """)
        for cp in range(2):
            for cl in range(2):
                k = 2 * cp + cl
                a.wait(lg=f"EY{k}")
                a.e(f"v_pk_add_f32 {v(160+4*k,2)}, {v(160+4*k,2)}, {v(176+4*k,2)}")
                a.e(f"v_pk_add_f32 {v(162+4*k,2)}, {v(162+4*k,2)}, {v(178+4*k,2)}")
                a.e(f"v_cvt_pk_bf16_f32 v{20+4*cp+2*cl}, v{160+4*k}, v{161+4*k}")
                a.e(f"v_cvt_pk_bf16_f32 v{21+4*cp+2*cl}, v{162+4*k}, v{163+4*k}")
            a.e(f"v_permlane16_swap_b32 v{20+4*cp}, v{22+4*cp}")
            a.e(f"v_permlane16_swap_b32 v{21+4*cp}, v{23+4*cp}")
            a.e(f"buffer_store_dwordx4 {v(20+4*cp,4)}, v7, {R_WS}, s8 offen offset:{1024*cp} sc1", tag="Ast")

    def publish_a(self):
        a = self.a
        a.e(f"""
        s_and_b32 s8, {sW}, 1
        s_lshl_b32 s8, s8, 13
        s_lshl_b32 s9, s79, 4
        s_add_u32 s8, s8, s9
        s_add_u32 s8, s8, {WS_AF}
        """)
        self.publish("s8")

    def poll_h(self):
        a = self.a
        a.e(f"""
        s_lshl_b32 s8, {sX}, 2
        s_lshr_b32 s9, {sI}, 3
        s_add_u32 s8, s8, s9
        s_lshl_b32 s8, s8, 2
        s_add_u32 s8, s8, {sW}
        s_lshl_b32 s8, s8, 7
        s_add_u32 s8, s8, {WS_HF}
        v_min_u32 v9, 6, v1
        v_lshlrev_b32 v9, 4, v9
        """)
        self.poll("v9", "s8", "v8")

    def a_load(self, i, ring):
        r = 32 + 8 * (i % ring)
        return [f"""
        s_lshl_b32 s3, s15, 10
        s_add_u32 s3, s3, s71
        buffer_load_dwordx4 {v(r,4)}, v12, {R_WS}, s3 offen sc1
        buffer_load_dwordx4 {v(r+4,4)}, v13, {R_WS}, s3 offen sc1
        s_add_u32 s15, s15, 1
        s_cmp_eq_u32 s15, 28
        s_cselect_b32 s15, 0, s15
        """]

    def g2(self):
        a = self.a
        RING = 16
        PRE = self.o.get("g2pre", 6)
        for i in range(PRE):
            a.e(self.a_load(i, RING)[0], tag=f"A{i}")
        for i in range(28):
            if i + PRE < 28:
                a.e(self.a_load(i + PRE, RING)[0], tag=f"A{i+PRE}")
            a.wait(vm=f"A{i}")
            if i == 0:
                self.publish_a()
                self.stamp("g2s")
            r = 32 + 8 * (i % RING)
            for rb in range(2):
                for par in range(2):
                    d = 192 + 16 * (2 * rb + par)
                    c = "0" if i == 0 else v(d, 16)
                    a.e(f"v_mfma_f32_32x32x16_bf16 {v(d,16)}, {v(r+4*rb,4)}, {acc(8*i+4*par,4)}, {c}")

    def final(self):
        a = self.a
        self.stamp("g2e")
        for lam in range(1, 4):
            a.e(f"""
            s_xor_b32 s8, {sW}, {lam}
            s_mul_i32 s8, s8, {3*4096}
            v_add_u32 v{13+lam}, s8, v7
            """)
        for lam in range(1, 4):
            rb, hf = lam >> 1, lam & 1
            for par in range(2):
                for q in range(2):
                    d = 192 + 16 * (2 * rb + par) + 8 * hf + 4 * q
                    a.e(f"ds_write_b128 v{13+lam}, {v(d,4)} offset:{L_RED+(lam-1)*4096+(2*par+q)*1024}", tag="RW")
        a.e(f"""
        s_lshr_b32 s9, {sI}, 3             ; m
        s_lshl_b32 s10, {sX}, 5
        s_lshl_b32 s11, s9, 3
        s_add_u32 s10, s10, s11
        s_lshl_b32 s11, {sW}, 1
        s_add_u32 s10, s10, s11
        s_lshl_b32 s8, s10, 4
        s_add_u32 s8, s8, {WS_TF}
        v_and_b32 v8, 1, v1
        v_bfe_u32 v9, v1, 1, 2
        v_lshlrev_b32 v9, 12, v9
        v_lshl_add_u32 v9, v8, 4, v9
        """)
        self.poll("v9", "s8", "v8")
        a.e(f"""
        s_lshl_b32 s8, s10, 7
        s_add_u32 s8, s8, {WS_G}
        v_lshrrev_b32 v9, 5, v1
        v_lshlrev_b32 v9, 4, v9
        """)
        for aa in range(2):
            for pw in range(4):
                a.e(f"buffer_load_dwordx4 {v(32+16*aa+4*pw,4)}, v9, {R_WS}, s8 offen offset:{128*aa+32*pw} sc1", tag="GL")
        a.e(f"""
        s_and_b32 s11, {sI}, 7             ; n
        s_lshl_b32 s12, s11, 6
        s_lshl_b32 s13, {sW}, 4
        s_add_u32 s12, s12, s13
        s_lshr_b32 s8, {sX}, 2
        s_lshl_b32 s8, s8, 13
        s_lshl_b32 s13, s12, 4
        s_add_u32 s8, s8, s13
        s_add_u32 s8, s8, {WS_AF}
        v_and_b32 v9, 15, v1
        v_lshlrev_b32 v9, 4, v9
        """)
        self.poll("v9", "s8", "v8")
        self.stamp("apoll")
        a.e(f"""
        s_lshl_b32 s8, s12, 12
        s_lshr_b32 s13, {sX}, 1
        s_lshl_b32 s13, s13, 10
        s_add_u32 s8, s8, s13
        s_and_b32 s13, {sX}, 1
        s_lshl_b32 s13, s13, 8
        s_add_u32 s8, s8, s13
        s_lshl_b32 s13, s9, 6
        s_add_u32 s8, s8, s13
        s_add_u32 s8, s8, {WS_AT}
        s_add_u32 s13, s8, {8*4096}
        v_lshrrev_b32 v8, 3, v1            ; dl
        v_bfe_u32 v9, v1, 2, 1             ; hf
        v_and_b32 v17, 3, v1               ; jj
        v_lshlrev_b32 v18, 12, v8
        v_lshl_add_u32 v18, v9, 9, v18
        v_lshl_add_u32 v18, v17, 4, v18
        """)
        a.e(f"buffer_load_dwordx4 v[64:67], v18, {R_WS}, s8 offen sc1", tag="AL")
        a.e(f"buffer_load_dwordx4 v[68:71], v18, {R_WS}, s13 offen sc1", tag="AL")
        a.e(f"""
        v_and_b32 v19, 1, v8
        v_lshrrev_b32 v8, 1, v8
        v_lshl_add_u32 v8, v19, 5, v8
        s_lshl_b32 s3, {sW}, 3
        v_add_u32 v8, s3, v8
        v_mul_u32_u24 v8, 144, v8
        v_lshl_add_u32 v8, v17, 5, v8
        v_lshl_add_u32 v8, v9, 4, v8
        v_add_u32 v8, {L_A}, v8
        """)
        for aa in range(2):
            b = 32 + 16 * aa
            for h in range(2):
                a.e(f"v_pk_add_f32 {v(b+2*h,2)}, {v(b+2*h,2)}, {v(b+4+2*h,2)}")
                a.e(f"v_pk_add_f32 {v(b+8+2*h,2)}, {v(b+8+2*h,2)}, {v(b+12+2*h,2)}")
            for h in range(2):
                a.e(f"v_pk_add_f32 {v(b+2*h,2)}, {v(b+2*h,2)}, {v(b+8+2*h,2)}")
        G = [32, 33, 34, 35, 48, 49, 50, 51]
        for g in G:
            a.e(f"v_mul_f32 v{g}, 0xbfb8aa3b, v{g}")
        for g in G:
            a.e(f"v_exp_f32 v{g}, v{g}")
        for g in G:
            a.e(f"v_add_f32 v{g}, 1.0, v{g}")
        for g in G:
            a.e(f"v_rcp_f32 v{g}, v{g}")
        a.wait(vm="AL")
        a.e("ds_write_b128 v8, v[64:67]", tag="AW")
        a.e(f"ds_write_b128 v8, v[68:71] offset:{4*144}", tag="AW")
        a.e(f"""
        s_mul_i32 s8, {sW}, {3*4096}
        v_add_u32 v14, s8, v7
        v_and_b32 v8, 31, v1
        v_lshrrev_b32 v9, 5, v1
        v_mul_u32_u24 v15, 144, v8
        v_lshl_add_u32 v15, v9, 3, v15
        s_lshl_b32 s8, {sW}, 5
        s_add_u32 s8, s8, {L_A}
        v_add_u32 v15, s8, v15
        v_lshlrev_b32 v16, 12, v9
        v_lshl_add_u32 v16, v8, 2, v16
        s_lshl_b32 s8, s10, 13
        s_lshl_b32 s3, s11, 7
        s_add_u32 s8, s8, s3
        s_add_u32 s13, s8, 8192
        """)
        a.wait(lg=0)
        a.e("s_barrier")
        for par in range(2):
            for q in range(2):
                a.e(f"ds_read_b64 {v(72+4*par+2*q,2)}, v15 offset:{par*32*144+16*q}", tag="AR")
        for lam in range(3):
            for pq in range(4):
                a.e(f"ds_read_b128 {v(80+16*lam+4*pq,4)}, v14 offset:{L_RED+lam*4096+pq*1024}", tag=f"RR{lam}")
        a.wait(lg="AR")
        for par in range(2):
            for q in range(2):
                s_ = 72 + 4 * par + 2 * q
                d_ = 128 + 8 * par + 4 * q
                a.e(f"v_lshlrev_b32 v{d_}, 16, v{s_}")
                a.e(f"v_and_b32 v{d_+1}, 0xffff0000, v{s_}")
                a.e(f"v_lshlrev_b32 v{d_+2}, 16, v{s_+1}")
                a.e(f"v_and_b32 v{d_+3}, 0xffff0000, v{s_+1}")
        for lam in range(3):
            a.wait(lg=f"RR{lam}")
            for par in range(2):
                for h in range(4):
                    d = 192 + 16 * par + 2 * h
                    a.e(f"v_pk_add_f32 {v(d,2)}, {v(d,2)}, {v(80+16*lam+8*par+2*h,2)}")
        for par in range(2):
            for h in range(4):
                d = 192 + 16 * par + 2 * h
                s_ = 128 + 8 * par + 2 * h
                a.e(f"v_pk_add_f32 {v(s_,2)}, {v(s_,2)}, {v(d,2)} neg_lo:[0,1] neg_hi:[0,1]")
        for par in range(2):
            for h in range(4):
                d = 192 + 16 * par + 2 * h
                s_ = 128 + 8 * par + 2 * h
                g = G[2 * h]
                a.e(f"v_pk_fma_f32 {v(d,2)}, {v(s_,2)}, {v(g,2)}, {v(d,2)}")
        for r in range(8):
            a.e(f"v_cvt_pk_bf16_f32 v{144+r}, v{192+r}, v{208+r}")
            a.e(f"buffer_store_dword v{144+r}, v16, {R_OUT}, {'s8' if r < 4 else 's13'} offen offset:{(r%4)*1024}", tag="O")
        a.e(f"""
        s_or_b32 s3, s2, {sW}
        s_cmp_eq_u32 s3, 0
        s_cselect_b32 s8, 0, {WS_SIZE}
        """)
        self.publish("s8")

    def build(self):
        a = self.a
        self.prologue()
        a.e(f"s_cmp_ge_u32 {sI}, 28")
        a.e("s_cbranch_scc1 L_spare")
        vm0 = list(a.vm)
        self.stamp("twiss")
        self.dma_stage(0)
        self.stamp("d0iss")
        self.tw_job(True)
        self.stamp("twdone")
        self.dma_stage(1)
        self.stamp("d1iss")
        self.dma_stage(2)
        self.stamp("d2iss")
        self.dma_stage(3)
        self.stamp("d3iss")
        self.epoch_ready()
        self.g1()
        a.e("s_branch L_join")
        nst_join = self.nst
        a.label("L_spare")
        vm_main = list(a.vm)
        a.vm = vm0
        self.tw_job()
        self.params_load()
        self.epoch_ready()
        a.wait(vm=0)
        a.e("s_barrier")
        self.publish_tw()
        a.vm = vm_main
        a.label("L_join")
        self.g2_setup()
        self.poll_tw()
        self.publish_h()
        self.stamp("twpoll")
        self.ut_gather()
        fill = []
        for i in range(28):
            o0, o1 = self.b_load(i)
            fill += [(o0, "B"), (o1, "B")]
        a.e("s_barrier")
        self.kgen(fill)
        self.kmfma(fill)
        self.restage()
        self.stamp("restaged")
        self.conv(fill)
        self.stamp("conve")
        self.poll_h()
        self.conv_out()
        self.g2()
        self.final()
        if self.o.get("amp"):
            self.stamp("end")
            a.e(f"""
            s_waitcnt lgkmcnt(0)
            s_sub_u32 s8, s82, s80
            s_lshl_b32 s8, s8, 2
            s_add_u32 s8, s8, 3000
            s_cmp_ge_u32 {sI}, 28
            s_cbranch_scc1 L_end
            """)
            if self.o["amp"] == 2:
                a.e("s_cmp_lg_u32 s2, 100\ns_cbranch_scc1 L_end")
            a.label("L_pad")
            a.e("""
            s_memrealtime s[98:99]
            s_waitcnt lgkmcnt(0)
            s_sub_u32 s98, s98, s80
            s_cmp_lt_u32 s98, s8
            s_cbranch_scc1 L_pad
            """)
        elif self.stamps:
            a.e("s_memtime s[100:101]")
            a.e("s_waitcnt lgkmcnt(0)")
            a.e(f"""
            s_lshl_b32 s3, s2, 2
            s_add_u32 s3, s3, {sW}
            s_lshl_b32 s3, s3, 6
            s_add_u32 s3, s3, {WS_STAMP}
            s_mov_b64 exec, 1
            """)
            for k in list(range(1, self.nst)) + [10]:
                a.e(f"s_sub_u32 s8, s{80+2*k}, s80\nv_mov_b32 v8, s8\nbuffer_store_dword v8, v3, {R_WS}, s3 offen offset:{4*k}")
        a.label("L_end")
        a.e("s_endpgm")
        hdr = open("gated_mix__ssm_conv_s4__dense_activation_relu__prompt.s.ref").read().split("; Override launch")[0]
        s = hdr + f"; @launch grid=(256,1,1) block=(256,1,1) lds={LDS_BYTES}\n"
        s += '.amdgcn_target "amdgcn-amd-amdhsa--gfx950"\n.text\n'
        s += f".globl {KNAME}\n.p2align 8\n.type {KNAME},@function\n{KNAME}:\n"
        s += a.text()
        s += f""".section .rodata,"a"
.p2align 6
.amdhsa_kernel {KNAME}
  .amdhsa_next_free_vgpr 512
  .amdhsa_next_free_sgpr 102
  .amdhsa_accum_offset 256
  .amdhsa_group_segment_fixed_size 0
  .amdhsa_kernarg_size 128
  .amdhsa_user_sgpr_count 2
  .amdhsa_user_sgpr_kernarg_segment_ptr 1
  .amdhsa_system_sgpr_workgroup_id_x 1
.end_amdhsa_kernel
"""
        return s


if __name__ == "__main__":
    out = sys.argv[1]
    stamps = None
    opts = {}
    for x in sys.argv[2:]:
        if x.startswith("--stamps="): stamps = x.split("=")[1].split(",")
        elif "=" in x: opts[x.split("=")[0]] = int(x.split("=")[1])
    g = Gen(stamps=stamps, opts=opts)
    s = g.build()
    open(out, "w").write(s)
    print("instructions", sum(1 for i in g.a.ins if i.kind != "label"), "auto nops", g.a.nops, "stamps", g.names)
```

```python
import sys
from collections import deque
from emit import Asm

KNAME = "gated_mix__ssm_conv_s4__dense_activation_relu__prompt_kernel"

WS_TF = 0x1000
WS_HF = 0x9000
WS_AF = 0xE000
WS_G = 0x12000
WS_STAMP = 0x20000
WS_PAD = 0x80000
WS_UT = 0x100000
WS_AT = 0x300000
WS_H = 0x500000
WS_SIZE = 0xC00000

XPOS = [0, 32768, 49152]
WPOS = [16384, 65536, 81920]
L_KC = 0
KCP = 4160
L_TAB = 33536
TROW = 1056
NROW = 67
TSPLIT = 28
L_U = 104320
UP = 4608
L_BS = 114688
BSN = 6
L_EX = 33536
L_RED = 49920
L_A = 0
LDS_BYTES = 163840
YB = {0: 16, 1: 35, 2: 45, 3: 50, 4: 55, 5: 58, 6: 61, 7: 64}

sX, sI, sW, sEP = "s4", "s5", "s6", "s7"
P_U, P_ARE, P_AIM, P_BRE, P_BIM, P_CRE, P_CIM, P_LDT = [f"s[{16+2*i}:{17+2*i}]" for i in range(8)]
P_DSK, P_BX, P_W1, P_W2, P_GW, P_OUT, P_DBG, P_WS = [f"s[{32+2*i}:{33+2*i}]" for i in range(8)]
R_U, R_W1, R_W2, R_OUT, R_WS = "s[48:51]", "s[52:55]", "s[56:59]", "s[60:63]", "s[64:67]"
sH0, sH1, sHF, sUG0, sUG1, sAT, sAF, sTM0, sTM1 = [f"s{16+i}" for i in range(9)]
sBB = [f"s{25+i}" for i in range(4)]
sAB = [f"s{29+i}" for i in range(4)]
sBS = "s76"
vKX, vKY, vKWA, vKWB, vUW, vCA, vCB, vEXD, vEXO, vTF, vHF, vUG, vKZ, vPD = 240, 241, 244, 245, 246, 247, 248, 249, 250, 251, 252, 253, 254, 255
KRES = list(range(32, 80)) + list(range(216, 235))


def v(a, n=1):
    return f"v{a}" if n == 1 else f"v[{a}:{a+n-1}]"


def acc(a, n=1):
    return f"a{a}" if n == 1 else f"a[{a}:{a+n-1}]"


def lines(t):
    return [x.strip() for x in t.strip().split("\n") if x.strip() and not x.strip().startswith(";")]


class Gen:
    def __init__(self, stamps=None, opts=None):
        self.a = Asm()
        self.stamps = stamps
        self.names = []
        self.o = opts or {}
        self.npoll = 0
        self.b_iss = 0
        self.b_con = 0
        self.bg = deque()

    def stamp(self, name):
        if self.stamps and (name == "start" or name in self.stamps):
            if name not in self.names:
                self.names.append(name)
            k = self.names.index(name)
            assert k < 10
            self.a.e(f"{'s_memrealtime' if self.o.get('amp') else 's_memtime'} s[{80+2*k}:{81+2*k}]")

    def push(self, text, tag=None):
        for l in lines(text):
            self.bg.append(lambda l=l, tag=tag: self.a.e(l, tag=tag))

    def pushf(self, f):
        self.bg.append(f)

    def pushw(self, **kw):
        self.bg.append(lambda: self.a.wait(**kw))

    def drain(self, n=10**9):
        while n > 0 and self.bg:
            self.bg.popleft()()
            n -= 1

    def publish(self, soff):
        a = self.a
        a.e("s_mov_b64 exec, 1")
        a.e(f"buffer_store_dword v2, v3, {R_WS}, {soff} offen sc1", tag="flag")
        a.e("s_mov_b64 exec, -1")

    def poll(self, voff, tmp):
        a = self.a
        n = self.npoll
        self.npoll += 1
        a.e("s_mov_b32 s3, 0")
        a.label(f"L_poll{n}")
        a.raw(f"buffer_load_dword {tmp}, {voff}, {R_WS}, 0 offen sc1")
        a.e("s_add_u32 s3, s3, 1")
        a.wait(vm=0)
        a.e(f"v_cmp_ne_u32 vcc, {sEP}, {tmp}")
        a.e("s_cmp_gt_u32 s3, 3000")
        a.e(f"s_cbranch_scc1 L_pollx{n}")
        a.e(f"s_cbranch_vccz L_pollx{n}")
        a.e("s_sleep 2")
        a.e(f"s_branch L_poll{n}")
        a.label(f"L_pollx{n}")

    def poll_issue(self, voff, tmp, tag):
        self.a.e(f"buffer_load_dword {tmp}, {voff}, {R_WS}, 0 offen sc1", tag=tag)

    def poll_check(self, voff, tmp, tag):
        a = self.a
        n = self.npoll
        a.wait(vm=tag)
        a.e(f"v_cmp_ne_u32 vcc, {sEP}, {tmp}")
        a.e(f"s_cbranch_vccz L_pollx{n}")
        self.poll(voff, tmp)

    def epoch_master(self):
        a = self.a
        a.e(f"""
        s_lshl_b32 s3, s2, 2
        s_add_u32 s3, s3, {sW}
        s_cmp_lg_u32 s3, 1023
        s_cbranch_scc1 L_nomaster
        s_load_dword s3, {P_WS}, 0
        s_waitcnt lgkmcnt(0)
        s_mul_i32 s3, s3, 1664525
        s_add_u32 s3, s3, 1013904223
        s_cmp_eq_u32 s3, 0
        s_cselect_b32 s3, 1, s3
        v_mov_b32 v8, s3
        s_mov_b64 exec, 1
        """)
        a.raw(f"global_store_dword v3, v8, {P_DBG} sc1")
        a.raw(f"global_store_dword v3, v8, {P_WS} sc1")
        a.e("s_mov_b64 exec, -1")
        a.label("L_nomaster")

    def epoch_issue(self):
        self.a.e(f"global_load_dword v2, v3, {P_DBG} sc1", tag="EP")

    def epoch_check(self):
        a = self.a
        n = self.npoll
        self.npoll += 1
        a.wait(vm="EP")
        a.e("s_mov_b32 s3, 0")
        a.label(f"L_ep{n}")
        a.e(f"v_readfirstlane_b32 {sEP}, v2")
        a.e("s_add_u32 s3, s3, 1")
        a.e(f"s_cmp_lg_u32 {sEP}, 0")
        a.e(f"s_cbranch_scc1 L_epx{n}")
        a.e("s_cmp_gt_u32 s3, 3000")
        a.e(f"s_cbranch_scc1 L_epx{n}")
        a.e("s_sleep 2")
        a.raw(f"global_load_dword v2, v3, {P_DBG} sc1")
        a.wait(vm=0)
        a.e(f"s_branch L_ep{n}")
        a.label(f"L_epx{n}")

    def prologue(self):
        a = self.a
        a.e("s_cmp_ge_u32 s2, 256\ns_cbranch_scc1 L_end")
        self.stamp("start")
        if self.stamps and not self.o.get("amp"):
            a.e("s_memrealtime s[68:69]")
        a.e(f"""
        s_load_dwordx16 s[16:31], s[0:1], 0
        s_load_dwordx16 s[32:47], s[0:1], 64
        s_lshr_b32 {sI}, s2, 3
        """)
        if self.o.get("cpf", 1):
            a.e(f"""
            s_getpc_b64 s[8:9]
            L_pc:
            s_lshl_b32 s3, {sI}, 10
            v_lshl_add_u32 v5, v0, 2, s3
            v_min_u32 v5, L_end-L_pc, v5
            """)
            a.e("global_load_dword v5, v5, s[8:9]", tag="CPF")
        a.e(f"""
        v_and_b32 v1, 63, v0
        v_lshrrev_b32 v4, 6, v0
        s_and_b32 {sX}, s2, 7
        v_readfirstlane_b32 {sW}, v4
        v_mov_b32 v3, 0
        v_lshlrev_b32 v7, 4, v1            ; lane*16
        s_mul_i32 s77, {sI}, 37
        s_lshr_b32 s77, s77, 8
        s_mul_i32 s13, s77, 7
        s_sub_u32 s78, {sI}, s13           ; ct
        s_lshr_b32 s11, {sX}, 1            ; R
        s_lshl_b32 s11, s11, 2
        s_add_u32 s11, s11, s77
        s_lshl_b32 s70, s11, 17
        s_and_b32 s11, {sX}, 1
        s_mul_i32 s11, s11, 7
        s_add_u32 s11, s11, s78
        s_lshl_b32 s71, s11, 8
        """)
        g = self.o.get("g1rot", 4)
        if g == 8:
            a.e("s_lshl_b32 s11, s77, 1\ns_add_u32 s72, s11, s78")
        elif g == 4:
            a.e("s_add_u32 s72, s77, s78\ns_lshl_b32 s72, s72, 1")
        elif g == 2:
            a.e("s_add_u32 s72, s77, s78\ns_lshl_b32 s72, s72, 2")
        else:
            a.e("s_mov_b32 s72, 0")
        if self.o.get("xrot", 0):
            a.e(f"s_mul_i32 s11, {sX}, {self.o['xrot']}\ns_lshr_b32 s11, s11, 1\ns_add_u32 s72, s72, s11")
        a.e(f"""
        s_lshl_b32 s73, {sW}, 12           ; wave*4096
        s_lshl_b32 s8, {sI}, 1
        s_lshr_b32 s9, {sW}, 1
        s_add_u32 s8, s8, s9
        s_lshl_b32 s8, s8, 3
        s_add_u32 s79, s8, {sX}            ; d
        s_and_b32 s9, {sW}, 1
        s_lshl_b32 s9, s9, 7
        s_lshl_b32 s8, s79, 8
        s_add_u32 s8, s8, s9
        v_lshl_add_u32 v12, v1, 1, s8      ; d*256 + (64*(w&1)+l)*2
        s_lshl_b32 s8, s79, 1
        v_mov_b32 v13, s8
        """)
        for k in range(8):
            a.e(f"v_mov_b32 v{176+k}, 0")
        a.e(f"""
        v_lshrrev_b32 v8, 3, v1            ; l>>3
        v_lshl_add_u32 v8, v4, 5, v8       ; 32w + (l>>3)
        v_lshlrev_b32 v8, 10, v8           ; *1024
        v_lshrrev_b32 v9, 4, v1            ; l>>4
        v_and_b32 v10, 7, v1
        v_xor_b32 v10, v10, v9             ; pos ^ (l>>4)
        v_lshl_add_u32 v16, v10, 4, v8
        v_xor_b32 v10, 4, v10
        v_lshl_add_u32 v17, v10, 4, v8
        v_add_u32 v17, {8192-1024}, v17
        v_add_u32 v18, {2*(8192-1024)}, v16
        v_add_u32 v19, {2*(8192-1024)}, v17
        v_lshl_add_u32 v8, v4, 4, v9       ; 16w + (l>>4)
        v_mul_u32_u24 v8, 3584, v8
        v_and_b32 v10, 15, v1
        v_lshlrev_b32 v11, 2, v9
        v_xor_b32 v10, v10, v11
        v_lshl_add_u32 v20, v10, 4, v8
        v_add_u32 v21, {4*3584-1024}, v20
        v_add_u32 v22, {2*(4*3584-1024)}, v20
        v_add_u32 v23, {3*(4*3584-1024)}, v20
        s_mov_b32 s50, {2048*1024}
        s_mov_b32 s51, 0x00020000
        s_mov_b32 s54, {512*3584}
        s_mov_b32 s55, 0x00020000
        s_mov_b32 s58, {1792*1024}
        s_mov_b32 s59, 0x00020000
        s_mov_b32 s62, {2048*1024}
        s_mov_b32 s63, 0x00020000
        s_mov_b32 s66, {WS_SIZE}
        s_mov_b32 s67, 0x00020000
        """)
        a.e(self.dma_setup(0))
        a.e("s_waitcnt lgkmcnt(0)")
        self.stamp("karg")
        a.e(f"""
        s_mov_b64 s[48:49], s[16:17]
        s_mov_b64 s[52:53], s[36:37]
        s_mov_b64 s[56:57], s[38:39]
        s_mov_b64 s[60:61], s[42:43]
        s_mov_b64 s[64:65], s[46:47]
        """)

    def params_load(self):
        a = self.a
        for k, p in enumerate((P_ARE, P_AIM, P_BRE, P_BIM, P_CRE, P_CIM)):
            a.e(f"global_load_short_d16_hi v{176+k}, v12, {p}", tag="P")
        a.e(f"global_load_short_d16_hi v182, v13, {P_LDT}", tag="P")
        a.e(f"global_load_short_d16_hi v183, v13, {P_DSK}", tag="P")

    def tlb_touch(self):
        a = self.a
        if not self.o.get("tlb", 1):
            return
        a.e(f"""
        v_min_u32 v8, 5, v1
        v_lshlrev_b32 v8, 21, v8
        v_add_u32 v8, {WS_PAD}, v8
        """)
        a.e(f"buffer_load_dword v6, v8, {R_WS}, 0 offen", tag="TLB")
        a.e(f"buffer_load_dword v6, v3, {R_W2}, 0 offen", tag="TLB")

    def dma_setup(self, s):
        return f"""
        s_add_u32 s11, s72, {s}
        s_and_b32 s11, s11, 7
        s_lshl_b32 s74, s11, 7
        s_add_u32 s74, s74, s70
        s_mul_i32 s75, s11, {64*3584}
        s_add_u32 s75, s75, s71
        """

    def dma_ops(self, s):
        slot = (s + 2) % 3
        ops = []
        for i in range(4):
            pre = f"s_add_u32 m0, s73, {XPOS[slot]}\n" if i == 0 else ""
            ops.append(pre + f"buffer_load_dwordx4 v{16+i}, {R_U}, s74 offen offset:{i*1024} lds")
        for i in range(4):
            pre = f"s_add_u32 m0, s73, {WPOS[slot]}\n" if i == 0 else ""
            ops.append(pre + f"buffer_load_dwordx4 v{20+i}, {R_W1}, s75 offen offset:{i*1024} lds")
        return ops

    def setup(self):
        a = self.a
        a.e(f"""
        v_and_b32 v8, 31, v1               ; t
        v_lshrrev_b32 v9, 5, v1            ; g
        v_lshrrev_b32 v10, 1, v8
        v_and_b32 v10, 7, v10
        v_xor_b32 v10, v10, v9             ; g ^ f
        s_lshr_b32 s8, {sW}, 1
        s_lshl_b32 s8, s8, 13              ; wm*64*128
        v_lshl_add_u32 v8, v8, 7, s8
        v_lshl_add_u32 v24, v10, 4, v8
        v_xor_b32 v25, 32, v24
        v_xor_b32 v26, 64, v24
        v_xor_b32 v27, 96, v24
        v_bfe_u32 v8, v1, 2, 2             ; r
        v_lshl_add_u32 v10, v9, 3, v8      ; 8*(G>>1) + r
        v_lshlrev_b32 v10, 8, v10          ; *256
        s_and_b32 s8, {sW}, 1
        s_lshl_b32 s8, s8, 1
        v_xor_b32 v8, s8, v8               ; (2wn) ^ r
        v_lshl_add_u32 v10, v8, 6, v10
        v_bfe_u32 v8, v1, 4, 1
        v_lshl_add_u32 v10, v8, 5, v10
        v_and_b32 v8, 3, v1
        v_lshl_add_u32 v10, v8, 3, v10
        v_add_u32 v28, {WPOS[0]}, v10
        v_xor_b32 v29, 64, v28
        v_add_u32 v14, {WPOS[2]}, v10
        v_xor_b32 v15, 64, v14
        """)
        a.e(f"""
        s_lshl_b32 s8, {sX}, 4
        s_lshl_b32 s9, s77, 2
        s_add_u32 s8, s8, s9
        s_and_b32 s9, {sW}, 2
        s_add_u32 s8, s8, s9
        s_mul_i32 s8, s8, 56
        s_lshl_b32 s9, s78, 3
        s_add_u32 s8, s8, s9
        s_and_b32 s9, {sW}, 1
        s_lshl_b32 s9, s9, 2
        s_add_u32 s8, s8, s9
        s_lshl_b32 s8, s8, 10
        s_add_u32 s8, s8, {WS_H}
        s_cmp_ge_u32 {sI}, 28
        s_cselect_b32 {sH0}, {WS_SIZE}, s8
        s_add_u32 {sH1}, {sH0}, {56*1024}
        s_lshr_b32 s8, {sX}, 1
        s_lshl_b32 s8, s8, 2
        s_add_u32 s8, s8, s77
        s_lshl_b32 s8, s8, 1
        s_lshr_b32 s9, {sW}, 1
        s_add_u32 s8, s8, s9
        s_lshl_b32 s8, s8, 1
        s_and_b32 s9, {sX}, 1
        s_add_u32 s8, s8, s9
        s_lshl_b32 s8, s8, 8               ; *2 groups*128B
        s_lshl_b32 s9, s78, 1
        s_and_b32 s10, {sW}, 1
        s_add_u32 s9, s9, s10              ; 2ct+wn
        s_cmp_ge_u32 s9, 7
        s_cselect_b32 s10, {128-7*16}, 0
        s_lshl_b32 s9, s9, 4
        s_add_u32 s8, s8, s9
        s_add_u32 s8, s8, s10
        s_add_u32 s8, s8, {WS_HF}
        s_cmp_ge_u32 {sI}, 28
        s_cselect_b32 {sHF}, {WS_SIZE}, s8
        """)
        a.e(f"""
        v_lshrrev_b32 v8, 1, v1
        v_and_b32 v9, 1, v1
        v_lshlrev_b32 v10, 13, v8
        v_lshl_add_u32 v{vUG}, v9, 4, v10
        s_lshl_b32 s8, {sW}, 19            ; 64w*8192
        s_lshl_b32 s9, {sX}, 10
        s_add_u32 s8, s8, s9
        s_lshl_b32 s9, {sI}, 5
        s_add_u32 s8, s8, s9
        s_add_u32 {sUG0}, s8, {WS_UT}
        s_add_u32 {sUG1}, {sUG0}, {32*8192}
        s_movk_i32 s8, {UP}
        v_lshlrev_b32 v8, 4, v8
        v_mad_u32_u24 v8, v9, s8, v8
        s_lshl_b32 s8, {sW}, 10
        s_add_u32 s9, s8, {L_U + 480}
        v_add_u32 v{vUW}, s9, v8
        v_and_b32 v8, 31, v1
        s_add_u32 s8, s8, {WS_TF}
        v_lshl_add_u32 v{vTF}, v8, 5, s8
        s_lshl_b32 s8, {sX}, 2
        s_lshr_b32 s9, {sI}, 3
        s_add_u32 s8, s8, s9
        s_lshl_b32 s8, s8, 2
        s_add_u32 s8, s8, {sW}
        s_lshl_b32 s8, s8, 7
        s_add_u32 s8, s8, {WS_HF}
        v_min_u32 v8, 6, v1
        v_lshl_add_u32 v{vHF}, v8, 4, s8
        s_and_b32 s9, {sW}, 1
        s_lshl_b32 s8, s79, 12
        s_lshl_b32 s10, s9, 11
        s_add_u32 s8, s8, s10
        s_add_u32 {sAT}, s8, {WS_AT}
        s_lshl_b32 s8, s9, 13
        s_lshl_b32 s10, s79, 4
        s_add_u32 s8, s8, s10
        s_add_u32 {sAF}, s8, {WS_AF}
        s_lshl_b32 s8, {sW}, 8
        s_add_u32 {sTM0}, s8, {L_TAB}
        s_add_u32 {sTM1}, s8, {L_TAB + TSPLIT*TROW}
        s_xor_b32 s8, {sW}, 1
        s_lshl_b32 s8, s8, 12
        s_add_u32 s8, s8, {L_EX}
        v_add_u32 v{vEXD}, s8, v7
        s_add_u32 s8, s73, {L_EX}
        v_add_u32 v{vEXO}, s8, v7
        """)
        a.e(f"""
        s_lshr_b32 s8, {sW}, 1             ; channel
        s_lshl_b32 s9, s8, 9
        s_add_u32 s9, s9, {L_TAB}
        v_and_b32 v8, 15, v1
        v_lshrrev_b32 v9, 4, v1
        v_lshl_add_u32 v10, v9, 4, s9      ; base + g*16
        s_movk_i32 s10, {TROW}
        v_mad_u32_u24 v{vKX}, v8, s10, v10
        s_and_b32 s11, {sW}, 1
        s_cmp_eq_u32 s11, 0
        s_cselect_b64 vcc, -1, 0
        v_lshrrev_b32 v11, 2, v8           ; gi
        v_and_b32 v4, 3, v8                ; r
        v_min_u32 v30, 2, v4               ; min(r,2)
        v_lshrrev_b32 v31, 1, v11
        v_lshl_add_u32 v12, v11, 1, v31
        v_add3_u32 v12, v12, v30, {YB[2]}
        v_add_u32 v13, {YB[0]}, v8
        v_cndmask_b32 v12, v12, v13, vcc
        v_mad_u32_u24 v{vKY}, v12, s10, v10
        v_mad_u32_u24 v12, v11, 3, v30
        v_add_u32 v12, {YB[4]}, v12
        v_min_u32 v13, 14, v8
        v_add_u32 v13, {YB[0]+4}, v13
        v_cndmask_b32 v12, v12, v13, vcc
        v_mad_u32_u24 v{vKY+1}, v12, s10, v10
        v_lshl_add_u32 v12, v11, 1, v4
        v_add_u32 v12, {YB[1]}, v12
        v_mad_u32_u24 v{vKY+2}, v12, s10, v10
        s_mul_i32 s9, s8, {4*KCP}
        s_add_u32 s9, s9, {L_KC}
        v_lshlrev_b32 v11, 5, v8           ; 32j
        v_sub_u32 v11, s9, v11             ; base - 32j
        v_lshlrev_b32 v12, 3, v9
        v_sub_u32 v12, v11, v12
        v_add_u32 v12, {4088-512}, v12
        v_lshrrev_b32 v13, 1, v9
        v_lshlrev_b32 v13, 9, v13
        v_and_b32 v4, 1, v9
        v_lshl_add_u32 v13, v4, 4, v13     ; 512(g>>1) + 16(g&1)
        v_sub_u32 v13, v11, v13
        v_add_u32 v13, {4080-1024}, v13
        v_cndmask_b32 v{vKWA}, v13, v12, vcc
        v_lshlrev_b32 v13, 9, v9
        v_sub_u32 v13, v11, v13
        v_add_u32 v{vKWB}, {4064-2048}, v13
        v_add_u32 v11, 1, v8
        v_and_b32 v11, 3, v11              ; sigma
        v_sub_u32 v12, 18, v8
        v_and_b32 v12, 28, v12
        v_lshl_add_u32 v12, v9, 3, v12
        v_lshlrev_b32 v12, 1, v12
        s_movk_i32 s10, {KCP}
        v_mad_u32_u24 v12, v11, s10, v12
        s_xor_b32 s11, s11, 1
        s_lshl_b32 s11, s11, 8             ; hw=0 (q0 0..3) -> +256 B
        s_add_u32 s12, s9, s11
        v_add_u32 v{vCA}, s12, v12
        v_lshlrev_b32 v12, 5, v8
        v_lshl_add_u32 v12, v9, 4, v12
        s_mul_i32 s12, s8, {UP}
        s_add_u32 s12, s12, s11
        s_add_u32 s12, s12, {L_U}
        v_add_u32 v{vCB}, s12, v12
        v_lshrrev_b32 v11, 3, v1
        v_and_b32 v12, 7, v1
        v_lshlrev_b32 v12, 3, v12
        v_mad_u32_u24 v12, v11, s10, v12
        s_add_u32 s12, s9, 4096
        v_add_u32 v{vKZ}, s12, v12
        v_min_u32 v11, 59, v1
        v_lshlrev_b32 v11, 3, v11
        s_mul_i32 s12, s8, {UP}
        s_add_u32 s12, s12, {L_U}
        v_add_u32 v11, s12, v11
        v_mov_b32 v12, 0
        v_mov_b32 v13, 0
        """)
        a.e("ds_write_b64 v11, v[12:13]", tag="Z")
        a.e(f"""
        v_lshrrev_b32 v8, 3, v1
        v_lshlrev_b32 v8, 10, v8
        v_bfe_u32 v9, v1, 4, 1
        v_lshlrev_b32 v9, 2, v9
        v_and_b32 v10, 7, v1
        v_xor_b32 v10, v10, v9
        v_lshl_add_u32 v10, v10, 4, v8
        s_mul_i32 {sBS}, {sW}, {BSN*2048}
        s_add_u32 {sBS}, {sBS}, {L_BS}
        v_lshrrev_b32 v8, 5, v1            ; g
        v_bfe_u32 v9, v1, 2, 2             ; r
        v_lshl_add_u32 v8, v8, 2, v9       ; 4g + r
        v_lshl_add_u32 v8, v8, 7, {sBS}
        v_bfe_u32 v9, v1, 3, 1             ; (r>>1)&1
        v_lshl_add_u32 v8, v9, 6, v8
        v_bfe_u32 v9, v1, 4, 1
        v_lshl_add_u32 v8, v9, 5, v8
        v_and_b32 v9, 3, v1
        v_lshl_add_u32 v30, v9, 3, v8
        v_xor_b32 v31, 64, v30
        v_add_u32 v11, {8192-1024}, v10
        s_and_b32 s8, {sI}, 7              ; n
        s_lshr_b32 s9, {sI}, 3             ; m
        s_mul_i32 s12, {sW}, {28*16384}
        s_lshl_b32 s10, s8, 7
        s_add_u32 s12, s12, s10            ; w2 base
        s_and_b32 s10, {sX}, 6
        s_lshr_b32 s11, {sW}, 1
        s_add_u32 s10, s10, s11
        s_lshl_b32 s10, s10, 4
        s_and_b32 s11, {sX}, 1
        s_lshl_b32 s11, s11, 3
        s_add_u32 s10, s10, s11
        s_lshl_b32 s11, s9, 1
        s_add_u32 s10, s10, s11            ; + 8(x&1) + 2m
        s_mul_i32 s10, s10, 56
        s_and_b32 s11, {sW}, 1
        s_mul_i32 s3, s11, 28
        s_add_u32 s10, s10, s3
        s_lshl_b32 s10, s10, 10
        s_add_u32 s13, s10, {WS_H}         ; h base
        s_lshl_b32 s11, s11, 8
        v_xor_b32 v8, s11, v7              ; (l ^ 16(w&1))*16
        s_lshr_b32 s11, {sW}, 1
        s_mul_i32 s3, s11, {56*1024}
        v_add_u32 v12, s3, v8
        s_sub_u32 s3, {56*1024}, s3
        v_add_u32 v13, s3, v8
        s_add_u32 s10, s8, s9
        """)
        g = self.o.get("g2rot", 2)
        if g == 2:
            a.e("s_lshl_b32 s10, s10, 1")
        elif g == 1:
            a.e("s_mov_b32 s10, 0")
        for k in range(4):
            a.e(f"""
            s_add_u32 s11, s10, {k}
            s_and_b32 s11, s11, 3
            s_mul_i32 s3, s11, {7*16384}
            s_add_u32 {sBB[k]}, s12, s3
            s_mul_i32 s3, s11, {7*1024}
            s_add_u32 {sAB[k]}, s13, s3
            """)

    def t_job(self):
        a = self.a
        a.e(f"""
        s_sub_u32 s8, {sI}, 28
        s_lshl_b32 s9, {sX}, 2
        s_add_u32 s8, s8, s9
        s_lshl_b32 s8, s8, 2
        s_add_u32 s70, s8, {sW}
        s_lshl_b32 s8, s70, 14
        """)
        a.e(f"global_load_dwordx4 v[96:99], v7, {P_GW}", tag="T0")
        for q in range(4):
            for r in range(4):
                a.e(f"buffer_load_dwordx4 {v(32+16*q+4*r,4)}, v7, {R_U}, s8 offen offset:{r*1024}", tag=f"T{q//2}")
            a.e("s_add_u32 s8, s8, 4096")
            if q == 2:
                self.epoch_master()
        self.params_load()
        a.e(f"""
        s_mov_b32 s12, 0x05040100
        s_mov_b32 s13, 0x07060302
        s_lshl_b32 s8, s70, 14
        s_add_u32 s8, s8, {WS_UT}
        """)
        for blk in range(2):
            a.wait(vm=f"T{blk}")
            self.stamp(f"t{blk}")
            if blk == 1:
                self.gate_tail()
            for c8 in range(8):
                o = 100 + 4 * c8
                for k in range(4):
                    r0 = 32 + 32 * blk + 8 * k + c8 // 2
                    a.e(f"v_perm_b32 v{o+k}, v{r0+4}, v{r0}, s{12+(c8&1)}")
                a.e(f"buffer_store_dwordx4 {v(o,4)}, v7, {R_WS}, s8 offen offset:{(c8%4)*1024} sc1", tag="Tst")
                if c8 % 4 == 3:
                    a.e("s_add_u32 s8, s8, 4096")
                if blk == 1:
                    self.drain(12)
            if blk == 0:
                for q in range(4):
                    for r in range(8):
                        a.e(f"v_dot2_f32_bf16 v{132+r}, v{32+4*r+q}, v{96+q}, {'0' if q == 0 else 'v%d' % (132+r)}")
        self.drain()
        self.epoch_issue()
        self.stamp("tst")
        self.setup()
        self.epoch_check()
        a.e(f"s_lshl_b32 s8, s70, 5\ns_add_u32 s8, s8, {WS_TF}")
        self.publish("s8")
        self.stamp("tpub")
        if self.o.get("w2warm", 1):
            a.e(f"s_mul_i32 s8, s70, {14*1024}")
            for k in range(14):
                a.e(f"buffer_load_dwordx4 {v(184+4*(k%8),4)}, v7, {R_W2}, s8 offen offset:{(k%4)*1024}", tag="WW")
                if k % 4 == 3:
                    a.e("s_add_u32 s8, s8, 4096")

    def gate_tail(self):
        P = self.push
        for q in range(4):
            for r in range(8, 16):
                P(f"v_dot2_f32_bf16 v{132+r}, v{32+4*r+q}, v{96+q}, {'0' if q == 0 else 'v%d' % (132+r)}")
        prs = [(4*j+e_, 4*j+e_+2) for j in range(4) for e_ in range(2)]
        for p, q in prs:
            P(f"v_permlane32_swap_b32 v{132+p}, v{132+q}")
        for p, q in prs:
            P(f"v_add_f32 v{132+p}, v{132+p}, v{132+q}")
        for j in range(4):
            P(f"v_permlane16_swap_b32 v{132+4*j}, v{133+4*j}")
        for j in range(4):
            P(f"v_add_f32 v{132+4*j}, v{132+4*j}, v{133+4*j}")
        for r in (8, 4, 2, 1):
            for j in range(4):
                P(f"v_add_f32_dpp v{132+4*j}, v{132+4*j}, v{132+4*j} row_ror:{r} row_mask:0xf bank_mask:0xf")
        P(f"""
        v_and_b32 v8, 3, v1
        v_cmp_eq_u32 vcc, 1, v8
        v_cndmask_b32 v132, v132, v136, vcc
        v_cmp_eq_u32 vcc, 2, v8
        v_cndmask_b32 v132, v132, v140, vcc
        v_cmp_eq_u32 vcc, 3, v8
        v_cndmask_b32 v132, v132, v144, vcc
        v_mul_f32 v132, 0xbfb8aa3b, v132
        v_exp_f32 v132, v132
        v_lshrrev_b32 v9, 4, v1
        v_lshlrev_b32 v9, 2, v9
        v_add_f32 v132, 1.0, v132
        v_rcp_f32 v132, v132
        v_lshl_add_u32 v9, v8, 4, v9
        s_lshl_b32 s9, s70, 6
        s_add_u32 s9, s9, {WS_G}
        """)

        def st():
            a = self.a
            a.e("s_mov_b32 exec_lo, 0x000f000f\ns_mov_b32 exec_hi, 0x000f000f")
            a.e(f"buffer_store_dword v132, v9, {R_WS}, s9 offen sc1", tag="Tst")
            a.e("s_mov_b64 exec, -1")
        self.pushf(st)

    def kgen(self, fill):
        a = self.a
        E = lambda k: 80 + 2 * (k - 1)
        F = lambda c: 116 + 2 * (c - 1)
        X0 = 130
        a.wait(vm="P")
        self.stamp("kgs")
        a.e(f"""
        v_mul_f32 v134, 0x3fb8aa3b, v182
        v_exp_f32 v134, v134
        v_pk_mul_f32 v[138:139], v[180:181], v[178:179] op_sel_hi:[1,0]
        v_cvt_pk_bf16_f32 v134, v134, v134
        v_pk_fma_f32 v[138:139], v[180:181], v[178:179], v[138:139] op_sel:[1,1,0] op_sel_hi:[0,1,1] neg_lo:[1,0,0]
        v_and_b32 v134, 0xffff0000, v134
        v_mov_b32 v{KRES[YB[0]]}, 0x3f80
        v_mul_f32 v135, v134, v176         ; zr
        v_mul_f32 v136, v134, v177         ; zi
        v_pk_mul_f32 v[{X0}:{X0+1}], v[138:139], v[134:135] op_sel_hi:[1,0]
        v_mul_f32 v135, 0x3fb8aa3b, v135
        v_mul_f32 v136, 0.15915494, v136   ; revolutions
        v_mul_f32 v142, 0x41800000, v135
        v_mul_f32 v143, 0x41800000, v136
        v_mul_f32 v144, 0x43800000, v135
        v_mul_f32 v145, 0x43800000, v136
        v_fract_f32 v141, v136
        v_fract_f32 v143, v143
        v_fract_f32 v145, v145
        v_exp_f32 v140, v135
        v_exp_f32 v142, v142
        v_exp_f32 v144, v144
        """)
        for dst, t in ((E(1), 140), (E(16), 142), (F(1), 144)):
            a.e(f"v_cos_f32 v{dst}, v{t+1}\nv_sin_f32 v{dst+1}, v{t+1}")
        for dst, t in ((E(1), 140), (E(16), 142), (F(1), 144)):
            a.e(f"v_pk_mul_f32 {v(dst,2)}, {v(dst,2)}, {v(t,2)} op_sel_hi:[1,0]")
        src = {2: (1, 1), 3: (2, 1), 4: (2, 2), 5: (4, 1), 6: (4, 2), 7: (4, 3), 8: (4, 4), 17: (16, 1), 18: (16, 2)}
        for k in range(9, 16):
            src[k] = (8, k - 8)
        ej = [(E(k), E(src[k][0]), E(src[k][1]), YB[0] + k, False) for k in (2, 17, 3, 4, 18, 5, 6, 7, 8, 9, 10, 11, 12, 13, 14, 15)]
        fsrc = {2: (1, 1), 3: (2, 1), 4: (2, 2), 5: (4, 1), 6: (4, 2), 7: (4, 3)}
        fj = [(F(c), F(fsrc[c][0]), F(fsrc[c][1]), YB[c], False) for c in range(2, 8)]
        xj = [(X0 + 2 * (k % 2), X0 + 2 * ((k - 1) % 2), E(16), k, True) for k in range(1, 16)]
        pj = []
        tmp = list(range(146, 170, 2))
        ti = 0
        for c in range(1, 8):
            step = {1: 2, 2: 4, 3: 4}.get(c, 8)
            top = 19 if c == 1 else 17
            for n_, rho in enumerate(range(step, top, step)):
                pj.append((tmp[ti % len(tmp)], F(c), E(rho), YB[c] + 1 + n_, False))
                ti += 1
        others = []
        q1, q2 = list(ej), list(fj)
        while q1 or q2:
            if q1:
                others.append(q1.pop(0))
            if q2:
                others.append(q2.pop(0))
        others += pj
        order = []
        xs = list(xj)
        while others or xs:
            grp = []
            if xs:
                grp.append(xs.pop(0))
            while others and len(grp) < 4:
                j = others[0]
                if any(g[0] in (j[1], j[2]) or g[0] == j[0] for g in grp):
                    break
                grp.append(others.pop(0))
            order.append(grp)
        put = lambda reg, row, neg: a.e(f"v_cvt_pk_bf16_f32 v{KRES[row]}, v{reg}, {'-' if neg else ''}v{reg+1}")
        a.label(".p2align 3")
        prev = [(X0, 0, 0, 0, True), (E(1), 0, 0, YB[0] + 1, False), (E(16), 0, 0, YB[0] + 16, False), (F(1), 0, 0, YB[1], False)]
        for gi, grp in enumerate(order):
            for (d, x, y, row, neg) in grp:
                a.e(f"v_pk_mul_f32 {v(d,2)}, {v(x,2)}, {v(y,2)} op_sel_hi:[1,0]")
            for (d, x, y, row, neg) in prev:
                put(d, row, neg)
            for (d, x, y, row, neg) in grp:
                a.e(f"v_pk_fma_f32 {v(d,2)}, {v(x,2)}, {v(y,2)}, {v(d,2)} op_sel:[1,1,0] op_sel_hi:[0,1,1] neg_lo:[1,0,0]")
            prev = grp
            for f in fill.get(gi, []):
                f()
        for (d, x, y, row, neg) in prev:
            put(d, row, neg)
        self.stamp("kge")
        return len(order)

    def push_tables(self):
        self.push(f"s_mov_b32 m0, {sTM0}")
        for row in range(NROW):
            if row == TSPLIT:
                self.push(f"s_mov_b32 m0, {sTM1}")
            off = (row - (TSPLIT if row >= TSPLIT else 0)) * TROW
            self.push(f"ds_write_addtid_b32 v{KRES[row]} offset:{off}", tag="TB")

    def push_b_issue(self):
        i = self.b_iss
        if i >= 28:
            return
        assert i - self.b_con < BSN
        self.b_iss += 1
        if i >= BSN:
            self.pushw(lg=f"BR{i-BSN}")
        self.push(f"""
        s_add_u32 m0, {sBS}, {(i % BSN)*2048}
        s_add_u32 s14, {sBB[i//7]}, {(i%7)*16384}
        buffer_load_dwordx4 v10, {R_W2}, s14 offen lds
        buffer_load_dwordx4 v11, {R_W2}, s14 offen offset:1024 lds
        """, tag=f"B{i}")

    def push_b_consume(self):
        i = self.b_con
        if i >= 28:
            return
        assert i < self.b_iss
        self.b_con += 1
        self.pushw(vm=f"B{i}")
        for cb in range(2):
            for hh in range(2):
                self.push(f"ds_read_b64_tr_b16 {acc(8*i+4*cb+2*hh,2)}, v{30+cb} offset:{(i % BSN)*2048+hh*1024}", tag=f"BR{i}")

    def push_b_step(self):
        if self.b_iss - self.b_con < BSN:
            self.push_b_issue()
        self.push_b_consume()

    def t_poll_issue(self):
        self.epoch_issue()
        self.poll_issue(f"v{vTF}", f"v{vPD}", "PT")

    def g1(self):
        a = self.a

        def reads(kap):
            s, ks = divmod(kap, 4)
            slot = (s + 2) % 3
            b = 80 + 16 * (kap % 2)
            L = []
            for fb in range(2):
                wa, wo = (28 + fb, WPOS[slot] - WPOS[0]) if slot < 2 else (14 + fb, 0)
                for hh in range(2):
                    L.append(f"ds_read_b64_tr_b16 {v(b+8+4*fb+2*hh,2)}, v{wa} offset:{wo+ks*4096+hh*1024}")
                L.append(f"ds_read_b128 {v(b+4*fb,4)}, v{24+ks} offset:{XPOS[slot]+fb*4096}")
            return L

        def mf(kap, fb, tb):
            b = 80 + 16 * (kap % 2)
            d = 112 + 16 * (2 * fb + tb)
            c = "0" if kap == 0 else v(d, 16)
            return f"v_mfma_f32_32x32x16_bf16 {v(d,16)}, {v(b+8+4*fb,4)}, {v(b+4*tb,4)}, {c}"

        a.wait(vm="D0")
        a.e("s_barrier")
        self.stamp("g1s")
        for r in reads(0):
            a.e(r, tag="R0")
        pend = []
        for kap in range(32):
            s, ks = divmod(kap, 4)
            nxt = []
            if kap + 1 < 32:
                if ks == 3:
                    a.wait(vm=f"D{s+1}", lg=0)
                    a.e("s_barrier")
                    self.stamp(f"st{s+1}")
                    if s + 3 < 8:
                        pend = [(o, f"D{s+3}") for o in self.dma_ops(s + 3)]
                    elif s == 5:
                        for _ in range(BSN):
                            self.push_b_issue()
                    elif s == 6:
                        self.drain()
                        self.push_tables()
                nxt = reads(kap + 1)
            if ks == 2 and s + 3 < 8:
                self.push(self.dma_setup(s + 3))
            if kap == self.o.get("tpos", 27):
                self.t_poll_issue()
            if ks != 3 or kap == 31:
                a.wait(lg=f"R{kap}")
            ms = [mf(kap, 0, 0), mf(kap, 0, 1), mf(kap, 1, 0), mf(kap, 1, 1)]
            per = [2, 2, 2, 0]
            for i, m in enumerate(ms):
                a.e(m)
                for _ in range(per[i]):
                    if nxt:
                        a.e(nxt.pop(0), tag=f"R{kap+1}")
                if pend and i in ((1, 2, 3) if ks in (3, 0) else (1, 3) if ks == 1 else ()):
                    o, t = pend.pop(0)
                    a.e(o, tag=t)
                if kap >= 27:
                    self.drain(3 if i < 3 else 5)
                elif kap >= 23:
                    self.drain(1 if i < 3 else 3)
                elif not pend:
                    self.drain(2)
            assert not (ks == 2 and s + 3 < 8 and self.bg)
        assert not pend
        self.drain()
        self.stamp("g1e")

    def push_h_epilogue(self):
        k = 0
        for fb in range(2):
            for tb in range(2):
                d = 112 + 16 * (2 * fb + tb)
                for half in range(2):
                    t = 184 + 4 * k
                    k += 1
                    for j in range(4):
                        self.push(f"v_cvt_pk_bf16_f32 v{t+j}, v{d+8*half+2*j}, v{d+8*half+2*j+1}")
                    for j in range(4):
                        self.push(f"v_pk_max_i16 v{t+j}, v{t+j}, 0")
                    self.push(f"buffer_store_dwordx4 {v(t,4)}, v7, {R_WS}, {sH0 if tb == 0 else sH1} offen offset:{(2*fb+half)*1024} sc1", tag="Hst")

    def kphase(self):
        a = self.a
        a.wait(lg=0)
        a.e("s_barrier")
        self.stamp("kmf")
        seq = [(ks, c) for ks in range(8) for c in range(3)]
        NY = 12
        rd = []
        for n_, (ks, c) in enumerate(seq):
            if c == 0:
                rd.append((f"ds_read_b128 {v(32+4*ks,4)}, v{vKX} offset:{64*ks}", f"KX{ks}"))
            rd.append((f"ds_read_b128 {v(64+4*(n_%NY),4)}, v{vKY+c} offset:{64*ks}", f"KY{n_}"))
        for _ in range(12):
            c_, t_ = rd.pop(0)
            a.e(c_, tag=t_)
        a.e(f"""
        s_and_b32 s8, {sW}, 1
        s_lshl_b32 s8, s8, 6
        v_cmp_eq_u32 vcc, s8, v1
        v_mov_b32 v217, 0
        v_mov_b32 v218, 0
        v_mov_b32 v219, 0
        v_cndmask_b32 v216, 0, v183, vcc
        """)
        self.epoch_check()
        self.poll_check(f"v{vTF}", f"v{vPD}", "PT")
        self.stamp("tpoll")
        a.e(f"buffer_load_dwordx4 v[228:231], v{vUG}, {R_WS}, {sUG0} offen sc1", tag="UG")
        a.e(f"buffer_load_dwordx4 v[232:235], v{vUG}, {R_WS}, {sUG1} offen sc1", tag="UG")
        self.push_h_epilogue()
        for n_, (ks, c) in enumerate(seq):
            a.wait(lg=f"KY{n_}")
            d = 216 + 4 * c
            cc = "0" if (ks == 0 and c != 0) else v(d, 4)
            a.e(f"v_mfma_f32_16x16x32_bf16 {v(d,4)}, {v(64+4*(n_%NY),4)}, {v(32+4*ks,4)}, {cc}")
            for _ in range(2 if c == 0 else 1):
                if rd:
                    c_, t_ = rd.pop(0)
                    a.e(c_, tag=t_)
            self.drain(3)
        self.drain()
        self.stamp("kme")
        for _ in range(BSN):
            self.push_b_consume()
        self.drain()
        lg0 = list(a.lg)
        a.e(f"s_bitcmp1_b32 {sW}, 0")
        a.e("s_cbranch_scc1 L_k1")
        cv = lambda dst, hi_lag, lo_lag: a.e(f"v_cvt_pk_bf16_f32 v{dst}, {hi_lag}, {lo_lag}")
        a.e("""
        v_cmp_eq_u32 vcc, 63, v1
        v_cndmask_b32 v221, v221, v220, vcc
        v_cndmask_b32 v227, v227, v226, vcc
        """)
        k0 = [f"v{216+n}" for n in range(7)]
        k1 = ["v224", "v224", "v225", "v226", "v226", "v226", "v227"]
        for si, (k, off) in enumerate(((k0, 512), (k1, 0))):
            for sg in range(4):
                t = 112 + 8 * si + 2 * sg
                cv(t, k[sg + 3], k[sg + 2])
                cv(t + 1, k[sg + 1], k[sg])
                a.e(f"ds_write_b64 v{vKWA}, {v(t,2)} offset:{off+sg*KCP}", tag="KW")
        a.e(f"""
        v_readfirstlane_b32 s8, v113       ; (K1 | K0<<16)
        v_readfirstlane_b32 s9, v115       ; (K2 | K1<<16)
        v_mov_b32 v128, 0
        v_mov_b32 v129, 0
        s_lshr_b32 s10, s8, 16             ; K0
        v_writelane_b32 v128, s10, 8
        v_writelane_b32 v128, s8, 16
        v_writelane_b32 v128, s9, 24
        v_writelane_b32 v129, s10, 24
        s_mov_b32 exec_hi, 0
        """)
        a.e(f"ds_write_b64 v{vKZ}, v[128:129]", tag="KW")
        a.e("s_mov_b32 exec_hi, -1")
        a.e("s_branch L_kj")
        a.label("L_k1")
        a.e("s_nop 4")
        k2 = ["v216"] * 3 + ["v217"] * 3 + ["v218"] * 5
        k3 = ["v220"] * 5 + ["v221"] * 7 + ["v222"] * 7
        t = 112
        for sg in range(4):
            for q in range(4):
                cv(t + q, k2[sg + 7 - 2 * q], k2[sg + 6 - 2 * q])
            a.e(f"ds_write_b128 v{vKWA}, {v(t,4)} offset:{sg*KCP}", tag="KW")
            t += 4
            for hf in range(2):
                for q in range(4):
                    cv(t + q, k3[sg + 15 - 8 * hf - 2 * q], k3[sg + 14 - 8 * hf - 2 * q])
                a.e(f"ds_write_b128 v{vKWB}, {v(t,4)} offset:{sg*KCP+16*hf}", tag="KW")
                t += 4
        a.label("L_kj")
        self.stamp("kw")
        a.wait(vm="UG")
        a.e(f"ds_write_b128 v{vUW}, v[228:231]", tag="UW")
        a.e(f"ds_write_b128 v{vUW}, v[232:235] offset:512", tag="UW")
        a.wait(lg=0)
        a.e("s_barrier")
        self.stamp("convs")

    def conv(self, fill):
        a = self.a

        def reads(st):
            A0 = 32 + 64 * (st % 2)
            B0 = 64 + 64 * (st % 2)
            L = []
            for k in range(8):
                offA = 512 * (7 - k) + 64 * (3 - st)
                offB = 512 * k + 64 * (3 - st)
                L.append((f"ds_read_b64 {v(A0+4*k,2)}, v{vCA} offset:{offA}", f"C{st}_{k}"))
                L.append((f"ds_read_b64 {v(A0+4*k+2,2)}, v{vCA} offset:{offA+8}", f"C{st}_{k}"))
                L.append((f"ds_read_b128 {v(B0+4*k,4)}, v{vCB} offset:{offB}", f"C{st}_{k}"))
            return L

        first = set()
        for c_, t_ in reads(0):
            a.e(c_, tag=t_)
        for st in range(4):
            A0 = 32 + 64 * (st % 2)
            B0 = 64 + 64 * (st % 2)
            nxt = reads(st + 1) if st < 3 else []
            pairs = sorted([(q1, m) for q1 in range(8) for m in range(8) if q1 + m <= 7], key=lambda p: (max(p), p[0] + p[1]))
            have = -1
            for n_, (q1, m) in enumerate(pairs):
                used = 0
                if max(q1, m) > have:
                    have = max(q1, m) if st == 0 else 7
                    a.wait(lg=f"C{st}_{have}")
                    used += 1
                c = q1 + m
                d = 160 + 4 * c
                cc = v(d, 4) if c in first else "0"
                first.add(c)
                a.e(f"v_mfma_f32_16x16x32_bf16 {v(d,4)}, {v(A0+4*q1,4)}, {v(B0+4*m,4)}, {cc}")
                if nxt and n_ >= 4:
                    c_, t_ = nxt.pop(0)
                    a.e(c_, tag=t_)
                    used += 1
                for f in fill.get(36 * st + n_, []):
                    f()
                self.drain(2 - used)
            assert not nxt
        self.drain()

    def conv_out(self):
        a = self.a
        a.e(f"""
        s_bitcmp1_b32 {sW}, 0
        s_nop 7
        s_cbranch_scc1 L_hw1
        """)
        for k in range(4):
            a.e(f"ds_write_b128 v{vEXD}, {v(176+4*k,4)} offset:{1024*k}", tag="EX")
        a.e("s_branch L_hwj")
        a.label("L_hw1")
        for k in range(4):
            a.raw(f"ds_write_b128 v{vEXD}, {v(160+4*k,4)} offset:{1024*k}")
        a.wait(lg=0)
        for k in range(8):
            a.e(f"v_pk_mov_b32 {v(160+2*k,2)}, {v(176+2*k,2)}, {v(176+2*k,2)} op_sel:[0,1]")
        a.label("L_hwj")

    def conv_out2(self):
        a = self.a
        a.wait(lg=0)
        a.e("s_barrier")
        for k in range(4):
            a.e(f"ds_read_b128 {v(176+4*k,4)}, v{vEXO} offset:{1024*k}", tag=f"EY{k}")
        for cp in range(2):
            for cl in range(2):
                k = 2 * cp + cl
                a.wait(lg=f"EY{k}")
                a.e(f"v_pk_add_f32 {v(160+4*k,2)}, {v(160+4*k,2)}, {v(176+4*k,2)}")
                a.e(f"v_pk_add_f32 {v(162+4*k,2)}, {v(162+4*k,2)}, {v(178+4*k,2)}")
                a.e(f"v_cvt_pk_bf16_f32 v{20+4*cp+2*cl}, v{160+4*k}, v{161+4*k}")
                a.e(f"v_cvt_pk_bf16_f32 v{21+4*cp+2*cl}, v{162+4*k}, v{163+4*k}")
            a.e(f"v_permlane16_swap_b32 v{20+4*cp}, v{22+4*cp}")
            a.e(f"v_permlane16_swap_b32 v{21+4*cp}, v{23+4*cp}")
            a.e(f"buffer_store_dwordx4 {v(20+4*cp,4)}, v7, {R_WS}, {sAT} offen offset:{1024*cp} sc1", tag="Ast")

    def a_load(self, i):
        r = 32 + 8 * (i % 16)
        return f"""
        s_add_u32 s15, {sAB[i//7]}, {(i%7)*1024}
        buffer_load_dwordx4 {v(r,4)}, v12, {R_WS}, s15 offen sc1
        buffer_load_dwordx4 {v(r+4,4)}, v13, {R_WS}, s15 offen sc1
        """

    def late_addr(self):
        t = f"""
        s_and_b32 s11, {sI}, 7             ; n
        s_lshl_b32 s12, s11, 6
        s_lshl_b32 s13, {sW}, 4
        s_add_u32 s12, s12, s13
        s_lshr_b32 s8, {sX}, 2
        s_lshl_b32 s8, s8, 13
        s_lshl_b32 s13, s12, 4
        s_add_u32 s8, s8, s13
        s_add_u32 s8, s8, {WS_AF}
        v_and_b32 v18, 15, v1
        v_lshl_add_u32 v18, v18, 4, s8     ; a flags
        s_lshr_b32 s9, {sI}, 3             ; m
        s_lshl_b32 s8, s12, 12
        s_lshr_b32 s13, {sX}, 1
        s_lshl_b32 s13, s13, 10
        s_add_u32 s8, s8, s13
        s_and_b32 s13, {sX}, 1
        s_lshl_b32 s13, s13, 8
        s_add_u32 s8, s8, s13
        s_lshl_b32 s13, s9, 6
        s_add_u32 s8, s8, s13
        s_add_u32 s8, s8, {WS_AT}
        v_lshrrev_b32 v8, 3, v1            ; dl
        v_bfe_u32 v9, v1, 2, 1             ; hf
        v_and_b32 v17, 3, v1               ; jj
        v_lshl_add_u32 v28, v8, 12, s8
        v_lshl_add_u32 v28, v9, 9, v28
        v_lshl_add_u32 v28, v17, 4, v28
        v_add_u32 v29, {8*4096}, v28
        s_lshl_b32 s13, {sW}, 4
        v_add_u32 v8, s13, v8
        v_mul_u32_u24 v8, 144, v8
        v_lshl_add_u32 v8, v17, 5, v8
        v_lshl_add_u32 v176, v9, 4, v8
        s_lshl_b32 s10, {sX}, 2
        s_add_u32 s10, s10, s9
        s_lshl_b32 s10, s10, 2
        s_add_u32 s10, s10, {sW}
        s_lshl_b32 s8, s10, 6
        s_add_u32 s8, s8, {WS_G}
        v_lshrrev_b32 v9, 5, v1
        v_lshl_add_u32 v177, v9, 4, s8
        v_and_b32 v8, 31, v1
        v_mul_u32_u24 v178, 144, v8
        v_lshl_add_u32 v178, v9, 3, v178
        s_lshl_b32 s8, {sW}, 5
        v_add_u32 v178, s8, v178
        v_lshlrev_b32 v179, 12, v9
        v_lshl_add_u32 v179, v8, 1, v179
        s_lshl_b32 s70, s10, 14
        s_lshl_b32 s13, s11, 7
        s_add_u32 s70, s70, s13
        s_add_u32 s71, s70, 8192
        s_mul_i32 s8, {sW}, {3*4096}
        s_add_u32 s8, s8, {L_RED}
        v_add_u32 v180, s8, v7
        """
        for lam in range(1, 4):
            t += f"""
            s_xor_b32 s8, {sW}, {lam}
            s_mul_i32 s8, s8, {3*4096}
            s_add_u32 s8, s8, {L_RED}
            v_add_u32 v{13+lam}, s8, v7
            """
        self.push(t)

    def a_loads(self, tag):
        a = self.a
        f = (lambda t: a.e(t, tag=tag)) if tag else a.raw
        f(f"buffer_load_dwordx4 v[160:163], v28, {R_WS}, 0 offen sc1")
        f(f"buffer_load_dwordx4 v[164:167], v29, {R_WS}, 0 offen sc1")

    def g2(self, PRE):
        a = self.a
        APOS = self.o.get("apos", 12)
        self.late_addr()
        for i in range(28):
            ld = lines(self.a_load(i + PRE)) if i + PRE < 28 else []
            if i == APOS:
                self.drain()
                self.poll_issue("v18", "v19", "PA")
            if i + PRE == 28:
                a.wait(vm="PA")
                a.e(f"v_cmp_ne_u32 s[74:75], {sEP}, v19")
                self.a_loads("AL")
                a.e(f"buffer_load_dwordx4 v[168:171], v177, {R_WS}, 0 offen sc1", tag="AL")
                a.e(f"buffer_load_dwordx4 v[172:175], v177, {R_WS}, 0 offen offset:32 sc1", tag="AL")
            if self.b_con <= i:
                while self.b_con <= i:
                    self.push_b_step()
                self.drain()
            elif self.b_con < 28:
                self.push_b_step()
            if a.lg.count(f"BR{i}") < 4:
                self.drain()
            a.wait(vm=f"A{i}", lg=f"BR{i}")
            if i == 0:
                self.stamp("g2s")
            r = 32 + 8 * (i % 16)
            k = 0
            for rb in range(2):
                for par in range(2):
                    d = 192 + 16 * (2 * rb + par)
                    c = "0" if i == 0 else v(d, 16)
                    a.e(f"v_mfma_f32_32x32x16_bf16 {v(d,16)}, {v(r+4*rb,4)}, {acc(8*i+4*par,4)}, {c}")
                    if ld and k == 0:
                        a.e(ld[0])
                        a.e(ld[1], tag=f"A{i+PRE}")
                    elif ld and k == 2:
                        a.e(ld[2], tag=f"A{i+PRE}")
                    self.drain(3)
                    k += 1
        self.drain()

    def final(self):
        a = self.a
        self.stamp("g2e")
        for lam in range(1, 4):
            rb, hf = lam >> 1, lam & 1
            for par in range(2):
                for q in range(2):
                    d = 192 + 16 * (2 * rb + par) + 8 * hf + 4 * q
                    a.e(f"ds_write_b128 v{13+lam}, {v(d,4)} offset:{(lam-1)*4096+(2*par+q)*1024}", tag="RW")
        a.e("s_cmp_eq_u64 s[74:75], 0")
        a.e("s_cbranch_scc1 L_aok")
        self.poll("v18", "v19")
        self.a_loads(None)
        a.label("L_aok")
        a.wait(vm=0)
        self.stamp("apoll")
        a.e("ds_write_b128 v176, v[160:163]", tag="AW")
        a.e(f"ds_write_b128 v176, v[164:167] offset:{8*144}", tag="AW")
        a.wait(lg=0)
        a.e("s_barrier")
        self.stamp("fbar")
        for par in range(2):
            for q in range(2):
                a.e(f"ds_read_b64 {v(72+4*par+2*q,2)}, v178 offset:{par*32*144+16*q}", tag="AR")
        for lam in range(3):
            for pq in range(4):
                a.e(f"ds_read_b128 {v(80+16*lam+4*pq,4)}, v180 offset:{lam*4096+pq*1024}", tag=f"RR{lam}")
        a.wait(lg="AR")
        for par in range(2):
            for q in range(2):
                s_ = 72 + 4 * par + 2 * q
                d_ = 128 + 8 * par + 4 * q
                a.e(f"v_lshlrev_b32 v{d_}, 16, v{s_}")
                a.e(f"v_and_b32 v{d_+1}, 0xffff0000, v{s_}")
                a.e(f"v_lshlrev_b32 v{d_+2}, 16, v{s_+1}")
                a.e(f"v_and_b32 v{d_+3}, 0xffff0000, v{s_+1}")
        for lam in range(3):
            a.wait(lg=f"RR{lam}")
            for par in range(2):
                for h in range(4):
                    d = 192 + 16 * par + 2 * h
                    a.e(f"v_pk_add_f32 {v(d,2)}, {v(d,2)}, {v(80+16*lam+8*par+2*h,2)}")
        for par in range(2):
            for h in range(4):
                d = 192 + 16 * par + 2 * h
                s_ = 128 + 8 * par + 2 * h
                a.e(f"v_pk_add_f32 {v(s_,2)}, {v(s_,2)}, {v(d,2)} neg_lo:[0,1] neg_hi:[0,1]")
        for h in range(4):
            for par in range(2):
                d = 192 + 16 * par + 2 * h
                s_ = 128 + 8 * par + 2 * h
                a.e(f"v_pk_fma_f32 {v(d,2)}, {v(s_,2)}, {v(168+2*h,2)}, {v(d,2)}")
        for r in range(8):
            so = 's70' if r < 4 else 's71'
            a.e(f"v_cvt_pk_bf16_f32 v{144+r}, v{192+r}, v{208+r}")
            a.e(f"buffer_store_short v{144+r}, v179, {R_OUT}, {so} offen offset:{(r%4)*1024}", tag="O")
            a.e(f"buffer_store_short_d16_hi v{144+r}, v179, {R_OUT}, {so} offen offset:{(r%4)*1024+64}", tag="O")

    def build(self):
        a = self.a
        o = self.o
        self.prologue()
        a.e(f"s_cmp_ge_u32 {sI}, 28")
        a.e("s_cbranch_scc1 L_spare")
        vm0, lg0 = list(a.vm), list(a.lg)
        self.params_load()
        for x in self.dma_ops(0):
            a.e(x, tag="D0")
        a.e(self.dma_setup(1))
        d1 = self.dma_ops(1)
        n1 = o.get("d1a", 3)
        for x in d1[:n1]:
            a.e(x, tag="D1")
        self.tlb_touch()
        self.stamp("d0iss")
        self.setup()
        self.stamp("setup")
        rest = [(lambda x=x: a.e(x, tag="D1")) for x in d1[n1:]]
        rest += [lambda: a.e(self.dma_setup(2))]
        rest += [(lambda x=x: a.e(x, tag="D2")) for x in self.dma_ops(2)]
        fill = {}
        g0 = o.get("kd0", 6)
        for k, f in enumerate(rest):
            fill.setdefault(min(g0 + k, 15), []).append(f)
        ng = self.kgen(fill)
        assert ng > 15, ng
        self.g1()
        a.e("s_branch L_join")
        a.label("L_spare")
        vm_main, lg_main = list(a.vm), list(a.lg)
        a.vm, a.lg = vm0, lg0
        self.b_iss = 0
        self.t_job()
        self.kgen({})
        self.push_tables()
        for _ in range(BSN):
            self.push_b_issue()
        self.drain()
        self.t_poll_issue()
        a.wait(vm=0)
        a.vm, a.lg = vm_main, lg_main
        a.label("L_join")
        self.kphase()

        def pub_h():
            self.pushw(vm="Hst")
            self.pushf(lambda: self.publish(sHF))
            self.pushf(lambda: self.stamp("hpub"))

        cf = {}
        hp = o.get("hpubpos", 30)
        cf.setdefault(hp, []).append(pub_h)
        b0 = o.get("b0", 30)
        for k in range(BSN - 1):
            cf.setdefault(b0 + 2 * k, []).append(self.push_b_issue)
        for k in range(o.get("b1", 72), 144, o.get("cvb", 8)):
            cf.setdefault(k, []).append(self.push_b_step)
        self.conv(cf)
        self.stamp("conve")
        self.conv_out()
        self.conv_out2()
        self.stamp("cout")
        for _ in range(o.get("bx", 6)):
            self.push_b_step()
        self.drain()
        self.poll_issue(f"v{vHF}", f"v{vPD}", "PH")
        for _ in range(o.get("by", 3)):
            self.push_b_step()
        self.drain()
        a.wait(vm="Ast")
        self.publish(sAF)
        self.poll_check(f"v{vHF}", f"v{vPD}", "PH")
        self.stamp("hpoll")
        PRE = o.get("g2pre", 6)
        for i in range(PRE):
            a.e(self.a_load(i), tag=f"A{i}")
        self.g2(PRE)
        self.final()
        if o.get("amp"):
            self.stamp("end")
            a.e(f"""
            s_waitcnt lgkmcnt(0)
            s_sub_u32 s8, s82, s80
            s_lshl_b32 s8, s8, 2
            s_add_u32 s8, s8, 3000
            s_cmp_lg_u32 s2, {o['amp']}
            s_cbranch_scc1 L_end
            """)
            a.label("L_pad")
            a.e("""
            s_memrealtime s[98:99]
            s_waitcnt lgkmcnt(0)
            s_sub_u32 s98, s98, s80
            s_cmp_lt_u32 s98, s8
            s_cbranch_scc1 L_pad
            """)
        elif self.stamps:
            a.e("s_memtime s[100:101]")
            a.e("s_memrealtime s[72:73]")
            a.e("s_waitcnt lgkmcnt(0)")
            a.e(f"""
            s_lshl_b32 s3, s2, 2
            s_add_u32 s3, s3, {sW}
            s_lshl_b32 s3, s3, 6
            s_add_u32 s3, s3, {WS_STAMP}
            s_mov_b64 exec, 1
            """)
            for k in list(range(1, len(self.names))) + [10]:
                a.e(f"s_sub_u32 s8, s{80+2*k}, s80\nv_mov_b32 v8, s8\nbuffer_store_dword v8, v3, {R_WS}, s3 offen offset:{4*k}")
            a.e(f"v_mov_b32 v8, s68\nbuffer_store_dword v8, v3, {R_WS}, s3 offen offset:44")
            a.e(f"v_mov_b32 v8, s72\nbuffer_store_dword v8, v3, {R_WS}, s3 offen offset:48")
        a.label("L_end")
        a.e("s_endpgm")
        hdr = open("gated_mix__ssm_conv_s4__dense_activation_relu__prompt.s.ref").read().split("; Override launch")[0]
        s = hdr + f"; @launch grid=(256,1,1) block=(256,1,1) lds={LDS_BYTES}\n"
        s += '.amdgcn_target "amdgcn-amd-amdhsa--gfx950"\n.text\n'
        s += f".globl {KNAME}\n.p2align 8\n.type {KNAME},@function\n{KNAME}:\n"
        s += a.text().replace(".p2align 3:", ".p2align 3")
        s += f""".section .rodata,"a"
.p2align 6
.amdhsa_kernel {KNAME}
  .amdhsa_next_free_vgpr 512
  .amdhsa_next_free_sgpr 102
  .amdhsa_accum_offset 256
  .amdhsa_group_segment_fixed_size 0
  .amdhsa_kernarg_size 128
  .amdhsa_user_sgpr_count 2
  .amdhsa_user_sgpr_kernarg_segment_ptr 1
  .amdhsa_system_sgpr_workgroup_id_x 1
.end_amdhsa_kernel
"""
        return s


if __name__ == "__main__":
    out = sys.argv[1]
    stamps = None
    opts = {}
    for x in sys.argv[2:]:
        if x.startswith("--stamps="):
            stamps = x.split("=")[1].split(",")
        elif "=" in x:
            opts[x.split("=")[0]] = int(x.split("=")[1])
    g = Gen(stamps=stamps, opts=opts)
    s = g.build()
    open(out, "w").write(s)
    print("instructions", sum(1 for i in g.a.ins if i.kind != "label"), "auto nops", g.a.nops, "stamps", g.names)
```

```python
import sys
from collections import deque
from emit import Asm

KNAME = "gated_mix__ssm_conv_s4__dense_activation_relu__prompt_kernel"

WS_TF = 0x1000
WS_HF = 0x9000
WS_AF = 0xE000
WS_G = 0x12000
WS_STAMP = 0x20000
WS_PAD = 0x80000
WS_UT = 0x100000
WS_AT = 0x300000
WS_H = 0x500000
WS_SIZE = 0xC00000

XPOS = [98304, 131072, 81920]
WPOS = [114688, 147456, 65536]
TROW = 1056
NROW = 67
L_TAB = 0
TSPLIT = 34
L_KC = 0
KCP = 4160
L_U = 33280
UP = 4608
BSN = 12
BS_LO, BS_HI = 49152, 98304
L_EX = 147456
L_RED = 0
LDS_BYTES = 163840
XB = 51
YB = {0: 0, 1: 19, 2: 29, 3: 34, 4: 39, 5: 42, 6: 45, 7: 48}


def bs_pos(i):
    return BS_LO + (i % BSN) * 8192


sX, sI, sW, sEP = "s4", "s5", "s6", "s7"
P_U, P_ARE, P_AIM, P_BRE, P_BIM, P_CRE, P_CIM, P_LDT = [f"s[{16+2*i}:{17+2*i}]" for i in range(8)]
P_DSK, P_BX, P_W1, P_W2, P_GW, P_OUT, P_DBG, P_WS = [f"s[{32+2*i}:{33+2*i}]" for i in range(8)]
R_U, R_W1, R_W2, R_OUT, R_WS = "s[48:51]", "s[52:55]", "s[56:59]", "s[60:63]", "s[64:67]"
sH0, sH1, sHF, sUG0, sUG1, sAT, sAF, sTM0, sTM1 = [f"s{16+i}" for i in range(9)]
sBB = [f"s{25+i}" for i in range(4)]
sAB = [f"s{29+i}" for i in range(4)]
sBS = "s76"
vKX, vKY, vKWA, vKWB, vUW, vCA, vCB, vEXD, vEXO, vTF, vHF, vUG, vKZ, vPD = 240, 241, 244, 245, 246, 247, 248, 249, 250, 251, 252, 253, 254, 255
vTW0, vTW1 = 232, 233
vX2, vW2 = 236, 14
vBL, vBH = 30, 4


def v(a, n=1):
    return f"v{a}" if n == 1 else f"v[{a}:{a+n-1}]"


def acc(a, n=1):
    return f"a{a}" if n == 1 else f"a[{a}:{a+n-1}]"


def lines(t):
    return [x.strip() for x in t.strip().split("\n") if x.strip() and not x.strip().startswith(";")]


class Gen:
    def __init__(self, stamps=None, opts=None):
        self.a = Asm()
        self.stamps = stamps
        self.names = []
        self.o = opts or {}
        self.npoll = 0
        self.b_iss = 0
        self.b_con = 0
        self.bg = deque()

    def stamp(self, name):
        if self.stamps and (name == "start" or name in self.stamps):
            if name not in self.names:
                self.names.append(name)
            k = self.names.index(name)
            assert k < 10
            self.a.e(f"{'s_memrealtime' if (self.o.get('amp') or self.o.get('rt')) else 's_memtime'} s[{80+2*k}:{81+2*k}]")

    def push(self, text, tag=None):
        L = lines(text)
        k = 0
        while k < len(L):
            u = [L[k]]
            if L[k].startswith("s_cmp"):
                while k + 1 < len(L) and L[k + 1].startswith("s_cselect"):
                    k += 1
                    u.append(L[k])
            k += 1
            self.bg.append(lambda u="\n".join(u), tag=tag: self.a.e(u, tag=tag))

    def pushf(self, f):
        self.bg.append(f)

    def pushw(self, **kw):
        self.bg.append(lambda: self.a.wait(**kw))

    def drain(self, n=10**9):
        while n > 0 and self.bg:
            self.bg.popleft()()
            n -= 1

    def publish(self, soff):
        a = self.a
        a.e("s_mov_b64 exec, 1")
        a.e(f"buffer_store_dword v2, v3, {R_WS}, {soff} offen sc1", tag="flag")
        a.e("s_mov_b64 exec, -1")

    def poll(self, voff, tmp):
        a = self.a
        n = self.npoll
        self.npoll += 1
        a.e("s_mov_b32 s3, 0")
        a.label(f"L_poll{n}")
        a.raw(f"buffer_load_dword {tmp}, {voff}, {R_WS}, 0 offen sc1")
        a.e("s_add_u32 s3, s3, 1")
        a.wait(vm=0)
        a.e(f"v_cmp_ne_u32 vcc, {sEP}, {tmp}")
        a.e("s_cmp_gt_u32 s3, 3000")
        a.e(f"s_cbranch_scc1 L_pollx{n}")
        a.e(f"s_cbranch_vccz L_pollx{n}")
        a.e("s_sleep 2")
        a.e(f"s_branch L_poll{n}")
        a.label(f"L_pollx{n}")

    def poll_issue(self, voff, tmp, tag):
        self.a.e(f"buffer_load_dword {tmp}, {voff}, {R_WS}, 0 offen sc1", tag=tag)

    def poll_check(self, voff, tmp, tag):
        a = self.a
        n = self.npoll
        a.wait(vm=tag)
        a.e(f"v_cmp_ne_u32 vcc, {sEP}, {tmp}")
        a.e(f"s_cbranch_vccz L_pollx{n}")
        self.poll(voff, tmp)

    def epoch_master(self):
        a = self.a
        a.e(f"""
        s_lshl_b32 s3, s2, 2
        s_add_u32 s3, s3, {sW}
        s_cmp_lg_u32 s3, 1023
        s_cbranch_scc1 L_nomaster
        s_load_dword s3, {P_WS}, 0
        s_waitcnt lgkmcnt(0)
        s_mul_i32 s3, s3, 1664525
        s_add_u32 s3, s3, 1013904223
        s_cmp_eq_u32 s3, 0
        s_cselect_b32 s3, 1, s3
        v_mov_b32 v8, s3
        s_mov_b64 exec, 1
        """)
        a.raw(f"global_store_dword v3, v8, {P_DBG} sc1")
        a.raw(f"global_store_dword v3, v8, {P_WS} sc1")
        a.e("s_mov_b64 exec, -1")
        a.label("L_nomaster")

    def epoch_issue(self):
        self.a.e(f"global_load_dword v2, v3, {P_DBG} sc1", tag="EP")

    def epoch_check(self):
        a = self.a
        n = self.npoll
        self.npoll += 1
        a.wait(vm="EP")
        a.e("s_mov_b32 s3, 0")
        a.label(f"L_ep{n}")
        a.e(f"v_readfirstlane_b32 {sEP}, v2")
        a.e("s_add_u32 s3, s3, 1")
        a.e(f"s_cmp_lg_u32 {sEP}, 0")
        a.e(f"s_cbranch_scc1 L_epx{n}")
        a.e("s_cmp_gt_u32 s3, 3000")
        a.e(f"s_cbranch_scc1 L_epx{n}")
        a.e("s_sleep 2")
        a.raw(f"global_load_dword v2, v3, {P_DBG} sc1")
        a.wait(vm=0)
        a.e(f"s_branch L_ep{n}")
        a.label(f"L_epx{n}")

    def prologue(self):
        a = self.a
        a.e("s_cmp_ge_u32 s2, 256\ns_cbranch_scc1 L_end")
        self.stamp("start")
        if self.stamps and not self.o.get("amp"):
            a.e("s_memrealtime s[68:69]")
        a.e(f"""
        s_load_dwordx16 s[16:31], s[0:1], 0
        s_load_dwordx16 s[32:47], s[0:1], 64
        s_lshr_b32 {sI}, s2, 3
        """)
        if self.o.get("cpf", 1):
            a.e(f"""
            s_getpc_b64 s[8:9]
            L_pc:
            s_lshl_b32 s3, {sI}, 10
            v_lshl_add_u32 v6, v0, 2, s3
            v_min_u32 v6, L_end-L_pc, v6
            """)
            a.e("global_load_dword v6, v6, s[8:9]", tag="CPF")
        a.e(f"""
        v_and_b32 v1, 63, v0
        v_lshrrev_b32 v4, 6, v0
        s_and_b32 {sX}, s2, 7
        v_readfirstlane_b32 {sW}, v4
        v_mov_b32 v3, 0
        v_lshlrev_b32 v7, 4, v1            ; lane*16
        s_mul_i32 s77, {sI}, 37
        s_lshr_b32 s77, s77, 8
        s_mul_i32 s13, s77, 7
        s_sub_u32 s78, {sI}, s13           ; ct
        s_lshr_b32 s11, {sX}, 1            ; R
        s_lshl_b32 s11, s11, 2
        s_add_u32 s11, s11, s77
        s_lshl_b32 s70, s11, 17
        s_and_b32 s11, {sX}, 1
        s_mul_i32 s11, s11, 7
        s_add_u32 s11, s11, s78
        s_lshl_b32 s71, s11, 8
        """)
        g = self.o.get("g1rot", 4)
        if g == 8:
            a.e("s_lshl_b32 s11, s77, 1\ns_add_u32 s72, s11, s78")
        elif g == 4:
            a.e("s_add_u32 s72, s77, s78\ns_lshl_b32 s72, s72, 1")
        elif g == 2:
            a.e("s_add_u32 s72, s77, s78\ns_lshl_b32 s72, s72, 2")
        else:
            a.e("s_mov_b32 s72, 0")
        if self.o.get("xrot", 0):
            a.e(f"s_mul_i32 s11, {sX}, {self.o['xrot']}\ns_lshr_b32 s11, s11, 1\ns_add_u32 s72, s72, s11")
        a.e(f"""
        s_lshl_b32 s73, {sW}, 12           ; wave*4096
        s_lshl_b32 s8, {sI}, 1
        s_lshr_b32 s9, {sW}, 1
        s_add_u32 s8, s8, s9
        s_lshl_b32 s8, s8, 3
        s_add_u32 s79, s8, {sX}            ; d
        s_and_b32 s9, {sW}, 1
        s_lshl_b32 s9, s9, 7
        s_lshl_b32 s8, s79, 8
        s_add_u32 s8, s8, s9
        v_lshl_add_u32 v12, v1, 1, s8      ; d*256 + (64*(w&1)+l)*2
        s_lshl_b32 s8, s79, 1
        v_mov_b32 v13, s8
        """)
        for k in range(8):
            a.e(f"v_mov_b32 v{176+k}, 0")
        a.e(f"""
        v_lshrrev_b32 v8, 3, v1            ; l>>3
        v_lshl_add_u32 v8, v4, 5, v8       ; 32w + (l>>3)
        v_lshlrev_b32 v8, 10, v8           ; *1024
        v_lshrrev_b32 v9, 4, v1            ; l>>4
        v_and_b32 v10, 7, v1
        v_xor_b32 v10, v10, v9             ; pos ^ (l>>4)
        v_lshl_add_u32 v16, v10, 4, v8
        v_xor_b32 v10, 4, v10
        v_lshl_add_u32 v17, v10, 4, v8
        v_add_u32 v17, {8192-1024}, v17
        v_add_u32 v18, {2*(8192-1024)}, v16
        v_add_u32 v19, {2*(8192-1024)}, v17
        v_lshl_add_u32 v8, v4, 4, v9       ; 16w + (l>>4)
        v_mul_u32_u24 v8, 3584, v8
        v_and_b32 v10, 15, v1
        v_lshlrev_b32 v11, 2, v9
        v_xor_b32 v10, v10, v11
        v_lshl_add_u32 v20, v10, 4, v8
        v_add_u32 v21, {4*3584-1024}, v20
        v_add_u32 v22, {2*(4*3584-1024)}, v20
        v_add_u32 v23, {3*(4*3584-1024)}, v20
        s_mov_b32 s50, {2048*1024}
        s_mov_b32 s51, 0x00020000
        s_mov_b32 s54, {512*3584}
        s_mov_b32 s55, 0x00020000
        s_mov_b32 s58, {1792*1024}
        s_mov_b32 s59, 0x00020000
        s_mov_b32 s62, {2048*1024}
        s_mov_b32 s63, 0x00020000
        s_mov_b32 s66, {WS_SIZE}
        s_mov_b32 s67, 0x00020000
        """)
        a.e(self.dma_setup(0))
        a.e("s_waitcnt lgkmcnt(0)")
        self.stamp("karg")
        a.e(f"""
        s_mov_b64 s[48:49], s[16:17]
        s_mov_b64 s[52:53], s[36:37]
        s_mov_b64 s[56:57], s[38:39]
        s_mov_b64 s[60:61], s[42:43]
        s_mov_b64 s[64:65], s[46:47]
        """)

    def params_load(self):
        a = self.a
        for k, p in enumerate((P_ARE, P_AIM, P_BRE, P_BIM, P_CRE, P_CIM)):
            a.e(f"global_load_short_d16_hi v{176+k}, v12, {p}", tag="P")
        a.e(f"global_load_short_d16_hi v182, v13, {P_LDT}", tag="P")
        a.e(f"global_load_short_d16_hi v183, v13, {P_DSK}", tag="P")

    def tlb_touch(self):
        a = self.a
        if not self.o.get("tlb", 1):
            return
        a.e(f"""
        s_cmp_eq_u32 {sW}, 1
        s_cselect_b64 s[8:9], {P_W2}, {P_WS}
        s_cmp_eq_u32 {sW}, 2
        s_cselect_b64 s[8:9], {P_OUT}, s[8:9]
        s_cmp_eq_u32 {sW}, 3
        s_cselect_b64 s[8:9], {P_DBG}, s[8:9]
        s_cmp_eq_u32 {sW}, 0
        s_cselect_b32 s10, 5, 0
        v_min_u32 v8, s10, v1
        v_lshlrev_b32 v8, 21, v8
        """)
        a.e("global_load_dword v6, v8, s[8:9] offset:128", tag="TLB")

    def dma_setup(self, s):
        return f"""
        s_add_u32 s74, s72, {s}
        s_and_b32 s74, s74, 7
        s_mul_i32 s75, s74, {64*3584}
        s_add_u32 s75, s75, s71
        s_lshl_b32 s74, s74, 7
        s_add_u32 s74, s74, s70
        """

    def dma_ops(self, s, own_m0=False):
        slot = s % 3
        ops = []
        for i in range(4):
            pre = f"s_add_u32 m0, s73, {XPOS[slot]}\n" if (i == 0 or own_m0) else ""
            ops.append(pre + f"buffer_load_dwordx4 v{16+i}, {R_U}, s74 offen offset:{i*1024} lds")
        for i in range(4):
            pre = f"s_add_u32 m0, s73, {WPOS[slot]}\n" if (i == 0 or own_m0) else ""
            ops.append(pre + f"buffer_load_dwordx4 v{20+i}, {R_W1}, s75 offen offset:{i*1024} lds")
        return ops

    def setup_pre(self):
        a = self.a
        a.e(f"""
        v_and_b32 v8, 31, v1               ; t
        v_lshrrev_b32 v9, 5, v1            ; g
        v_lshrrev_b32 v10, 1, v8
        v_and_b32 v10, 7, v10
        v_xor_b32 v10, v10, v9             ; g ^ f
        s_lshr_b32 s8, {sW}, 1
        s_lshl_b32 s8, s8, 13              ; wm*64*128
        s_add_u32 s8, s8, {XPOS[2]}
        v_lshl_add_u32 v8, v8, 7, s8
        v_lshl_add_u32 v24, v10, 4, v8
        v_xor_b32 v25, 32, v24
        v_xor_b32 v26, 64, v24
        v_xor_b32 v27, 96, v24
        v_bfe_u32 v8, v1, 2, 2             ; r
        v_lshl_add_u32 v10, v9, 3, v8      ; 8*(G>>1) + r
        v_lshlrev_b32 v10, 8, v10          ; *256
        s_and_b32 s8, {sW}, 1
        s_lshl_b32 s8, s8, 1
        v_xor_b32 v8, s8, v8               ; (2wn) ^ r
        v_lshl_add_u32 v10, v8, 6, v10
        v_bfe_u32 v8, v1, 4, 1
        v_lshl_add_u32 v10, v8, 5, v10
        v_and_b32 v8, 3, v1
        v_lshl_add_u32 v10, v8, 3, v10
        v_add_u32 v28, {WPOS[0]}, v10
        v_xor_b32 v29, 64, v28
        v_add_u32 v{vW2}, {WPOS[2]}, v10
        v_xor_b32 v{vW2+1}, 64, v{vW2}
        s_lshl_b32 {sTM0}, {sW}, 8
        s_add_u32 {sTM1}, {sTM0}, {TSPLIT*TROW}
        """)
        a.e(f"""
        s_lshr_b32 s8, {sW}, 1             ; channel
        s_lshl_b32 s9, s8, 9
        s_add_u32 s9, s9, {L_TAB}
        v_and_b32 v8, 15, v1
        v_lshrrev_b32 v9, 4, v1
        v_lshl_add_u32 v10, v9, 4, s9      ; base + g*16
        s_movk_i32 s10, {TROW}
        v_add_u32 v12, {XB}, v8
        v_mad_u32_u24 v{vKX}, v12, s10, v10
        s_and_b32 s11, {sW}, 1
        s_cmp_eq_u32 s11, 0
        s_cselect_b64 vcc, -1, 0
        v_lshrrev_b32 v11, 2, v8           ; gi
        v_and_b32 v4, 3, v8                ; r
        v_min_u32 v30, 2, v4               ; min(r,2)
        v_lshrrev_b32 v31, 1, v11
        v_lshl_add_u32 v12, v11, 1, v31
        v_add3_u32 v12, v12, v30, {YB[2]}
        v_add_u32 v13, {YB[0]}, v8
        v_cndmask_b32 v12, v12, v13, vcc
        v_mad_u32_u24 v{vKY}, v12, s10, v10
        v_mad_u32_u24 v12, v11, 3, v30
        v_add_u32 v12, {YB[4]}, v12
        v_min_u32 v13, 14, v8
        v_add_u32 v13, {YB[0]+4}, v13
        v_cndmask_b32 v12, v12, v13, vcc
        v_mad_u32_u24 v{vKY+1}, v12, s10, v10
        v_lshl_add_u32 v12, v11, 1, v4
        v_add_u32 v12, {YB[1]}, v12
        v_mad_u32_u24 v{vKY+2}, v12, s10, v10
        s_mul_i32 s9, s8, {4*KCP}
        s_add_u32 s9, s9, {L_KC}
        v_lshlrev_b32 v11, 5, v8           ; 32j
        v_sub_u32 v11, s9, v11             ; base - 32j
        v_lshlrev_b32 v12, 3, v9
        v_sub_u32 v12, v11, v12
        v_add_u32 v12, {4088-512}, v12
        v_lshrrev_b32 v13, 1, v9
        v_lshlrev_b32 v13, 9, v13
        v_and_b32 v4, 1, v9
        v_lshl_add_u32 v13, v4, 4, v13     ; 512(g>>1) + 16(g&1)
        v_sub_u32 v13, v11, v13
        v_add_u32 v13, {4080-1024}, v13
        v_cndmask_b32 v{vKWA}, v13, v12, vcc
        v_lshlrev_b32 v13, 9, v9
        v_sub_u32 v13, v11, v13
        v_add_u32 v{vKWB}, {4064-2048}, v13
        s_movk_i32 s10, {KCP}
        v_lshrrev_b32 v11, 3, v1
        v_and_b32 v12, 7, v1
        v_lshlrev_b32 v12, 3, v12
        v_mad_u32_u24 v12, v11, s10, v12
        s_add_u32 s12, s9, 4096
        v_add_u32 v{vKZ}, s12, v12
        """)

    def push_setup_late(self):
        P = self.push
        P(f"""
        v_lshrrev_b32 v8, 1, v1
        v_and_b32 v9, 1, v1
        v_lshlrev_b32 v10, 13, v8
        v_lshl_add_u32 v{vUG}, v9, 4, v10
        s_lshl_b32 s8, {sW}, 19            ; 64w*8192
        s_lshl_b32 s9, {sX}, 10
        s_add_u32 s8, s8, s9
        s_lshl_b32 s9, {sI}, 5
        s_add_u32 s8, s8, s9
        s_add_u32 {sUG0}, s8, {WS_UT}
        s_add_u32 {sUG1}, {sUG0}, {32*8192}
        s_movk_i32 s8, {UP}
        v_lshlrev_b32 v8, 4, v8
        v_mad_u32_u24 v8, v9, s8, v8
        s_lshl_b32 s8, {sW}, 10
        s_add_u32 s9, s8, {L_U + 480}
        v_add_u32 v{vUW}, s9, v8
        v_and_b32 v8, 31, v1
        s_add_u32 s8, s8, {WS_TF}
        v_lshl_add_u32 v{vTF}, v8, 5, s8
        s_lshl_b32 s8, {sX}, 2
        s_lshr_b32 s9, {sI}, 3
        s_add_u32 s8, s8, s9
        s_lshl_b32 s8, s8, 2
        s_add_u32 s8, s8, {sW}
        s_lshl_b32 s8, s8, 7
        s_add_u32 s8, s8, {WS_HF}
        v_min_u32 v8, 6, v1
        v_lshl_add_u32 v{vHF}, v8, 4, s8
        s_and_b32 s9, {sW}, 1
        s_lshl_b32 s8, s79, 12
        s_lshl_b32 s10, s9, 11
        s_add_u32 s8, s8, s10
        s_add_u32 {sAT}, s8, {WS_AT}
        s_lshl_b32 s8, s9, 13
        s_lshl_b32 s10, s79, 4
        s_add_u32 s8, s8, s10
        s_add_u32 {sAF}, s8, {WS_AF}
        s_xor_b32 s8, {sW}, 1
        s_lshl_b32 s8, s8, 12
        s_add_u32 s8, s8, {L_EX}
        v_add_u32 v{vEXD}, s8, v7
        s_add_u32 s8, s73, {L_EX}
        v_add_u32 v{vEXO}, s8, v7
        """)
        P(f"""
        s_lshr_b32 s8, {sW}, 1             ; channel
        s_mul_i32 s9, s8, {4*KCP}
        s_add_u32 s9, s9, {L_KC}
        v_and_b32 v8, 15, v1
        v_lshrrev_b32 v9, 4, v1
        v_add_u32 v11, 1, v8
        v_and_b32 v11, 3, v11              ; sigma
        v_sub_u32 v12, 18, v8
        v_and_b32 v12, 28, v12
        v_lshl_add_u32 v12, v9, 3, v12
        v_lshlrev_b32 v12, 1, v12
        s_movk_i32 s10, {KCP}
        v_mad_u32_u24 v12, v11, s10, v12
        s_and_b32 s11, {sW}, 1
        s_xor_b32 s11, s11, 1
        s_lshl_b32 s11, s11, 8             ; hw=0 (q0 0..3) -> +256 B
        s_add_u32 s12, s9, s11
        v_add_u32 v{vCA}, s12, v12
        v_lshlrev_b32 v12, 5, v8
        v_lshl_add_u32 v12, v9, 4, v12
        s_mul_i32 s12, s8, {UP}
        s_add_u32 s12, s12, {L_U}
        s_add_u32 s13, s12, s11
        v_add_u32 v{vCB}, s13, v12
        v_min_u32 v11, 59, v1
        v_lshl_add_u32 v11, v11, 3, s12
        v_mov_b32 v12, 0
        v_mov_b32 v13, 0
        """)
        P("ds_write_b64 v11, v[12:13]", tag="Z")
        P(f"""
        v_lshrrev_b32 v8, 3, v1
        v_lshlrev_b32 v8, 10, v8
        v_bfe_u32 v9, v1, 4, 1
        v_lshlrev_b32 v9, 2, v9
        v_and_b32 v10, 7, v1
        v_xor_b32 v10, v10, v9
        v_lshl_add_u32 v10, v10, 4, v8
        s_lshl_b32 {sBS}, {sW}, 11
        v_lshrrev_b32 v8, 5, v1            ; g
        v_bfe_u32 v9, v1, 2, 2             ; r
        v_lshl_add_u32 v8, v8, 2, v9       ; 4g + r
        v_lshl_add_u32 v8, v8, 7, {sBS}
        v_bfe_u32 v9, v1, 3, 1             ; (r>>1)&1
        v_lshl_add_u32 v8, v9, 6, v8
        v_bfe_u32 v9, v1, 4, 1
        v_lshl_add_u32 v8, v9, 5, v8
        v_and_b32 v9, 3, v1
        v_lshl_add_u32 v8, v9, 3, v8
        v_add_u32 v{vBL}, {BS_LO}, v8
        v_xor_b32 v{vBL+1}, 64, v{vBL}
        v_add_u32 v{vBH}, {BS_HI}, v8
        v_xor_b32 v{vBH+1}, 64, v{vBH}
        v_add_u32 v11, {8192-1024}, v10
        s_and_b32 s8, {sI}, 7              ; n
        s_lshr_b32 s9, {sI}, 3             ; m
        s_mul_i32 s12, {sW}, {28*16384}
        s_lshl_b32 s10, s8, 7
        s_add_u32 s12, s12, s10            ; w2 base
        s_and_b32 s10, {sX}, 6
        s_lshr_b32 s11, {sW}, 1
        s_add_u32 s10, s10, s11
        s_lshl_b32 s10, s10, 4
        s_and_b32 s11, {sX}, 1
        s_lshl_b32 s11, s11, 3
        s_add_u32 s10, s10, s11
        s_lshl_b32 s11, s9, 1
        s_add_u32 s10, s10, s11            ; + 8(x&1) + 2m
        s_mul_i32 s10, s10, 56
        s_and_b32 s11, {sW}, 1
        s_mul_i32 s3, s11, 28
        s_add_u32 s10, s10, s3
        s_lshl_b32 s10, s10, 10
        s_add_u32 s13, s10, {WS_H}         ; h base
        s_lshl_b32 s11, s11, 8
        v_xor_b32 v8, s11, v7              ; (l ^ 16(w&1))*16
        s_lshr_b32 s11, {sW}, 1
        s_mul_i32 s3, s11, {56*1024}
        v_add_u32 v12, s3, v8
        s_sub_u32 s3, {56*1024}, s3
        v_add_u32 v13, s3, v8
        s_add_u32 s10, s8, s9
        """)
        g = self.o.get("g2rot", 2)
        if g == 2:
            P("s_lshl_b32 s10, s10, 1")
        elif g == 1:
            P("s_mov_b32 s10, 0")
        for k in range(4):
            P(f"""
            s_add_u32 s11, s10, {k}
            s_and_b32 s11, s11, 3
            s_mul_i32 s3, s11, {7*16384}
            s_add_u32 {sBB[k]}, s12, s3
            s_mul_i32 s3, s11, {7*1024}
            s_add_u32 {sAB[k]}, s13, s3
            """)
        P(f"""
        s_lshl_b32 s8, {sX}, 4
        s_lshl_b32 s9, s77, 2
        s_add_u32 s8, s8, s9
        s_and_b32 s9, {sW}, 2
        s_add_u32 s8, s8, s9
        s_mul_i32 s8, s8, 56
        s_lshl_b32 s9, s78, 3
        s_add_u32 s8, s8, s9
        s_and_b32 s9, {sW}, 1
        s_lshl_b32 s9, s9, 2
        s_add_u32 s8, s8, s9
        s_lshl_b32 s8, s8, 10
        s_add_u32 {sH0}, s8, {WS_H}
        s_add_u32 {sH1}, {sH0}, {56*1024}
        s_lshr_b32 s8, {sX}, 1
        s_lshl_b32 s8, s8, 2
        s_add_u32 s8, s8, s77
        s_lshl_b32 s8, s8, 1
        s_lshr_b32 s9, {sW}, 1
        s_add_u32 s8, s8, s9
        s_lshl_b32 s8, s8, 1
        s_and_b32 s9, {sX}, 1
        s_add_u32 s8, s8, s9
        s_lshl_b32 s8, s8, 8               ; *2 groups*128B
        s_lshl_b32 s9, s78, 1
        s_and_b32 s10, {sW}, 1
        s_add_u32 s9, s9, s10              ; 2ct+wn
        s_cmp_ge_u32 s9, 7
        s_cselect_b32 s10, {128-7*16}, 0
        s_lshl_b32 s9, s9, 4
        s_add_u32 s8, s8, s9
        s_add_u32 s8, s8, s10
        s_add_u32 s8, s8, {WS_HF}
        s_cmp_ge_u32 {sI}, 28
        s_cselect_b32 {sHF}, {WS_SIZE}, s8
        """)

    def t_job(self):
        a = self.a
        a.e(f"""
        s_sub_u32 s8, {sI}, 28
        s_lshl_b32 s9, {sX}, 2
        s_add_u32 s8, s8, s9
        s_lshl_b32 s8, s8, 2
        s_add_u32 s70, s8, {sW}
        s_lshl_b32 s8, s70, 14
        """)
        a.e(f"global_load_dwordx4 v[96:99], v7, {P_GW}", tag="T0")
        for q in range(4):
            for r in range(4):
                a.e(f"buffer_load_dwordx4 {v(32+16*q+4*r,4)}, v7, {R_U}, s8 offen offset:{r*1024}", tag=f"T{q//2}")
            a.e("s_add_u32 s8, s8, 4096")
            if q == 2:
                self.epoch_master()
        self.params_load()
        self.tlb_touch()
        a.e(f"""
        s_mov_b32 s12, 0x05040100
        s_mov_b32 s13, 0x07060302
        s_lshl_b32 s8, s70, 14
        s_add_u32 s8, s8, {WS_UT}
        """)
        for blk in range(2):
            a.wait(vm=f"T{blk}")
            self.stamp(f"t{blk}")
            if blk == 1:
                self.gate_tail()
            for c8 in range(8):
                o = 100 + 4 * c8
                for k in range(4):
                    r0 = 32 + 32 * blk + 8 * k + c8 // 2
                    a.e(f"v_perm_b32 v{o+k}, v{r0+4}, v{r0}, s{12+(c8&1)}")
                a.e(f"buffer_store_dwordx4 {v(o,4)}, v7, {R_WS}, s8 offen offset:{(c8%4)*1024} sc1", tag="Tst")
                if c8 % 4 == 3:
                    a.e("s_add_u32 s8, s8, 4096")
                if blk == 1:
                    self.drain(12)
            if blk == 0:
                for q in range(4):
                    for r in range(8):
                        a.e(f"v_dot2_f32_bf16 v{132+r}, v{32+4*r+q}, v{96+q}, {'0' if q == 0 else 'v%d' % (132+r)}")
        self.drain()
        self.epoch_issue()
        self.stamp("tst")
        self.setup_pre()
        self.epoch_check()
        a.e(f"s_lshl_b32 s8, s70, 5\ns_add_u32 s8, s8, {WS_TF}")
        self.publish("s8")
        self.stamp("tpub")
        if self.o.get("w2warm", 1):
            a.e(f"s_mul_i32 s8, s70, {14*1024}")
            for k in range(14):
                a.e(f"buffer_load_dwordx4 {acc(224+4*(k%8),4)}, v7, {R_W2}, s8 offen offset:{(k%4)*1024}", tag="WW")
                if k % 4 == 3:
                    a.e("s_add_u32 s8, s8, 4096")

    def gate_tail(self):
        P = self.push
        for q in range(4):
            for r in range(8, 16):
                P(f"v_dot2_f32_bf16 v{132+r}, v{32+4*r+q}, v{96+q}, {'0' if q == 0 else 'v%d' % (132+r)}")
        prs = [(4*j+e_, 4*j+e_+2) for j in range(4) for e_ in range(2)]
        for p, q in prs:
            P(f"v_permlane32_swap_b32 v{132+p}, v{132+q}")
        for p, q in prs:
            P(f"v_add_f32 v{132+p}, v{132+p}, v{132+q}")
        for j in range(4):
            P(f"v_permlane16_swap_b32 v{132+4*j}, v{133+4*j}")
        for j in range(4):
            P(f"v_add_f32 v{132+4*j}, v{132+4*j}, v{133+4*j}")
        for r in (8, 4, 2, 1):
            for j in range(4):
                P(f"v_add_f32_dpp v{132+4*j}, v{132+4*j}, v{132+4*j} row_ror:{r} row_mask:0xf bank_mask:0xf")
        P(f"""
        v_and_b32 v8, 3, v1
        v_cmp_eq_u32 vcc, 1, v8
        v_cndmask_b32 v132, v132, v136, vcc
        v_cmp_eq_u32 vcc, 2, v8
        v_cndmask_b32 v132, v132, v140, vcc
        v_cmp_eq_u32 vcc, 3, v8
        v_cndmask_b32 v132, v132, v144, vcc
        v_mul_f32 v132, 0xbfb8aa3b, v132
        v_exp_f32 v132, v132
        v_lshrrev_b32 v9, 4, v1
        v_lshlrev_b32 v9, 2, v9
        v_add_f32 v132, 1.0, v132
        v_rcp_f32 v132, v132
        v_lshl_add_u32 v9, v8, 4, v9
        s_lshl_b32 s9, s70, 6
        s_add_u32 s9, s9, {WS_G}
        """)

        def st():
            a = self.a
            a.e("s_mov_b32 exec_lo, 0x000f000f\ns_mov_b32 exec_hi, 0x000f000f")
            a.e(f"buffer_store_dword v132, v9, {R_WS}, s9 offen sc1", tag="Tst")
            a.e("s_mov_b64 exec, -1")
        self.pushf(st)

    def kgen(self, fill):
        a = self.a
        E = lambda k: 80 + 2 * (k - 1)
        F = lambda c: 116 + 2 * (c - 1)
        X0 = 130
        a.wait(vm="P")
        self.stamp("kgs")
        a.e(f"""
        v_mul_f32 v134, 0x3fb8aa3b, v182
        v_exp_f32 v134, v134
        v_pk_mul_f32 v[138:139], v[180:181], v[178:179] op_sel_hi:[1,0]
        v_cvt_pk_bf16_f32 v134, v134, v134
        v_pk_fma_f32 v[138:139], v[180:181], v[178:179], v[138:139] op_sel:[1,1,0] op_sel_hi:[0,1,1] neg_lo:[1,0,0]
        v_and_b32 v134, 0xffff0000, v134
        v_mov_b32 v47, 0x3f80
        v_mul_f32 v135, v134, v176         ; zr
        v_mul_f32 v136, v134, v177         ; zi
        v_pk_mul_f32 v[{X0}:{X0+1}], v[138:139], v[134:135] op_sel_hi:[1,0]
        v_mul_f32 v135, 0x3fb8aa3b, v135
        v_mul_f32 v136, 0.15915494, v136   ; revolutions
        v_mul_f32 v142, 0x41800000, v135
        v_mul_f32 v143, 0x41800000, v136
        v_mul_f32 v144, 0x43800000, v135
        v_mul_f32 v145, 0x43800000, v136
        v_fract_f32 v141, v136
        v_fract_f32 v143, v143
        v_fract_f32 v145, v145
        v_exp_f32 v140, v135
        v_exp_f32 v142, v142
        v_exp_f32 v144, v144
        """)
        for dst, t in ((E(1), 140), (E(16), 142), (F(1), 144)):
            a.e(f"v_cos_f32 v{dst}, v{t+1}\nv_sin_f32 v{dst+1}, v{t+1}")
        for dst, t in ((E(1), 140), (E(16), 142), (F(1), 144)):
            a.e(f"v_pk_mul_f32 {v(dst,2)}, {v(dst,2)}, {v(t,2)} op_sel_hi:[1,0]")
        src = {2: (1, 1), 3: (2, 1), 4: (2, 2), 5: (4, 1), 6: (4, 2), 7: (4, 3), 8: (4, 4), 17: (16, 1), 18: (16, 2)}
        for k in range(9, 16):
            src[k] = (8, k - 8)
        ej = [(E(k), E(src[k][0]), E(src[k][1]), YB[0] + k, False) for k in (2, 17, 3, 4, 18, 5, 6, 7, 8, 9, 10, 11, 12, 13, 14, 15)]
        fsrc = {2: (1, 1), 3: (2, 1), 4: (2, 2), 5: (4, 1), 6: (4, 2), 7: (4, 3)}
        fj = [(F(c), F(fsrc[c][0]), F(fsrc[c][1]), YB[c], False) for c in range(2, 8)]
        xj = [(X0 + 2 * (k % 2), X0 + 2 * ((k - 1) % 2), E(16), XB + k, True) for k in range(1, 16)]
        pj = []
        tmp = list(range(146, 170, 2))
        ti = 0
        for c in range(1, 8):
            step = {1: 2, 2: 4, 3: 4}.get(c, 8)
            top = 19 if c == 1 else 17
            for n_, rho in enumerate(range(step, top, step)):
                pj.append((tmp[ti % len(tmp)], F(c), E(rho), YB[c] + 1 + n_, False))
                ti += 1
        others = []
        q1, q2 = list(ej), list(fj)
        while q1 or q2:
            if q1:
                others.append(q1.pop(0))
            if q2:
                others.append(q2.pop(0))
        others += pj
        order = []
        xs = list(xj)
        while others or xs:
            grp = []
            if xs:
                grp.append(xs.pop(0))
            while others and len(grp) < 4:
                j = others[0]
                if any(g[0] in (j[1], j[2]) or g[0] == j[0] for g in grp):
                    break
                grp.append(others.pop(0))
            order.append(grp)
        wq = deque()
        st = {"n": 0, "t": 0, "m0": None}

        def wr(reg, row):
            if st["m0"] is None or (st["m0"] == 0 and row * TROW > 64000) or (st["m0"] == 1 and row < TSPLIT):
                st["m0"] = 0 if row * TROW <= 64000 else 1
                a.e(f"s_mov_b32 m0, {sTM1 if st['m0'] else sTM0}")
                a.e("s_nop 0")
            a.e(f"ds_write_addtid_b32 v{reg} offset:{(row - TSPLIT * st['m0']) * TROW}", tag="TB")

        def valu(t):
            a.e(t)
            st["n"] += 1
            if wq and st["n"] % 3 == 0 and wq[0][2] + 2 <= st["n"]:
                r_ = wq.popleft()
                wr(r_[0], r_[1])

        def put(reg, row, neg):
            t = 32 + st["t"] % 15
            st["t"] += 1
            assert len(wq) < 13
            wq.append((t, row, st["n"] + 1))
            valu(f"v_cvt_pk_bf16_f32 v{t}, v{reg}, {'-' if neg else ''}v{reg+1}")

        a.label(".p2align 3")
        wr(47, YB[0])
        prev = [(X0, 0, 0, XB, True), (E(1), 0, 0, YB[0] + 1, False), (E(16), 0, 0, YB[0] + 16, False), (F(1), 0, 0, YB[1], False)]
        for gi, grp in enumerate(order):
            for (d, x, y, row, neg) in grp:
                valu(f"v_pk_mul_f32 {v(d,2)}, {v(x,2)}, {v(y,2)} op_sel_hi:[1,0]")
            for (d, x, y, row, neg) in prev:
                put(d, row, neg)
            for (d, x, y, row, neg) in grp:
                valu(f"v_pk_fma_f32 {v(d,2)}, {v(x,2)}, {v(y,2)}, {v(d,2)} op_sel:[1,1,0] op_sel_hi:[0,1,1] neg_lo:[1,0,0]")
            prev = grp
            for f in fill.get(gi, []):
                f()
                st["m0"] = None
        for (d, x, y, row, neg) in prev:
            put(d, row, neg)
        a.e(f"""
        s_and_b32 s8, {sW}, 1
        s_lshl_b32 s8, s8, 6
        v_cmp_eq_u32 vcc, s8, v1
        v_mov_b32 v217, 0
        v_mov_b32 v218, 0
        v_mov_b32 v219, 0
        v_cndmask_b32 v216, 0, v183, vcc
        """)
        while wq:
            r_ = wq.popleft()
            wr(r_[0], r_[1])
        self.stamp("kge")
        return len(order)

    def push_kmfma(self):
        YR = [64, 68, 72, 76] + list(range(184, 216, 4))
        NY = len(YR)
        AH = 8
        seq = [(ks, c) for ks in range(8) for c in range(3)]
        for ks in range(8):
            self.push(f"ds_read_b128 {v(32+4*ks,4)}, v{vKX} offset:{64*ks}", tag="KX")
        yr = lambda n_: self.push(f"ds_read_b128 {v(YR[n_%NY],4)}, v{vKY+seq[n_][1]} offset:{64*seq[n_][0]}", tag=f"KY{n_}")
        for n_ in range(AH):
            yr(n_)
        for n_, (ks, c) in enumerate(seq):
            d = 216 + 4 * c
            cc = "0" if (ks == 0 and c != 0) else v(d, 4)

            def f(n_=n_, d=d, cc=cc, ks=ks):
                self.a.wait(lg=f"KY{n_}")
                self.a.e(f"v_mfma_f32_16x16x32_bf16 {v(d,4)}, {v(YR[n_%NY],4)}, {v(32+4*ks,4)}, {cc}")
            self.pushf(f)
            if n_ + AH < 24:
                yr(n_ + AH)

    def push_kexpand(self, hw):
        P = self.push
        cv = lambda dst, hi_lag, lo_lag: P(f"v_cvt_pk_bf16_f32 v{dst}, {hi_lag}, {lo_lag}")
        if hw == 0:
            P("""
            v_cmp_eq_u32 vcc, 63, v1
            v_cndmask_b32 v221, v221, v220, vcc
            v_cndmask_b32 v227, v227, v226, vcc
            """)
            k0 = [f"v{216+n}" for n in range(7)]
            k1 = ["v224", "v224", "v225", "v226", "v226", "v226", "v227"]
            for si, (k, off) in enumerate(((k0, 512), (k1, 0))):
                for sg in range(4):
                    t = 32 + 8 * si + 2 * sg
                    cv(t, k[sg + 3], k[sg + 2])
                    cv(t + 1, k[sg + 1], k[sg])
                    P(f"ds_write_b64 v{vKWA}, {v(t,2)} offset:{off+sg*KCP}", tag="KW")
            P("""
            v_readfirstlane_b32 s8, v33        ; (K1 | K0<<16)
            v_readfirstlane_b32 s9, v35        ; (K2 | K1<<16)
            v_mov_b32 v48, 0
            v_mov_b32 v49, 0
            s_lshr_b32 s10, s8, 16             ; K0
            v_writelane_b32 v48, s10, 8
            v_writelane_b32 v48, s8, 16
            v_writelane_b32 v48, s9, 24
            v_writelane_b32 v49, s10, 24
            """)
            self.pushf(lambda: self.a.e(f"s_mov_b32 exec_hi, 0\nds_write_b64 v{vKZ}, v[48:49]\ns_mov_b32 exec_hi, -1", tag="KW"))
        else:
            k2 = ["v216"] * 3 + ["v217"] * 3 + ["v218"] * 5
            k3 = ["v220"] * 5 + ["v221"] * 7 + ["v222"] * 7
            t = 32
            for sg in range(4):
                for q in range(4):
                    cv(t + q, k2[sg + 7 - 2 * q], k2[sg + 6 - 2 * q])
                P(f"ds_write_b128 v{vKWA}, {v(t,4)} offset:{sg*KCP}", tag="KW")
                t += 4
                for hf in range(2):
                    for q in range(4):
                        cv(t + q, k3[sg + 15 - 8 * hf - 2 * q], k3[sg + 14 - 8 * hf - 2 * q])
                    P(f"ds_write_b128 v{vKWB}, {v(t,4)} offset:{sg*KCP+16*hf}", tag="KW")
                    t += 4

    def push_b_issue(self):
        i = self.b_iss
        if i >= 28:
            return
        assert i - self.b_con < BSN
        self.b_iss += 1
        if i >= BSN:
            self.pushw(lg=f"BR{i-BSN}")
        self.push(f"""
        s_add_u32 m0, {sBS}, {bs_pos(i)}
        s_add_u32 s14, {sBB[i//7]}, {(i%7)*16384}
        buffer_load_dwordx4 v10, {R_W2}, s14 offen lds
        buffer_load_dwordx4 v11, {R_W2}, s14 offen offset:1024 lds
        """, tag=f"B{i}")

    def push_b_consume(self):
        i = self.b_con
        if i >= 28:
            return
        assert i < self.b_iss
        self.b_con += 1
        self.pushw(vm=f"B{i}")
        for cb in range(2):
            for hh in range(2):
                ad, off = (vBL, bs_pos(i) - BS_LO) if bs_pos(i) < BS_HI else (vBH, bs_pos(i) - BS_HI)
                self.push(f"ds_read_b64_tr_b16 {acc(8*i+4*cb+2*hh,2)}, v{ad+cb} offset:{off+hh*1024}", tag=f"BR{i}")

    def push_b_step(self):
        if self.b_iss - self.b_con < BSN:
            self.push_b_issue()
        self.push_b_consume()

    def t_poll_issue(self):
        self.epoch_issue()
        self.poll_issue(f"v{vTF}", f"v{vPD}", "PT")

    def ut_gather(self):
        a = self.a
        self.epoch_check()
        self.poll_check(f"v{vTF}", f"v{vPD}", "PT")
        self.stamp("tpoll")
        a.e(f"buffer_load_dwordx4 v[228:231], v{vUG}, {R_WS}, {sUG0} offen sc1", tag="UG")
        a.e(f"buffer_load_dwordx4 v[232:235], v{vUG}, {R_WS}, {sUG1} offen sc1", tag="UG")

    def g1(self):
        a = self.a
        o = self.o

        def reads(kap):
            s, ks = divmod(kap, 4)
            slot = s % 3
            b = 80 + 16 * (kap % 2)
            L = []
            for fb in range(2):
                wa, wo = (28 + fb, WPOS[slot] - WPOS[0]) if slot < 2 else (vW2 + fb, 0)
                xa, xo = 24 + ks, XPOS[slot] - XPOS[2]
                for hh in range(2):
                    L.append(f"ds_read_b64_tr_b16 {v(b+8+4*fb+2*hh,2)}, v{wa} offset:{wo+ks*4096+hh*1024}")
                L.append(f"ds_read_b128 {v(b+4*fb,4)}, v{xa} offset:{xo+fb*4096}")
            return L

        def mf(kap, fb, tb):
            b = 80 + 16 * (kap % 2)
            d = 112 + 16 * (2 * fb + tb)
            c = "0" if kap == 0 else v(d, 16)
            return f"v_mfma_f32_32x32x16_bf16 {v(d,16)}, {v(b+8+4*fb,4)}, {v(b+4*tb,4)}, {c}"

        pend = []

        def head(kap):
            s, ks = divmod(kap, 4)
            if ks == 3 and kap < 31:
                a.wait(vm=f"D{s+1}", lg=0)
                a.e("s_barrier")
                self.stamp(f"st{s+1}")

        def body(kap, rate):
            s, ks = divmod(kap, 4)
            if ks == 3 and s + 3 < 8:
                assert not pend
                if s == 0:
                    pend.extend((x, "D2") for x in self.dma_ops(2)[4:])
                d = self.dma_ops(s + 3)
                d[0] = self.dma_setup(s + 3) + d[0]
                pend.extend((x, f"D{s+3}") for x in d)
            nxt = reads(kap + 1) if kap < 31 else []
            if ks != 3 or kap == 31:
                a.wait(lg=f"R{kap}")
            ms = [mf(kap, 0, 0), mf(kap, 0, 1), mf(kap, 1, 0), mf(kap, 1, 1)]
            per = [2, 2, 2, 0]
            for i, m in enumerate(ms):
                a.e(m)
                for _ in range(per[i]):
                    if nxt:
                        a.e(nxt.pop(0), tag=f"R{kap+1}")
                if pend and (i in (1, 3) or (kap < 7 and i == 2)):
                    x, t = pend.pop(0)
                    a.e(x, tag=t)
                self.drain(rate[i])

        a.wait(vm="D0", lg=0)
        a.e("s_barrier")
        self.stamp("g1s")
        for r in reads(0):
            a.e(r, tag="R0")
        self.push_kmfma()
        for kap in range(7):
            head(kap)
            body(kap, (2, 2, 2, 3))
        self.drain()
        tpos, upos = o.get("tpos", 23), o.get("upos", 27)
        for kap in range(7, 32):
            head(kap)
            if kap == 7:
                self.push_setup_late()
            if kap == tpos:
                self.drain()
                self.t_poll_issue()
            if kap == upos:
                self.ut_gather()
            if kap >= 23 and self.b_iss < 6:
                self.push_b_issue()
            body(kap, (3, 2, 3, 4) if kap < tpos else (1, 1, 1, 1))
        assert not pend
        self.drain()
        self.stamp("g1e")

    def push_h_epilogue(self):
        k = 0
        for fb in range(2):
            for tb in range(2):
                d = 112 + 16 * (2 * fb + tb)
                for half in range(2):
                    t = 184 + 4 * k
                    k += 1
                    for j in range(4):
                        self.push(f"v_cvt_pk_bf16_f32 v{t+j}, v{d+8*half+2*j}, v{d+8*half+2*j+1}")
                    for j in range(4):
                        self.push(f"v_pk_max_i16 v{t+j}, v{t+j}, 0")
                    self.push(f"buffer_store_dwordx4 {v(t,4)}, v7, {R_WS}, {sH0 if tb == 0 else sH1} offen offset:{(2*fb+half)*1024} sc1", tag="Hst")

    def pre_conv(self):
        a = self.a
        self.stamp("hiss")
        a.e(f"s_bitcmp1_b32 {sW}, 0")
        a.e("s_cbranch_scc1 L_sk1")
        self.push_kexpand(0)
        self.drain()
        a.e("s_branch L_skj")
        a.label("L_sk1")
        self.push_kexpand(1)
        self.drain()
        a.label("L_skj")
        self.stamp("kw")
        a.wait(vm="UG")
        a.e(f"ds_write_b128 v{vUW}, v[228:231]", tag="UW")
        a.e(f"ds_write_b128 v{vUW}, v[232:235] offset:512", tag="UW")
        a.wait(lg=0)
        a.e("s_barrier")
        self.stamp("convs")

    def conv(self, fill):
        a = self.a

        def reads(st):
            A0 = 32 + 64 * (st % 2)
            B0 = 64 + 64 * (st % 2)
            L = []
            for k in range(8):
                offA = 512 * (7 - k) + 64 * (3 - st)
                offB = 512 * k + 64 * (3 - st)
                L.append((f"ds_read_b64 {v(A0+4*k,2)}, v{vCA} offset:{offA}", f"C{st}_{k}"))
                L.append((f"ds_read_b64 {v(A0+4*k+2,2)}, v{vCA} offset:{offA+8}", f"C{st}_{k}"))
                L.append((f"ds_read_b128 {v(B0+4*k,4)}, v{vCB} offset:{offB}", f"C{st}_{k}"))
            return L

        first = set()
        for c_, t_ in reads(0):
            a.e(c_, tag=t_)
        for st in range(4):
            A0 = 32 + 64 * (st % 2)
            B0 = 64 + 64 * (st % 2)
            nxt = reads(st + 1) if st < 3 else []
            pairs = sorted([(q1, m) for q1 in range(8) for m in range(8) if q1 + m <= 7], key=lambda p: (max(p), p[0] + p[1]))
            have = -1
            for n_, (q1, m) in enumerate(pairs):
                used = 0
                if max(q1, m) > have:
                    have = max(q1, m) if st == 0 else 7
                    a.wait(lg=f"C{st}_{have}")
                    used += 1
                c = q1 + m
                d = 160 + 4 * c
                cc = v(d, 4) if c in first else "0"
                first.add(c)
                a.e(f"v_mfma_f32_16x16x32_bf16 {v(d,4)}, {v(A0+4*q1,4)}, {v(B0+4*m,4)}, {cc}")
                if nxt and n_ >= 4:
                    c_, t_ = nxt.pop(0)
                    a.e(c_, tag=t_)
                    used += 1
                for f in fill.get(36 * st + n_, []):
                    f()
                self.drain(2 - used)
            assert not nxt
        self.drain()

    def conv_out(self):
        a = self.a
        a.e(f"""
        s_bitcmp1_b32 {sW}, 0
        s_nop 7
        s_cbranch_scc1 L_hw1
        """)
        for k in range(4):
            a.e(f"ds_write_b128 v{vEXD}, {v(176+4*k,4)} offset:{1024*k}", tag="EX")
        a.e("s_branch L_hwj")
        a.label("L_hw1")
        for k in range(4):
            a.raw(f"ds_write_b128 v{vEXD}, {v(160+4*k,4)} offset:{1024*k}")
        a.wait(lg=0)
        for k in range(8):
            a.e(f"v_pk_mov_b32 {v(160+2*k,2)}, {v(176+2*k,2)}, {v(176+2*k,2)} op_sel:[0,1]")
        a.label("L_hwj")

    def conv_out2(self):
        a = self.a
        a.wait(lg=0)
        a.e("s_barrier")
        for k in range(4):
            a.e(f"ds_read_b128 {v(176+4*k,4)}, v{vEXO} offset:{1024*k}", tag=f"EY{k}")
        for cp in range(2):
            for cl in range(2):
                k = 2 * cp + cl
                a.wait(lg=f"EY{k}")
                a.e(f"v_pk_add_f32 {v(160+4*k,2)}, {v(160+4*k,2)}, {v(176+4*k,2)}")
                a.e(f"v_pk_add_f32 {v(162+4*k,2)}, {v(162+4*k,2)}, {v(178+4*k,2)}")
                a.e(f"v_cvt_pk_bf16_f32 v{20+4*cp+2*cl}, v{160+4*k}, v{161+4*k}")
                a.e(f"v_cvt_pk_bf16_f32 v{21+4*cp+2*cl}, v{162+4*k}, v{163+4*k}")
            a.e(f"v_permlane16_swap_b32 v{20+4*cp}, v{22+4*cp}")
            a.e(f"v_permlane16_swap_b32 v{21+4*cp}, v{23+4*cp}")
            a.e(f"buffer_store_dwordx4 {v(20+4*cp,4)}, v7, {R_WS}, {sAT} offen offset:{1024*cp} sc1", tag="Ast")

    def a_load(self, i):
        r = 32 + 8 * (i % 16)
        return f"""
        s_add_u32 s15, {sAB[i//7]}, {(i%7)*1024}
        buffer_load_dwordx4 {v(r,4)}, v12, {R_WS}, s15 offen sc1
        buffer_load_dwordx4 {v(r+4,4)}, v13, {R_WS}, s15 offen sc1
        """

    def late_addr(self):
        t = f"""
        s_and_b32 s11, {sI}, 7             ; n
        s_lshl_b32 s12, s11, 6
        s_lshl_b32 s13, {sW}, 4
        s_add_u32 s12, s12, s13
        s_lshr_b32 s8, {sX}, 2
        s_lshl_b32 s8, s8, 13
        s_lshl_b32 s13, s12, 4
        s_add_u32 s8, s8, s13
        s_add_u32 s8, s8, {WS_AF}
        v_and_b32 v18, 15, v1
        v_lshl_add_u32 v18, v18, 4, s8     ; a flags
        s_lshr_b32 s9, {sI}, 3             ; m
        s_lshl_b32 s8, s12, 12
        s_lshr_b32 s13, {sX}, 1
        s_lshl_b32 s13, s13, 10
        s_add_u32 s8, s8, s13
        s_and_b32 s13, {sX}, 1
        s_lshl_b32 s13, s13, 8
        s_add_u32 s8, s8, s13
        s_lshl_b32 s13, s9, 6
        s_add_u32 s8, s8, s13
        s_add_u32 s8, s8, {WS_AT}
        v_lshrrev_b32 v8, 3, v1            ; dl
        v_bfe_u32 v9, v1, 2, 1             ; hf
        v_and_b32 v17, 3, v1               ; jj
        v_lshl_add_u32 v28, v8, 12, s8
        v_lshl_add_u32 v28, v9, 9, v28
        v_lshl_add_u32 v28, v17, 4, v28
        v_add_u32 v29, {8*4096}, v28
        v_mul_u32_u24 v8, 144, v8
        s_add_u32 s13, s73, {L_EX}
        v_add_u32 v8, s13, v8
        v_lshl_add_u32 v8, v17, 5, v8
        v_lshl_add_u32 v176, v9, 4, v8
        s_lshl_b32 s10, {sX}, 2
        s_add_u32 s10, s10, s9
        s_lshl_b32 s10, s10, 2
        s_add_u32 s10, s10, {sW}
        s_lshl_b32 s8, s10, 6
        s_add_u32 s8, s8, {WS_G}
        v_lshrrev_b32 v9, 5, v1
        v_lshl_add_u32 v177, v9, 4, s8
        v_and_b32 v8, 15, v1
        v_mul_u32_u24 v178, 144, v8
        v_bfe_u32 v8, v1, 4, 1
        v_lshl_add_u32 v178, v8, 12, v178
        v_and_b32 v8, 31, v1
        v_lshl_add_u32 v178, v9, 3, v178
        s_lshl_b32 s8, {sW}, 5
        s_add_u32 s8, s8, {L_EX}
        v_add_u32 v178, s8, v178
        v_lshlrev_b32 v179, 12, v9
        v_lshl_add_u32 v179, v8, 1, v179
        s_lshl_b32 s70, s10, 14
        s_lshl_b32 s13, s11, 7
        s_add_u32 s70, s70, s13
        s_add_u32 s71, s70, 8192
        s_mul_i32 s8, {sW}, {3*4096}
        s_add_u32 s8, s8, {L_RED}
        v_add_u32 v180, s8, v7
        """
        for lam in range(1, 4):
            t += f"""
            s_xor_b32 s8, {sW}, {lam}
            s_mul_i32 s8, s8, {3*4096}
            s_add_u32 s8, s8, {L_RED}
            v_add_u32 v{13+lam}, s8, v7
            """
        self.push(t)

    def a_loads(self, tag):
        a = self.a
        f = (lambda t: a.e(t, tag=tag)) if tag else a.raw
        f(f"buffer_load_dwordx4 v[160:163], v28, {R_WS}, 0 offen sc1")
        f(f"buffer_load_dwordx4 v[164:167], v29, {R_WS}, 0 offen sc1")

    def g2(self, PRE):
        a = self.a
        APOS = self.o.get("apos", 12)
        self.late_addr()
        for i in range(28):
            ld = lines(self.a_load(i + PRE)) if i + PRE < 28 else []
            if i == APOS:
                self.drain()
                self.poll_issue("v18", "v19", "PA")
            if i + PRE == 28:
                a.wait(vm="PA")
                a.e(f"v_cmp_ne_u32 s[74:75], {sEP}, v19")
                self.a_loads("AL")
                a.e(f"buffer_load_dwordx4 v[168:171], v177, {R_WS}, 0 offen sc1", tag="AL")
                a.e(f"buffer_load_dwordx4 v[172:175], v177, {R_WS}, 0 offen offset:32 sc1", tag="AL")
            while self.b_con <= i:
                self.push_b_step()
            if self.b_con < 28:
                self.push_b_step()
            if a.lg.count(f"BR{i}") < 4:
                self.drain()
            a.wait(vm=f"A{i}", lg=f"BR{i}")
            if i == 0:
                self.stamp("g2s")
            r = 32 + 8 * (i % 16)
            k = 0
            for rb in range(2):
                for par in range(2):
                    d = 192 + 16 * (2 * rb + par)
                    c = "0" if i == 0 else v(d, 16)
                    a.e(f"v_mfma_f32_32x32x16_bf16 {v(d,16)}, {v(r+4*rb,4)}, {acc(8*i+4*par,4)}, {c}")
                    if ld and k == 0:
                        a.e(ld[0])
                        a.e(ld[1], tag=f"A{i+PRE}")
                    elif ld and k == 2:
                        a.e(ld[2], tag=f"A{i+PRE}")
                    self.drain(3)
                    k += 1
        self.drain()

    def final(self):
        a = self.a
        self.stamp("g2e")
        for lam in range(1, 4):
            rb, hf = lam >> 1, lam & 1
            for par in range(2):
                for q in range(2):
                    d = 192 + 16 * (2 * rb + par) + 8 * hf + 4 * q
                    a.e(f"ds_write_b128 v{13+lam}, {v(d,4)} offset:{(lam-1)*4096+(2*par+q)*1024}", tag="RW")
        a.e("s_cmp_eq_u64 s[74:75], 0")
        a.e("s_cbranch_scc1 L_aok")
        self.poll("v18", "v19")
        self.a_loads(None)
        a.label("L_aok")
        a.wait(vm=0)
        self.stamp("apoll")
        a.e("ds_write_b128 v176, v[160:163]", tag="AW")
        a.e(f"ds_write_b128 v176, v[164:167] offset:{8*144}", tag="AW")
        a.wait(lg=0)
        a.e("s_barrier")
        self.stamp("fbar")
        for par in range(2):
            for q in range(2):
                a.e(f"ds_read_b64 {v(72+4*par+2*q,2)}, v178 offset:{par*8192+16*q}", tag="AR")
        for lam in range(3):
            for pq in range(4):
                a.e(f"ds_read_b128 {v(80+16*lam+4*pq,4)}, v180 offset:{lam*4096+pq*1024}", tag=f"RR{lam}")
        a.wait(lg="AR")
        for par in range(2):
            for q in range(2):
                s_ = 72 + 4 * par + 2 * q
                d_ = 128 + 8 * par + 4 * q
                a.e(f"v_lshlrev_b32 v{d_}, 16, v{s_}")
                a.e(f"v_and_b32 v{d_+1}, 0xffff0000, v{s_}")
                a.e(f"v_lshlrev_b32 v{d_+2}, 16, v{s_+1}")
                a.e(f"v_and_b32 v{d_+3}, 0xffff0000, v{s_+1}")
        for lam in range(3):
            a.wait(lg=f"RR{lam}")
            for par in range(2):
                for h in range(4):
                    d = 192 + 16 * par + 2 * h
                    a.e(f"v_pk_add_f32 {v(d,2)}, {v(d,2)}, {v(80+16*lam+8*par+2*h,2)}")
        for par in range(2):
            for h in range(4):
                d = 192 + 16 * par + 2 * h
                s_ = 128 + 8 * par + 2 * h
                a.e(f"v_pk_add_f32 {v(s_,2)}, {v(s_,2)}, {v(d,2)} neg_lo:[0,1] neg_hi:[0,1]")
        for h in range(4):
            for par in range(2):
                d = 192 + 16 * par + 2 * h
                s_ = 128 + 8 * par + 2 * h
                a.e(f"v_pk_fma_f32 {v(d,2)}, {v(s_,2)}, {v(168+2*h,2)}, {v(d,2)}")
        for r in range(8):
            so = 's70' if r < 4 else 's71'
            a.e(f"v_cvt_pk_bf16_f32 v{144+r}, v{192+r}, v{208+r}")
            a.e(f"buffer_store_short v{144+r}, v179, {R_OUT}, {so} offen offset:{(r%4)*1024}", tag="O")
            a.e(f"buffer_store_short_d16_hi v{144+r}, v179, {R_OUT}, {so} offen offset:{(r%4)*1024+64}", tag="O")

    def build(self):
        a = self.a
        o = self.o
        self.prologue()
        a.e(f"s_cmp_ge_u32 {sI}, 28")
        a.e("s_cbranch_scc1 L_spare")
        vm0, lg0 = list(a.vm), list(a.lg)
        if o.get("pfirst", 1):
            self.params_load()
        for x in self.dma_ops(0):
            a.e(x, tag="D0")
        self.stamp("d0a")
        if not o.get("pfirst", 1):
            self.params_load()
        self.stamp("d0b")
        a.e(self.dma_setup(1))
        d1 = self.dma_ops(1, True)
        n1 = o.get("d1a", 3)
        for x in d1[:n1]:
            a.e(x, tag="D1")
        self.stamp("d0c")
        self.tlb_touch()
        self.stamp("d0iss")
        self.setup_pre()
        self.stamp("setup")
        rest = [(lambda x=x: a.e(x, tag="D1")) for x in d1[n1:]]
        rest += [lambda: a.e(self.dma_setup(2))]
        rest += [(lambda x=x: a.e(x, tag="D2")) for x in self.dma_ops(2, True)[:4]]
        fill = {}
        g0 = o.get("kd0", 4)
        for k, f in enumerate(rest):
            fill.setdefault(min(g0 + k, 15), []).append(f)
        ng = self.kgen(fill)
        assert ng > 15, ng
        self.g1()
        self.push_h_epilogue()
        self.drain()
        a.e("s_branch L_join")
        a.label("L_spare")
        vm_main, lg_main = list(a.vm), list(a.lg)
        a.vm, a.lg = vm0, lg0
        self.b_iss = 0
        self.t_job()
        self.kgen({})
        a.wait(lg=0)
        a.e("s_barrier")
        self.push_kmfma()
        self.drain()
        a.wait(lg=0)
        a.e("s_barrier")
        self.push_setup_late()
        for _ in range(6):
            self.push_b_issue()
        self.drain()
        self.t_poll_issue()
        self.ut_gather()
        a.wait(vm=0)
        a.vm, a.lg = vm_main, lg_main
        a.label("L_join")
        self.pre_conv()

        def pub_h():
            self.pushw(vm="Hst")
            self.pushf(lambda: self.publish(sHF))
            self.pushf(lambda: self.stamp("hpub"))

        cf = {}
        for k in range(6):
            cf.setdefault(4 + 6 * k, []).append(self.push_b_consume)
        cf.setdefault(o.get("hpubpos", 50), []).append(pub_h)
        b0 = o.get("b0", 50)
        bstep = o.get("bstep", 6)
        for k in range(12):
            cf.setdefault(min(143, b0 + bstep * k), []).append(self.push_b_issue)
        for k in range(o.get("nb1", 4)):
            cf.setdefault(o.get("b1", 112) + 8 * k, []).append(self.push_b_consume)
        self.conv(cf)
        self.stamp("conve")
        self.conv_out()
        while self.b_iss - self.b_con < BSN and self.b_iss < 28:
            self.push_b_issue()
        self.drain()
        self.conv_out2()
        self.stamp("cout")
        self.poll_issue(f"v{vHF}", f"v{vPD}", "PH")
        while self.b_iss < 28:
            self.push_b_consume()
            self.push_b_issue()
        self.drain()
        a.wait(vm="Ast")
        self.publish(sAF)
        self.poll_check(f"v{vHF}", f"v{vPD}", "PH")
        self.stamp("hpoll")
        PRE = o.get("g2pre", 6)
        for i in range(PRE):
            a.e(self.a_load(i), tag=f"A{i}")
        self.g2(PRE)
        self.final()
        if o.get("amp"):
            self.stamp("end")
            a.e(f"""
            s_waitcnt lgkmcnt(0)
            s_sub_u32 s8, s82, s80
            s_lshl_b32 s8, s8, 2
            s_add_u32 s8, s8, 3000
            s_cmp_lg_u32 s2, {o['amp']}
            s_cbranch_scc1 L_end
            """)
            a.label("L_pad")
            a.e("""
            s_memrealtime s[98:99]
            s_waitcnt lgkmcnt(0)
            s_sub_u32 s98, s98, s80
            s_cmp_lt_u32 s98, s8
            s_cbranch_scc1 L_pad
            """)
        elif self.stamps:
            a.e("s_memrealtime s[100:101]" if o.get("rt") else "s_memtime s[100:101]")
            a.e("s_memrealtime s[72:73]")
            a.e("s_waitcnt lgkmcnt(0)")
            a.e(f"""
            s_lshl_b32 s3, s2, 2
            s_add_u32 s3, s3, {sW}
            s_lshl_b32 s3, s3, 6
            s_add_u32 s3, s3, {WS_STAMP}
            s_mov_b64 exec, 1
            """)
            for k in list(range(1, len(self.names))) + [10]:
                a.e(f"s_sub_u32 s8, s{80+2*k}, s80\nv_mov_b32 v8, s8\nbuffer_store_dword v8, v3, {R_WS}, s3 offen offset:{4*k}")
            a.e(f"v_mov_b32 v8, s68\nbuffer_store_dword v8, v3, {R_WS}, s3 offen offset:44")
            a.e(f"v_mov_b32 v8, s72\nbuffer_store_dword v8, v3, {R_WS}, s3 offen offset:48")
        a.label("L_end")
        a.e("s_endpgm")
        hdr = open("gated_mix__ssm_conv_s4__dense_activation_relu__prompt.s.ref").read().split("; Override launch")[0]
        s = hdr + f"; @launch grid=(256,1,1) block=(256,1,1) lds={LDS_BYTES}\n"
        s += '.amdgcn_target "amdgcn-amd-amdhsa--gfx950"\n.text\n'
        s += f".globl {KNAME}\n.p2align 8\n.type {KNAME},@function\n{KNAME}:\n"
        s += a.text().replace(".p2align 3:", ".p2align 3")
        s += f""".section .rodata,"a"
.p2align 6
.amdhsa_kernel {KNAME}
  .amdhsa_next_free_vgpr 512
  .amdhsa_next_free_sgpr 102
  .amdhsa_accum_offset 256
  .amdhsa_group_segment_fixed_size 0
  .amdhsa_kernarg_size 128
  .amdhsa_user_sgpr_count 2
  .amdhsa_user_sgpr_kernarg_segment_ptr 1
  .amdhsa_system_sgpr_workgroup_id_x 1
.end_amdhsa_kernel
"""
        return s


if __name__ == "__main__":
    out = sys.argv[1]
    stamps = None
    opts = {}
    for x in sys.argv[2:]:
        if x.startswith("--stamps="):
            stamps = x.split("=")[1].split(",")
        elif "=" in x:
            opts[x.split("=")[0]] = int(x.split("=")[1])
    g = Gen(stamps=stamps, opts=opts)
    s = g.build()
    open(out, "w").write(s)
    print("instructions", sum(1 for i in g.a.ins if i.kind != "label"), "auto nops", g.a.nops, "stamps", g.names)
```

```python
import sys
from collections import deque
from emit import Asm

KNAME = "gated_mix__ssm_conv_s4__dense_activation_relu__prompt_kernel"

WS_TF = 0x1000
WS_GF = 0x5000
WS_HF = 0x9000
WS_AF = 0xE000
WS_G = 0x12000
WS_STAMP = 0x20000
WS_UT = 0x100000
WS_AT = 0x300000
WS_H = 0x500000
WS_SIZE = 0xC00000

LDS_BYTES = 163840
XPOS = [98304, 131072, 81920]
WPOS = [114688, 147456, 65536]
L_BS = 81920
BSN = 10
L_CNT = 64384
NBR = 13
NAR = 7
vA0, vB0 = 32, 88
TROW = 1056
NROW = 67
L_TAB = 0
TSPLIT = 34
L_KC = 0
KCP = 4160
L_U = 70784
UP = 4608
L_EX = 33280
XB = 51
YB = {0: 0, 1: 19, 2: 29, 3: 34, 4: 39, 5: 42, 6: 45, 7: 48}

sX, sI, sW, sEP = "s4", "s5", "s6", "s7"
P_U, P_ARE, P_AIM, P_BRE, P_BIM, P_CRE, P_CIM, P_LDT = [f"s[{16+2*i}:{17+2*i}]" for i in range(8)]
P_DSK, P_BX, P_W1, P_W2, P_GW, P_OUT, P_DBG, P_WS = [f"s[{32+2*i}:{33+2*i}]" for i in range(8)]
R_U, R_W1, R_W2, R_OUT, R_WS = "s[48:51]", "s[52:55]", "s[56:59]", "s[60:63]", "s[64:67]"
sE2 = "s[68:69]"
sH0, sH1, sHF, sUG0, sUG1, sAT, sAF, sTM0, sTM1 = "s32", "s33", "s34", "s32", "s33", "s34", "s35", "s36", "s37"
sBB = ["s36", "s37", "s38", "s39"]
sAB = ["s40", "s41", "s42", "s43"]
sBS = "s76"
sM, sN = "s30", "s31"
vKX, vKY, vKWA, vKWB, vUW, vCA, vCB, vEXD, vEXO, vUG, vKZ, vTF, vUZ, vCN = 240, 241, 244, 245, 246, 247, 248, 249, 250, 251, 252, 253, 254, 255
KRES = list(range(32, 80)) + list(range(216, 235))
vW2 = 14
vBL, vBH = 30, 4


def v(a, n=1):
    return f"v{a}" if n == 1 else f"v[{a}:{a+n-1}]"


def lines(t):
    return [x.strip() for x in t.strip().split("\n") if x.strip() and not x.strip().startswith(";")]


class Gen:
    def __init__(self, stamps=None, opts=None):
        self.a = Asm()
        self.stamps = stamps
        self.names = []
        self.o = opts or {}
        self.npoll = 0
        self.b_iss = 0
        self.b_con = 0
        self.bg = deque()
        self.lg_idle = False
        self.no_lg = False
        self.nsync = 0
        self.gpub = False
        self.acount = 0
        self.kc0 = 0

    def stamp(self, name):
        if self.stamps and (name == "start" or name in self.stamps):
            if name not in self.names:
                self.names.append(name)
            k = self.names.index(name)
            assert k < 10
            self.a.e(f"{'s_memrealtime' if (self.o.get('amp') or self.o.get('rt')) else 's_memtime'} s[{80+2*k}:{81+2*k}]")

    def push(self, text, tag=None):
        L = lines(text)
        k = 0
        while k < len(L):
            u = [L[k]]
            if L[k].startswith("s_cmp"):
                while k + 1 < len(L) and L[k + 1].startswith("s_cselect"):
                    k += 1
                    u.append(L[k])
            k += 1
            self.bg.append(lambda u="\n".join(u), tag=tag: self.a.e(u, tag=tag))

    def pushf(self, f):
        self.bg.append(f)

    def pushw(self, **kw):
        self.bg.append(lambda: self.a.wait(**kw))

    def drain(self, n=10**9):
        while n > 0 and self.bg:
            self.bg.popleft()()
            n -= 1

    def publish(self, soff, mask="1", voff="v3"):
        a = self.a
        a.e(f"s_mov_b64 exec, {mask}")
        a.e(f"buffer_store_dword v2, {voff}, {R_WS}, {soff} offen sc1", tag="flag")
        a.e("s_mov_b64 exec, -1")

    def spoll_issue(self, soff, n):
        if self.o.get("vp", 1):
            self.a.e(f"v_min_u32 v27, {n-1}, v1\nv_lshl_add_u32 v27, v27, 2, {soff}")
            self.a.e(f"buffer_load_dword v28, v27, {R_WS}, 0 offen sc1", tag="VP")
            return
        dst = "s16" if n == 1 else f"s[16:{15+n}]"
        self.a.e(f"s_load_dword{'' if n == 1 else 'x%d' % n} {dst}, {P_WS}, {soff} glc")

    def spoll(self, soff, n, sleep=2, issued=False):
        a = self.a
        sleep = self.o.get("psl", sleep)
        if self.o.get("vp", 1):
            a.wait(vm="VP")
            a.e(f"v_cmp_ne_u32 vcc, {sEP}, v28")
            a.e(f"s_cbranch_vccz L_pollx{self.npoll}")
            self.vpoll("v27", "v28", sleep=sleep)
            return
        k = self.npoll
        self.npoll += 1
        a.e("s_mov_b32 s3, 0")
        if not issued:
            self.spoll_issue(soff, n)
        a.label(f"L_poll{k}")
        a.e("s_waitcnt lgkmcnt(0)")
        for q in range(n // 2):
            a.e(f"s_xor_b64 s[{16+2*q}:{17+2*q}], s[{16+2*q}:{17+2*q}], {sE2}")
        for q in range(1, n // 2):
            a.e(f"s_or_b64 s[16:17], s[16:17], s[{16+2*q}:{17+2*q}]")
        a.e(f"s_cbranch_scc0 L_pollx{k}")
        a.e("s_add_u32 s3, s3, 1")
        a.e("s_cmp_gt_u32 s3, 4000")
        a.e(f"s_cbranch_scc1 L_pollx{k}")
        a.e(f"s_sleep {sleep}")
        self.spoll_issue(soff, n)
        a.e(f"s_branch L_poll{k}")
        a.label(f"L_pollx{k}")

    def epoch_master(self):
        a = self.a
        a.e(f"""
        s_lshl_b32 s3, s2, 2
        s_add_u32 s3, s3, {sW}
        s_cmp_lg_u32 s3, 1023
        s_cbranch_scc1 L_nomaster
        """)
        if self.o.get("clk", 1):
            a.e("""
            s_memrealtime s[10:11]
            s_waitcnt lgkmcnt(0)
            s_max_u32 s3, s10, 1
            """)
        else:
            a.e(f"""
            s_load_dword s3, {P_WS}, 0
            s_waitcnt lgkmcnt(0)
            s_mul_i32 s3, s3, 1664525
            s_add_u32 s3, s3, 1013904223
            s_max_u32 s3, s3, 1
            """)
        a.e("v_mov_b32 v8, s3\ns_mov_b64 exec, 1")
        a.raw(f"global_store_dword v3, v8, {P_DBG} sc1")
        if not self.o.get("clk", 1):
            a.raw(f"global_store_dword v3, v8, {P_WS} sc1")
        a.e("s_mov_b64 exec, -1")
        a.label("L_nomaster")

    def epoch_issue(self):
        self.a.e(f"s_load_dword {sEP}, {P_DBG}, 0")

    def epoch_get(self, issued=False):
        a = self.a
        k = self.npoll
        self.npoll += 1
        if not issued:
            self.epoch_issue()
        a.e("s_mov_b32 s3, 0")
        a.e("s_waitcnt lgkmcnt(0)")
        a.label(f"L_ep{k}")
        a.e(f"s_cmp_lg_u32 {sEP}, 0")
        a.e(f"s_cbranch_scc1 L_epx{k}")
        a.e("s_add_u32 s3, s3, 1")
        a.e("s_cmp_gt_u32 s3, 4000")
        a.e(f"s_cbranch_scc1 L_epx{k}")
        a.e("s_sleep 2")
        a.raw(f"global_load_dword v2, v3, {P_DBG} sc1")
        a.wait(vm=0)
        a.e(f"v_readfirstlane_b32 {sEP}, v2")
        a.e("s_nop 1")
        a.e(f"s_branch L_ep{k}")
        a.label(f"L_epx{k}")
        a.e(f"s_mov_b32 s68, {sEP}\ns_mov_b32 s69, {sEP}\nv_mov_b32 v2, {sEP}")

    def vpoll(self, voff, tmp, sleep=2):
        a = self.a
        n = self.npoll
        self.npoll += 1
        a.e("s_mov_b32 s3, 0")
        a.label(f"L_poll{n}")
        a.raw(f"buffer_load_dword {tmp}, {voff}, {R_WS}, 0 offen sc1")
        a.e("s_add_u32 s3, s3, 1")
        a.wait(vm=0)
        a.e(f"v_cmp_ne_u32 vcc, {sEP}, {tmp}")
        a.e("s_cmp_gt_u32 s3, 4000")
        a.e(f"s_cbranch_scc1 L_pollx{n}")
        a.e(f"s_cbranch_vccz L_pollx{n}")
        a.e(f"s_sleep {sleep}")
        a.e(f"s_branch L_poll{n}")
        a.label(f"L_pollx{n}")

    def params_load(self):
        a = self.a
        for k, p in enumerate((P_ARE, P_AIM, P_BRE, P_BIM, P_CRE, P_CIM)):
            a.e(f"global_load_short_d16_hi v{176+k}, v24, {p}", tag="P")
        a.e(f"global_load_short_d16_hi v182, v25, {P_LDT}", tag="P")
        a.e(f"global_load_short_d16_hi v183, v25, s[56:57]", tag="P")

    def tlb_touch(self):
        a = self.a
        if not self.o.get("tlb", 1):
            return
        a.e(f"""
        s_cmp_eq_u32 {sW}, 1
        s_cselect_b64 s[8:9], {P_W2}, {P_WS}
        s_cmp_eq_u32 {sW}, 2
        s_cselect_b64 s[8:9], {P_OUT}, s[8:9]
        s_cmp_eq_u32 {sW}, 3
        s_cselect_b64 s[8:9], {P_DBG}, s[8:9]
        s_cmp_eq_u32 {sW}, 0
        s_cselect_b32 s10, 5, 0
        s_mov_b32 s11, 21
        """)
        if self.o.get("tlb", 1) == 2:
            a.e(f"""
            s_cselect_b32 s10, 47, 27
            s_cselect_b32 s11, 18, 16
            s_cmp_eq_u32 {sW}, 3
            s_cselect_b32 s10, 0, s10
            """)
        a.e("""
        v_min_u32 v8, s10, v1
        v_lshlrev_b32 v8, s11, v8
        """)
        a.e("global_load_dword v6, v8, s[8:9] offset:128", tag="TLB")
        if self.o.get("stlb", 0):
            a.e(f"s_load_dword s60, {P_DBG}, 128")
            a.e(f"s_load_dword s61, {P_WS}, 128")

    def gate_tail(self):
        P = self.push
        for q in range(4):
            for r in range(8, 16):
                P(f"v_dot2_f32_bf16 v{132+r}, v{32+4*r+q}, v{96+q}, {'0' if q == 0 else 'v%d' % (132+r)}")
        prs = [(4*j+e_, 4*j+e_+2) for j in range(4) for e_ in range(2)]
        for p, q in prs:
            P(f"v_permlane32_swap_b32 v{132+p}, v{132+q}")
        for p, q in prs:
            P(f"v_add_f32 v{132+p}, v{132+p}, v{132+q}")
        for j in range(4):
            P(f"v_permlane16_swap_b32 v{132+4*j}, v{133+4*j}")
        for j in range(4):
            P(f"v_add_f32 v{132+4*j}, v{132+4*j}, v{133+4*j}")
        for r in (8, 4, 2, 1):
            for j in range(4):
                P(f"v_add_f32_dpp v{132+4*j}, v{132+4*j}, v{132+4*j} row_ror:{r} row_mask:0xf bank_mask:0xf")
        P(f"""
        v_and_b32 v8, 3, v1
        v_cmp_eq_u32 vcc, 1, v8
        v_cndmask_b32 v132, v132, v136, vcc
        v_cmp_eq_u32 vcc, 2, v8
        v_cndmask_b32 v132, v132, v140, vcc
        v_cmp_eq_u32 vcc, 3, v8
        v_cndmask_b32 v132, v132, v144, vcc
        v_mul_f32 v132, 0xbfb8aa3b, v132
        v_exp_f32 v132, v132
        v_lshrrev_b32 v9, 4, v1
        v_lshlrev_b32 v9, 2, v9
        v_add_f32 v132, 1.0, v132
        v_rcp_f32 v132, v132
        v_lshl_add_u32 v9, v8, 4, v9
        s_lshl_b32 s9, s70, 6
        s_add_u32 s9, s9, {WS_G}
        """)

        def st():
            a = self.a
            a.e("s_mov_b32 exec_lo, 0x000f000f\ns_mov_b32 exec_hi, 0x000f000f")
            a.e(f"buffer_store_dword v132, v9, {R_WS}, s9 offen sc1", tag="Tst")
            a.e("s_mov_b64 exec, -1")
        self.pushf(st)

    def push_kgen(self):
        P = self.push
        E = lambda k: 80 + 2 * (k - 1)
        F = lambda c: 116 + 2 * (c - 1)
        X0 = 130
        P(f"""
        v_mul_f32 v134, 0x3fb8aa3b, v182
        v_exp_f32 v134, v134
        v_pk_mul_f32 v[138:139], v[180:181], v[178:179] op_sel_hi:[1,0]
        v_cvt_pk_bf16_f32 v134, v134, v134
        v_pk_fma_f32 v[138:139], v[180:181], v[178:179], v[138:139] op_sel:[1,1,0] op_sel_hi:[0,1,1] neg_lo:[1,0,0]
        v_and_b32 v134, 0xffff0000, v134
        v_mov_b32 v{KRES[YB[0]]}, 0x3f80
        v_mul_f32 v135, v134, v176         ; zr
        v_mul_f32 v136, v134, v177         ; zi
        v_pk_mul_f32 v[{X0}:{X0+1}], v[138:139], v[134:135] op_sel_hi:[1,0]
        v_mul_f32 v135, 0x3fb8aa3b, v135
        v_mul_f32 v136, 0.15915494, v136   ; revolutions
        v_mul_f32 v142, 0x41800000, v135
        v_mul_f32 v143, 0x41800000, v136
        v_mul_f32 v144, 0x43800000, v135
        v_mul_f32 v145, 0x43800000, v136
        v_fract_f32 v141, v136
        v_fract_f32 v143, v143
        v_fract_f32 v145, v145
        v_exp_f32 v140, v135
        v_exp_f32 v142, v142
        v_exp_f32 v144, v144
        """)
        for dst, t in ((E(1), 140), (E(16), 142), (F(1), 144)):
            P(f"v_cos_f32 v{dst}, v{t+1}\nv_sin_f32 v{dst+1}, v{t+1}")
        for dst, t in ((E(1), 140), (E(16), 142), (F(1), 144)):
            P(f"v_pk_mul_f32 {v(dst,2)}, {v(dst,2)}, {v(t,2)} op_sel_hi:[1,0]")
        src = {2: (1, 1), 3: (2, 1), 4: (2, 2), 5: (4, 1), 6: (4, 2), 7: (4, 3), 8: (4, 4), 17: (16, 1), 18: (16, 2)}
        for k in range(9, 16):
            src[k] = (8, k - 8)
        ej = [(E(k), E(src[k][0]), E(src[k][1]), YB[0] + k, False) for k in (2, 17, 3, 4, 18, 5, 6, 7, 8, 9, 10, 11, 12, 13, 14, 15)]
        fsrc = {2: (1, 1), 3: (2, 1), 4: (2, 2), 5: (4, 1), 6: (4, 2), 7: (4, 3)}
        fj = [(F(c), F(fsrc[c][0]), F(fsrc[c][1]), YB[c], False) for c in range(2, 8)]
        xj = [(X0 + 2 * (k % 2), X0 + 2 * ((k - 1) % 2), E(16), XB + k, True) for k in range(1, 16)]
        pj = []
        tmp = list(range(146, 170, 2))
        ti = 0
        for c in range(1, 8):
            step = {1: 2, 2: 4, 3: 4}.get(c, 8)
            top = 19 if c == 1 else 17
            for n_, rho in enumerate(range(step, top, step)):
                pj.append((tmp[ti % len(tmp)], F(c), E(rho), YB[c] + 1 + n_, False))
                ti += 1
        others = []
        q1, q2 = list(ej), list(fj)
        while q1 or q2:
            if q1:
                others.append(q1.pop(0))
            if q2:
                others.append(q2.pop(0))
        others += pj
        order = []
        xs = list(xj)
        while others or xs:
            grp = []
            if xs:
                grp.append(xs.pop(0))
            while others and len(grp) < 4:
                j = others[0]
                if any(g[0] in (j[1], j[2]) or g[0] == j[0] for g in grp):
                    break
                grp.append(others.pop(0))
            order.append(grp)
        put = lambda reg, row, neg: P(f"v_cvt_pk_bf16_f32 v{KRES[row]}, v{reg}, {'-' if neg else ''}v{reg+1}")
        prev = [(X0, 0, 0, XB, True), (E(1), 0, 0, YB[0] + 1, False), (E(16), 0, 0, YB[0] + 16, False), (F(1), 0, 0, YB[1], False)]
        for gi, grp in enumerate(order):
            pk = gi < self.o.get("pkg", 0)
            for (d, x, y, row, neg) in grp:
                if pk:
                    P(f"v_pk_mul_f32 {v(d,2)}, {v(x,2)}, {v(y,2)} op_sel_hi:[1,0]")
                else:
                    P(f"v_mul_f32 v{d}, v{x}, v{y}\nv_mul_f32 v{d+1}, v{x+1}, v{y}")
            for (d, x, y, row, neg) in prev:
                put(d, row, neg)
            for (d, x, y, row, neg) in grp:
                if pk:
                    P(f"v_pk_fma_f32 {v(d,2)}, {v(x,2)}, {v(y,2)}, {v(d,2)} op_sel:[1,1,0] op_sel_hi:[0,1,1] neg_lo:[1,0,0]")
                else:
                    P(f"v_fma_f32 v{d}, -v{x+1}, v{y+1}, v{d}\nv_fmac_f32 v{d+1}, v{x}, v{y+1}")
            prev = grp
            if gi + 1 == self.o.get("pkg", 0):
                self.kc0 = len(self.bg)
        for (d, x, y, row, neg) in prev:
            put(d, row, neg)

    def tables(self, r0, r1):
        a = self.a
        for row in range(r0, r1):
            if row in (r0, TSPLIT):
                a.e(f"s_mov_b32 m0, {sTM1 if row >= TSPLIT else sTM0}")
            a.e(f"ds_write_addtid_b32 v{KRES[row]} offset:{(row - (TSPLIT if row >= TSPLIT else 0)) * TROW}", tag="TB")

    def arrive(self, vaddr, vone, off):
        a = self.a
        a.e("s_mov_b64 exec, 1")
        a.e(f"ds_add_u32 {vaddr}, {vone} offset:{off}")
        a.e("s_mov_b64 exec, -1")

    def await_(self, vaddr, off, count):
        a = self.a
        k = self.npoll
        self.npoll += 1
        a.e("s_mov_b32 s3, 0")
        a.label(f"L_bs{k}")
        a.e(f"ds_read_b32 v8, {vaddr} offset:{off}")
        a.e("s_add_u32 s3, s3, 1")
        a.wait(lg=0)
        a.e("v_readfirstlane_b32 s8, v8")
        a.e("s_cmp_gt_u32 s3, 100000")
        a.e(f"s_cbranch_scc1 L_bsx{k}")
        a.e(f"s_cmp_lt_u32 s8, {count}")
        a.e(f"s_cbranch_scc1 L_bs{k}")
        a.label(f"L_bsx{k}")

    def bsync(self):
        self.nsync += 1
        self.a.wait(lg=0)
        self.arrive("v3", "v5", L_CNT)
        self.await_("v3", L_CNT, 4 * self.nsync)

    def push_kmfma(self):
        YR = [64, 68, 72, 76] + list(range(184, 216, 4))
        NY = len(YR)
        AH = 8
        seq = [(ks, c) for ks in range(8) for c in range(3)]
        for ks in range(8):
            self.push(f"ds_read_b128 {v(32+4*ks,4)}, v{vKX} offset:{64*ks}", tag="KX")
        yr = lambda n_: self.push(f"ds_read_b128 {v(YR[n_%NY],4)}, v{vKY+seq[n_][1]} offset:{64*seq[n_][0]}", tag=f"KY{n_}")
        for n_ in range(AH):
            yr(n_)
        for n_, (ks, c) in enumerate(seq):
            d = 216 + 4 * c
            cc = "0" if (ks == 0 and c != 0) else v(d, 4)

            def f(n_=n_, d=d, cc=cc, ks=ks):
                self.a.wait(lg=f"KY{n_}")
                self.a.e(f"v_mfma_f32_16x16x32_bf16 {v(d,4)}, {v(YR[n_%NY],4)}, {v(32+4*ks,4)}, {cc}")
            self.pushf(f)
            if n_ + AH < 24:
                yr(n_ + AH)

    def push_kexpand(self, hw):
        P = self.push
        cv = lambda dst, hi_lag, lo_lag: P(f"v_cvt_pk_bf16_f32 v{dst}, {hi_lag}, {lo_lag}")
        if hw == 0:
            P("""
            v_cmp_eq_u32 vcc, 63, v1
            v_cndmask_b32 v221, v221, v220, vcc
            v_cndmask_b32 v227, v227, v226, vcc
            """)
            k0 = [f"v{216+n}" for n in range(7)]
            k1 = ["v224", "v224", "v225", "v226", "v226", "v226", "v227"]
            for si, (k, off) in enumerate(((k0, 512), (k1, 0))):
                for sg in range(4):
                    t = 32 + 8 * si + 2 * sg
                    cv(t, k[sg + 3], k[sg + 2])
                    cv(t + 1, k[sg + 1], k[sg])
                    P(f"ds_write_b64 v{vKWA}, {v(t,2)} offset:{off+sg*KCP}", tag="KW")
            P("""
            v_readfirstlane_b32 s8, v33        ; (K1 | K0<<16)
            v_readfirstlane_b32 s9, v35        ; (K2 | K1<<16)
            v_mov_b32 v48, 0
            v_mov_b32 v49, 0
            s_lshr_b32 s10, s8, 16             ; K0
            v_writelane_b32 v48, s10, 8
            v_writelane_b32 v48, s8, 16
            v_writelane_b32 v48, s9, 24
            v_writelane_b32 v49, s10, 24
            """)
            self.pushf(lambda: self.a.e(f"s_mov_b32 exec_hi, 0\nds_write_b64 v{vKZ}, v[48:49]\ns_mov_b32 exec_hi, -1", tag="KW"))
        else:
            k2 = ["v216"] * 3 + ["v217"] * 3 + ["v218"] * 5
            k3 = ["v220"] * 5 + ["v221"] * 7 + ["v222"] * 7
            t = 32
            for sg in range(4):
                for q in range(4):
                    cv(t + q, k2[sg + 7 - 2 * q], k2[sg + 6 - 2 * q])
                P(f"ds_write_b128 v{vKWA}, {v(t,4)} offset:{sg*KCP}", tag="KW")
                t += 4
                for hf in range(2):
                    for q in range(4):
                        cv(t + q, k3[sg + 15 - 8 * hf - 2 * q], k3[sg + 14 - 8 * hf - 2 * q])
                    P(f"ds_write_b128 v{vKWB}, {v(t,4)} offset:{sg*KCP+16*hf}", tag="KW")
                    t += 4

    def conv(self, fill):
        a = self.a

        def reads(st):
            A0 = 32 + 64 * (st % 2)
            B0 = 64 + 64 * (st % 2)
            L = []
            for k in range(8):
                offA = 512 * (7 - k) + 64 * (3 - st)
                offB = 512 * k + 64 * (3 - st)
                L.append((f"ds_read_b64 {v(A0+4*k,2)}, v{vCA} offset:{offA}", f"C{st}_{k}"))
                L.append((f"ds_read_b64 {v(A0+4*k+2,2)}, v{vCA} offset:{offA+8}", f"C{st}_{k}"))
                L.append((f"ds_read_b128 {v(B0+4*k,4)}, v{vCB} offset:{offB}", f"C{st}_{k}"))
            return L

        first = set()
        for c_, t_ in reads(0):
            a.e(c_, tag=t_)
        for st in range(4):
            A0 = 32 + 64 * (st % 2)
            B0 = 64 + 64 * (st % 2)
            nxt = reads(st + 1) if st < 3 else []
            pairs = sorted([(q1, m) for q1 in range(8) for m in range(8) if q1 + m <= 7], key=lambda p: (max(p), p[0] + p[1]))
            have = -1
            for n_, (q1, m) in enumerate(pairs):
                used = 0
                if max(q1, m) > have:
                    have = max(q1, m) if st == 0 else 7
                    a.wait(lg=f"C{st}_{have}")
                    used += 1
                c = q1 + m
                d = 160 + 4 * c
                cc = v(d, 4) if c in first else "0"
                first.add(c)
                a.e(f"v_mfma_f32_16x16x32_bf16 {v(d,4)}, {v(A0+4*q1,4)}, {v(B0+4*m,4)}, {cc}")
                if nxt and n_ >= 4:
                    c_, t_ = nxt.pop(0)
                    a.e(c_, tag=t_)
                    used += 1
                for f in fill.get(36 * st + n_, []):
                    f()
                self.drain(2 - used)
            assert not nxt
        self.drain()

    def conv_out(self):
        a = self.a
        a.e(f"""
        s_bitcmp1_b32 {sW}, 0
        s_nop 7
        s_cbranch_scc1 L_hw1
        """)
        for k in range(4):
            a.e(f"ds_write_b128 v{vEXD}, {v(176+4*k,4)} offset:{1024*k}", tag="EX")
        a.e("s_branch L_hwj")
        a.label("L_hw1")
        for k in range(4):
            a.raw(f"ds_write_b128 v{vEXD}, {v(160+4*k,4)} offset:{1024*k}")
        a.wait(lg=0)
        for k in range(16):
            a.e(f"v_mov_b32 v{160+k}, v{176+k}")
        a.label("L_hwj")

    def conv_out2(self):
        a = self.a
        self.bsync()
        for k in range(4):
            a.e(f"ds_read_b128 {v(176+4*k,4)}, v{vEXO} offset:{1024*k}", tag=f"EY{k}")
        for cp in range(2):
            for cl in range(2):
                k = 2 * cp + cl
                a.wait(lg=f"EY{k}")
                for q in range(4):
                    a.e(f"v_add_f32 v{160+4*k+q}, v{160+4*k+q}, v{176+4*k+q}")
                a.e(f"v_cvt_pk_bf16_f32 v{20+4*cp+2*cl}, v{160+4*k}, v{161+4*k}")
                a.e(f"v_cvt_pk_bf16_f32 v{21+4*cp+2*cl}, v{162+4*k}, v{163+4*k}")
            a.e(f"v_permlane16_swap_b32 v{20+4*cp}, v{22+4*cp}")
            a.e(f"v_permlane16_swap_b32 v{21+4*cp}, v{23+4*cp}")
            a.e(f"buffer_store_dwordx4 {v(20+4*cp,4)}, v255, {R_WS}, {'s38' if cp else sAT} offen sc1", tag="Ast")

    def prologue(self):
        a = self.a
        a.e("s_cmp_ge_u32 s2, 256\ns_cbranch_scc1 L_end")
        self.stamp("start")
        if self.stamps and not self.o.get("amp"):
            a.e("s_memrealtime s[78:79]")
        a.e(f"""
        s_lshr_b32 {sI}, s2, 3
        s_min_u32 s3, {sI}, 15
        s_lshl_b32 s3, s3, 3
        s_load_dwordx2 s[68:69], s[0:1], s3
        s_load_dwordx16 s[16:31], s[0:1], 0
        s_load_dwordx16 s[32:47], s[0:1], 64
        s_getpc_b64 s[8:9]
        L_pc:
        s_lshl_b32 s3, {sI}, 10
        v_lshl_add_u32 v6, v0, 2, s3
        v_min_u32 v6, L_end-L_pc, v6
        v_readfirstlane_b32 s14, v0
        v_and_b32 v1, 63, v0
        v_bfe_u32 v4, v0, 6, 2
        s_and_b32 {sX}, s2, 7
        s_mul_i32 s77, {sI}, 37
        s_lshr_b32 s77, s77, 8
        s_bfe_u32 {sW}, s14, 0x20006
        s_mul_i32 s13, s77, 7
        s_sub_u32 s15, {sI}, s13           ; ct
        s_and_b32 s11, {sX}, 6
        s_lshl1_add_u32 s11, s11, s77
        s_lshl_b32 s70, s11, 17
        s_and_b32 s11, {sX}, 1
        s_mul_i32 s11, s11, 7
        s_add_u32 s11, s11, s15
        s_lshl_b32 s71, s11, 8
        """)
        g = self.o.get("g1rot", 4)
        if g == 8:
            a.e("s_lshl1_add_u32 s72, s77, s15")
        elif g == 4:
            a.e("s_add_u32 s72, s77, s15\ns_lshl_b32 s72, s72, 1")
        elif g == 2:
            a.e("s_add_u32 s72, s77, s15\ns_lshl_b32 s72, s72, 2")
        a.e(f"""
        s_lshl_b32 s73, {sW}, 12           ; wave*4096
        s_mov_b32 s50, {2048*1024}
        s_mov_b32 s51, 0x00020000
        s_mov_b32 s54, {512*3584}
        s_mov_b32 s55, s51
        s_bitcmp1_b32 s14, 8
        s_cbranch_scc1 L_roleB
        """)

    def dma_voffs(self):
        self.a.e(f"""
        v_lshrrev_b32 v8, 3, v1            ; l>>3
        v_lshl_add_u32 v8, v4, 5, v8       ; 32w + (l>>3)
        v_lshlrev_b32 v8, 10, v8           ; *1024
        v_lshrrev_b32 v9, 4, v1            ; l>>4
        v_and_b32 v10, 7, v1
        v_xor_b32 v10, v10, v9             ; pos ^ (l>>4)
        v_lshl_add_u32 v16, v10, 4, v8
        v_xor_b32 v10, 4, v10
        v_lshl_add_u32 v17, v10, 4, v8
        v_add_u32 v17, {8192-1024}, v17
        v_add_u32 v18, {2*(8192-1024)}, v16
        v_add_u32 v19, {2*(8192-1024)}, v17
        v_lshl_add_u32 v8, v4, 4, v9       ; 16w + (l>>4)
        v_mul_u32_u24 v8, 3584, v8
        v_and_b32 v10, 15, v1
        v_lshlrev_b32 v11, 2, v9
        v_xor_b32 v10, v10, v11
        v_lshl_add_u32 v20, v10, 4, v8
        v_add_u32 v21, {4*3584-1024}, v20
        v_add_u32 v22, {2*(4*3584-1024)}, v20
        v_add_u32 v23, {3*(4*3584-1024)}, v20
        """)

    def common2(self):
        self.a.e(f"""
        v_mov_b32 v3, 0
        v_lshlrev_b32 v7, 4, v1            ; lane*16
        s_mov_b32 s66, {WS_SIZE}
        s_mov_b32 s67, 0x00020000
        s_mov_b64 s[64:65], s[46:47]
        """)

    def a_prologue(self):
        a = self.a
        a.e("global_load_dword v6, v6, s[8:9]", tag="CPF")
        a.e(f"""
        s_max_u32 s3, {sI}, 15
        s_min_u32 s3, s3, 20
        s_sub_u32 s3, s3, 15
        v_lshlrev_b32 v12, 21, s3
        """)
        self.dma_voffs()
        a.e(self.dma_setup(0))
        a.e("s_waitcnt lgkmcnt(0)")
        self.stamp("karg")
        a.e("global_load_dword v6, v12, s[68:69] offset:128", tag="FAN")
        a.e(f"""
        s_mov_b64 s[48:49], s[16:17]
        s_mov_b64 s[52:53], s[36:37]
        """)

    def a_prologue2(self):
        a = self.a
        a.e(f"s_setprio {self.o.get('prio', 2)}")
        self.common2()
        a.e(f"""
        s_lshl_b32 {sBS}, {sW}, 11         ; wave*2048
        s_add_u32 {sBS}, {sBS}, {L_BS}
        s_mov_b32 s58, {1792*1024}
        s_mov_b32 s59, 0x00020000
        s_mov_b32 s62, {2048*1024}
        s_mov_b32 s63, 0x00020000
        s_mov_b64 s[56:57], s[38:39]
        s_mov_b64 s[60:61], s[42:43]
        """)

    def dma_setup(self, s):
        return f"""
        s_add_u32 s74, s72, {s}
        s_and_b32 s74, s74, 7
        s_mul_i32 s75, s74, {64*3584}
        s_add_u32 s75, s75, s71
        s_lshl_b32 s74, s74, 7
        s_add_u32 s74, s74, s70
        """

    def dma_ops(self, s, setup=True):
        slot = s % 3
        ops = []
        for i in range(4):
            pre = ((self.dma_setup(s) if setup else "") + f"s_add_u32 m0, s73, {XPOS[slot]}\n") if i == 0 else ""
            ops.append((pre + f"buffer_load_dwordx4 v{16+i}, {R_U}, s74 offen offset:{i*1024} lds", f"D{s}"))
        for i in range(4):
            pre = f"s_add_u32 m0, s73, {WPOS[slot]}\n" if i == 0 else ""
            ops.append((pre + f"buffer_load_dwordx4 v{20+i}, {R_W1}, s75 offen offset:{i*1024} lds", f"D{s}"))
        return ops

    def a_setup_g1(self):
        self.a.e(f"""
        v_and_b32 v8, 31, v1               ; t
        v_lshrrev_b32 v9, 5, v1            ; g
        v_lshrrev_b32 v10, 1, v8
        v_and_b32 v10, 7, v10
        v_xor_b32 v10, v10, v9             ; g ^ f
        s_lshr_b32 s8, {sW}, 1
        s_lshl_b32 s8, s8, 13              ; wm*64*128
        s_add_u32 s8, s8, {XPOS[2]}
        v_lshl_add_u32 v8, v8, 7, s8
        v_lshl_add_u32 v24, v10, 4, v8
        v_xor_b32 v25, 32, v24
        v_xor_b32 v26, 64, v24
        v_xor_b32 v27, 96, v24
        v_bfe_u32 v8, v1, 2, 2             ; r
        v_lshl_add_u32 v10, v9, 3, v8      ; 8*(G>>1) + r
        v_lshlrev_b32 v10, 8, v10          ; *256
        s_and_b32 s8, {sW}, 1
        s_lshl_b32 s8, s8, 1
        v_xor_b32 v8, s8, v8               ; (2wn) ^ r
        v_lshl_add_u32 v10, v8, 6, v10
        v_bfe_u32 v8, v1, 4, 1
        v_lshl_add_u32 v10, v8, 5, v10
        v_and_b32 v8, 3, v1
        v_lshl_add_u32 v10, v8, 3, v10
        v_add_u32 v28, {WPOS[0]}, v10
        v_xor_b32 v29, 64, v28
        v_add_u32 v{vW2}, {WPOS[2]}, v10
        v_xor_b32 v{vW2+1}, 64, v{vW2}
        s_lshl_b32 s8, {sX}, 4
        s_lshl_b32 s9, s77, 2
        s_add_u32 s8, s8, s9
        s_and_b32 s9, {sW}, 2
        s_add_u32 s8, s8, s9
        s_mul_i32 s8, s8, 56
        s_lshl_b32 s9, s15, 3
        s_add_u32 s8, s8, s9
        s_and_b32 s9, {sW}, 1
        s_lshl_b32 s9, s9, 2
        s_add_u32 s8, s8, s9
        s_lshl_b32 s8, s8, 10
        s_add_u32 {sH0}, s8, {WS_H}
        s_add_u32 {sH1}, {sH0}, {56*1024}
        s_lshr_b32 s8, {sX}, 1
        s_lshl_b32 s8, s8, 2
        s_add_u32 s8, s8, s77
        s_lshl_b32 s8, s8, 1
        s_lshr_b32 s9, {sW}, 1
        s_add_u32 s8, s8, s9
        s_lshl_b32 s8, s8, 1
        s_and_b32 s9, {sX}, 1
        s_add_u32 s8, s8, s9
        s_lshl_b32 s8, s8, 8               ; *2 groups*128B
        s_lshl_b32 s9, s15, 1
        s_and_b32 s10, {sW}, 1
        s_add_u32 s9, s9, s10              ; 2ct+wn
        s_cmp_ge_u32 s9, 7
        s_cselect_b32 s10, 128, 0
        s_cselect_b32 s11, 7, 0
        s_sub_u32 s9, s9, s11              ; entry 0..6
        s_cmp_eq_u32 s9, 6
        s_cselect_b32 s35, 3, 1
        s_lshl_b32 s9, s9, 2
        s_add_u32 s8, s8, s9
        s_add_u32 s8, s8, s10
        s_add_u32 {sHF}, s8, {WS_HF}
        """)

    def a_setup_g2(self):
        a = self.a
        a.e(f"""
        v_lshrrev_b32 v8, 3, v1
        v_lshlrev_b32 v8, 10, v8
        v_bfe_u32 v9, v1, 4, 1
        v_lshlrev_b32 v9, 2, v9
        v_and_b32 v10, 7, v1
        v_xor_b32 v10, v10, v9
        v_lshl_add_u32 v10, v10, 4, v8
        v_lshrrev_b32 v8, 5, v1            ; g
        v_bfe_u32 v9, v1, 2, 2             ; r
        v_lshl_add_u32 v8, v8, 2, v9       ; 4g + r
        v_lshl_add_u32 v8, v8, 7, {sBS}
        v_bfe_u32 v9, v1, 3, 1             ; (r>>1)&1
        v_lshl_add_u32 v8, v9, 6, v8
        v_bfe_u32 v9, v1, 4, 1
        v_lshl_add_u32 v8, v9, 5, v8
        v_and_b32 v9, 3, v1
        v_lshl_add_u32 v{vBL}, v9, 3, v8
        v_xor_b32 v{vBL+1}, 64, v{vBL}
        v_add_u32 v{vBH}, 0x10000, v{vBL}
        v_xor_b32 v{vBH+1}, 64, v{vBH}
        v_add_u32 v11, {8192-1024}, v10
        s_cmp_ge_u32 s15, 3
        s_addc_u32 s8, s15, 0
        s_cmp_ge_u32 {sI}, 28
        s_cselect_b32 s8, 3, s8
        s_cselect_b32 s9, s15, s77         ; m
        s_mov_b32 {sN}, s8
        s_mov_b32 {sM}, s9
        s_mul_i32 s12, {sW}, {28*16384}
        s_lshl_b32 s10, s8, 7
        s_add_u32 s12, s12, s10            ; w2 base
        s_and_b32 s10, {sX}, 6
        s_lshr_b32 s11, {sW}, 1
        s_add_u32 s10, s10, s11
        s_lshl_b32 s10, s10, 4
        s_and_b32 s11, {sX}, 1
        s_lshl_b32 s11, s11, 3
        s_add_u32 s10, s10, s11
        s_lshl_b32 s11, s9, 1
        s_add_u32 s10, s10, s11            ; + 8(x&1) + 2m
        s_mul_i32 s10, s10, 56
        s_and_b32 s11, {sW}, 1
        s_mul_i32 s3, s11, 28
        s_add_u32 s10, s10, s3
        s_lshl_b32 s10, s10, 10
        s_add_u32 s13, s10, {WS_H}         ; h base
        s_lshl_b32 s11, s11, 8
        v_xor_b32 v8, s11, v7              ; (l ^ 16(w&1))*16
        s_lshr_b32 s11, {sW}, 1
        s_mul_i32 s3, s11, {56*1024}
        v_add_u32 v12, s3, v8
        s_sub_u32 s3, {56*1024}, s3
        v_add_u32 v13, s3, v8
        s_add_u32 s10, s8, s9
        """)
        g = self.o.get("g2rot", 2)
        if g == 2:
            a.e("s_lshl_b32 s10, s10, 1")
        elif g == 1:
            a.e("s_mov_b32 s10, 0")
        if self.o.get("sprot", 1):
            a.e(f"s_cmp_ge_u32 {sI}, 28\ns_cselect_b32 s10, s9, s10")
        for k in range(4):
            a.e(f"""
            s_add_u32 s11, s10, {k}
            s_and_b32 s11, s11, 3
            s_mul_i32 s3, s11, {7*16384}
            s_add_u32 {sBB[k]}, s12, s3
            s_mul_i32 s3, s11, {7*1024}
            s_add_u32 {sAB[k]}, s13, s3
            """)

    def a_setup_late(self):
        self.a.e(f"""
        s_mov_b32 s11, {sN}
        s_mov_b32 s9, {sM}
        s_lshl_b32 s12, s11, 2
        s_add_u32 s12, s12, {sW}
        s_lshr_b32 s8, {sX}, 2
        s_lshl_b32 s8, s8, 5
        s_add_u32 s8, s8, s12
        s_lshl_b32 s8, s8, 7
        s_add_u32 s74, s8, {WS_AF}         ; a flags
        s_lshl_b32 s8, s12, 14
        s_lshr_b32 s13, {sX}, 1
        s_lshl_b32 s13, s13, 19
        s_add_u32 s8, s8, s13
        s_add_u32 s8, s8, {WS_AT}
        s_and_b32 s13, {sX}, 1
        s_lshl_b32 s13, s13, 8
        s_lshl_b32 s10, s9, 6
        s_add_u32 s13, s13, s10
        v_lshrrev_b32 v8, 3, v1            ; dl
        v_bfe_u32 v9, v1, 2, 1             ; hf
        v_and_b32 v14, 3, v1               ; jj
        v_lshl_add_u32 v16, v9, 9, s13
        v_lshl_add_u32 v16, v14, 4, v16
        v_lshlrev_b32 v17, 7, v8
        v_xor_b32 v16, v16, v17
        v_lshl_add_u32 v16, v8, 10, v16
        v_add_u32 v16, s8, v16
        v_add_u32 v17, {8*1024}, v16       ; v16,v17: a loads
        v_mul_u32_u24 v8, 144, v8
        v_add_u32 v8, {sBS}, v8
        v_lshl_add_u32 v8, v14, 5, v8
        v_lshl_add_u32 v18, v9, 4, v8
        s_lshl_b32 s10, {sX}, 2
        s_add_u32 s10, s10, s9
        s_lshl_b32 s10, s10, 2
        s_add_u32 s10, s10, {sW}
        s_lshl_b32 s8, s10, 7
        s_add_u32 s72, s8, {WS_HF}         ; h flags
        s_add_u32 s75, s8, {WS_GF}
        v_lshl_add_u32 v29, v1, 2, s74
        v_mov_b32 v8, s75
        v_cmp_gt_u32 vcc, 16, v1
        v_cndmask_b32 v29, v8, v29, vcc
        s_lshl_b32 s8, s10, 6
        s_add_u32 s8, s8, {WS_G}
        v_lshrrev_b32 v9, 5, v1
        v_lshl_add_u32 v19, v9, 4, s8
        v_and_b32 v8, 7, v1
        v_mul_u32_u24 v20, 144, v8
        v_bfe_u32 v8, v1, 3, 1
        v_lshl_add_u32 v20, v8, 13, v20
        v_bfe_u32 v8, v1, 4, 1
        v_lshl_add_u32 v20, v8, 11, v20
        v_lshl_add_u32 v20, v9, 3, v20
        s_lshl_b32 s8, {sW}, 5
        s_add_u32 s8, s8, {L_BS}
        v_add_u32 v20, s8, v20
        v_and_b32 v8, 31, v1
        v_lshlrev_b32 v21, 12, v9
        v_lshl_add_u32 v21, v8, 1, v21
        s_lshl_b32 s70, s10, 14
        s_lshl_b32 s13, s11, 7
        s_add_u32 s70, s70, s13
        s_add_u32 s71, s70, 8192
        v_add_u32 v23, {sBS}, v7
        v_xor_b32 v24, 0x800, v23
        v_xor_b32 v25, 0x1000, v23
        v_xor_b32 v26, 0x1800, v23
        """)

    def t_job(self):
        a = self.a
        o = self.o
        a.e(f"""
        s_sub_u32 s8, {sI}, 28
        s_lshl_b32 s9, {sX}, 2
        s_add_u32 s71, s8, s9
        s_lshl_b32 s8, s71, 2
        s_add_u32 s70, s8, {sW}
        s_lshl_b32 s72, s70, 11
        s_add_u32 s72, s72, {WS_UT}
        s_lshl_b32 s8, s70, 8
        s_and_b32 s8, s8, 0x300
        v_xor_b32 v14, s8, v7
        v_xor_b32 v15, 0x80, v14
        s_lshl_b32 s8, s70, 14
        """)
        for q in range(4):
            for r in range(4):
                a.e(f"buffer_load_dwordx4 {v(32+16*q+4*r,4)}, v7, {R_U}, s8 offen offset:{r*1024}", tag=f"T{q//2}")
            a.e("s_add_u32 s8, s8, 4096")
            if q == o.get("spb", 2):
                a.e("s_barrier")
            if q == 1:
                self.epoch_master()
                a.e("v_and_b32 v8, 1, v1\nv_lshlrev_b32 v8, 21, v8")
                a.e(f"buffer_load_dword v6, v8, {R_WS}, 0 offen offset:128", tag="TL")
        a.e(f"global_load_dwordx4 v[96:99], v7, {P_GW}", tag="GW")
        if o.get("x3", 1):
            a.e("""
            s_xor_b32 s10, s70, 16
            s_lshl_b32 s10, s10, 14
            s_add_u32 s9, s10, 8192
            v_lshrrev_b32 v8, 3, v1
            v_lshlrev_b32 v8, 10, v8
            v_and_b32 v9, 7, v1
            v_lshl_add_u32 v8, v9, 4, v8
            """)
            a.e(f"buffer_load_dwordx4 v[248:251], v8, {R_U}, s10 offen offset:384", tag="X3")
            a.e(f"buffer_load_dwordx4 v[252:255], v8, {R_U}, s9 offen offset:384", tag="X3")
        a.e("""
        s_mov_b32 s12, 0x05040100
        s_mov_b32 s13, 0x07060302
        """)
        for blk in range(2):
            a.wait(vm=f"T{blk}")
            self.stamp(f"t{blk}")
            if blk == 1:
                a.e(f"global_load_dword v2, v3, {P_DBG} sc1", tag="EP")
            for c8 in range(8):
                t = 100 + 4 * c8
                for k in range(4):
                    r0 = 32 + 32 * blk + 8 * k + c8 // 2
                    a.e(f"v_perm_b32 v{t+k}, v{r0+4}, v{r0}, s{12+(c8&1)}")
                a.e(f"s_add_u32 s8, s72, {c8*262144}")
                a.e(f"buffer_store_dwordx4 {v(t,4)}, v{14+blk}, {R_WS}, s8 offen offset:{blk*1024} sc1", tag="Ust")
        self.stamp("tst")
        a.wait(vm="GW")
        for q in range(4):
            for r in range(8):
                a.e(f"v_dot2_f32_bf16 v{132+r}, v{32+4*r+q}, v{96+q}, {'0' if q == 0 else 'v%d' % (132+r)}")
        self.gate_tail()
        self.drain(len(self.bg) - 1)
        a.wait(vm="EP")
        a.e(f"v_readfirstlane_b32 {sEP}, v2")
        self.epoch_get(issued=True)
        a.e(f"s_lshl_b32 s10, s70, 5\ns_add_u32 s10, s10, {WS_TF}")
        a.wait(vm="Ust")
        self.publish("s10")
        self.stamp("tpub")
        self.drain()
        a.e(f"s_setprio {o.get('sprio', 0)}")
        a.e(f"s_mul_i32 s9, s70, {14*1024}")
        for k in range(14):
            a.e(f"buffer_load_dwordx4 {v(192+4*k,4)}, v7, {R_W2}, s9 offen offset:{(k%4)*1024}", tag="WW")
            if k % 4 == 3:
                a.e("s_add_u32 s9, s9, 4096")
        a.e(f"s_lshl_b32 s9, s70, 7\ns_add_u32 s9, s9, {WS_GF}")
        a.wait(vm="Tst")
        self.publish("s9")
        self.gpub = True
        a.e(f"""
        s_mul_i32 s8, {sW}, {28*16384}
        s_sub_u32 s9, {sI}, 28
        s_lshl_b32 s9, s9, 12
        s_add_u32 s8, s8, s9
        """)
        steps = [x for k_ in range(o.get("pf0", 14), 14) for x in (k_, k_ + 14)]
        for n_, st in enumerate(steps):
            a.e(f"s_add_u32 s9, s8, {st*16384}")
            for k in range(4):
                a.e(f"buffer_load_dwordx4 {v(32+16*(n_%4)+4*k,4)}, v7, {R_W2}, s9 offen offset:{k*1024}", tag="WW")
        self.stamp("pfd")
        a.e(f"s_setprio {o.get('sprio2', 2)}")

    def push_b_issue(self):
        i = self.b_iss
        if i >= 28:
            return
        assert i - self.b_con < BSN
        self.b_iss += 1
        if i >= BSN and not self.no_lg:
            self.pushw(lg=f"BR{i-BSN}")
        self.push(f"""
        s_add_u32 m0, {sBS}, {(i % BSN)*8192}
        s_add_u32 s14, {sBB[0 if self.o.get('bfake') else i//7]}, {(i%(6 if self.o.get('bfake') else 7))*16384}
        buffer_load_dwordx4 v10, {R_W2}, s14 offen lds
        buffer_load_dwordx4 v11, {R_W2}, s14 offen offset:1024 lds
        """, tag=f"B{i}")

    def push_b_consume(self):
        i = self.b_con
        if i >= 28:
            return
        assert i < self.b_iss
        self.b_con += 1
        self.pushw(vm=f"B{i}")
        p = (i % BSN) * 8192
        ad, off = (vBL, p) if p < 65536 else (vBH, p - 65536)
        for cb in range(2):
            for hh in range(2):
                self.push(f"ds_read_b64_tr_b16 {v(vB0+8*(i%NBR)+4*cb+2*hh,2)}, v{ad+cb} offset:{off+hh*1024}", tag=f"BR{i}")

    def g1(self):
        a = self.a

        def reads(kap):
            s, ks = divmod(kap, 4)
            slot = s % 3
            b = 32 + 16 * (kap % 2)
            L = []
            for fb in range(2):
                wa, wo = (28 + fb, WPOS[slot] - WPOS[0]) if slot < 2 else (vW2 + fb, 0)
                for hh in range(2):
                    L.append(f"ds_read_b64_tr_b16 {v(b+8+4*fb+2*hh,2)}, v{wa} offset:{wo+ks*4096+hh*1024}")
                L.append(f"ds_read_b128 {v(b+4*fb,4)}, v{24+ks} offset:{XPOS[slot]-XPOS[2]+fb*4096}")
            return L

        def mf(kap, fb, tb):
            b = 32 + 16 * (kap % 2)
            d = 192 + 16 * (2 * fb + tb)
            c = "0" if kap == 0 else v(d, 16)
            return f"v_mfma_f32_32x32x16_bf16 {v(d,16)}, {v(b+8+4*fb,4)}, {v(b+4*tb,4)}, {c}"

        a.e("v_mov_b32 v9, 1")
        a.wait(vm="D0")
        a.e("s_barrier")
        self.stamp("g1s")
        for r in reads(0):
            a.e(r, tag="R0")
        nb = {5: 2, 6: 4}
        for kap in range(32):
            s, ks = divmod(kap, 4)
            if ks == 3 and kap < 31:
                a.wait(vm=f"D{s+1}" if f"D{s+1}" in a.vm else None, lg=0)
                if s + 1 < self.o.get("nb", 8):
                    a.e("s_barrier")
                else:
                    self.arrive("v3", "v9", L_CNT + 4)
                    self.acount += 4
                self.stamp(f"st{s+1}")
                if s + 1 < self.o.get("nb", 8):
                    for _ in range(nb.get(s, 0) if self.o.get("bearly", 1) else 0):
                        self.push_b_issue()
            elif kap == 29 and self.o.get("nb", 8) == 7 and self.o.get("bearly", 1):
                self.await_("v3", L_CNT + 4, 4)
                for _ in range(self.o.get("be2", 3)):
                    self.push_b_issue()
            else:
                a.wait(lg=f"R{kap}")
            nxt = reads(kap + 1) if kap < 31 else []
            ms = [mf(kap, 0, 0), mf(kap, 0, 1), mf(kap, 1, 0), mf(kap, 1, 1)]
            per = [2, 2, 2, 0]
            for i, m in enumerate(ms):
                a.e(m)
                for _ in range(per[i]):
                    if nxt:
                        a.e(nxt.pop(0), tag=f"R{kap+1}")
                self.drain(1)
        self.drain()
        self.arrive("v3", "v9", L_CNT + 4)
        self.acount += 4
        self.stamp("g1e")

    def h_stores(self):
        a = self.a
        k = 0
        for fb in range(2):
            for tb in range(2):
                d = 192 + 16 * (2 * fb + tb)
                for half in range(2):
                    t = 32 + 4 * k
                    k += 1
                    for j in range(4):
                        a.e(f"v_cvt_pk_bf16_f32 v{t+j}, v{d+8*half+2*j}, v{d+8*half+2*j+1}")
                    for j in range(4):
                        a.e(f"v_pk_max_i16 v{t+j}, v{t+j}, 0")
                    a.e(f"buffer_store_dwordx4 {v(t,4)}, v7, {R_WS}, {sH0 if tb == 0 else sH1} offen offset:{(2*fb+half)*1024} {['sc1', 'sc0 sc1', 'sc1 nt'][self.o.get('hfl', 0)]}", tag="Hst")
        self.stamp("hiss")

    def a_load(self, i):
        r = vA0 + 8 * (i % NAR)
        return f"""
        s_add_u32 s15, {sAB[0 if self.o.get('afake') else i//7]}, {(i%7)*1024}
        buffer_load_dwordx4 {v(r,4)}, v12, {R_WS}, s15 offen sc1
        buffer_load_dwordx4 {v(r+4,4)}, v13, {R_WS}, s15 offen sc1
        """

    def g2(self, PRE):
        a = self.a
        for i in range(28):
            ld = lines(self.a_load(i + PRE)) if i + PRE < 28 else []
            if i == self.o.get("apos", 16):
                a.e(f"buffer_load_dword v28, v29, {R_WS}, 0 offen sc1", tag="VA")
            if i + PRE == 28:
                self.drain()
                self.stamp("apre")
                a.wait(vm="VA")
                a.e(f"v_cmp_ne_u32 vcc, {sEP}, v28")
                a.e(f"s_cbranch_vccz L_pollx{self.npoll}")
                self.vpoll("v29", "v28", sleep=4)
                self.stamp("apoll")
                a.e(f"buffer_load_dwordx4 v[104:107], v16, {R_WS}, 0 offen sc1", tag="AL")
                a.e(f"buffer_load_dwordx4 v[108:111], v17, {R_WS}, 0 offen sc1", tag="AL")
                a.e(f"buffer_load_dwordx4 v[112:115], v19, {R_WS}, 0 offen sc1", tag="AL")
                a.e(f"buffer_load_dwordx4 v[116:119], v19, {R_WS}, 0 offen offset:32 sc1", tag="AL")
            if a.lg.count(f"BR{i}") < 4:
                while self.b_con <= i:
                    if self.b_iss <= self.b_con:
                        self.push_b_issue()
                    self.push_b_consume()
                self.drain()
            a.wait(vm=f"A{i}", lg=None if self.lg_idle else f"BR{i}")
            if i == 0:
                self.stamp("g2s")
            if self.b_iss < 28 and self.b_iss - self.b_con < BSN:
                self.push_b_issue()
            if self.b_con < 28 and self.b_con - i < NBR and self.b_con < self.b_iss and (self.b_iss - self.b_con >= self.o.get("blag", 4) or self.b_iss == 28):
                self.push_b_consume()
            r = vA0 + 8 * (i % NAR)
            k = 0
            for rb in range(2):
                for par in range(2):
                    d = 192 + 16 * (2 * rb + par)
                    c = "0" if i == 0 else v(d, 16)
                    a.e(f"v_mfma_f32_32x32x16_bf16 {v(d,16)}, {v(r+4*rb,4)}, {v(vB0+8*(i%NBR)+4*par,4)}, {c}")
                    if ld and k == 0:
                        a.e(ld[0])
                        a.e(ld[1], tag=f"A{i+PRE}")
                    elif ld and k == 2:
                        a.e(ld[2], tag=f"A{i+PRE}")
                    self.drain(3)
                    k += 1
        self.drain()

    def final(self):
        a = self.a
        self.stamp("g2e")
        for lam in range(1, 4):
            rb, hf = lam >> 1, lam & 1
            for par in range(2):
                for q in range(2):
                    d = 192 + 16 * (2 * rb + par) + 8 * hf + 4 * q
                    a.e(f"ds_write_b128 v23, {v(d,4)} offset:{(2*(lam-1)+par)*8192+q*1024}", tag="RW")
        a.wait(vm=0)
        a.e(f"ds_write_b128 v18, v[104:107] offset:{6*8192}", tag="AW")
        a.e(f"ds_write_b128 v18, v[108:111] offset:{7*8192}", tag="AW")
        a.wait(lg=0)
        a.e("s_barrier")
        self.stamp("fbar")
        for par in range(2):
            for q in range(2):
                a.e(f"ds_read_b64 {v(80+4*par+2*q,2)}, v20 offset:{6*8192+par*4096+16*q}", tag="AR")
        for lam in range(1, 4):
            for par in range(2):
                for q in range(2):
                    a.e(f"ds_read_b128 {v(32+16*(lam-1)+8*par+4*q,4)}, v{23+lam} offset:{(2*(lam-1)+par)*8192+q*1024}", tag=f"RR{lam}")
        a.wait(lg="AR")
        for par in range(2):
            for q in range(2):
                s_ = 80 + 4 * par + 2 * q
                d_ = 128 + 8 * par + 4 * q
                a.e(f"v_lshlrev_b32 v{d_}, 16, v{s_}")
                a.e(f"v_and_b32 v{d_+1}, 0xffff0000, v{s_}")
                a.e(f"v_lshlrev_b32 v{d_+2}, 16, v{s_+1}")
                a.e(f"v_and_b32 v{d_+3}, 0xffff0000, v{s_+1}")
        for lam in range(1, 4):
            a.wait(lg=f"RR{lam}")
            for par in range(2):
                for h in range(4):
                    d = 192 + 16 * par + 2 * h
                    a.e(f"v_pk_add_f32 {v(d,2)}, {v(d,2)}, {v(32+16*(lam-1)+8*par+2*h,2)}")
        for par in range(2):
            for h in range(4):
                d = 192 + 16 * par + 2 * h
                s_ = 128 + 8 * par + 2 * h
                a.e(f"v_pk_add_f32 {v(s_,2)}, {v(s_,2)}, {v(d,2)} neg_lo:[0,1] neg_hi:[0,1]")
        for h in range(4):
            for par in range(2):
                d = 192 + 16 * par + 2 * h
                s_ = 128 + 8 * par + 2 * h
                a.e(f"v_pk_fma_f32 {v(d,2)}, {v(s_,2)}, {v(112+2*h,2)}, {v(d,2)}")
        for r in range(8):
            so = 's70' if r < 4 else 's71'
            a.e(f"v_cvt_pk_bf16_f32 v{144+r}, v{192+r}, v{208+r}")
            a.e(f"buffer_store_short v{144+r}, v21, {R_OUT}, {so} offen offset:{(r%4)*1024}", tag="O")
            a.e(f"buffer_store_short_d16_hi v{144+r}, v21, {R_OUT}, {so} offen offset:{(r%4)*1024+64}", tag="O")

    def role_a(self):
        a = self.a
        o = self.o
        self.a_prologue()
        a.e(f"s_cmp_ge_u32 {sI}, 28")
        a.e("s_cbranch_scc1 L_spare")
        vm0, lg0 = list(a.vm), list(a.lg)
        ops = self.dma_ops(0, False) + self.dma_ops(1)
        if o.get("a2", 0):
            ops += self.dma_ops(2)
        n1 = o.get("n1", 11)
        for k_, (x, t) in enumerate(ops[:n1]):
            a.e(x, tag=t)
            self.stamp(f"i{k_}")
            if k_ + 1 == o.get("sb", 11):
                a.e("s_barrier")
        self.stamp("d0iss")
        self.a_prologue2()
        self.a_setup_g1()
        self.a_setup_g2()
        for x, t in ops[n1:]:
            a.e(x, tag=t)
        self.stamp("d2iss")
        self.g1()
        nearly = self.b_iss

        def ring_free():
            for _ in range(nearly):
                self.push_b_consume()
            self.drain()
            self.await_("v3", L_CNT + 4, self.acount)

        def issue(n):
            for _ in range(n):
                self.push_b_issue()
            self.drain()

        def pub():
            a.e("v_lshlrev_b32 v22, 2, v1")
            self.await_("v3", L_CNT + 8, 1)
            a.e(f"s_mov_b32 {sEP}, s8\nv_mov_b32 v2, v8")
            a.wait(vm="Hst")
            a.e("s_mov_b32 exec_lo, s35\ns_mov_b32 exec_hi, 0")
            a.e(f"buffer_store_dword v2, v22, {R_WS}, {sHF} offen sc1", tag="flag")
            a.e("s_mov_b64 exec, -1")
            self.stamp("hpub")

        sg = o.get("stag", 0)
        if sg:
            a.e(f"s_bitcmp1_b32 {sI}, 0")
            a.e("s_cbranch_scc0 L_st0")
            keep = (list(a.vm), list(a.lg), self.b_iss, self.b_con)
            ring_free()
            issue(sg)
            self.h_stores()
            pub()
            a.e("s_branch L_join")
            a.label("L_st0")
            a.e("s_nop 7")
            a.vm, a.lg, self.b_iss, self.b_con = keep
        self.h_stores()
        ring_free()
        issue(o.get("bh", 3))
        pub()
        issue(max(0, sg - o.get("bh", 3)))
        a.e("s_branch L_join")
        a.label("L_spare")
        vm_main, lg_main = list(a.vm), list(a.lg)
        bi = self.b_iss
        a.vm, a.lg = vm0, lg0
        self.b_iss = self.b_con = 0
        self.a_prologue2()
        self.t_job()
        self.a_setup_g2()
        for _ in range(nearly):
            self.push_b_issue()
        self.drain()
        if not self.gpub:
            a.e(f"s_lshl_b32 s9, s70, 7\ns_add_u32 s9, s9, {WS_GF}")
            a.wait(vm="Tst")
            self.publish("s9")
        for _ in range(nearly):
            self.push_b_consume()
        while self.b_iss < bi:
            self.push_b_issue()
        self.drain()
        a.wait(vm=0, lg=0)
        a.vm, a.lg = vm_main, lg_main
        a.label("L_join")
        self.a_setup_late()
        bt = o.get("bt", 23)
        hq = o.get("hq", 3)
        while self.b_iss < bt:
            if self.b_iss == bt - hq:
                assert bt - self.b_con <= BSN
                self.pushw(lg=0)
                self.pushf(lambda: self.spoll_issue("s72", 8))
                self.no_lg = True
            if not self.no_lg and self.b_con < NBR and self.b_iss - self.b_con >= o.get("blag0", 5):
                self.push_b_consume()
            self.push_b_issue()
        self.no_lg = False
        self.drain()
        self.stamp("biss")
        self.spoll("s72", 8, sleep=1, issued=True)
        self.stamp("hpoll")
        a.e(f"s_setprio {o.get('gprio', 0)}")
        PRE = o.get("g2pre", 6)
        for i in range(PRE):
            a.e(self.a_load(i), tag=f"A{i}")
            if self.b_con < NBR and self.b_con < self.b_iss:
                self.push_b_consume()
                self.drain()
        self.g2(PRE)
        self.final()

    def role_b(self):
        a = self.a
        o = self.o
        a.vm, a.lg = [], []
        a.label("L_roleB")
        a.e(f"s_setprio {self.o.get('bprio', 3)}")
        a.e(f"""
        s_lshl_b32 s8, {sI}, 1
        s_lshr_b32 s9, {sW}, 1
        s_add_u32 s8, s8, s9
        s_lshl_b32 s8, s8, 3
        s_add_u32 s77, s8, {sX}            ; d
        s_and_b32 s9, {sW}, 1
        s_lshl_b32 s9, s9, 7
        s_lshl_b32 s8, s77, 8
        s_add_u32 s8, s8, s9
        v_lshl_add_u32 v24, v1, 1, s8      ; d*256 + (64*(w&1)+l)*2
        s_mov_b32 s62, s8
        s_lshl_b32 s8, s77, 1
        v_mov_b32 v25, s8
        s_and_b32 s63, s8, -4
        """)
        for k in range(8):
            a.e(f"v_mov_b32 v{176+k}, 0")
        a.e("s_waitcnt lgkmcnt(0)")
        self.stamp("bk")
        self.common2()
        a.e(f"s_mov_b64 s[56:57], {P_DSK}")

        a.e("s_mov_b64 s[48:49], s[16:17]")
        a.e(f"ds_write_b32 v3, v3 offset:{L_CNT}", tag="Z")
        a.e(f"ds_write_b32 v3, v3 offset:{L_CNT+4}", tag="Z")
        a.e(f"ds_write_b32 v3, v3 offset:{L_CNT+8}", tag="Z")
        a.wait(lg=0)
        a.e("s_barrier")
        self.params_load()
        self.tlb_touch()
        self.dma_voffs()
        a.e(f"""
        s_mov_b64 s[52:53], s[36:37]
        s_lshl_b32 {sTM0}, {sW}, 8
        s_add_u32 {sTM1}, {sTM0}, {TSPLIT*TROW}
        s_lshr_b32 s8, {sW}, 1             ; channel
        s_lshl_b32 s9, s8, 9
        v_and_b32 v8, 15, v1
        v_lshrrev_b32 v9, 4, v1
        v_lshl_add_u32 v10, v9, 4, s9      ; base + g*16
        s_movk_i32 s10, {TROW}
        v_add_u32 v12, {XB}, v8
        v_mad_u32_u24 v{vKX}, v12, s10, v10
        s_and_b32 s11, {sW}, 1
        s_cmp_eq_u32 s11, 0
        s_cselect_b64 vcc, -1, 0
        v_lshrrev_b32 v11, 2, v8           ; gi
        v_and_b32 v4, 3, v8                ; r
        v_min_u32 v5, 2, v4                ; min(r,2)
        v_lshrrev_b32 v13, 1, v11
        v_lshl_add_u32 v12, v11, 1, v13
        v_add3_u32 v12, v12, v5, {YB[2]}
        v_add_u32 v13, {YB[0]}, v8
        v_cndmask_b32 v12, v12, v13, vcc
        v_mad_u32_u24 v{vKY}, v12, s10, v10
        v_mad_u32_u24 v12, v11, 3, v5
        v_add_u32 v12, {YB[4]}, v12
        v_min_u32 v13, 14, v8
        v_add_u32 v13, {YB[0]+4}, v13
        v_cndmask_b32 v12, v12, v13, vcc
        v_mad_u32_u24 v{vKY+1}, v12, s10, v10
        v_lshl_add_u32 v12, v11, 1, v4
        v_add_u32 v12, {YB[1]}, v12
        v_mad_u32_u24 v{vKY+2}, v12, s10, v10
        s_mul_i32 s9, s8, {4*KCP}
        v_lshlrev_b32 v11, 5, v8           ; 32j
        v_sub_u32 v11, s9, v11             ; base - 32j
        v_lshlrev_b32 v12, 3, v9
        v_sub_u32 v12, v11, v12
        v_add_u32 v12, {4088-512}, v12
        v_lshrrev_b32 v13, 1, v9
        v_lshlrev_b32 v13, 9, v13
        v_and_b32 v4, 1, v9
        v_lshl_add_u32 v13, v4, 4, v13     ; 512(g>>1) + 16(g&1)
        v_sub_u32 v13, v11, v13
        v_add_u32 v13, {4080-1024}, v13
        v_cndmask_b32 v{vKWA}, v13, v12, vcc
        v_lshlrev_b32 v13, 9, v9
        v_sub_u32 v13, v11, v13
        v_add_u32 v{vKWB}, {4064-2048}, v13
        s_movk_i32 s10, {KCP}
        v_lshrrev_b32 v11, 3, v1
        v_and_b32 v12, 7, v1
        v_lshlrev_b32 v12, 3, v12
        v_mad_u32_u24 v12, v11, s10, v12
        s_add_u32 s12, s9, 4096
        v_add_u32 v{vKZ}, s12, v12
        v_add_u32 v11, 1, v8
        v_and_b32 v11, 3, v11              ; sigma
        v_sub_u32 v12, 18, v8
        v_and_b32 v12, 28, v12
        v_lshl_add_u32 v12, v9, 3, v12
        v_lshlrev_b32 v12, 1, v12
        v_mad_u32_u24 v12, v11, s10, v12
        s_xor_b32 s13, s11, 1
        s_lshl_b32 s13, s13, 8             ; hw=0 (q0 0..3) -> +256 B
        s_add_u32 s12, s9, s13
        v_add_u32 v{vCA}, s12, v12
        v_lshlrev_b32 v12, 5, v8
        v_lshl_add_u32 v12, v9, 4, v12
        s_mul_i32 s12, s8, {UP}
        s_add_u32 s12, s12, {L_U}
        s_add_u32 s13, s12, s13
        v_add_u32 v{vCB}, s13, v12
        v_min_u32 v11, 59, v1
        v_lshl_add_u32 v{vUZ}, v11, 3, s12
        v_mov_b32 v5, 1
        """)
        a.e(f"""
        v_lshrrev_b32 v8, 1, v1
        v_and_b32 v9, 1, v1
        v_and_b32 v10, 7, v8
        v_lshlrev_b32 v10, 7, v10
        s_lshl_b32 s9, {sI}, 5
        v_xor_b32 v10, s9, v10
        v_lshl_add_u32 v10, v8, 10, v10
        v_lshl_add_u32 v{vUG}, v9, 4, v10
        s_lshl_b32 s8, {sW}, 16            ; 64w*1024
        s_lshl_b32 s9, {sX}, 18
        s_add_u32 s8, s8, s9
        s_add_u32 {sUG0}, s8, {WS_UT}
        s_add_u32 {sUG1}, {sUG0}, {32*1024}
        s_movk_i32 s8, {UP}
        v_lshlrev_b32 v8, 4, v8
        v_mad_u32_u24 v8, v9, s8, v8
        s_lshl_b32 s8, {sW}, 10
        s_add_u32 s9, s8, {L_U + 480}
        v_add_u32 v{vUW}, s9, v8
        s_lshl_b32 s8, {sW}, 10
        s_add_u32 s8, s8, {WS_TF}
        v_and_b32 v8, 31, v1
        v_lshl_add_u32 v{vTF}, v8, 5, s8
        s_lshl_b32 s8, s77, 10
        s_lshl_b32 s10, s11, 20
        s_add_u32 s8, s8, s10
        s_add_u32 {sAT}, s8, {WS_AT}
        s_add_u32 s38, {sAT}, 0x80000
        s_lshl_b32 s8, {sX}, 7             ; d & 7 = x
        v_xor_b32 v255, s8, v7
        s_lshl_b32 s8, s11, 12
        s_lshr_b32 s10, s77, 4
        s_lshl_b32 s10, s10, 7
        s_add_u32 s8, s8, s10
        s_and_b32 s10, s77, 15
        s_lshl_b32 s10, s10, 2
        s_add_u32 s8, s8, s10
        s_add_u32 {sAF}, s8, {WS_AF}
        s_lshl_b32 s8, {sW}, 12
        s_add_u32 s8, s8, {L_EX}
        v_add_u32 v{vEXO}, s8, v7
        s_xor_b32 s8, {sW}, 1
        s_lshl_b32 s8, s8, 12
        s_add_u32 s8, s8, {L_EX}
        v_add_u32 v{vEXD}, s8, v7
        """)
        self.push_kgen()
        chunk = o.get("kch", 64)

        def gather():
            if o.get("noug", 0):
                return
            a.raw(f"buffer_load_dwordx4 v[176:179], v{vUG}, {R_WS}, {sUG0} offen sc1")
            a.raw(f"buffer_load_dwordx4 v[236:239], v{vUG}, {R_WS}, {sUG1} offen sc1")

        def look():
            a.e(f"global_load_dword v2, v3, {P_DBG} sc1", tag="PT")
            a.e(f"buffer_load_dword v9, v{vTF}, {R_WS}, 0 offen sc1", tag="PT")

        def tag():
            a.wait(vm=0)
            a.e(f"v_readfirstlane_b32 {sEP}, v2")
            self.epoch_get(issued=True)
            a.e(f"ds_write_b32 v3, v2 offset:{L_CNT+8}")

        def check(lab):
            a.wait(vm=0)
            a.e(f"v_cmp_ne_u32 vcc, {sEP}, v9")
            a.e(f"s_cbranch_vccz {lab}y")
            a.raw(f"buffer_load_dword v9, v{vTF}, {R_WS}, 0 offen sc1")
            a.e(f"s_branch {lab}")
            a.label(f"{lab}y")
            a.e("s_mov_b32 s14, 0")
            gather()

        def kmf():
            a.e(f"""
            s_and_b32 s8, {sW}, 1
            s_lshl_b32 s8, s8, 6
            v_cmp_eq_u32 vcc, s8, v1
            v_mov_b32 v217, 0
            v_mov_b32 v218, 0
            v_mov_b32 v219, 0
            v_cndmask_b32 v216, 0, v183, vcc
            """)
            self.push_kmfma()
            self.drain()

        tp = o.get("tp", 6)
        tb = o.get("tb", 6)
        NB = o.get("nb", 8)
        for s in range(NB):
            a.e(f"s_cmp_lt_u32 {sI}, 28")
            a.e("s_cselect_b64 vcc, -1, 0")
            a.e(f"s_cbranch_scc0 L_nl{s}")
            need = "D7" if s == NB - 1 else f"D{s}"
            if need in a.vm:
                a.wait(vm=need)
            a.e("s_barrier")
            a.label(f"L_nl{s}")
            if s == tp + 1:
                tag()
                check("L_c1")
                a.label("L_c1")
            if s == 1:
                a.e("s_cbranch_vccnz L_pw")
                a.wait(vm=0)
                a.label("L_pw")
                a.wait(vm="P")
                self.stamp("kgs")
            left = (chunk if s >= o.get("kil", 3) else o.get("kc1", 40)) if s >= 1 else 0
            if s + 2 < 8 and (s >= 1 or not o.get("a2", 0)):
                for k_, (x, t) in enumerate(self.dma_ops(s + 2)):
                    a.e(f"s_cbranch_vccz L_nd{s}_{k_}")
                    a.e(x, tag=t)
                    a.label(f"L_nd{s}_{k_}")
                    if s >= o.get("kil", 3) and k_ < 7:
                        n_ = left // (8 - k_)
                        self.drain(n_)
                        left -= n_
            if s == tp:
                look()
            if s == 0:
                a.e(f"s_setprio {o.get('bprio2', 1)}")
            self.drain(left)
        self.drain()
        self.stamp("kge")
        self.tables(0, NROW)
        self.stamp("tabd")
        if tp + 1 >= NB:
            tag()
        a.e("s_cmp_eq_u32 s14, 0")
        a.e("s_cbranch_scc1 L_c2")
        check("L_c2")
        a.label("L_c2")
        a.e(f"s_setprio {o.get('bprio3', 3)}")
        self.bsync()
        kmf()
        self.bsync()
        self.stamp("kme")
        a.e(f"s_bitcmp1_b32 {sW}, 0")
        a.e("s_nop 4")
        a.e("s_cbranch_scc1 L_sk1")
        self.push_kexpand(0)
        self.drain()
        a.e("s_branch L_skj")
        a.label("L_sk1")
        self.push_kexpand(1)
        self.drain()
        a.label("L_skj")
        self.stamp("kw")
        a.e("s_cmp_eq_u32 s14, 0")
        a.e("s_cbranch_scc1 L_haveu")
        a.wait(vm=0)
        a.e(f"v_cmp_ne_u32 vcc, {sEP}, v9")
        a.e(f"s_cbranch_vccz L_pollx{self.npoll}")
        self.vpoll(f"v{vTF}", "v9", sleep=2)
        gather()
        a.label("L_haveu")
        a.e("v_mov_b32 v10, 0\nv_mov_b32 v11, 0")
        a.e(f"ds_write_b64 v{vUZ}, v[10:11]", tag="Z")
        a.wait(vm=0)
        a.e(f"ds_write_b128 v{vUW}, v[176:179]", tag="UW")
        a.e(f"ds_write_b128 v{vUW}, v[236:239] offset:512", tag="UW")
        self.bsync()
        self.stamp("convs")
        a.e(f"s_setprio {self.o.get('cprio', 1)}")
        if not o.get("noconv"):
            self.conv({})
        self.stamp("conve")
        a.e(f"s_setprio {o.get('eprio', 3)}")
        self.conv_out()
        self.conv_out2()
        a.wait(vm=0)
        self.publish(sAF)
        self.stamp("apub")

    def tail(self):
        a = self.a
        o = self.o
        if o.get("amp"):
            self.stamp("end")
            a.e(f"""
            s_waitcnt lgkmcnt(0)
            s_sub_u32 s8, s82, s80
            s_lshl_b32 s8, s8, 2
            s_add_u32 s8, s8, 3000
            s_cmp_lg_u32 s2, {o['amp']}
            s_cbranch_scc1 L_end
            """)
            a.label("L_pad")
            a.e("""
            s_memrealtime s[98:99]
            s_waitcnt lgkmcnt(0)
            s_sub_u32 s98, s98, s80
            s_cmp_lt_u32 s98, s8
            s_cbranch_scc1 L_pad
            """)
        elif self.stamps:
            a.e("s_memrealtime s[100:101]" if o.get("rt") else "s_memtime s[100:101]")
            a.e("s_memrealtime s[72:73]")
            a.e("s_waitcnt lgkmcnt(0)")
            a.e(f"""
            v_readfirstlane_b32 s3, v0
            s_and_b32 s3, s3, 256
            s_add_u32 s3, s3, s2
            s_lshl_b32 s3, s3, 2
            s_add_u32 s3, s3, {sW}
            s_lshl_b32 s3, s3, 6
            s_add_u32 s3, s3, {WS_STAMP}
            s_mov_b64 exec, 1
            """)
            for k in list(range(1, len(self.names))) + [10]:
                a.e(f"s_sub_u32 s8, s{80+2*k}, s80\nv_mov_b32 v8, s8\nbuffer_store_dword v8, v3, {R_WS}, s3 offen offset:{4*k}")
            a.e(f"v_mov_b32 v8, s78\nbuffer_store_dword v8, v3, {R_WS}, s3 offen offset:44")
            a.e(f"v_mov_b32 v8, s72\nbuffer_store_dword v8, v3, {R_WS}, s3 offen offset:48")

    def build(self):
        a = self.a
        self.prologue()
        self.role_a()
        a.e("s_branch L_tail" if self.stamps else "s_endpgm")
        self.role_b()
        a.label("L_tail")
        self.tail()
        a.label("L_end")
        a.e("s_endpgm")
        hdr = open("gated_mix__ssm_conv_s4__dense_activation_relu__prompt.s.ref").read().split("; Override launch")[0]
        s = hdr + f"; @launch grid=(256,1,1) block=(512,1,1) lds={LDS_BYTES}\n"
        s += '.amdgcn_target "amdgcn-amd-amdhsa--gfx950"\n.text\n'
        s += f".globl {KNAME}\n.p2align 8\n.type {KNAME},@function\n{KNAME}:\n"
        s += a.text().replace(".p2align 3:", ".p2align 3")
        s += f""".section .rodata,"a"
.p2align 6
.amdhsa_kernel {KNAME}
  .amdhsa_next_free_vgpr 256
  .amdhsa_next_free_sgpr 102
  .amdhsa_accum_offset 256
  .amdhsa_group_segment_fixed_size 0
  .amdhsa_kernarg_size 128
  .amdhsa_user_sgpr_count 2
  .amdhsa_user_sgpr_kernarg_segment_ptr 1
  .amdhsa_system_sgpr_workgroup_id_x 1
.end_amdhsa_kernel
"""
        return s


if __name__ == "__main__":
    out = sys.argv[1]
    stamps = None
    opts = {}
    for x in sys.argv[2:]:
        if x.startswith("--stamps="):
            stamps = x.split("=")[1].split(",")
        elif "=" in x:
            opts[x.split("=")[0]] = int(x.split("=")[1])
    g = Gen(stamps=stamps, opts=opts)
    s = g.build()
    open(out, "w").write(s)
    print("instructions", sum(1 for i in g.a.ins if i.kind != "label"), "auto nops", g.a.nops, "stamps", g.names)
```

```python
import sys
from collections import deque
from emit import Asm

KNAME = "gated_mix__ssm_conv_s4__dense_activation_relu__prompt_kernel"

WS_TF = 0x1000
WS_GF = 0x5000
WS_HF = 0x40000
WS_AF = 0x60000
WS_G = 0x12000
WS_STAMP = 0x20000
WS_UT = 0x100000
WS_AT = 0x300000
WS_H = 0x500000
WS_SIZE = 0xC00000

LDS_BYTES = 163840
XPOS = [98304, 131072, 81920]
WPOS = [114688, 147456, 65536]
L_BS = 81920
BSN = 10
L_CNT = 64384
NBR = 13
NAR = 7
vA0, vB0 = 32, 88
TROW = 1056
NROW = 67
L_TAB = 0
TSPLIT = 34
L_KC = 0
KCP = 4160
L_U = 70784
UP = 4608
L_EX = 33280
XB = 51
YB = {0: 0, 1: 19, 2: 29, 3: 34, 4: 39, 5: 42, 6: 45, 7: 48}

sX, sI, sW, sEP = "s4", "s5", "s6", "s7"
P_U, P_ARE, P_AIM, P_BRE, P_BIM, P_CRE, P_CIM, P_LDT = [f"s[{16+2*i}:{17+2*i}]" for i in range(8)]
P_DSK, P_BX, P_W1, P_W2, P_GW, P_OUT, P_DBG, P_WS = [f"s[{32+2*i}:{33+2*i}]" for i in range(8)]
R_U, R_W1, R_W2, R_OUT, R_WS = "s[48:51]", "s[52:55]", "s[56:59]", "s[60:63]", "s[64:67]"
sE2 = "s[68:69]"
sH0, sH1, sHF, sUG0, sUG1, sAT, sAF, sTM0, sTM1 = "s32", "s33", "s34", "s32", "s33", "s34", "s35", "s36", "s37"
sBB = ["s36", "s37", "s38", "s39"]
sAB = ["s40", "s41", "s42", "s43"]
sBS = "s76"
sM, sN = "s30", "s31"
vKX, vKY, vKWA, vKWB, vUW, vCA, vCB, vEXD, vEXO, vUG, vKZ, vTF, vUZ, vCN = 240, 241, 244, 245, 246, 247, 248, 249, 250, 251, 252, 253, 254, 255
KRES = list(range(32, 80)) + list(range(216, 235))
vW2 = 14
vBL, vBH = 30, 4


def v(a, n=1):
    return f"v{a}" if n == 1 else f"v[{a}:{a+n-1}]"


def lines(t):
    return [x.strip() for x in t.strip().split("\n") if x.strip() and not x.strip().startswith(";")]


class Gen:
    def __init__(self, stamps=None, opts=None):
        self.a = Asm()
        self.stamps = stamps
        self.names = []
        self.o = opts or {}
        self.npoll = 0
        self.b_iss = 0
        self.b_con = 0
        self.bg = deque()
        self.lg_idle = False
        self.no_lg = False
        self.nsync = 0
        self.gpub = False
        self.acount = 0
        self.kc0 = 0

    def stamp(self, name):
        if self.stamps and (name == "start" or name in self.stamps):
            if name not in self.names:
                self.names.append(name)
            k = self.names.index(name)
            assert k < 10
            self.a.e(f"{'s_memrealtime' if (self.o.get('amp') or self.o.get('rt')) else 's_memtime'} s[{80+2*k}:{81+2*k}]")

    def push(self, text, tag=None):
        L = lines(text)
        k = 0
        while k < len(L):
            u = [L[k]]
            if L[k].startswith("s_cmp"):
                while k + 1 < len(L) and L[k + 1].startswith("s_cselect"):
                    k += 1
                    u.append(L[k])
            k += 1
            self.bg.append(lambda u="\n".join(u), tag=tag: self.a.e(u, tag=tag))

    def pushf(self, f):
        self.bg.append(f)

    def pushw(self, **kw):
        self.bg.append(lambda: self.a.wait(**kw))

    def drain(self, n=10**9):
        while n > 0 and self.bg:
            self.bg.popleft()()
            n -= 1

    def publish(self, soff, mask="1", voff="v3"):
        a = self.a
        a.e(f"s_mov_b64 exec, {mask}")
        a.e(f"buffer_store_dword v2, {voff}, {R_WS}, {soff} offen sc1", tag="flag")
        a.e("s_mov_b64 exec, -1")

    def spoll_issue(self, soff, n):
        if self.o.get("vp", 0):
            self.a.e(f"v_min_u32 v27, 6, v1\nv_lshl_add_u32 v27, v27, 2, {soff}")
            self.a.e(f"buffer_load_dword v28, v27, {R_WS}, 0 offen sc1", tag="VP")
            return
        dst = "s16" if n == 1 else f"s[16:{15+n}]"
        self.a.e(f"s_load_dword{'' if n == 1 else 'x%d' % n} {dst}, {P_WS}, {soff} glc")

    def spoll(self, soff, n, sleep=2, issued=False):
        a = self.a
        sleep = self.o.get("psl", sleep)
        if self.o.get("vp", 0):
            a.wait(vm="VP")
            a.e(f"v_cmp_ne_u32 vcc, {sEP}, v28")
            a.e(f"s_cbranch_vccz L_pollx{self.npoll}")
            self.vpoll("v27", "v28", sleep=sleep)
            return
        k = self.npoll
        self.npoll += 1
        a.e("s_mov_b32 s3, 0")
        if not issued:
            self.spoll_issue(soff, n)
        a.label(f"L_poll{k}")
        a.e("s_waitcnt lgkmcnt(0)")
        a.e("s_mov_b32 s23, s22")
        for q in range(n // 2):
            a.e(f"s_xor_b64 s[{16+2*q}:{17+2*q}], s[{16+2*q}:{17+2*q}], {sE2}")
        for q in range(1, n // 2):
            a.e(f"s_or_b64 s[16:17], s[16:17], s[{16+2*q}:{17+2*q}]")
        a.e(f"s_cbranch_scc0 L_pollx{k}")
        a.e("s_add_u32 s3, s3, 1")
        a.e("s_cmp_gt_u32 s3, 4000")
        a.e(f"s_cbranch_scc1 L_pollx{k}")
        a.e(f"s_sleep {sleep}")
        self.spoll_issue(soff, n)
        a.e(f"s_branch L_poll{k}")
        a.label(f"L_pollx{k}")

    def epoch_master(self):
        a = self.a
        a.e(f"""
        s_lshl_b32 s3, s2, 2
        s_add_u32 s3, s3, {sW}
        s_cmp_lg_u32 s3, 1023
        s_cbranch_scc1 L_nomaster
        """)
        if self.o.get("clk", 1):
            a.e("""
            s_memrealtime s[10:11]
            s_waitcnt lgkmcnt(0)
            s_max_u32 s3, s10, 1
            """)
        else:
            a.e(f"""
            s_load_dword s3, {P_WS}, 0
            s_waitcnt lgkmcnt(0)
            s_mul_i32 s3, s3, 1664525
            s_add_u32 s3, s3, 1013904223
            s_max_u32 s3, s3, 1
            """)
        a.e("v_mov_b32 v8, s3\ns_mov_b64 exec, 1")
        a.raw(f"global_store_dword v3, v8, {P_DBG} sc1")
        if not self.o.get("clk", 1):
            a.raw(f"global_store_dword v3, v8, {P_WS} sc1")
        a.e("s_mov_b64 exec, -1")
        a.label("L_nomaster")

    def epoch_issue(self):
        self.a.e(f"s_load_dword {sEP}, {P_DBG}, 0")

    def epoch_get(self, issued=False):
        a = self.a
        k = self.npoll
        self.npoll += 1
        if not issued:
            self.epoch_issue()
        a.e("s_mov_b32 s3, 0")
        a.e("s_waitcnt lgkmcnt(0)")
        a.label(f"L_ep{k}")
        a.e(f"s_cmp_lg_u32 {sEP}, 0")
        a.e(f"s_cbranch_scc1 L_epx{k}")
        a.e("s_add_u32 s3, s3, 1")
        a.e("s_cmp_gt_u32 s3, 4000")
        a.e(f"s_cbranch_scc1 L_epx{k}")
        a.e("s_sleep 2")
        a.raw(f"global_load_dword v2, v3, {P_DBG} sc1")
        a.wait(vm=0)
        a.e(f"v_readfirstlane_b32 {sEP}, v2")
        a.e("s_nop 1")
        a.e(f"s_branch L_ep{k}")
        a.label(f"L_epx{k}")
        a.e(f"s_mov_b32 s68, {sEP}\ns_mov_b32 s69, {sEP}\nv_mov_b32 v2, {sEP}")

    def vpoll(self, voff, tmp, sleep=2):
        a = self.a
        n = self.npoll
        self.npoll += 1
        a.e("s_mov_b32 s3, 0")
        a.label(f"L_poll{n}")
        a.raw(f"buffer_load_dword {tmp}, {voff}, {R_WS}, 0 offen sc1")
        a.e("s_add_u32 s3, s3, 1")
        a.wait(vm=0)
        a.e(f"v_cmp_ne_u32 vcc, {sEP}, {tmp}")
        a.e("s_cmp_gt_u32 s3, 4000")
        a.e(f"s_cbranch_scc1 L_pollx{n}")
        a.e(f"s_cbranch_vccz L_pollx{n}")
        a.e(f"s_sleep {sleep}")
        a.e(f"s_branch L_poll{n}")
        a.label(f"L_pollx{n}")

    def params_load(self):
        a = self.a
        for k, p in enumerate((P_ARE, P_AIM, P_BRE, P_BIM, P_CRE, P_CIM)):
            a.e(f"global_load_short_d16_hi v{176+k}, v24, {p}", tag="P")
        a.e(f"global_load_short_d16_hi v182, v25, {P_LDT}", tag="P")
        a.e(f"global_load_short_d16_hi v183, v25, s[56:57]", tag="P")

    def tlb_touch(self):
        a = self.a
        if not self.o.get("tlb", 1):
            return
        a.e(f"""
        s_cmp_eq_u32 {sW}, 1
        s_cselect_b64 s[8:9], {P_W2}, {P_WS}
        s_cmp_eq_u32 {sW}, 2
        s_cselect_b64 s[8:9], {P_OUT}, s[8:9]
        s_cmp_eq_u32 {sW}, 3
        s_cselect_b64 s[8:9], {P_DBG}, s[8:9]
        s_cmp_eq_u32 {sW}, 0
        s_cselect_b32 s10, 5, 0
        s_mov_b32 s11, 21
        """)
        if self.o.get("tlb", 1) == 2:
            a.e(f"""
            s_cselect_b32 s10, 47, 27
            s_cselect_b32 s11, 18, 16
            s_cmp_eq_u32 {sW}, 3
            s_cselect_b32 s10, 0, s10
            """)
        a.e("""
        v_min_u32 v8, s10, v1
        v_lshlrev_b32 v8, s11, v8
        """)
        a.e("global_load_dword v6, v8, s[8:9] offset:128", tag="TLB")
        if self.o.get("stlb", 0):
            a.e(f"s_load_dword s60, {P_DBG}, 128")
            a.e(f"s_load_dword s61, {P_WS}, 128")

    def gate_tail(self):
        P = self.push
        for q in range(4):
            for r in range(8, 16):
                P(f"v_dot2_f32_bf16 v{132+r}, v{32+4*r+q}, v{96+q}, {'0' if q == 0 else 'v%d' % (132+r)}")
        prs = [(4*j+e_, 4*j+e_+2) for j in range(4) for e_ in range(2)]
        for p, q in prs:
            P(f"v_permlane32_swap_b32 v{132+p}, v{132+q}")
        for p, q in prs:
            P(f"v_add_f32 v{132+p}, v{132+p}, v{132+q}")
        for j in range(4):
            P(f"v_permlane16_swap_b32 v{132+4*j}, v{133+4*j}")
        for j in range(4):
            P(f"v_add_f32 v{132+4*j}, v{132+4*j}, v{133+4*j}")
        for r in (8, 4, 2, 1):
            for j in range(4):
                P(f"v_add_f32_dpp v{132+4*j}, v{132+4*j}, v{132+4*j} row_ror:{r} row_mask:0xf bank_mask:0xf")
        P(f"""
        v_and_b32 v8, 3, v1
        v_cmp_eq_u32 vcc, 1, v8
        v_cndmask_b32 v132, v132, v136, vcc
        v_cmp_eq_u32 vcc, 2, v8
        v_cndmask_b32 v132, v132, v140, vcc
        v_cmp_eq_u32 vcc, 3, v8
        v_cndmask_b32 v132, v132, v144, vcc
        v_mul_f32 v132, 0xbfb8aa3b, v132
        v_exp_f32 v132, v132
        v_lshrrev_b32 v9, 4, v1
        v_lshlrev_b32 v9, 2, v9
        v_add_f32 v132, 1.0, v132
        v_rcp_f32 v132, v132
        v_lshl_add_u32 v9, v8, 4, v9
        s_lshl_b32 s9, s70, 6
        s_add_u32 s9, s9, {WS_G}
        """)

        def st():
            a = self.a
            a.e("s_mov_b32 exec_lo, 0x000f000f\ns_mov_b32 exec_hi, 0x000f000f")
            a.e(f"buffer_store_dword v132, v9, {R_WS}, s9 offen sc1", tag="Tst")
            a.e("s_mov_b64 exec, -1")
        self.pushf(st)

    def push_kgen(self):
        P = self.push
        E = lambda k: 80 + 2 * (k - 1)
        F = lambda c: 116 + 2 * (c - 1)
        X0 = 130
        P(f"""
        v_mul_f32 v134, 0x3fb8aa3b, v182
        v_exp_f32 v134, v134
        v_pk_mul_f32 v[138:139], v[180:181], v[178:179] op_sel_hi:[1,0]
        v_cvt_pk_bf16_f32 v134, v134, v134
        v_pk_fma_f32 v[138:139], v[180:181], v[178:179], v[138:139] op_sel:[1,1,0] op_sel_hi:[0,1,1] neg_lo:[1,0,0]
        v_and_b32 v134, 0xffff0000, v134
        v_mov_b32 v{KRES[YB[0]]}, 0x3f80
        v_mul_f32 v135, v134, v176         ; zr
        v_mul_f32 v136, v134, v177         ; zi
        v_pk_mul_f32 v[{X0}:{X0+1}], v[138:139], v[134:135] op_sel_hi:[1,0]
        v_mul_f32 v135, 0x3fb8aa3b, v135
        v_mul_f32 v136, 0.15915494, v136   ; revolutions
        v_mul_f32 v142, 0x41800000, v135
        v_mul_f32 v143, 0x41800000, v136
        v_mul_f32 v144, 0x43800000, v135
        v_mul_f32 v145, 0x43800000, v136
        v_fract_f32 v141, v136
        v_fract_f32 v143, v143
        v_fract_f32 v145, v145
        v_exp_f32 v140, v135
        v_exp_f32 v142, v142
        v_exp_f32 v144, v144
        """)
        for dst, t in ((E(1), 140), (E(16), 142), (F(1), 144)):
            P(f"v_cos_f32 v{dst}, v{t+1}\nv_sin_f32 v{dst+1}, v{t+1}")
        for dst, t in ((E(1), 140), (E(16), 142), (F(1), 144)):
            P(f"v_pk_mul_f32 {v(dst,2)}, {v(dst,2)}, {v(t,2)} op_sel_hi:[1,0]")
        src = {2: (1, 1), 3: (2, 1), 4: (2, 2), 5: (4, 1), 6: (4, 2), 7: (4, 3), 8: (4, 4), 17: (16, 1), 18: (16, 2)}
        for k in range(9, 16):
            src[k] = (8, k - 8)
        ej = [(E(k), E(src[k][0]), E(src[k][1]), YB[0] + k, False) for k in (2, 17, 3, 4, 18, 5, 6, 7, 8, 9, 10, 11, 12, 13, 14, 15)]
        fsrc = {2: (1, 1), 3: (2, 1), 4: (2, 2), 5: (4, 1), 6: (4, 2), 7: (4, 3)}
        fj = [(F(c), F(fsrc[c][0]), F(fsrc[c][1]), YB[c], False) for c in range(2, 8)]
        xj = [(X0 + 2 * (k % 2), X0 + 2 * ((k - 1) % 2), E(16), XB + k, True) for k in range(1, 16)]
        pj = []
        tmp = list(range(146, 170, 2))
        ti = 0
        for c in range(1, 8):
            step = {1: 2, 2: 4, 3: 4}.get(c, 8)
            top = 19 if c == 1 else 17
            for n_, rho in enumerate(range(step, top, step)):
                pj.append((tmp[ti % len(tmp)], F(c), E(rho), YB[c] + 1 + n_, False))
                ti += 1
        others = []
        q1, q2 = list(ej), list(fj)
        while q1 or q2:
            if q1:
                others.append(q1.pop(0))
            if q2:
                others.append(q2.pop(0))
        others += pj
        order = []
        xs = list(xj)
        while others or xs:
            grp = []
            if xs:
                grp.append(xs.pop(0))
            while others and len(grp) < 4:
                j = others[0]
                if any(g[0] in (j[1], j[2]) or g[0] == j[0] for g in grp):
                    break
                grp.append(others.pop(0))
            order.append(grp)
        put = lambda reg, row, neg: P(f"v_cvt_pk_bf16_f32 v{KRES[row]}, v{reg}, {'-' if neg else ''}v{reg+1}")
        prev = [(X0, 0, 0, XB, True), (E(1), 0, 0, YB[0] + 1, False), (E(16), 0, 0, YB[0] + 16, False), (F(1), 0, 0, YB[1], False)]
        for gi, grp in enumerate(order):
            pk = gi < self.o.get("pkg", 99)
            for (d, x, y, row, neg) in grp:
                if pk:
                    P(f"v_pk_mul_f32 {v(d,2)}, {v(x,2)}, {v(y,2)} op_sel_hi:[1,0]")
                else:
                    P(f"v_mul_f32 v{d}, v{x}, v{y}\nv_mul_f32 v{d+1}, v{x+1}, v{y}")
            for (d, x, y, row, neg) in prev:
                put(d, row, neg)
            for (d, x, y, row, neg) in grp:
                if pk:
                    P(f"v_pk_fma_f32 {v(d,2)}, {v(x,2)}, {v(y,2)}, {v(d,2)} op_sel:[1,1,0] op_sel_hi:[0,1,1] neg_lo:[1,0,0]")
                else:
                    P(f"v_fma_f32 v{d}, -v{x+1}, v{y+1}, v{d}\nv_fmac_f32 v{d+1}, v{x}, v{y+1}")
            prev = grp
            if gi + 1 == self.o.get("pkg", 99):
                self.kc0 = len(self.bg)
        for (d, x, y, row, neg) in prev:
            put(d, row, neg)

    def tables(self, r0, r1):
        a = self.a
        for row in range(r0, r1):
            if row in (r0, TSPLIT):
                a.e(f"s_mov_b32 m0, {sTM1 if row >= TSPLIT else sTM0}")
            a.e(f"ds_write_addtid_b32 v{KRES[row]} offset:{(row - (TSPLIT if row >= TSPLIT else 0)) * TROW}", tag="TB")

    def arrive(self, vaddr, vone, off):
        a = self.a
        a.e("s_mov_b64 exec, 1")
        a.e(f"ds_add_u32 {vaddr}, {vone} offset:{off}")
        a.e("s_mov_b64 exec, -1")

    def await_(self, vaddr, off, count, sleep=0):
        a = self.a
        k = self.npoll
        self.npoll += 1
        a.e("s_mov_b32 s3, 0")
        a.label(f"L_bs{k}")
        if sleep:
            a.e(f"s_sleep {sleep}")
        a.e(f"ds_read_b32 v8, {vaddr} offset:{off}")
        a.e("s_add_u32 s3, s3, 1")
        a.wait(lg=0)
        a.e("v_readfirstlane_b32 s8, v8")
        a.e("s_cmp_gt_u32 s3, 100000")
        a.e(f"s_cbranch_scc1 L_bsx{k}")
        a.e(f"s_cmp_lt_u32 s8, {count}")
        a.e(f"s_cbranch_scc1 L_bs{k}")
        a.label(f"L_bsx{k}")

    def bsync(self):
        self.nsync += 1
        self.a.wait(lg=0)
        self.arrive("v3", "v5", L_CNT)
        self.await_("v3", L_CNT, 4 * self.nsync)

    def push_kmfma(self):
        YR = [64, 68, 72, 76] + list(range(184, 216, 4))
        NY = len(YR)
        AH = 8
        seq = [(ks, c) for ks in range(8) for c in range(3)]
        for ks in range(8):
            self.push(f"ds_read_b128 {v(32+4*ks,4)}, v{vKX} offset:{64*ks}", tag="KX")
        yr = lambda n_: self.push(f"ds_read_b128 {v(YR[n_%NY],4)}, v{vKY+seq[n_][1]} offset:{64*seq[n_][0]}", tag=f"KY{n_}")
        for n_ in range(AH):
            yr(n_)
        for n_, (ks, c) in enumerate(seq):
            d = 216 + 4 * c
            cc = "0" if (ks == 0 and c != 0) else v(d, 4)

            def f(n_=n_, d=d, cc=cc, ks=ks):
                self.a.wait(lg=f"KY{n_}")
                self.a.e(f"v_mfma_f32_16x16x32_bf16 {v(d,4)}, {v(YR[n_%NY],4)}, {v(32+4*ks,4)}, {cc}")
            self.pushf(f)
            if n_ + AH < 24:
                yr(n_ + AH)

    def push_kexpand(self, hw):
        P = self.push
        cv = lambda dst, hi_lag, lo_lag: P(f"v_cvt_pk_bf16_f32 v{dst}, {hi_lag}, {lo_lag}")
        if hw == 0:
            P("""
            v_cmp_eq_u32 vcc, 63, v1
            v_cndmask_b32 v221, v221, v220, vcc
            v_cndmask_b32 v227, v227, v226, vcc
            """)
            k0 = [f"v{216+n}" for n in range(7)]
            k1 = ["v224", "v224", "v225", "v226", "v226", "v226", "v227"]
            for si, (k, off) in enumerate(((k0, 512), (k1, 0))):
                for sg in range(4):
                    t = 32 + 8 * si + 2 * sg
                    cv(t, k[sg + 3], k[sg + 2])
                    cv(t + 1, k[sg + 1], k[sg])
                    P(f"ds_write_b64 v{vKWA}, {v(t,2)} offset:{off+sg*KCP}", tag="KW")
            P("""
            v_readfirstlane_b32 s8, v33        ; (K1 | K0<<16)
            v_readfirstlane_b32 s9, v35        ; (K2 | K1<<16)
            v_mov_b32 v48, 0
            v_mov_b32 v49, 0
            s_lshr_b32 s10, s8, 16             ; K0
            v_writelane_b32 v48, s10, 8
            v_writelane_b32 v48, s8, 16
            v_writelane_b32 v48, s9, 24
            v_writelane_b32 v49, s10, 24
            """)
            self.pushf(lambda: self.a.e(f"s_mov_b32 exec_hi, 0\nds_write_b64 v{vKZ}, v[48:49]\ns_mov_b32 exec_hi, -1", tag="KW"))
        else:
            k2 = ["v216"] * 3 + ["v217"] * 3 + ["v218"] * 5
            k3 = ["v220"] * 5 + ["v221"] * 7 + ["v222"] * 7
            t = 32
            for sg in range(4):
                for q in range(4):
                    cv(t + q, k2[sg + 7 - 2 * q], k2[sg + 6 - 2 * q])
                P(f"ds_write_b128 v{vKWA}, {v(t,4)} offset:{sg*KCP}", tag="KW")
                t += 4
                for hf in range(2):
                    for q in range(4):
                        cv(t + q, k3[sg + 15 - 8 * hf - 2 * q], k3[sg + 14 - 8 * hf - 2 * q])
                    P(f"ds_write_b128 v{vKWB}, {v(t,4)} offset:{sg*KCP+16*hf}", tag="KW")
                    t += 4

    def conv(self, fill):
        a = self.a

        def reads(st):
            A0 = 32 + 64 * (st % 2)
            B0 = 64 + 64 * (st % 2)
            L = []
            for k in range(8):
                offA = 512 * (7 - k) + 64 * (3 - st)
                offB = 512 * k + 64 * (3 - st)
                L.append((f"ds_read_b64 {v(A0+4*k,2)}, v{vCA} offset:{offA}", f"C{st}_{k}"))
                L.append((f"ds_read_b64 {v(A0+4*k+2,2)}, v{vCA} offset:{offA+8}", f"C{st}_{k}"))
                L.append((f"ds_read_b128 {v(B0+4*k,4)}, v{vCB} offset:{offB}", f"C{st}_{k}"))
            return L

        first = set()
        for c_, t_ in reads(0):
            a.e(c_, tag=t_)
        for st in range(4):
            A0 = 32 + 64 * (st % 2)
            B0 = 64 + 64 * (st % 2)
            nxt = reads(st + 1) if st < 3 else []
            pairs = sorted([(q1, m) for q1 in range(8) for m in range(8) if q1 + m <= 7], key=lambda p: (max(p), p[0] + p[1]))
            have = -1
            for n_, (q1, m) in enumerate(pairs):
                used = 0
                if max(q1, m) > have:
                    have = max(q1, m) if st == 0 else 7
                    a.wait(lg=f"C{st}_{have}")
                    used += 1
                c = q1 + m
                d = 160 + 4 * c
                cc = v(d, 4) if c in first else "0"
                first.add(c)
                a.e(f"v_mfma_f32_16x16x32_bf16 {v(d,4)}, {v(A0+4*q1,4)}, {v(B0+4*m,4)}, {cc}")
                if nxt and n_ >= 4:
                    c_, t_ = nxt.pop(0)
                    a.e(c_, tag=t_)
                    used += 1
                for f in fill.get(36 * st + n_, []):
                    f()
                self.drain(2 - used)
            assert not nxt
        self.drain()

    def conv_out(self):
        a = self.a
        a.e(f"""
        s_bitcmp1_b32 {sW}, 0
        s_nop 7
        s_cbranch_scc1 L_hw1
        """)
        for k in range(4):
            a.e(f"ds_write_b128 v{vEXD}, {v(176+4*k,4)} offset:{1024*k}", tag="EX")
        a.e("s_branch L_hwj")
        a.label("L_hw1")
        for k in range(4):
            a.raw(f"ds_write_b128 v{vEXD}, {v(160+4*k,4)} offset:{1024*k}")
        a.wait(lg=0)
        for k in range(16):
            a.e(f"v_mov_b32 v{160+k}, v{176+k}")
        a.label("L_hwj")

    def conv_out2(self):
        a = self.a
        self.bsync()
        for k in range(4):
            a.e(f"ds_read_b128 {v(176+4*k,4)}, v{vEXO} offset:{1024*k}", tag=f"EY{k}")
        for cp in range(2):
            for cl in range(2):
                k = 2 * cp + cl
                a.wait(lg=f"EY{k}")
                for q in range(4):
                    a.e(f"v_add_f32 v{160+4*k+q}, v{160+4*k+q}, v{176+4*k+q}")
                a.e(f"v_cvt_pk_bf16_f32 v{20+4*cp+2*cl}, v{160+4*k}, v{161+4*k}")
                a.e(f"v_cvt_pk_bf16_f32 v{21+4*cp+2*cl}, v{162+4*k}, v{163+4*k}")
            a.e(f"v_permlane16_swap_b32 v{20+4*cp}, v{22+4*cp}")
            a.e(f"v_permlane16_swap_b32 v{21+4*cp}, v{23+4*cp}")
            a.e(f"buffer_store_dwordx4 {v(20+4*cp,4)}, v255, {R_WS}, {'s38' if cp else sAT} offen sc1", tag="Ast")

    def prologue(self):
        a = self.a
        a.e("s_cmp_ge_u32 s2, 256\ns_cbranch_scc1 L_end")
        self.stamp("start")
        if self.stamps and not self.o.get("amp"):
            a.e("s_memrealtime s[78:79]")
        a.e(f"""
        s_lshr_b32 {sI}, s2, 3
        s_min_u32 s3, {sI}, 15
        s_lshl_b32 s3, s3, 3
        s_load_dwordx2 s[68:69], s[0:1], s3
        s_load_dwordx16 s[16:31], s[0:1], 0
        s_load_dwordx16 s[32:47], s[0:1], 64
        s_getpc_b64 s[8:9]
        L_pc:
        s_lshl_b32 s3, {sI}, 10
        v_lshl_add_u32 v6, v0, 2, s3
        v_min_u32 v6, L_end-L_pc, v6
        v_readfirstlane_b32 s14, v0
        v_and_b32 v1, 63, v0
        v_bfe_u32 v4, v0, 6, 2
        s_and_b32 {sX}, s2, 7
        s_mul_i32 s77, {sI}, 37
        s_lshr_b32 s77, s77, 8
        s_bfe_u32 {sW}, s14, 0x20006
        s_mul_i32 s13, s77, 7
        s_sub_u32 s15, {sI}, s13           ; ct
        s_and_b32 s11, {sX}, 6
        s_lshl1_add_u32 s11, s11, s77
        s_lshl_b32 s70, s11, 17
        s_and_b32 s11, {sX}, 1
        s_mul_i32 s11, s11, 7
        s_add_u32 s11, s11, s15
        s_lshl_b32 s71, s11, 8
        """)
        g = self.o.get("g1rot", 2)
        if g == 8:
            a.e("s_lshl1_add_u32 s72, s77, s15")
        elif g == 4:
            a.e("s_add_u32 s72, s77, s15\ns_lshl_b32 s72, s72, 1")
        elif g == 2:
            a.e("s_add_u32 s72, s77, s15\ns_lshl_b32 s72, s72, 2")
        a.e(f"""
        s_lshl_b32 s73, {sW}, 12           ; wave*4096
        s_mov_b32 s50, {2048*1024}
        s_mov_b32 s51, 0x00020000
        s_mov_b32 s54, {512*3584}
        s_mov_b32 s55, s51
        s_bitcmp1_b32 s14, 8
        s_cbranch_scc1 L_roleB
        """)

    def dma_voffs(self):
        self.a.e(f"""
        v_lshrrev_b32 v8, 3, v1            ; l>>3
        v_lshl_add_u32 v8, v4, 5, v8       ; 32w + (l>>3)
        v_lshlrev_b32 v8, 10, v8           ; *1024
        v_lshrrev_b32 v9, 4, v1            ; l>>4
        v_and_b32 v10, 7, v1
        v_xor_b32 v10, v10, v9             ; pos ^ (l>>4)
        v_lshl_add_u32 v16, v10, 4, v8
        v_xor_b32 v10, 4, v10
        v_lshl_add_u32 v17, v10, 4, v8
        v_add_u32 v17, {8192-1024}, v17
        v_add_u32 v18, {2*(8192-1024)}, v16
        v_add_u32 v19, {2*(8192-1024)}, v17
        v_lshl_add_u32 v8, v4, 4, v9       ; 16w + (l>>4)
        v_mul_u32_u24 v8, 3584, v8
        v_and_b32 v10, 15, v1
        v_lshlrev_b32 v11, 2, v9
        v_xor_b32 v10, v10, v11
        v_lshl_add_u32 v20, v10, 4, v8
        v_add_u32 v21, {4*3584-1024}, v20
        v_add_u32 v22, {2*(4*3584-1024)}, v20
        v_add_u32 v23, {3*(4*3584-1024)}, v20
        """)

    def common2(self):
        self.a.e(f"""
        v_mov_b32 v3, 0
        v_lshlrev_b32 v7, 4, v1            ; lane*16
        s_mov_b32 s66, {WS_SIZE}
        s_mov_b32 s67, 0x00020000
        s_mov_b64 s[64:65], s[46:47]
        """)

    def a_prologue(self):
        a = self.a
        a.e("global_load_dword v6, v6, s[8:9]", tag="CPF")
        a.e(f"""
        s_max_u32 s3, {sI}, 15
        s_min_u32 s3, s3, 20
        s_sub_u32 s3, s3, 15
        v_lshlrev_b32 v12, 21, s3
        """)
        self.dma_voffs()
        a.e(self.dma_setup(0))
        a.e("s_waitcnt lgkmcnt(0)")
        self.stamp("karg")
        a.e("global_load_dword v6, v12, s[68:69] offset:128", tag="FAN")
        a.e(f"""
        s_mov_b64 s[48:49], s[16:17]
        s_mov_b64 s[52:53], s[36:37]
        """)

    def a_prologue2(self):
        a = self.a
        a.e(f"s_setprio {self.o.get('prio', 2)}")
        self.common2()
        a.e(f"""
        s_lshl_b32 {sBS}, {sW}, 11         ; wave*2048
        s_add_u32 {sBS}, {sBS}, {L_BS}
        s_mov_b32 s58, {1792*1024}
        s_mov_b32 s59, 0x00020000
        s_mov_b32 s62, {2048*1024}
        s_mov_b32 s63, 0x00020000
        s_mov_b64 s[56:57], s[38:39]
        s_mov_b64 s[60:61], s[42:43]
        """)
        if not self.o.get("vp", 0):
            a.e(f"s_load_dword s16, {P_WS}, 128")

    def dma_setup(self, s):
        return f"""
        s_add_u32 s74, s72, {s}
        s_and_b32 s74, s74, 7
        s_mul_i32 s75, s74, {64*3584}
        s_add_u32 s75, s75, s71
        s_lshl_b32 s74, s74, 7
        s_add_u32 s74, s74, s70
        """

    def dma_ops(self, s, setup=True):
        slot = s % 3
        ops = []
        for i in range(4):
            pre = ((self.dma_setup(s) if setup else "") + f"s_add_u32 m0, s73, {XPOS[slot]}\n") if i == 0 else ""
            ops.append((pre + f"buffer_load_dwordx4 v{16+i}, {R_U}, s74 offen offset:{i*1024} lds", f"D{s}"))
        for i in range(4):
            pre = f"s_add_u32 m0, s73, {WPOS[slot]}\n" if i == 0 else ""
            ops.append((pre + f"buffer_load_dwordx4 v{20+i}, {R_W1}, s75 offen offset:{i*1024} lds", f"D{s}"))
        return ops

    def a_setup_g1(self):
        self.a.e(f"""
        v_and_b32 v8, 31, v1               ; t
        v_lshrrev_b32 v9, 5, v1            ; g
        v_lshrrev_b32 v10, 1, v8
        v_and_b32 v10, 7, v10
        v_xor_b32 v10, v10, v9             ; g ^ f
        s_lshr_b32 s8, {sW}, 1
        s_lshl_b32 s8, s8, 13              ; wm*64*128
        s_add_u32 s8, s8, {XPOS[2]}
        v_lshl_add_u32 v8, v8, 7, s8
        v_lshl_add_u32 v24, v10, 4, v8
        v_xor_b32 v25, 32, v24
        v_xor_b32 v26, 64, v24
        v_xor_b32 v27, 96, v24
        v_bfe_u32 v8, v1, 2, 2             ; r
        v_lshl_add_u32 v10, v9, 3, v8      ; 8*(G>>1) + r
        v_lshlrev_b32 v10, 8, v10          ; *256
        s_and_b32 s8, {sW}, 1
        s_lshl_b32 s8, s8, 1
        v_xor_b32 v8, s8, v8               ; (2wn) ^ r
        v_lshl_add_u32 v10, v8, 6, v10
        v_bfe_u32 v8, v1, 4, 1
        v_lshl_add_u32 v10, v8, 5, v10
        v_and_b32 v8, 3, v1
        v_lshl_add_u32 v10, v8, 3, v10
        v_add_u32 v28, {WPOS[0]}, v10
        v_xor_b32 v29, 64, v28
        v_add_u32 v{vW2}, {WPOS[2]}, v10
        v_xor_b32 v{vW2+1}, 64, v{vW2}
        s_lshl_b32 s8, {sX}, 4
        s_lshl_b32 s9, s77, 2
        s_add_u32 s8, s8, s9
        s_and_b32 s9, {sW}, 2
        s_add_u32 s8, s8, s9
        s_mul_i32 s8, s8, 56
        s_lshl_b32 s9, s15, 3
        s_add_u32 s8, s8, s9
        s_and_b32 s9, {sW}, 1
        s_lshl_b32 s9, s9, 2
        s_add_u32 s8, s8, s9
        s_lshl_b32 s8, s8, 10
        s_add_u32 {sH0}, s8, {WS_H}
        s_add_u32 {sH1}, {sH0}, {56*1024}
        s_lshr_b32 s8, {sX}, 1
        s_lshl_b32 s8, s8, 2
        s_add_u32 s8, s8, s77
        s_lshl_b32 s8, s8, 1
        s_lshr_b32 s9, {sW}, 1
        s_add_u32 s8, s8, s9
        s_lshl_b32 s8, s8, 1
        s_and_b32 s9, {sX}, 1
        s_add_u32 s8, s8, s9
        s_lshl_b32 s8, s8, 8               ; *2 groups*128B
        s_lshl_b32 s9, s15, 1
        s_and_b32 s10, {sW}, 1
        s_add_u32 s9, s9, s10              ; 2ct+wn
        s_cmp_ge_u32 s9, 7
        s_cselect_b32 s10, {128-28}, 0
        s_lshl2_add_u32 s8, s9, s8
        s_add_u32 s8, s8, s10
        s_add_u32 {sHF}, s8, {WS_HF}
        """)

    def a_setup_g2(self):
        a = self.a
        a.e(f"""
        v_lshrrev_b32 v8, 3, v1
        v_lshlrev_b32 v8, 10, v8
        v_bfe_u32 v9, v1, 4, 1
        v_lshlrev_b32 v9, 2, v9
        v_and_b32 v10, 7, v1
        v_xor_b32 v10, v10, v9
        v_lshl_add_u32 v10, v10, 4, v8
        v_lshrrev_b32 v8, 5, v1            ; g
        v_bfe_u32 v9, v1, 2, 2             ; r
        v_lshl_add_u32 v8, v8, 2, v9       ; 4g + r
        v_lshl_add_u32 v8, v8, 7, {sBS}
        v_bfe_u32 v9, v1, 3, 1             ; (r>>1)&1
        v_lshl_add_u32 v8, v9, 6, v8
        v_bfe_u32 v9, v1, 4, 1
        v_lshl_add_u32 v8, v9, 5, v8
        v_and_b32 v9, 3, v1
        v_lshl_add_u32 v{vBL}, v9, 3, v8
        v_xor_b32 v{vBL+1}, 64, v{vBL}
        v_add_u32 v{vBH}, 0x10000, v{vBL}
        v_xor_b32 v{vBH+1}, 64, v{vBH}
        v_add_u32 v11, {8192-1024}, v10
        s_cmp_ge_u32 s15, 3
        s_addc_u32 s8, s15, 0
        s_cmp_ge_u32 {sI}, 28
        s_cselect_b32 s8, 3, s8
        s_cselect_b32 s9, s15, s77         ; m
        s_mov_b32 {sN}, s8
        s_mov_b32 {sM}, s9
        s_mul_i32 s12, {sW}, {28*16384}
        s_lshl_b32 s10, s8, 7
        s_add_u32 s12, s12, s10            ; w2 base
        s_and_b32 s10, {sX}, 6
        s_lshr_b32 s11, {sW}, 1
        s_add_u32 s10, s10, s11
        s_lshl_b32 s10, s10, 4
        s_and_b32 s11, {sX}, 1
        s_lshl_b32 s11, s11, 3
        s_add_u32 s10, s10, s11
        s_lshl_b32 s11, s9, 1
        s_add_u32 s10, s10, s11            ; + 8(x&1) + 2m
        s_mul_i32 s10, s10, 56
        s_and_b32 s11, {sW}, 1
        s_mul_i32 s3, s11, 28
        s_add_u32 s10, s10, s3
        s_lshl_b32 s10, s10, 10
        s_add_u32 s13, s10, {WS_H}         ; h base
        s_lshl_b32 s11, s11, 8
        v_xor_b32 v8, s11, v7              ; (l ^ 16(w&1))*16
        s_lshr_b32 s11, {sW}, 1
        s_mul_i32 s3, s11, {56*1024}
        v_add_u32 v12, s3, v8
        s_sub_u32 s3, {56*1024}, s3
        v_add_u32 v13, s3, v8
        s_add_u32 s10, s8, s9
        """)
        g = self.o.get("g2rot", 2)
        if g == 2:
            a.e("s_lshl_b32 s10, s10, 1")
        elif g == 1:
            a.e("s_mov_b32 s10, 0")
        if self.o.get("sprot", 0):
            a.e(f"s_cmp_ge_u32 {sI}, 28\ns_cselect_b32 s10, s9, s10")
        for k in range(4):
            a.e(f"""
            s_add_u32 s11, s10, {k}
            s_and_b32 s11, s11, 3
            s_mul_i32 s3, s11, {7*16384}
            s_add_u32 {sBB[k]}, s12, s3
            s_mul_i32 s3, s11, {7*1024}
            s_add_u32 {sAB[k]}, s13, s3
            """)

    def a_setup_late(self):
        self.a.e(f"""
        s_mov_b32 s11, {sN}
        s_mov_b32 s9, {sM}
        s_lshl_b32 s12, s11, 2
        s_add_u32 s12, s12, {sW}
        s_lshr_b32 s8, {sX}, 2
        s_lshl_b32 s8, s8, 5
        s_add_u32 s8, s8, s12
        s_lshl_b32 s8, s8, 11
        s_add_u32 s74, s8, {WS_AF}         ; a flags
        s_lshl_b32 s8, s12, 14
        s_lshr_b32 s13, {sX}, 1
        s_lshl_b32 s13, s13, 19
        s_add_u32 s8, s8, s13
        s_add_u32 s8, s8, {WS_AT}
        s_and_b32 s13, {sX}, 1
        s_lshl_b32 s13, s13, 8
        s_lshl_b32 s10, s9, 6
        s_add_u32 s13, s13, s10
        v_lshrrev_b32 v8, 3, v1            ; dl
        v_bfe_u32 v9, v1, 2, 1             ; hf
        v_and_b32 v14, 3, v1               ; jj
        v_lshl_add_u32 v16, v9, 9, s13
        v_lshl_add_u32 v16, v14, 4, v16
        v_lshlrev_b32 v17, 7, v8
        v_xor_b32 v16, v16, v17
        v_lshl_add_u32 v16, v8, 10, v16
        v_add_u32 v16, s8, v16
        v_add_u32 v17, {8*1024}, v16       ; v16,v17: a loads
        v_mul_u32_u24 v8, 144, v8
        v_add_u32 v8, {sBS}, v8
        v_lshl_add_u32 v8, v14, 5, v8
        v_lshl_add_u32 v18, v9, 4, v8
        s_lshl_b32 s10, {sX}, 2
        s_add_u32 s10, s10, s9
        s_lshl_b32 s10, s10, 2
        s_add_u32 s10, s10, {sW}
        s_lshl_b32 s8, s10, 7
        s_add_u32 s72, s8, {WS_HF}         ; h flags
        s_add_u32 s75, s8, {WS_GF}
        v_lshl_add_u32 v29, v1, 7, s74
        v_mov_b32 v8, s75
        v_cmp_gt_u32 vcc, 16, v1
        v_cndmask_b32 v29, v8, v29, vcc
        s_lshl_b32 s8, s10, 6
        s_add_u32 s8, s8, {WS_G}
        v_lshrrev_b32 v9, 5, v1
        v_lshl_add_u32 v19, v9, 4, s8
        v_and_b32 v8, 7, v1
        v_mul_u32_u24 v20, 144, v8
        v_bfe_u32 v8, v1, 3, 1
        v_lshl_add_u32 v20, v8, 13, v20
        v_bfe_u32 v8, v1, 4, 1
        v_lshl_add_u32 v20, v8, 11, v20
        v_lshl_add_u32 v20, v9, 3, v20
        s_lshl_b32 s8, {sW}, 5
        s_add_u32 s8, s8, {L_BS}
        v_add_u32 v20, s8, v20
        v_and_b32 v8, 31, v1
        v_lshlrev_b32 v21, 12, v9
        v_lshl_add_u32 v21, v8, 1, v21
        s_lshl_b32 s70, s10, 14
        s_lshl_b32 s13, s11, 7
        s_add_u32 s70, s70, s13
        s_add_u32 s71, s70, 8192
        v_add_u32 v23, {sBS}, v7
        v_xor_b32 v24, 0x800, v23
        v_xor_b32 v25, 0x1000, v23
        v_xor_b32 v26, 0x1800, v23
        """)

    def t_job(self):
        a = self.a
        o = self.o
        a.e(f"""
        s_sub_u32 s8, {sI}, 28
        s_lshl_b32 s9, {sX}, 2
        s_add_u32 s71, s8, s9
        s_lshl_b32 s8, s71, 2
        s_add_u32 s70, s8, {sW}
        s_lshl_b32 s72, s70, 11
        s_add_u32 s72, s72, {WS_UT}
        s_lshl_b32 s8, s70, 8
        s_and_b32 s8, s8, 0x300
        v_xor_b32 v14, s8, v7
        v_xor_b32 v15, 0x80, v14
        s_lshl_b32 s8, s70, 14
        """)
        for q in range(4):
            for r in range(4):
                a.e(f"buffer_load_dwordx4 {v(32+16*q+4*r,4)}, v7, {R_U}, s8 offen offset:{r*1024}", tag=f"T{q//2}")
            a.e("s_add_u32 s8, s8, 4096")
            if q == o.get("spb", 2):
                a.e("s_barrier")
            if q == 1:
                self.epoch_master()
                a.e("v_and_b32 v8, 1, v1\nv_lshlrev_b32 v8, 21, v8")
                a.e(f"buffer_load_dword v6, v8, {R_WS}, 0 offen offset:128", tag="TL")
        a.e(f"global_load_dwordx4 v[96:99], v7, {P_GW}", tag="GW")
        if o.get("x3", 0):
            a.e("""
            s_xor_b32 s10, s70, 16
            s_lshl_b32 s10, s10, 14
            s_add_u32 s9, s10, 8192
            v_lshrrev_b32 v8, 3, v1
            v_lshlrev_b32 v8, 10, v8
            v_and_b32 v9, 7, v1
            v_lshl_add_u32 v8, v9, 4, v8
            """)
            a.e(f"buffer_load_dwordx4 v[248:251], v8, {R_U}, s10 offen offset:384", tag="X3")
            a.e(f"buffer_load_dwordx4 v[252:255], v8, {R_U}, s9 offen offset:384", tag="X3")
        a.e("""
        s_mov_b32 s12, 0x05040100
        s_mov_b32 s13, 0x07060302
        """)
        for blk in range(2):
            a.wait(vm=f"T{blk}")
            self.stamp(f"t{blk}")
            if blk == 1:
                a.e(f"global_load_dword v2, v3, {P_DBG} sc1", tag="EP")
            for c8 in range(8):
                t = 100 + 4 * c8
                for k in range(4):
                    r0 = 32 + 32 * blk + 8 * k + c8 // 2
                    a.e(f"v_perm_b32 v{t+k}, v{r0+4}, v{r0}, s{12+(c8&1)}")
                a.e(f"s_add_u32 s8, s72, {c8*262144}")
                a.e(f"buffer_store_dwordx4 {v(t,4)}, v{14+blk}, {R_WS}, s8 offen offset:{blk*1024} sc1", tag="Ust")
        self.stamp("tst")
        a.wait(vm="GW")
        for q in range(4):
            for r in range(8):
                a.e(f"v_dot2_f32_bf16 v{132+r}, v{32+4*r+q}, v{96+q}, {'0' if q == 0 else 'v%d' % (132+r)}")
        self.gate_tail()
        self.drain(len(self.bg) - 1)
        a.wait(vm="EP")
        a.e(f"v_readfirstlane_b32 {sEP}, v2")
        self.epoch_get(issued=True)
        a.e(f"s_lshl_b32 s10, s71, 7\ns_add_u32 s10, s10, {WS_TF}\nv_mov_b32 v10, 1")
        a.wait(vm="Ust")
        a.e("s_mov_b64 exec, 1")
        a.e(f"ds_add_rtn_u32 v10, v3, v10 offset:{L_CNT+4}")
        a.e("s_mov_b64 exec, -1")
        a.wait(lg=0)
        a.e(f"v_readfirstlane_b32 s8, v10\ns_cmp_eq_u32 s8, 3\ns_cselect_b32 s10, s10, {WS_SIZE}")
        self.publish("s10")
        self.stamp("tpub")
        self.drain()
        a.e(f"s_setprio {o.get('sprio', 0)}")
        a.e(f"s_mul_i32 s9, s70, {14*1024}")
        for k in range(14 if o.get("w2warm", 1) else 0):
            a.e(f"buffer_load_dwordx4 {v(192+4*k,4)}, v7, {R_W2}, s9 offen offset:{(k%4)*1024}", tag="WW")
            if k % 4 == 3:
                a.e("s_add_u32 s9, s9, 4096")
        a.e(f"s_lshl_b32 s9, s70, 7\ns_add_u32 s9, s9, {WS_GF}")
        a.wait(vm="Tst")
        self.publish("s9")
        self.gpub = True
        a.e(f"""
        s_mul_i32 s8, {sW}, {28*16384}
        s_sub_u32 s9, {sI}, 28
        s_lshl_b32 s9, s9, 12
        s_add_u32 s8, s8, s9
        """)
        steps = [x for k_ in range(o.get("pf0", 14), 14) for x in (k_, k_ + 14)]
        for n_, st in enumerate(steps):
            a.e(f"s_add_u32 s9, s8, {st*16384}")
            for k in range(4):
                a.e(f"buffer_load_dwordx4 {v(32+16*(n_%4)+4*k,4)}, v7, {R_W2}, s9 offen offset:{k*1024}", tag="WW")
        self.stamp("pfd")
        a.e(f"s_setprio {o.get('sprio2', 2)}")

    def push_b_issue(self):
        i = self.b_iss
        if i >= 28:
            return
        assert i - self.b_con < BSN
        self.b_iss += 1
        if i >= BSN and not self.no_lg:
            self.pushw(lg=f"BR{i-BSN}")
        self.push(f"""
        s_add_u32 m0, {sBS}, {(i % BSN)*8192}
        s_add_u32 s14, {sBB[0 if self.o.get('bfake') else i//7]}, {(i%(6 if self.o.get('bfake') else 7))*16384}
        buffer_load_dwordx4 v10, {R_W2}, s14 offen lds
        buffer_load_dwordx4 v11, {R_W2}, s14 offen offset:1024 lds
        """, tag=f"B{i}")

    def push_b_consume(self):
        i = self.b_con
        if i >= 28:
            return
        assert i < self.b_iss
        self.b_con += 1
        self.pushw(vm=f"B{i}")
        p = (i % BSN) * 8192
        ad, off = (vBL, p) if p < 65536 else (vBH, p - 65536)
        for cb in range(2):
            for hh in range(2):
                self.push(f"ds_read_b64_tr_b16 {v(vB0+8*(i%NBR)+4*cb+2*hh,2)}, v{ad+cb} offset:{off+hh*1024}", tag=f"BR{i}")

    def g1(self):
        a = self.a

        def reads(kap):
            s, ks = divmod(kap, 4)
            slot = s % 3
            b = 32 + 16 * (kap % 2)
            L = []
            for fb in range(2):
                wa, wo = (28 + fb, WPOS[slot] - WPOS[0]) if slot < 2 else (vW2 + fb, 0)
                for hh in range(2):
                    L.append(f"ds_read_b64_tr_b16 {v(b+8+4*fb+2*hh,2)}, v{wa} offset:{wo+ks*4096+hh*1024}")
                L.append(f"ds_read_b128 {v(b+4*fb,4)}, v{24+ks} offset:{XPOS[slot]-XPOS[2]+fb*4096}")
            return L

        def mf(kap, fb, tb):
            b = 32 + 16 * (kap % 2)
            d = 192 + 16 * (2 * fb + tb)
            c = "0" if kap == 0 else v(d, 16)
            return f"v_mfma_f32_32x32x16_bf16 {v(d,16)}, {v(b+8+4*fb,4)}, {v(b+4*tb,4)}, {c}"

        a.e("v_mov_b32 v9, 1")
        a.wait(vm="D0")
        a.e("s_barrier")
        self.stamp("g1s")
        for r in reads(0):
            a.e(r, tag="R0")
        nb = {5: 2, 6: 4}
        for kap in range(32):
            s, ks = divmod(kap, 4)
            if ks == 3 and kap < 31:
                a.wait(vm=f"D{s+1}" if f"D{s+1}" in a.vm else None, lg=0)
                if s + 1 < self.o.get("nb", 8):
                    a.e("s_barrier")
                else:
                    self.arrive("v3", "v9", L_CNT + 4)
                    self.acount += 4
                self.stamp(f"st{s+1}")
                if s + 1 < self.o.get("nb", 8):
                    for _ in range(nb.get(s, 0) if self.o.get("bearly", 1) else 0):
                        self.push_b_issue()
            elif kap == 29 and self.o.get("nb", 8) == 7 and self.o.get("bearly", 1):
                self.await_("v3", L_CNT + 4, 4)
                for _ in range(self.o.get("be2", 3)):
                    self.push_b_issue()
            else:
                a.wait(lg=f"R{kap}")
            nxt = reads(kap + 1) if kap < 31 else []
            ms = [mf(kap, 0, 0), mf(kap, 0, 1), mf(kap, 1, 0), mf(kap, 1, 1)]
            per = [2, 2, 2, 0]
            for i, m in enumerate(ms):
                a.e(m)
                for _ in range(per[i]):
                    if nxt:
                        a.e(nxt.pop(0), tag=f"R{kap+1}")
                self.drain(1)
        self.drain()
        self.arrive("v3", "v9", L_CNT + 4)
        self.acount += 4
        self.stamp("g1e")

    def h_stores(self, hook=None):
        a = self.a
        hd = self.o.get("hdiag", 0)
        if hd == 1:
            a.e(f"s_mov_b32 {sH0}, {WS_SIZE}\ns_mov_b32 {sH1}, {WS_SIZE}")
        if hd == 2:
            a.e(f"s_mul_i32 s8, {sX}, 112\ns_lshl2_add_u32 s8, {sI}, s8\ns_add_u32 s8, s8, {sW}\ns_lshl_b32 s8, s8, 13\ns_add_u32 {sH0}, s8, {WS_H}\ns_add_u32 {sH1}, {sH0}, 4096")
        k = 0
        for fb in range(2):
            for tb in range(2):
                d = 192 + 16 * (2 * fb + tb)
                for half in range(2):
                    t = 32 + 4 * k
                    k += 1
                    for j in range(4):
                        a.e(f"v_cvt_pk_bf16_f32 v{t+j}, v{d+8*half+2*j}, v{d+8*half+2*j+1}")
                    for j in range(4):
                        a.e(f"v_pk_max_i16 v{t+j}, v{t+j}, 0" if hd != 3 else f"v_mov_b32 v{t+j}, 0")
                    a.e(f"buffer_store_dwordx4 {v(t,4)}, v7, {R_WS}, {sH0 if tb == 0 else sH1} offen offset:{(2*fb+half)*1024} {['sc1', 'sc0 sc1', 'sc1 nt'][self.o.get('hfl', 0)]}", tag="Hst")
                    if hook:
                        hook(k)
        self.stamp("hiss")

    def a_load(self, i):
        r = vA0 + 8 * (i % NAR)
        return f"""
        s_add_u32 s15, {sAB[0 if self.o.get('afake') else i//7]}, {(i%7)*1024}
        buffer_load_dwordx4 {v(r,4)}, v12, {R_WS}, s15 offen {["sc1", "", "nt", "sc0 sc1"][self.o.get("afl", 0)]}
        buffer_load_dwordx4 {v(r+4,4)}, v13, {R_WS}, s15 offen {["sc1", "", "nt", "sc0 sc1"][self.o.get("afl", 0)]}
        """

    def g2(self, PRE):
        a = self.a
        for i in range(28):
            ld = lines(self.a_load(i + PRE)) if i + PRE < 28 else []
            if i == self.o.get("apos", 16):
                a.e(f"buffer_load_dword v28, v29, {R_WS}, 0 offen sc1", tag="VA")
            if i + PRE == 28:
                self.drain()
                self.stamp("apre")
                a.wait(vm="VA")
                a.e(f"v_cmp_ne_u32 vcc, {sEP}, v28")
                a.e(f"s_cbranch_vccz L_pollx{self.npoll}")
                self.vpoll("v29", "v28", sleep=4)
                self.stamp("apoll")
                a.e(f"buffer_load_dwordx4 v[104:107], v16, {R_WS}, 0 offen sc1", tag="AL")
                a.e(f"buffer_load_dwordx4 v[108:111], v17, {R_WS}, 0 offen sc1", tag="AL")
                a.e(f"buffer_load_dwordx4 v[112:115], v19, {R_WS}, 0 offen sc1", tag="AL")
                a.e(f"buffer_load_dwordx4 v[116:119], v19, {R_WS}, 0 offen offset:32 sc1", tag="AL")
            if a.lg.count(f"BR{i}") < 4:
                while self.b_con <= i:
                    if self.b_iss <= self.b_con:
                        self.push_b_issue()
                    self.push_b_consume()
                self.drain()
            a.wait(vm=f"A{i}", lg=None if self.lg_idle else f"BR{i}")
            if i == 0:
                self.stamp("g2s")
            self.stamp(f"q{i}")
            if self.b_iss < 28 and self.b_iss - self.b_con < BSN:
                self.push_b_issue()
            if self.b_con < 28 and self.b_con - i < NBR and self.b_con < self.b_iss and (self.b_iss - self.b_con >= self.o.get("blag", 4) or self.b_iss == 28):
                self.push_b_consume()
            r = vA0 + 8 * (i % NAR)
            k = 0
            for rb in range(2):
                for par in range(2):
                    d = 192 + 16 * (2 * rb + par)
                    c = "0" if i == 0 else v(d, 16)
                    if not (self.o.get("nomf") and k):
                        a.e(f"v_mfma_f32_32x32x16_bf16 {v(d,16)}, {v(r+4*rb,4)}, {v(vB0+8*(i%NBR)+4*par,4)}, {c}")
                    p0, p1 = {0: (0, 2), 1: (0, 0), 2: (1, 3), 3: (0, 1), 4: (3, 3)}[self.o.get("lp", 1)]
                    if ld and k == p0:
                        a.e(ld[0])
                        a.e(ld[1], tag=f"A{i+PRE}")
                    if ld and k == p1:
                        a.e(ld[2], tag=f"A{i+PRE}")
                    self.drain(3)
                    k += 1
        self.drain()

    def final(self):
        a = self.a
        self.stamp("g2e")
        for lam in range(1, 4):
            rb, hf = lam >> 1, lam & 1
            for par in range(2):
                for q in range(2):
                    d = 192 + 16 * (2 * rb + par) + 8 * hf + 4 * q
                    a.e(f"ds_write_b128 v23, {v(d,4)} offset:{(2*(lam-1)+par)*8192+q*1024}", tag="RW")
        a.wait(vm=0)
        a.e(f"ds_write_b128 v18, v[104:107] offset:{6*8192}", tag="AW")
        a.e(f"ds_write_b128 v18, v[108:111] offset:{7*8192}", tag="AW")
        a.wait(lg=0)
        a.e("s_barrier")
        self.stamp("fbar")
        for par in range(2):
            for q in range(2):
                a.e(f"ds_read_b64 {v(80+4*par+2*q,2)}, v20 offset:{6*8192+par*4096+16*q}", tag="AR")
        for lam in range(1, 4):
            for par in range(2):
                for q in range(2):
                    a.e(f"ds_read_b128 {v(32+16*(lam-1)+8*par+4*q,4)}, v{23+lam} offset:{(2*(lam-1)+par)*8192+q*1024}", tag=f"RR{lam}")
        a.wait(lg="AR")
        for par in range(2):
            for q in range(2):
                s_ = 80 + 4 * par + 2 * q
                d_ = 128 + 8 * par + 4 * q
                a.e(f"v_lshlrev_b32 v{d_}, 16, v{s_}")
                a.e(f"v_and_b32 v{d_+1}, 0xffff0000, v{s_}")
                a.e(f"v_lshlrev_b32 v{d_+2}, 16, v{s_+1}")
                a.e(f"v_and_b32 v{d_+3}, 0xffff0000, v{s_+1}")
        for lam in range(1, 4):
            a.wait(lg=f"RR{lam}")
            for par in range(2):
                for h in range(4):
                    d = 192 + 16 * par + 2 * h
                    a.e(f"v_pk_add_f32 {v(d,2)}, {v(d,2)}, {v(32+16*(lam-1)+8*par+2*h,2)}")
        for par in range(2):
            for h in range(4):
                d = 192 + 16 * par + 2 * h
                s_ = 128 + 8 * par + 2 * h
                a.e(f"v_pk_add_f32 {v(s_,2)}, {v(s_,2)}, {v(d,2)} neg_lo:[0,1] neg_hi:[0,1]")
        for h in range(4):
            for par in range(2):
                d = 192 + 16 * par + 2 * h
                s_ = 128 + 8 * par + 2 * h
                a.e(f"v_pk_fma_f32 {v(d,2)}, {v(s_,2)}, {v(112+2*h,2)}, {v(d,2)}")
        for r in range(8):
            so = 's70' if r < 4 else 's71'
            a.e(f"v_cvt_pk_bf16_f32 v{144+r}, v{192+r}, v{208+r}")
            a.e(f"buffer_store_short v{144+r}, v21, {R_OUT}, {so} offen offset:{(r%4)*1024}", tag="O")
            a.e(f"buffer_store_short_d16_hi v{144+r}, v21, {R_OUT}, {so} offen offset:{(r%4)*1024+64}", tag="O")

    def role_a(self):
        a = self.a
        o = self.o
        self.a_prologue()
        a.e(f"s_cmp_ge_u32 {sI}, 28")
        a.e("s_cbranch_scc1 L_spare")
        vm0, lg0 = list(a.vm), list(a.lg)
        ops = self.dma_ops(0, False) + self.dma_ops(1)
        if o.get("a2", 1):
            ops += self.dma_ops(2)
        n1 = o.get("n1", 11)
        for k_, (x, t) in enumerate(ops[:n1]):
            a.e(x, tag=t)
            self.stamp(f"i{k_}")
            if k_ + 1 == o.get("sb", 1):
                a.e("s_barrier")
        self.stamp("d0iss")
        self.a_prologue2()
        self.a_setup_g1()
        self.a_setup_g2()
        for x, t in ops[n1:]:
            a.e(x, tag=t)
        self.stamp("d2iss")
        self.g1()
        nearly = self.b_iss

        def ring_free():
            for _ in range(nearly):
                self.push_b_consume()
            self.drain()
            self.await_("v3", L_CNT + 4, self.acount)

        def issue(n):
            for _ in range(n):
                self.push_b_issue()
            self.drain()

        def pub():
            self.await_("v3", L_CNT + 8, 1)
            a.e(f"s_mov_b32 {sEP}, s8\nv_mov_b32 v2, v8\ns_mov_b32 s68, s8\ns_mov_b32 s69, s8")
            a.wait(vm="Hst")
            self.publish(sHF)
            self.stamp("hpub")

        sg = o.get("stag", 0)
        if sg:
            a.e(f"s_bitcmp1_b32 {sI}, 0")
            a.e("s_cbranch_scc0 L_st0")
            keep = (list(a.vm), list(a.lg), self.b_iss, self.b_con)
            ring_free()
            issue(sg)
            self.h_stores()
            pub()
            a.e("s_branch L_join")
            a.label("L_st0")
            a.e("s_nop 7")
            a.vm, a.lg, self.b_iss, self.b_con = keep
        if o.get("pace", 0):
            def hook(k):
                if k == 2:
                    ring_free()
                if k in (2, 4, 6):
                    issue(o["pace"])
            self.h_stores(hook)
        else:
            self.h_stores()
            ring_free()
        issue(o.get("bh", 3))
        pub()
        issue(max(0, sg - o.get("bh", 3)))
        a.e("s_branch L_join")
        a.label("L_spare")
        vm_main, lg_main = list(a.vm), list(a.lg)
        bi = self.b_iss
        a.vm, a.lg = vm0, lg0
        self.b_iss = self.b_con = 0
        self.a_prologue2()
        self.t_job()
        self.a_setup_g2()
        for _ in range(nearly):
            self.push_b_issue()
        self.drain()
        if not self.gpub:
            a.e(f"s_lshl_b32 s9, s70, 7\ns_add_u32 s9, s9, {WS_GF}")
            a.wait(vm="Tst")
            self.publish("s9")
        for _ in range(nearly):
            self.push_b_consume()
        while self.b_iss < bi:
            self.push_b_issue()
        self.drain()
        a.wait(vm=0, lg=0)
        a.vm, a.lg = vm_main, lg_main
        a.label("L_join")
        self.a_setup_late()
        bt = o.get("bt", 23)
        hq = o.get("hq", 3)
        while self.b_iss < bt:
            if self.b_iss == bt - hq:
                assert bt - self.b_con <= BSN
                self.pushw(lg=0)
                self.pushf(lambda: self.spoll_issue("s72", 8))
                self.no_lg = True
            if not self.no_lg and self.b_con < NBR and self.b_iss - self.b_con >= o.get("blag0", 5):
                self.push_b_consume()
            self.push_b_issue()
        self.no_lg = False
        self.drain()
        self.stamp("biss")
        self.spoll("s72", 8, sleep=3, issued=True)
        self.stamp("hpoll")
        a.e(f"s_setprio {o.get('gprio', 0)}")
        PRE = o.get("g2pre", 6)
        for i in range(PRE):
            a.e(self.a_load(i), tag=f"A{i}")
            if self.b_con < NBR and self.b_con < self.b_iss:
                self.push_b_consume()
                self.drain()
        self.g2(PRE)
        self.final()

    def role_b(self):
        a = self.a
        o = self.o
        a.vm, a.lg = [], []
        a.label("L_roleB")
        a.e(f"s_setprio {self.o.get('bprio', 3)}")
        a.e(f"""
        s_lshl_b32 s8, {sI}, 1
        s_lshr_b32 s9, {sW}, 1
        s_add_u32 s8, s8, s9
        s_lshl_b32 s8, s8, 3
        s_add_u32 s77, s8, {sX}            ; d
        s_and_b32 s9, {sW}, 1
        s_lshl_b32 s9, s9, 7
        s_lshl_b32 s8, s77, 8
        s_add_u32 s8, s8, s9
        v_lshl_add_u32 v24, v1, 1, s8      ; d*256 + (64*(w&1)+l)*2
        s_mov_b32 s62, s8
        s_lshl_b32 s8, s77, 1
        v_mov_b32 v25, s8
        s_and_b32 s63, s8, -4
        """)
        for k in range(8):
            a.e(f"v_mov_b32 v{176+k}, 0")
        a.e("s_waitcnt lgkmcnt(0)")
        self.stamp("bk")
        self.common2()
        a.e(f"s_mov_b64 s[56:57], {P_DSK}")

        a.e("s_mov_b64 s[48:49], s[16:17]")
        a.e(f"ds_write_b32 v3, v3 offset:{L_CNT}", tag="Z")
        a.e(f"ds_write_b32 v3, v3 offset:{L_CNT+4}", tag="Z")
        a.e(f"ds_write_b32 v3, v3 offset:{L_CNT+8}", tag="Z")
        a.wait(lg=0)
        a.e("s_barrier")
        self.params_load()
        self.tlb_touch()
        self.dma_voffs()
        a.e(f"""
        s_mov_b64 s[52:53], s[36:37]
        s_lshl_b32 {sTM0}, {sW}, 8
        s_add_u32 {sTM1}, {sTM0}, {TSPLIT*TROW}
        s_lshr_b32 s8, {sW}, 1             ; channel
        s_lshl_b32 s9, s8, 9
        v_and_b32 v8, 15, v1
        v_lshrrev_b32 v9, 4, v1
        v_lshl_add_u32 v10, v9, 4, s9      ; base + g*16
        s_movk_i32 s10, {TROW}
        v_add_u32 v12, {XB}, v8
        v_mad_u32_u24 v{vKX}, v12, s10, v10
        s_and_b32 s11, {sW}, 1
        s_cmp_eq_u32 s11, 0
        s_cselect_b64 vcc, -1, 0
        v_lshrrev_b32 v11, 2, v8           ; gi
        v_and_b32 v4, 3, v8                ; r
        v_min_u32 v5, 2, v4                ; min(r,2)
        v_lshrrev_b32 v13, 1, v11
        v_lshl_add_u32 v12, v11, 1, v13
        v_add3_u32 v12, v12, v5, {YB[2]}
        v_add_u32 v13, {YB[0]}, v8
        v_cndmask_b32 v12, v12, v13, vcc
        v_mad_u32_u24 v{vKY}, v12, s10, v10
        v_mad_u32_u24 v12, v11, 3, v5
        v_add_u32 v12, {YB[4]}, v12
        v_min_u32 v13, 14, v8
        v_add_u32 v13, {YB[0]+4}, v13
        v_cndmask_b32 v12, v12, v13, vcc
        v_mad_u32_u24 v{vKY+1}, v12, s10, v10
        v_lshl_add_u32 v12, v11, 1, v4
        v_add_u32 v12, {YB[1]}, v12
        v_mad_u32_u24 v{vKY+2}, v12, s10, v10
        s_mul_i32 s9, s8, {4*KCP}
        v_lshlrev_b32 v11, 5, v8           ; 32j
        v_sub_u32 v11, s9, v11             ; base - 32j
        v_lshlrev_b32 v12, 3, v9
        v_sub_u32 v12, v11, v12
        v_add_u32 v12, {4088-512}, v12
        v_lshrrev_b32 v13, 1, v9
        v_lshlrev_b32 v13, 9, v13
        v_and_b32 v4, 1, v9
        v_lshl_add_u32 v13, v4, 4, v13     ; 512(g>>1) + 16(g&1)
        v_sub_u32 v13, v11, v13
        v_add_u32 v13, {4080-1024}, v13
        v_cndmask_b32 v{vKWA}, v13, v12, vcc
        v_lshlrev_b32 v13, 9, v9
        v_sub_u32 v13, v11, v13
        v_add_u32 v{vKWB}, {4064-2048}, v13
        s_movk_i32 s10, {KCP}
        v_lshrrev_b32 v11, 3, v1
        v_and_b32 v12, 7, v1
        v_lshlrev_b32 v12, 3, v12
        v_mad_u32_u24 v12, v11, s10, v12
        s_add_u32 s12, s9, 4096
        v_add_u32 v{vKZ}, s12, v12
        v_add_u32 v11, 1, v8
        v_and_b32 v11, 3, v11              ; sigma
        v_sub_u32 v12, 18, v8
        v_and_b32 v12, 28, v12
        v_lshl_add_u32 v12, v9, 3, v12
        v_lshlrev_b32 v12, 1, v12
        v_mad_u32_u24 v12, v11, s10, v12
        s_xor_b32 s13, s11, 1
        s_lshl_b32 s13, s13, 8             ; hw=0 (q0 0..3) -> +256 B
        s_add_u32 s12, s9, s13
        v_add_u32 v{vCA}, s12, v12
        v_lshlrev_b32 v12, 5, v8
        v_lshl_add_u32 v12, v9, 4, v12
        s_mul_i32 s12, s8, {UP}
        s_add_u32 s12, s12, {L_U}
        s_add_u32 s13, s12, s13
        v_add_u32 v{vCB}, s13, v12
        v_min_u32 v11, 59, v1
        v_lshl_add_u32 v{vUZ}, v11, 3, s12
        v_mov_b32 v5, 1
        """)
        a.e(f"""
        v_lshrrev_b32 v8, 1, v1
        v_and_b32 v9, 1, v1
        v_and_b32 v10, 7, v8
        v_lshlrev_b32 v10, 7, v10
        s_lshl_b32 s9, {sI}, 5
        v_xor_b32 v10, s9, v10
        v_lshl_add_u32 v10, v8, 10, v10
        v_lshl_add_u32 v{vUG}, v9, 4, v10
        s_lshl_b32 s8, {sW}, 16            ; 64w*1024
        s_lshl_b32 s9, {sX}, 18
        s_add_u32 s8, s8, s9
        s_add_u32 {sUG0}, s8, {WS_UT}
        s_add_u32 {sUG1}, {sUG0}, {32*1024}
        s_movk_i32 s8, {UP}
        v_lshlrev_b32 v8, 4, v8
        v_mad_u32_u24 v8, v9, s8, v8
        s_lshl_b32 s8, {sW}, 10
        s_add_u32 s9, s8, {L_U + 480}
        v_add_u32 v{vUW}, s9, v8
        s_lshl_b32 s8, {sW}, 10
        s_add_u32 s8, s8, {WS_TF}
        v_and_b32 v8, 7, v1
        v_lshl_add_u32 v{vTF}, v8, 7, s8
        s_lshl_b32 s8, s77, 10
        s_lshl_b32 s10, s11, 20
        s_add_u32 s8, s8, s10
        s_add_u32 {sAT}, s8, {WS_AT}
        s_add_u32 s38, {sAT}, 0x80000
        s_lshl_b32 s8, {sX}, 7             ; d & 7 = x
        v_xor_b32 v255, s8, v7
        s_lshl_b32 s8, s11, 16
        s_lshl_b32 s10, s77, 7
        s_add_u32 s8, s8, s10
        s_add_u32 {sAF}, s8, {WS_AF}
        s_lshl_b32 s8, {sW}, 12
        s_add_u32 s8, s8, {L_EX}
        v_add_u32 v{vEXO}, s8, v7
        s_xor_b32 s8, {sW}, 1
        s_lshl_b32 s8, s8, 12
        s_add_u32 s8, s8, {L_EX}
        v_add_u32 v{vEXD}, s8, v7
        """)
        self.push_kgen()
        chunk = o.get("kch", 64)

        def gather():
            if o.get("noug", 0):
                return
            a.raw(f"buffer_load_dwordx4 v[176:179], v{vUG}, {R_WS}, {sUG0} offen sc1")
            a.raw(f"buffer_load_dwordx4 v[236:239], v{vUG}, {R_WS}, {sUG1} offen sc1")

        def look():
            a.e(f"global_load_dword v2, v3, {P_DBG} sc1", tag="PT")
            a.e(f"buffer_load_dword v9, v{vTF}, {R_WS}, 0 offen sc1", tag="PT")

        def tag():
            a.wait(vm=0)
            a.e(f"v_readfirstlane_b32 {sEP}, v2")
            self.epoch_get(issued=True)
            a.e(f"ds_write_b32 v3, v2 offset:{L_CNT+8}")

        def check(lab):
            a.wait(vm=0)
            a.e(f"v_cmp_ne_u32 vcc, {sEP}, v9")
            a.e(f"s_cbranch_vccz {lab}y")
            a.raw(f"buffer_load_dword v9, v{vTF}, {R_WS}, 0 offen sc1")
            a.e(f"s_branch {lab}")
            a.label(f"{lab}y")
            a.e("s_mov_b32 s14, 0")
            gather()

        def kmf():
            a.e(f"""
            s_and_b32 s8, {sW}, 1
            s_lshl_b32 s8, s8, 6
            v_cmp_eq_u32 vcc, s8, v1
            v_mov_b32 v217, 0
            v_mov_b32 v218, 0
            v_mov_b32 v219, 0
            v_cndmask_b32 v216, 0, v183, vcc
            """)
            self.push_kmfma()
            self.drain()

        tp = o.get("tp", 6)
        tb = o.get("tb", 6)
        NB = 8
        if o.get("sphold", 1):
            a.e(f"s_cmp_lt_u32 {sI}, 28")
            a.e("s_cbranch_scc1 L_nh0")
            a.e("s_setprio 0")
            a.label("L_nh0")
        a.wait(vm="P")
        self.stamp("kgs")
        a.label(".p2align 3")
        self.drain()
        self.stamp("kge")
        ta, tb_ = o.get("ta", 62), o.get("tb", 62)
        rows = {-1: (0, ta), 0: (ta, tb_), 1: (tb_, o.get("tc", 62)), 2: (o.get("tc", 62), 62), 6: (62, NROW)}
        if o.get("sphold", 1):
            a.e(f"s_cmp_lt_u32 {sI}, 28")
            a.e("s_cbranch_scc1 L_nh1")
            self.await_("v3", L_CNT + 4, 4, sleep=2)
            a.label("L_nh1")
        self.tables(*rows[-1])
        for s in range(NB):
            a.e(f"s_cmp_lt_u32 {sI}, 28")
            a.e(f"s_cbranch_scc0 L_nl{s}")
            if f"D{s}" in a.vm:
                a.wait(vm=f"D{s}")
            a.e("s_barrier")
            if s + 2 < 8 and (s >= 1 or not o.get("a2", 1)):
                for x, t in self.dma_ops(s + 2):
                    a.e(x, tag=t)
            a.label(f"L_nl{s}")
            if s == tp + 1:
                tag()
                check("L_c1")
                a.label("L_c1")
            if s == tp:
                look()
            if s == 0:
                a.e(f"s_setprio {o.get('bprio2', 1)}")
            if s in rows:
                self.tables(*rows[s])
        self.stamp("tabd")
        self.bsync()
        kmf()
        a.e(f"s_setprio {o.get('bprio3', 3)}")
        a.e("s_cmp_eq_u32 s14, 0")
        a.e("s_cbranch_scc1 L_c2")
        check("L_c2")
        a.label("L_c2")
        self.bsync()
        self.stamp("kme")
        a.e(f"s_bitcmp1_b32 {sW}, 0")
        a.e("s_nop 4")
        a.e("s_cbranch_scc1 L_sk1")
        self.push_kexpand(0)
        self.drain()
        a.e("s_branch L_skj")
        a.label("L_sk1")
        self.push_kexpand(1)
        self.drain()
        a.label("L_skj")
        self.stamp("kw")
        a.e("s_cmp_eq_u32 s14, 0")
        a.e("s_cbranch_scc1 L_haveu")
        a.wait(vm=0)
        a.e(f"v_cmp_ne_u32 vcc, {sEP}, v9")
        a.e(f"s_cbranch_vccz L_pollx{self.npoll}")
        self.vpoll(f"v{vTF}", "v9", sleep=o.get("tsl", 2))
        gather()
        a.label("L_haveu")
        a.e("v_mov_b32 v10, 0\nv_mov_b32 v11, 0")
        a.e(f"ds_write_b64 v{vUZ}, v[10:11]", tag="Z")
        a.wait(vm=0)
        a.e(f"ds_write_b128 v{vUW}, v[176:179]", tag="UW")
        a.e(f"ds_write_b128 v{vUW}, v[236:239] offset:512", tag="UW")
        self.bsync()
        self.stamp("convs")
        a.e(f"s_setprio {self.o.get('cprio', 1)}")
        if not o.get("noconv"):
            self.conv({})
        self.stamp("conve")
        a.e(f"s_setprio {o.get('eprio', 3)}")
        self.conv_out()
        self.conv_out2()
        a.wait(vm=0)
        self.publish(sAF)
        self.stamp("apub")

    def tail(self):
        a = self.a
        o = self.o
        if o.get("amp"):
            self.stamp("end")
            a.e(f"""
            s_waitcnt lgkmcnt(0)
            s_sub_u32 s8, s82, s80
            s_lshl_b32 s8, s8, 2
            s_add_u32 s8, s8, 3000
            s_cmp_lg_u32 s2, {o['amp']}
            s_cbranch_scc1 L_end
            """)
            a.label("L_pad")
            a.e("""
            s_memrealtime s[98:99]
            s_waitcnt lgkmcnt(0)
            s_sub_u32 s98, s98, s80
            s_cmp_lt_u32 s98, s8
            s_cbranch_scc1 L_pad
            """)
        elif self.stamps:
            a.e("s_memrealtime s[100:101]" if o.get("rt") else "s_memtime s[100:101]")
            a.e("s_memrealtime s[72:73]")
            a.e("s_waitcnt lgkmcnt(0)")
            a.e(f"""
            v_readfirstlane_b32 s3, v0
            s_and_b32 s3, s3, 256
            s_add_u32 s3, s3, s2
            s_lshl_b32 s3, s3, 2
            s_add_u32 s3, s3, {sW}
            s_lshl_b32 s3, s3, 6
            s_add_u32 s3, s3, {WS_STAMP}
            s_mov_b64 exec, 1
            """)
            for k in list(range(1, len(self.names))) + [10]:
                a.e(f"s_sub_u32 s8, s{80+2*k}, s80\nv_mov_b32 v8, s8\nbuffer_store_dword v8, v3, {R_WS}, s3 offen offset:{4*k}")
            a.e(f"v_mov_b32 v8, s78\nbuffer_store_dword v8, v3, {R_WS}, s3 offen offset:44")
            a.e(f"v_mov_b32 v8, s72\nbuffer_store_dword v8, v3, {R_WS}, s3 offen offset:48")

    def build(self):
        a = self.a
        self.prologue()
        self.role_a()
        a.e("s_branch L_tail" if self.stamps else "s_endpgm")
        self.role_b()
        a.label("L_tail")
        self.tail()
        a.label("L_end")
        a.e("s_endpgm")
        hdr = open("gated_mix__ssm_conv_s4__dense_activation_relu__prompt.s.ref").read().split("; Override launch")[0]
        s = hdr + f"; @launch grid=(256,1,1) block=(512,1,1) lds={LDS_BYTES}\n"
        s += '.amdgcn_target "amdgcn-amd-amdhsa--gfx950"\n.text\n'
        s += f".globl {KNAME}\n.p2align 8\n.type {KNAME},@function\n{KNAME}:\n"
        s += a.text().replace(".p2align 3:", ".p2align 3")
        s += f""".section .rodata,"a"
.p2align 6
.amdhsa_kernel {KNAME}
  .amdhsa_next_free_vgpr 256
  .amdhsa_next_free_sgpr 102
  .amdhsa_accum_offset 256
  .amdhsa_group_segment_fixed_size 0
  .amdhsa_kernarg_size 128
  .amdhsa_user_sgpr_count 2
  .amdhsa_user_sgpr_kernarg_segment_ptr 1
  .amdhsa_system_sgpr_workgroup_id_x 1
.end_amdhsa_kernel
"""
        return s


if __name__ == "__main__":
    out = sys.argv[1]
    stamps = None
    opts = {}
    for x in sys.argv[2:]:
        if x.startswith("--stamps="):
            stamps = x.split("=")[1].split(",")
        elif "=" in x:
            opts[x.split("=")[0]] = int(x.split("=")[1])
    g = Gen(stamps=stamps, opts=opts)
    s = g.build()
    open(out, "w").write(s)
    print("instructions", sum(1 for i in g.a.ins if i.kind != "label"), "auto nops", g.a.nops, "stamps", g.names)
```

```python
import sys
from collections import deque
from emit import Asm

KNAME = "gated_mix__ssm_conv_s4__dense_activation_relu__prompt_kernel"

WS_TF = 0x1000
WS_GF = 0x5000
WS_HF = 0x40000
WS_AF = 0x60000
WS_G = 0x12000
WS_STAMP = 0x20000
WS_UT = 0x100000
WS_AT = 0x300000
WS_H = 0x500000
WS_SIZE = 0xC00000

LDS_BYTES = 163840
XPOS = [98304, 131072, 81920]
WPOS = [114688, 147456, 65536]
L_BS = 81920
BSN = 10
L_CNT = 64384
NAR = int(([x.split("=")[1] for x in sys.argv if x.startswith("nar=")] + [7])[0])
NBR = 20 - NAR
vA0, vB0 = 32, 32 + 8 * NAR
_free = [k for k in range(NBR) if max(j for j in range(28) if j % NBR == k) <= 28 - NAR - 1]
vAG = vB0 + 8 * _free[0]
assert _free[1] == _free[0] + 1
TROW = 1056
NROW = 67
L_TAB = 0
TSPLIT = 34
L_KC = 0
KCP = 4160
L_U = 70784
UP = 4608
L_EX = 33280
XB = 51
YB = {0: 0, 1: 19, 2: 29, 3: 34, 4: 39, 5: 42, 6: 45, 7: 48}

sX, sI, sW, sEP = "s4", "s5", "s6", "s7"
P_U, P_ARE, P_AIM, P_BRE, P_BIM, P_CRE, P_CIM, P_LDT = [f"s[{16+2*i}:{17+2*i}]" for i in range(8)]
P_DSK, P_BX, P_W1, P_W2, P_GW, P_OUT, P_DBG, P_WS = [f"s[{32+2*i}:{33+2*i}]" for i in range(8)]
R_U, R_W1, R_W2, R_OUT, R_WS = "s[48:51]", "s[52:55]", "s[56:59]", "s[60:63]", "s[64:67]"
sE2 = "s[68:69]"
sH0, sH1, sHF, sUG0, sUG1, sAT, sAF, sTM0, sTM1 = "s32", "s33", "s34", "s32", "s33", "s34", "s35", "s36", "s37"
sBB = ["s36", "s37", "s38", "s39"]
sAB = ["s40", "s41", "s42", "s43"]
sBS = "s76"
sM, sN = "s30", "s31"
vKX, vKY, vKWA, vKWB, vUW, vCA, vCB, vEXD, vEXO, vUG, vKZ, vTF, vUZ, vCN = 240, 241, 244, 245, 246, 247, 248, 249, 250, 251, 252, 253, 254, 255
KRES = list(range(32, 80)) + list(range(216, 235))
vW2 = 14
vBL, vBH = 30, 4


def v(a, n=1):
    return f"v{a}" if n == 1 else f"v[{a}:{a+n-1}]"


def lines(t):
    return [x.strip() for x in t.strip().split("\n") if x.strip() and not x.strip().startswith(";")]


class Gen:
    def __init__(self, stamps=None, opts=None):
        self.a = Asm()
        self.stamps = stamps
        self.names = []
        self.o = opts or {}
        self.npoll = 0
        self.b_iss = 0
        self.b_con = 0
        self.bg = deque()
        self.lg_idle = False
        self.no_lg = False
        self.nsync = 0
        self.gpub = False
        self.skipped = set()
        self.acount = 0
        self.kc0 = 0

    def stamp(self, name):
        if self.stamps and (name == "start" or name in self.stamps):
            if name not in self.names:
                self.names.append(name)
            k = self.names.index(name)
            assert k < 10
            self.a.e(f"{'s_memrealtime' if (self.o.get('amp') or self.o.get('rt')) else 's_memtime'} s[{80+2*k}:{81+2*k}]")

    def push(self, text, tag=None):
        L = lines(text)
        k = 0
        while k < len(L):
            u = [L[k]]
            if L[k].startswith("s_cmp"):
                while k + 1 < len(L) and L[k + 1].startswith("s_cselect"):
                    k += 1
                    u.append(L[k])
            k += 1
            self.bg.append(lambda u="\n".join(u), tag=tag: self.a.e(u, tag=tag))

    def pushf(self, f):
        self.bg.append(f)

    def pushw(self, **kw):
        self.bg.append(lambda: self.a.wait(**kw))

    def drain(self, n=10**9):
        while n > 0 and self.bg:
            self.bg.popleft()()
            n -= 1

    def publish(self, soff, mask="1", voff="v3", line=False):
        a = self.a
        if self.o.get("sat", 1):
            a.e(f"s_atomic_swap {sEP}, {P_WS}, {soff}")
            return
        if line and self.o.get("fline", 1):
            a.e("v_lshlrev_b32 v8, 2, v1\ns_mov_b32 exec_hi, 0")
            a.e(f"buffer_store_dword v2, v8, {R_WS}, {soff} offen sc1", tag="flag")
            a.e("s_mov_b32 exec_hi, -1")
            return
        a.e(f"s_mov_b64 exec, {mask}")
        a.e(f"buffer_store_dword v2, {voff}, {R_WS}, {soff} offen sc1", tag="flag")
        a.e("s_mov_b64 exec, -1")

    def spoll_issue(self, soff, n):
        if self.o.get("vp", 0):
            self.a.e(f"v_min_u32 v27, 6, v1\nv_lshl_add_u32 v27, v27, 2, {soff}")
            self.a.e(f"buffer_load_dword v28, v27, {R_WS}, 0 offen sc1", tag="VP")
            return
        dst = "s16" if n == 1 else f"s[16:{15+n}]"
        self.a.e(f"s_load_dword{'' if n == 1 else 'x%d' % n} {dst}, {P_WS}, {soff} glc")
        if n == 16:
            self.a.e(f"s_load_dword s32, {P_WS}, s75 glc")

    def spoll(self, soff, n, sleep=2, issued=False):
        a = self.a
        sleep = self.o.get("psl", sleep)
        if self.o.get("vp", 0):
            a.wait(vm="VP")
            a.e(f"v_cmp_ne_u32 vcc, {sEP}, v28")
            a.e(f"s_cbranch_vccz L_pollx{self.npoll}")
            self.vpoll("v27", "v28", sleep=sleep)
            return
        k = self.npoll
        self.npoll += 1
        a.e("s_mov_b32 s3, 0")
        if not issued:
            self.spoll_issue(soff, n)
        a.label(f"L_poll{k}")
        a.e("s_waitcnt lgkmcnt(0)")
        if n == 8:
            a.e("s_mov_b32 s23, s22")
        else:
            a.e("s_mov_b32 s33, s32")
            n = 18
        for q in range(n // 2):
            a.e(f"s_xor_b64 s[{16+2*q}:{17+2*q}], s[{16+2*q}:{17+2*q}], {sE2}")
        for q in range(1, n // 2):
            a.e(f"s_or_b64 s[16:17], s[16:17], s[{16+2*q}:{17+2*q}]")
        a.e(f"s_cbranch_scc0 L_pollx{k}")
        a.e("s_add_u32 s3, s3, 1")
        a.e("s_cmp_gt_u32 s3, 4000")
        a.e(f"s_cbranch_scc1 L_pollx{k}")
        a.e(f"s_sleep {sleep}")
        self.spoll_issue(soff, min(n, 16))
        a.e(f"s_branch L_poll{k}")
        a.label(f"L_pollx{k}")

    def epoch_master(self):
        a = self.a
        a.e(f"""
        s_lshl_b32 s3, s2, 2
        s_add_u32 s3, s3, {sW}
        s_cmp_lg_u32 s3, 1023
        s_cbranch_scc1 L_nomaster
        """)
        if self.o.get("clk", 1):
            a.e("""
            s_memrealtime s[10:11]
            s_waitcnt lgkmcnt(0)
            s_max_u32 s3, s10, 1
            """)
        else:
            a.e(f"""
            s_load_dword s3, {P_WS}, 0
            s_waitcnt lgkmcnt(0)
            s_mul_i32 s3, s3, 1664525
            s_add_u32 s3, s3, 1013904223
            s_max_u32 s3, s3, 1
            """)
        a.e("v_mov_b32 v8, s3\ns_mov_b64 exec, 1")
        a.raw(f"global_store_dword v3, v8, {P_DBG} sc1")
        if not self.o.get("clk", 1):
            a.raw(f"global_store_dword v3, v8, {P_WS} sc1")
        a.e("s_mov_b64 exec, -1")
        a.label("L_nomaster")

    def epoch_issue(self):
        self.a.e(f"s_load_dword {sEP}, {P_DBG}, 0")

    def epoch_get(self, issued=False):
        a = self.a
        k = self.npoll
        self.npoll += 1
        if not issued:
            self.epoch_issue()
        a.e("s_mov_b32 s3, 0")
        a.e("s_waitcnt lgkmcnt(0)")
        a.label(f"L_ep{k}")
        a.e(f"s_cmp_lg_u32 {sEP}, 0")
        a.e(f"s_cbranch_scc1 L_epx{k}")
        a.e("s_add_u32 s3, s3, 1")
        a.e("s_cmp_gt_u32 s3, 4000")
        a.e(f"s_cbranch_scc1 L_epx{k}")
        a.e("s_sleep 2")
        a.raw(f"global_load_dword v2, v3, {P_DBG} sc1")
        a.wait(vm=0)
        a.e(f"v_readfirstlane_b32 {sEP}, v2")
        a.e("s_nop 1")
        a.e(f"s_branch L_ep{k}")
        a.label(f"L_epx{k}")
        a.e(f"s_mov_b32 s68, {sEP}\ns_mov_b32 s69, {sEP}\nv_mov_b32 v2, {sEP}")

    def vpoll(self, voff, tmp, sleep=2):
        a = self.a
        n = self.npoll
        self.npoll += 1
        a.e("s_mov_b32 s3, 0")
        a.label(f"L_poll{n}")
        a.raw(f"buffer_load_dword {tmp}, {voff}, {R_WS}, 0 offen sc1")
        a.e("s_add_u32 s3, s3, 1")
        a.wait(vm=0)
        a.e(f"v_cmp_ne_u32 vcc, {sEP}, {tmp}")
        a.e("s_cmp_gt_u32 s3, 4000")
        a.e(f"s_cbranch_scc1 L_pollx{n}")
        a.e(f"s_cbranch_vccz L_pollx{n}")
        a.e(f"s_sleep {sleep}")
        a.e(f"s_branch L_poll{n}")
        a.label(f"L_pollx{n}")

    def params_load(self):
        a = self.a
        for k, p in enumerate((P_ARE, P_AIM, P_BRE, P_BIM, P_CRE, P_CIM)):
            a.e(f"global_load_short_d16_hi v{176+k}, v24, {p}", tag="P")
        a.e(f"global_load_short_d16_hi v182, v25, {P_LDT}", tag="P")
        a.e(f"global_load_short_d16_hi v183, v25, {P_DSK}", tag="P")

    def tlb_touch(self):
        a = self.a
        if not self.o.get("tlb", 1):
            return
        a.e(f"""
        s_cmp_eq_u32 {sW}, 1
        s_cselect_b64 s[8:9], {P_W2}, {P_WS}
        s_cmp_eq_u32 {sW}, 2
        s_cselect_b64 s[8:9], {P_OUT}, s[8:9]
        s_cmp_eq_u32 {sW}, 3
        s_cselect_b64 s[8:9], {P_DBG}, s[8:9]
        s_cmp_eq_u32 {sW}, 0
        s_cselect_b32 s10, 5, 0
        s_mov_b32 s11, 21
        """)
        if self.o.get("tlb", 1) == 2:
            a.e(f"""
            s_cselect_b32 s10, 47, 27
            s_cselect_b32 s11, 18, 16
            s_cmp_eq_u32 {sW}, 3
            s_cselect_b32 s10, 0, s10
            """)
        a.e("""
        v_min_u32 v8, s10, v1
        v_lshlrev_b32 v8, s11, v8
        """)
        a.e("global_load_dword v6, v8, s[8:9] offset:128", tag="TLB")
        if self.o.get("stlb", 0):
            a.e(f"s_load_dword s60, {P_DBG}, 128")
            a.e(f"s_load_dword s61, {P_WS}, 128")

    def gate_tail(self):
        P = self.push
        for q in range(4):
            for r in range(8, 16):
                P(f"v_dot2_f32_bf16 v{132+r}, v{32+4*r+q}, v{96+q}, {'0' if q == 0 else 'v%d' % (132+r)}")
        prs = [(4*j+e_, 4*j+e_+2) for j in range(4) for e_ in range(2)]
        for p, q in prs:
            P(f"v_permlane32_swap_b32 v{132+p}, v{132+q}")
        for p, q in prs:
            P(f"v_add_f32 v{132+p}, v{132+p}, v{132+q}")
        for j in range(4):
            P(f"v_permlane16_swap_b32 v{132+4*j}, v{133+4*j}")
        for j in range(4):
            P(f"v_add_f32 v{132+4*j}, v{132+4*j}, v{133+4*j}")
        for r in (8, 4, 2, 1):
            for j in range(4):
                P(f"v_add_f32_dpp v{132+4*j}, v{132+4*j}, v{132+4*j} row_ror:{r} row_mask:0xf bank_mask:0xf")
        P(f"""
        v_and_b32 v8, 3, v1
        v_cmp_eq_u32 vcc, 1, v8
        v_cndmask_b32 v132, v132, v136, vcc
        v_cmp_eq_u32 vcc, 2, v8
        v_cndmask_b32 v132, v132, v140, vcc
        v_cmp_eq_u32 vcc, 3, v8
        v_cndmask_b32 v132, v132, v144, vcc
        v_mul_f32 v132, 0xbfb8aa3b, v132
        v_exp_f32 v132, v132
        v_lshrrev_b32 v9, 4, v1
        v_lshlrev_b32 v9, 2, v9
        v_add_f32 v132, 1.0, v132
        v_rcp_f32 v132, v132
        v_lshl_add_u32 v9, v8, 4, v9
        s_lshl_b32 s9, s70, 6
        s_add_u32 s9, s9, {WS_G}
        """)

        def st():
            a = self.a
            a.e("s_mov_b32 exec_lo, 0x000f000f\ns_mov_b32 exec_hi, 0x000f000f")
            a.e(f"buffer_store_dword v132, v9, {R_WS}, s9 offen sc1", tag="Tst")
            a.e("s_mov_b64 exec, -1")
        self.pushf(st)

    def push_kgen(self):
        P = self.push
        E = lambda k: 80 + 2 * (k - 1)
        F = lambda c: 116 + 2 * (c - 1)
        X0 = 130
        P(f"""
        v_mul_f32 v134, 0x3fb8aa3b, v182
        v_exp_f32 v134, v134
        v_pk_mul_f32 v[138:139], v[180:181], v[178:179] op_sel_hi:[1,0]
        v_cvt_pk_bf16_f32 v134, v134, v134
        v_pk_fma_f32 v[138:139], v[180:181], v[178:179], v[138:139] op_sel:[1,1,0] op_sel_hi:[0,1,1] neg_lo:[1,0,0]
        v_and_b32 v134, 0xffff0000, v134
        v_mov_b32 v{KRES[YB[0]]}, 0x3f80
        v_mul_f32 v135, v134, v176         ; zr
        v_mul_f32 v136, v134, v177         ; zi
        v_pk_mul_f32 v[{X0}:{X0+1}], v[138:139], v[134:135] op_sel_hi:[1,0]
        v_mul_f32 v135, 0x3fb8aa3b, v135
        v_mul_f32 v136, 0.15915494, v136   ; revolutions
        v_mul_f32 v142, 0x41800000, v135
        v_mul_f32 v143, 0x41800000, v136
        v_mul_f32 v144, 0x43800000, v135
        v_mul_f32 v145, 0x43800000, v136
        v_fract_f32 v141, v136
        v_fract_f32 v143, v143
        v_fract_f32 v145, v145
        v_exp_f32 v140, v135
        v_exp_f32 v142, v142
        v_exp_f32 v144, v144
        """)
        for dst, t in ((E(1), 140), (E(16), 142), (F(1), 144)):
            P(f"v_cos_f32 v{dst}, v{t+1}\nv_sin_f32 v{dst+1}, v{t+1}")
        for dst, t in ((E(1), 140), (E(16), 142), (F(1), 144)):
            P(f"v_pk_mul_f32 {v(dst,2)}, {v(dst,2)}, {v(t,2)} op_sel_hi:[1,0]")
        src = {2: (1, 1), 3: (2, 1), 4: (2, 2), 5: (4, 1), 6: (4, 2), 7: (4, 3), 8: (4, 4), 17: (16, 1), 18: (16, 2)}
        for k in range(9, 16):
            src[k] = (8, k - 8)
        ej = [(E(k), E(src[k][0]), E(src[k][1]), YB[0] + k, False) for k in (2, 17, 3, 4, 18, 5, 6, 7, 8, 9, 10, 11, 12, 13, 14, 15)]
        fsrc = {2: (1, 1), 3: (2, 1), 4: (2, 2), 5: (4, 1), 6: (4, 2), 7: (4, 3)}
        fj = [(F(c), F(fsrc[c][0]), F(fsrc[c][1]), YB[c], False) for c in range(2, 8)]
        xj = [(X0 + 2 * (k % 2), X0 + 2 * ((k - 1) % 2), E(16), XB + k, True) for k in range(1, 16)]
        pj = []
        tmp = list(range(146, 170, 2))
        ti = 0
        for c in range(1, 8):
            step = {1: 2, 2: 4, 3: 4}.get(c, 8)
            top = 19 if c == 1 else 17
            for n_, rho in enumerate(range(step, top, step)):
                pj.append((tmp[ti % len(tmp)], F(c), E(rho), YB[c] + 1 + n_, False))
                ti += 1
        others = []
        q1, q2 = list(ej), list(fj)
        while q1 or q2:
            if q1:
                others.append(q1.pop(0))
            if q2:
                others.append(q2.pop(0))
        others += pj
        order = []
        xs = list(xj)
        while others or xs:
            grp = []
            if xs:
                grp.append(xs.pop(0))
            while others and len(grp) < 4:
                j = others[0]
                if any(g[0] in (j[1], j[2]) or g[0] == j[0] for g in grp):
                    break
                grp.append(others.pop(0))
            order.append(grp)
        put = lambda reg, row, neg: P(f"v_cvt_pk_bf16_f32 v{KRES[row]}, v{reg}, {'-' if neg else ''}v{reg+1}")
        prev = [(X0, 0, 0, XB, True), (E(1), 0, 0, YB[0] + 1, False), (E(16), 0, 0, YB[0] + 16, False), (F(1), 0, 0, YB[1], False)]
        for gi, grp in enumerate(order):
            pk = gi < self.o.get("pkg", 99)
            for (d, x, y, row, neg) in grp:
                if pk:
                    P(f"v_pk_mul_f32 {v(d,2)}, {v(x,2)}, {v(y,2)} op_sel_hi:[1,0]")
                else:
                    P(f"v_mul_f32 v{d}, v{x}, v{y}\nv_mul_f32 v{d+1}, v{x+1}, v{y}")
            for (d, x, y, row, neg) in prev:
                put(d, row, neg)
            for (d, x, y, row, neg) in grp:
                if pk:
                    P(f"v_pk_fma_f32 {v(d,2)}, {v(x,2)}, {v(y,2)}, {v(d,2)} op_sel:[1,1,0] op_sel_hi:[0,1,1] neg_lo:[1,0,0]")
                else:
                    P(f"v_fma_f32 v{d}, -v{x+1}, v{y+1}, v{d}\nv_fmac_f32 v{d+1}, v{x}, v{y+1}")
            prev = grp
            if gi + 1 == self.o.get("pkg", 99):
                self.kc0 = len(self.bg)
        for (d, x, y, row, neg) in prev:
            put(d, row, neg)

    def tables(self, r0, r1):
        a = self.a
        for row in range(r0, r1):
            if row in (r0, TSPLIT):
                a.e(f"s_mov_b32 m0, {sTM1 if row >= TSPLIT else sTM0}")
            a.e(f"ds_write_addtid_b32 v{KRES[row]} offset:{(row - (TSPLIT if row >= TSPLIT else 0)) * TROW}", tag="TB")

    def arrive(self, vaddr, vone, off):
        a = self.a
        a.e("s_mov_b64 exec, 1")
        a.e(f"ds_add_u32 {vaddr}, {vone} offset:{off}")
        a.e("s_mov_b64 exec, -1")

    def await_(self, vaddr, off, count, sleep=0):
        a = self.a
        k = self.npoll
        self.npoll += 1
        a.e("s_mov_b32 s3, 0")
        a.label(f"L_bs{k}")
        if sleep:
            a.e(f"s_sleep {sleep}")
        a.e(f"ds_read_b32 v8, {vaddr} offset:{off}")
        a.e("s_add_u32 s3, s3, 1")
        a.wait(lg=0)
        a.e("v_readfirstlane_b32 s8, v8")
        a.e("s_cmp_gt_u32 s3, 100000")
        a.e(f"s_cbranch_scc1 L_bsx{k}")
        a.e(f"s_cmp_lt_u32 s8, {count}")
        a.e(f"s_cbranch_scc1 L_bs{k}")
        a.label(f"L_bsx{k}")

    def bsync(self):
        self.nsync += 1
        self.a.wait(lg=0)
        self.arrive("v3", "v5", L_CNT)
        self.await_("v3", L_CNT, 4 * self.nsync)

    def push_kmfma(self):
        YR = [64, 68, 72, 76] + list(range(184, 216, 4))
        NY = len(YR)
        AH = 8
        seq = [(ks, c) for ks in range(8) for c in range(3)]
        for ks in range(8):
            self.push(f"ds_read_b128 {v(32+4*ks,4)}, v{vKX} offset:{64*ks}", tag="KX")
        yr = lambda n_: self.push(f"ds_read_b128 {v(YR[n_%NY],4)}, v{vKY+seq[n_][1]} offset:{64*seq[n_][0]}", tag=f"KY{n_}")
        for n_ in range(AH):
            yr(n_)
        for n_, (ks, c) in enumerate(seq):
            d = 216 + 4 * c
            cc = "0" if (ks == 0 and c != 0) else v(d, 4)

            def f(n_=n_, d=d, cc=cc, ks=ks):
                self.a.wait(lg=f"KY{n_}")
                self.a.e(f"v_mfma_f32_16x16x32_bf16 {v(d,4)}, {v(YR[n_%NY],4)}, {v(32+4*ks,4)}, {cc}")
            self.pushf(f)
            if n_ + AH < 24:
                yr(n_ + AH)

    def push_kexpand(self, hw):
        P = self.push
        cv = lambda dst, hi_lag, lo_lag: P(f"v_cvt_pk_bf16_f32 v{dst}, {hi_lag}, {lo_lag}")
        if hw == 0:
            P("""
            v_cmp_eq_u32 vcc, 63, v1
            v_cndmask_b32 v221, v221, v220, vcc
            v_cndmask_b32 v227, v227, v226, vcc
            """)
            k0 = [f"v{216+n}" for n in range(7)]
            k1 = ["v224", "v224", "v225", "v226", "v226", "v226", "v227"]
            for si, (k, off) in enumerate(((k0, 512), (k1, 0))):
                for sg in range(4):
                    t = 32 + 8 * si + 2 * sg
                    cv(t, k[sg + 3], k[sg + 2])
                    cv(t + 1, k[sg + 1], k[sg])
                    P(f"ds_write_b64 v{vKWA}, {v(t,2)} offset:{off+sg*KCP}", tag="KW")
            P("""
            v_readfirstlane_b32 s8, v33        ; (K1 | K0<<16)
            v_readfirstlane_b32 s9, v35        ; (K2 | K1<<16)
            v_mov_b32 v48, 0
            v_mov_b32 v49, 0
            s_lshr_b32 s10, s8, 16             ; K0
            v_writelane_b32 v48, s10, 8
            v_writelane_b32 v48, s8, 16
            v_writelane_b32 v48, s9, 24
            v_writelane_b32 v49, s10, 24
            """)
            self.pushf(lambda: self.a.e(f"s_mov_b32 exec_hi, 0\nds_write_b64 v{vKZ}, v[48:49]\ns_mov_b32 exec_hi, -1", tag="KW"))
        else:
            k2 = ["v216"] * 3 + ["v217"] * 3 + ["v218"] * 5
            k3 = ["v220"] * 5 + ["v221"] * 7 + ["v222"] * 7
            t = 32
            for sg in range(4):
                for q in range(4):
                    cv(t + q, k2[sg + 7 - 2 * q], k2[sg + 6 - 2 * q])
                P(f"ds_write_b128 v{vKWA}, {v(t,4)} offset:{sg*KCP}", tag="KW")
                t += 4
                for hf in range(2):
                    for q in range(4):
                        cv(t + q, k3[sg + 15 - 8 * hf - 2 * q], k3[sg + 14 - 8 * hf - 2 * q])
                    P(f"ds_write_b128 v{vKWB}, {v(t,4)} offset:{sg*KCP+16*hf}", tag="KW")
                    t += 4

    def conv(self, fill):
        a = self.a

        def reads(st):
            A0 = 32 + 64 * (st % 2)
            B0 = 64 + 64 * (st % 2)
            L = []
            for k in range(8):
                offA = 512 * (7 - k) + 64 * (3 - st)
                offB = 512 * k + 64 * (3 - st)
                L.append((f"ds_read_b64 {v(A0+4*k,2)}, v{vCA} offset:{offA}", f"C{st}_{k}"))
                L.append((f"ds_read_b64 {v(A0+4*k+2,2)}, v{vCA} offset:{offA+8}", f"C{st}_{k}"))
                L.append((f"ds_read_b128 {v(B0+4*k,4)}, v{vCB} offset:{offB}", f"C{st}_{k}"))
            return L

        first = set()
        for c_, t_ in reads(0):
            a.e(c_, tag=t_)
        for st in range(4):
            A0 = 32 + 64 * (st % 2)
            B0 = 64 + 64 * (st % 2)
            nxt = reads(st + 1) if st < 3 else []
            pairs = sorted([(q1, m) for q1 in range(8) for m in range(8) if q1 + m <= 7], key=lambda p: (max(p), p[0] + p[1]))
            have = -1
            for n_, (q1, m) in enumerate(pairs):
                used = 0
                if max(q1, m) > have:
                    have = max(q1, m) if st == 0 else 7
                    a.wait(lg=f"C{st}_{have}")
                    used += 1
                c = q1 + m
                d = 160 + 4 * c
                cc = v(d, 4) if c in first else "0"
                first.add(c)
                a.e(f"v_mfma_f32_16x16x32_bf16 {v(d,4)}, {v(A0+4*q1,4)}, {v(B0+4*m,4)}, {cc}")
                if nxt and n_ >= 4:
                    c_, t_ = nxt.pop(0)
                    a.e(c_, tag=t_)
                    used += 1
                for f in fill.get(36 * st + n_, []):
                    f()
                self.drain(2 - used)
            assert not nxt
        self.drain()

    def conv_out(self):
        a = self.a
        a.e(f"""
        s_bitcmp1_b32 {sW}, 0
        s_nop 7
        s_cbranch_scc1 L_hw1
        """)
        for k in range(4):
            a.e(f"ds_write_b128 v{vEXD}, {v(176+4*k,4)} offset:{1024*k}", tag="EX")
        a.e("s_branch L_hwj")
        a.label("L_hw1")
        for k in range(4):
            a.raw(f"ds_write_b128 v{vEXD}, {v(160+4*k,4)} offset:{1024*k}")
        a.wait(lg=0)
        for k in range(16):
            a.e(f"v_mov_b32 v{160+k}, v{176+k}")
        a.label("L_hwj")

    def conv_out2(self):
        a = self.a
        self.bsync()
        for k in range(4):
            a.e(f"ds_read_b128 {v(176+4*k,4)}, v{vEXO} offset:{1024*k}", tag=f"EY{k}")
        for cp in range(2):
            for cl in range(2):
                k = 2 * cp + cl
                a.wait(lg=f"EY{k}")
                for q in range(4):
                    a.e(f"v_add_f32 v{160+4*k+q}, v{160+4*k+q}, v{176+4*k+q}")
                a.e(f"v_cvt_pk_bf16_f32 v{20+4*cp+2*cl}, v{160+4*k}, v{161+4*k}")
                a.e(f"v_cvt_pk_bf16_f32 v{21+4*cp+2*cl}, v{162+4*k}, v{163+4*k}")
            a.e(f"v_permlane16_swap_b32 v{20+4*cp}, v{22+4*cp}")
            a.e(f"v_permlane16_swap_b32 v{21+4*cp}, v{23+4*cp}")
            a.e(f"buffer_store_dwordx4 {v(20+4*cp,4)}, v255, {R_WS}, {'s38' if cp else sAT} offen sc1", tag="Ast")

    def prologue(self):
        a = self.a
        a.e("s_cmp_ge_u32 s2, 256\ns_cbranch_scc1 L_end")
        self.stamp("start")
        if self.stamps and not self.o.get("amp"):
            a.e("s_memrealtime s[78:79]")
        a.e(f"""
        s_lshr_b32 {sI}, s2, 3
        s_min_u32 s3, {sI}, 15
        s_lshl_b32 s3, s3, 3
        s_load_dwordx2 s[68:69], s[0:1], s3
        s_load_dwordx16 s[16:31], s[0:1], 0
        s_load_dwordx16 s[32:47], s[0:1], 64
        s_getpc_b64 s[8:9]
        L_pc:
        s_lshl_b32 s3, {sI}, 10
        v_lshl_add_u32 v6, v0, 2, s3
        v_min_u32 v6, L_end-L_pc, v6
        v_readfirstlane_b32 s14, v0
        v_and_b32 v1, 63, v0
        v_bfe_u32 v4, v0, 6, 2
        s_and_b32 {sX}, s2, 7
        s_mul_i32 s77, {sI}, 37
        s_lshr_b32 s77, s77, 8
        s_bfe_u32 {sW}, s14, 0x20006
        s_mul_i32 s13, s77, 7
        s_sub_u32 s15, {sI}, s13           ; ct
        s_and_b32 s11, {sX}, 6
        s_lshl1_add_u32 s11, s11, s77
        s_lshl_b32 s70, s11, 17
        s_and_b32 s11, {sX}, 1
        s_mul_i32 s11, s11, 7
        s_add_u32 s11, s11, s15
        s_lshl_b32 s71, s11, 8
        """)
        g = self.o.get("g1rot", 2)
        if g == 8:
            a.e("s_lshl1_add_u32 s72, s77, s15")
        elif g == 4:
            a.e("s_add_u32 s72, s77, s15\ns_lshl_b32 s72, s72, 1")
        elif g == 2:
            a.e("s_add_u32 s72, s77, s15\ns_lshl_b32 s72, s72, 2")
        a.e(f"""
        s_lshl_b32 s73, {sW}, 12           ; wave*4096
        s_mov_b32 s50, {2048*1024}
        s_mov_b32 s51, 0x00020000
        s_mov_b32 s54, {512*3584}
        s_mov_b32 s55, s51
        s_bitcmp1_b32 s14, 8
        """)
        if not self.o.get("bnear", 0):
            a.e("s_cbranch_scc1 L_roleB0")
            return
        a.e("s_cbranch_scc0 L_roleA")
        self.b_first()
        a.e("s_branch L_roleB")
        a.label("L_roleA")
        a.vm = []

    def b_first(self):
        a = self.a
        a.e(f"s_setprio {self.o.get('bprio', 3)}")
        a.e(f"""
        s_lshr_b32 s9, {sW}, 1
        s_lshl1_add_u32 s8, {sI}, s9
        s_lshl3_add_u32 s77, s8, {sX}
        s_and_b32 s9, {sW}, 1
        s_lshl1_add_u32 s8, s77, s9
        s_lshl_b32 s8, s8, 7
        v_lshl_add_u32 v24, v1, 1, s8      ; d*256 + (64*(w&1)+l)*2
        v_lshlrev_b32 v25, 1, s77
        """)
        for k in range(4):
            a.e(f"v_pk_mov_b32 v[{176+2*k}:{177+2*k}], 0, 0")
        a.e("s_waitcnt lgkmcnt(0)")
        self.stamp("bk")
        if self.o.get("pb", 1):
            a.e("s_barrier")
        self.params_load()

    def dma_voffs(self):
        self.a.e(f"""
        v_lshrrev_b32 v8, 3, v1            ; l>>3
        v_lshl_add_u32 v8, v4, 5, v8       ; 32w + (l>>3)
        v_lshlrev_b32 v8, 10, v8           ; *1024
        v_lshrrev_b32 v9, 4, v1            ; l>>4
        v_and_b32 v10, 7, v1
        v_xor_b32 v10, v10, v9             ; pos ^ (l>>4)
        v_lshl_add_u32 v16, v10, 4, v8
        v_xor_b32 v10, 4, v10
        v_lshl_add_u32 v17, v10, 4, v8
        v_add_u32 v17, {8192-1024}, v17
        v_add_u32 v18, {2*(8192-1024)}, v16
        v_add_u32 v19, {2*(8192-1024)}, v17
        v_lshl_add_u32 v8, v4, 4, v9       ; 16w + (l>>4)
        v_mul_u32_u24 v8, 3584, v8
        v_and_b32 v10, 15, v1
        v_lshlrev_b32 v11, 2, v9
        v_xor_b32 v10, v10, v11
        v_lshl_add_u32 v20, v10, 4, v8
        v_add_u32 v21, {4*3584-1024}, v20
        v_add_u32 v22, {2*(4*3584-1024)}, v20
        v_add_u32 v23, {3*(4*3584-1024)}, v20
        """)

    def common2(self):
        self.a.e(f"""
        v_mov_b32 v3, 0
        v_lshlrev_b32 v7, 4, v1            ; lane*16
        s_mov_b32 s66, {WS_SIZE}
        s_mov_b32 s67, 0x00020000
        s_mov_b64 s[64:65], s[46:47]
        """)

    def a_prologue(self):
        a = self.a
        a.e("global_load_dword v6, v6, s[8:9]", tag="CPF")
        a.e(f"""
        s_max_u32 s3, {sI}, 15
        s_min_u32 s3, s3, 20
        s_sub_u32 s3, s3, 15
        v_lshlrev_b32 v12, 21, s3
        """)
        self.dma_voffs()
        a.e(self.dma_setup(0))
        a.e("s_waitcnt lgkmcnt(0)")
        self.stamp("karg")
        a.e("global_load_dword v6, v12, s[68:69] offset:128", tag="FAN")
        a.e(f"""
        s_mov_b64 s[48:49], s[16:17]
        s_mov_b64 s[52:53], s[36:37]
        """)

    def a_prologue2(self):
        a = self.a
        a.e(f"s_setprio {self.o.get('prio', 2)}")
        self.common2()
        a.e(f"""
        s_lshl_b32 {sBS}, {sW}, 11         ; wave*2048
        s_add_u32 {sBS}, {sBS}, {L_BS}
        s_mov_b32 s58, {1792*1024}
        s_mov_b32 s59, 0x00020000
        s_mov_b32 s62, {2048*1024}
        s_mov_b32 s63, 0x00020000
        s_mov_b64 s[56:57], s[38:39]
        s_mov_b64 s[60:61], s[42:43]
        """)
        if not self.o.get("vp", 0):
            a.e(f"s_load_dword s16, {P_WS}, 128")

    def dma_setup(self, s):
        return f"""
        s_add_u32 s74, s72, {s}
        s_and_b32 s74, s74, 7
        s_mul_i32 s75, s74, {64*3584}
        s_add_u32 s75, s75, s71
        s_lshl_b32 s74, s74, 7
        s_add_u32 s74, s74, s70
        """

    def dma_ops(self, s, setup=True):
        slot = s % 3
        ops = []
        for i in range(4):
            pre = ((self.dma_setup(s) if setup else "") + f"s_add_u32 m0, s73, {XPOS[slot]}\n") if i == 0 else ""
            ops.append((pre + f"buffer_load_dwordx4 v{16+i}, {R_U}, s74 offen offset:{i*1024} lds", f"D{s}"))
        for i in range(4):
            pre = f"s_add_u32 m0, s73, {WPOS[slot]}\n" if i == 0 else ""
            ops.append((pre + f"buffer_load_dwordx4 v{20+i}, {R_W1}, s75 offen offset:{i*1024} lds", f"D{s}"))
        return ops

    def a_setup_g1(self):
        self.a.e(f"""
        v_and_b32 v8, 31, v1               ; t
        v_lshrrev_b32 v9, 5, v1            ; g
        v_lshrrev_b32 v10, 1, v8
        v_and_b32 v10, 7, v10
        v_xor_b32 v10, v10, v9             ; g ^ f
        s_lshr_b32 s8, {sW}, 1
        s_lshl_b32 s8, s8, 13              ; wm*64*128
        s_add_u32 s8, s8, {XPOS[2]}
        v_lshl_add_u32 v8, v8, 7, s8
        v_lshl_add_u32 v24, v10, 4, v8
        v_xor_b32 v25, 32, v24
        v_xor_b32 v26, 64, v24
        v_xor_b32 v27, 96, v24
        v_bfe_u32 v8, v1, 2, 2             ; r
        v_lshl_add_u32 v10, v9, 3, v8      ; 8*(G>>1) + r
        v_lshlrev_b32 v10, 8, v10          ; *256
        s_and_b32 s8, {sW}, 1
        s_lshl_b32 s8, s8, 1
        v_xor_b32 v8, s8, v8               ; (2wn) ^ r
        v_lshl_add_u32 v10, v8, 6, v10
        v_bfe_u32 v8, v1, 4, 1
        v_lshl_add_u32 v10, v8, 5, v10
        v_and_b32 v8, 3, v1
        v_lshl_add_u32 v10, v8, 3, v10
        v_add_u32 v28, {WPOS[0]}, v10
        v_xor_b32 v29, 64, v28
        v_add_u32 v{vW2}, {WPOS[2]}, v10
        v_xor_b32 v{vW2+1}, 64, v{vW2}
        s_lshl_b32 s8, {sX}, 4
        s_lshl_b32 s9, s77, 2
        s_add_u32 s8, s8, s9
        s_and_b32 s9, {sW}, 2
        s_add_u32 s8, s8, s9
        s_mul_i32 s8, s8, 56
        s_lshl_b32 s9, s15, 3
        s_add_u32 s8, s8, s9
        s_and_b32 s9, {sW}, 1
        s_lshl_b32 s9, s9, 2
        s_add_u32 s8, s8, s9
        s_lshl_b32 s8, s8, 10
        s_add_u32 {sH0}, s8, {WS_H}
        s_add_u32 {sH1}, {sH0}, {56*1024}
        s_lshr_b32 s8, {sX}, 1
        s_lshl_b32 s8, s8, 2
        s_add_u32 s8, s8, s77
        s_lshl_b32 s8, s8, 1
        s_lshr_b32 s9, {sW}, 1
        s_add_u32 s8, s8, s9
        s_lshl_b32 s8, s8, 1
        s_and_b32 s9, {sX}, 1
        s_add_u32 s8, s8, s9
        s_lshl_b32 s8, s8, 8               ; *2 groups*128B
        s_lshl_b32 s9, s15, 1
        s_and_b32 s10, {sW}, 1
        s_add_u32 s9, s9, s10              ; 2ct+wn
        s_cmp_ge_u32 s9, 7
        s_cselect_b32 s10, {128-28}, 0
        s_lshl2_add_u32 s8, s9, s8
        s_add_u32 s8, s8, s10
        s_add_u32 {sHF}, s8, {WS_HF}
        """)

    def a_setup_g2(self):
        a = self.a
        a.e(f"""
        v_lshrrev_b32 v8, 3, v1
        v_lshlrev_b32 v8, 10, v8
        v_bfe_u32 v9, v1, 4, 1
        v_lshlrev_b32 v9, 2, v9
        v_and_b32 v10, 7, v1
        v_xor_b32 v10, v10, v9
        v_lshl_add_u32 v10, v10, 4, v8
        v_lshrrev_b32 v8, 5, v1            ; g
        v_bfe_u32 v9, v1, 2, 2             ; r
        v_lshl_add_u32 v8, v8, 2, v9       ; 4g + r
        v_lshl_add_u32 v8, v8, 7, {sBS}
        v_bfe_u32 v9, v1, 3, 1             ; (r>>1)&1
        v_lshl_add_u32 v8, v9, 6, v8
        v_bfe_u32 v9, v1, 4, 1
        v_lshl_add_u32 v8, v9, 5, v8
        v_and_b32 v9, 3, v1
        v_lshl_add_u32 v{vBL}, v9, 3, v8
        v_xor_b32 v{vBL+1}, 64, v{vBL}
        v_add_u32 v{vBH}, 0x10000, v{vBL}
        v_xor_b32 v{vBH+1}, 64, v{vBH}
        v_add_u32 v11, {8192-1024}, v10
        s_cmp_ge_u32 s15, 3
        s_addc_u32 s8, s15, 0
        s_cmp_ge_u32 {sI}, 28
        s_cselect_b32 s8, 3, s8
        s_cselect_b32 s9, s15, s77         ; m
        s_mov_b32 {sN}, s8
        s_mov_b32 {sM}, s9
        s_mul_i32 s12, {sW}, {28*16384}
        s_lshl_b32 s10, s8, 7
        s_add_u32 s12, s12, s10            ; w2 base
        s_and_b32 s10, {sX}, 6
        s_lshr_b32 s11, {sW}, 1
        s_add_u32 s10, s10, s11
        s_lshl_b32 s10, s10, 4
        s_and_b32 s11, {sX}, 1
        s_lshl_b32 s11, s11, 3
        s_add_u32 s10, s10, s11
        s_lshl_b32 s11, s9, 1
        s_add_u32 s10, s10, s11            ; + 8(x&1) + 2m
        s_mul_i32 s10, s10, 56
        s_and_b32 s11, {sW}, 1
        s_mul_i32 s3, s11, 28
        s_add_u32 s10, s10, s3
        s_lshl_b32 s10, s10, 10
        s_add_u32 s13, s10, {WS_H}         ; h base
        s_lshl_b32 s11, s11, 8
        v_xor_b32 v8, s11, v7              ; (l ^ 16(w&1))*16
        s_lshr_b32 s11, {sW}, 1
        s_mul_i32 s3, s11, {56*1024}
        v_add_u32 v12, s3, v8
        s_sub_u32 s3, {56*1024}, s3
        v_add_u32 v13, s3, v8
        s_add_u32 s10, s8, s9
        """)
        g = self.o.get("g2rot", 2)
        if g == 2:
            a.e("s_lshl_b32 s10, s10, 1")
        elif g == 1:
            a.e("s_mov_b32 s10, 0")
        if self.o.get("sprot", 0):
            a.e(f"s_cmp_ge_u32 {sI}, 28\ns_cselect_b32 s10, s9, s10")
        for k in range(4):
            a.e(f"""
            s_add_u32 s11, s10, {k}
            s_and_b32 s11, s11, 3
            s_mul_i32 s3, s11, {7*16384}
            s_add_u32 {sBB[k]}, s12, s3
            s_mul_i32 s3, s11, {7*1024}
            s_add_u32 {sAB[k]}, s13, s3
            """)

    def a_setup_late(self):
        self.a.e(f"""
        s_mov_b32 s11, {sN}
        s_mov_b32 s9, {sM}
        s_lshl_b32 s12, s11, 2
        s_add_u32 s12, s12, {sW}
        s_lshr_b32 s8, {sX}, 2
        s_lshl_b32 s8, s8, 5
        s_add_u32 s8, s8, s12
        s_lshl_b32 s8, s8, {7 if self.o.get("asc", 1) else 11}
        s_add_u32 s74, s8, {WS_AF}         ; a flags
        s_lshl_b32 s8, s12, 14
        s_lshr_b32 s13, {sX}, 1
        s_lshl_b32 s13, s13, 19
        s_add_u32 s8, s8, s13
        s_add_u32 s8, s8, {WS_AT}
        s_and_b32 s13, {sX}, 1
        s_lshl_b32 s13, s13, 8
        s_lshl_b32 s10, s9, 6
        s_add_u32 s13, s13, s10
        v_lshrrev_b32 v8, 3, v1            ; dl
        v_bfe_u32 v9, v1, 2, 1             ; hf
        v_and_b32 v14, 3, v1               ; jj
        v_lshl_add_u32 v16, v9, 9, s13
        v_lshl_add_u32 v16, v14, 4, v16
        v_lshlrev_b32 v17, 7, v8
        v_xor_b32 v16, v16, v17
        v_lshl_add_u32 v16, v8, 10, v16
        v_add_u32 v16, s8, v16
        v_add_u32 v17, {8*1024}, v16       ; v16,v17: a loads
        v_mul_u32_u24 v8, 144, v8
        v_add_u32 v8, {sBS}, v8
        v_lshl_add_u32 v8, v14, 5, v8
        v_lshl_add_u32 v18, v9, 4, v8
        s_lshl_b32 s10, {sX}, 2
        s_add_u32 s10, s10, s9
        s_lshl_b32 s10, s10, 2
        s_add_u32 s10, s10, {sW}
        s_lshl_b32 s8, s10, 7
        s_add_u32 s72, s8, {WS_HF}         ; h flags
        s_add_u32 s75, s8, {WS_GF}
        v_lshl_add_u32 v29, v1, 7, s74
        v_mov_b32 v8, s75
        v_cmp_gt_u32 vcc, 16, v1
        v_cndmask_b32 v29, v8, v29, vcc
        s_lshl_b32 s8, s10, 6
        s_add_u32 s8, s8, {WS_G}
        v_lshrrev_b32 v9, 5, v1
        v_lshl_add_u32 v19, v9, 4, s8
        v_and_b32 v8, 7, v1
        v_mul_u32_u24 v20, 144, v8
        v_bfe_u32 v8, v1, 3, 1
        v_lshl_add_u32 v20, v8, 13, v20
        v_bfe_u32 v8, v1, 4, 1
        v_lshl_add_u32 v20, v8, 11, v20
        v_lshl_add_u32 v20, v9, 3, v20
        s_lshl_b32 s8, {sW}, 5
        s_add_u32 s8, s8, {L_BS}
        v_add_u32 v20, s8, v20
        v_and_b32 v8, 31, v1
        v_lshlrev_b32 v21, 12, v9
        v_lshl_add_u32 v21, v8, 1, v21
        s_lshl_b32 s70, s10, 14
        s_lshl_b32 s13, s11, 7
        s_add_u32 s70, s70, s13
        s_add_u32 s71, s70, 8192
        v_add_u32 v23, {sBS}, v7
        v_xor_b32 v24, 0x800, v23
        v_xor_b32 v25, 0x1000, v23
        v_xor_b32 v26, 0x1800, v23
        """)

    def t_job(self):
        a = self.a
        o = self.o
        a.e(f"""
        s_sub_u32 s8, {sI}, 28
        s_lshl_b32 s9, {sX}, 2
        s_add_u32 s71, s8, s9
        s_lshl_b32 s8, s71, 2
        s_add_u32 s70, s8, {sW}
        s_lshl_b32 s72, s70, 11
        s_add_u32 s72, s72, {WS_UT}
        s_lshl_b32 s8, s70, 8
        s_and_b32 s8, s8, 0x300
        v_xor_b32 v14, s8, v7
        v_xor_b32 v15, 0x80, v14
        s_lshl_b32 s8, s70, 14
        """)
        for q in range(4):
            for r in range(4):
                a.e(f"buffer_load_dwordx4 {v(32+16*q+4*r,4)}, v7, {R_U}, s8 offen offset:{r*1024}", tag=f"T{q//2}")
            a.e("s_add_u32 s8, s8, 4096")
            if q == 0 and o.get("pb", 1):
                a.e("s_barrier")
            if q == o.get("spb", 2):
                a.e("s_barrier")
            if q == 1:
                self.epoch_master()
                a.e("v_and_b32 v8, 1, v1\nv_lshlrev_b32 v8, 21, v8")
                a.e(f"buffer_load_dword v6, v8, {R_WS}, 0 offen offset:128", tag="TL")
        a.e(f"global_load_dwordx4 v[96:99], v7, {P_GW}", tag="GW")
        if o.get("x3", 0):
            a.e("""
            s_xor_b32 s10, s70, 16
            s_lshl_b32 s10, s10, 14
            s_add_u32 s9, s10, 8192
            v_lshrrev_b32 v8, 3, v1
            v_lshlrev_b32 v8, 10, v8
            v_and_b32 v9, 7, v1
            v_lshl_add_u32 v8, v9, 4, v8
            """)
            a.e(f"buffer_load_dwordx4 v[248:251], v8, {R_U}, s10 offen offset:384", tag="X3")
            a.e(f"buffer_load_dwordx4 v[252:255], v8, {R_U}, s9 offen offset:384", tag="X3")
        a.e("""
        s_mov_b32 s12, 0x05040100
        s_mov_b32 s13, 0x07060302
        """)
        for blk in range(2):
            a.wait(vm=f"T{blk}")
            self.stamp(f"t{blk}")
            if blk == 1:
                a.e(f"global_load_dword v2, v3, {P_DBG} sc1", tag="EP")
            for c8 in range(8):
                t = 100 + 4 * c8
                for k in range(4):
                    r0 = 32 + 32 * blk + 8 * k + c8 // 2
                    a.e(f"v_perm_b32 v{t+k}, v{r0+4}, v{r0}, s{12+(c8&1)}")
                a.e(f"s_add_u32 s8, s72, {c8*262144}")
                a.e(f"buffer_store_dwordx4 {v(t,4)}, v{14+blk}, {R_WS}, s8 offen offset:{blk*1024} sc1", tag="Ust")
        self.stamp("tst")
        a.wait(vm="GW")
        for q in range(4):
            for r in range(8):
                a.e(f"v_dot2_f32_bf16 v{132+r}, v{32+4*r+q}, v{96+q}, {'0' if q == 0 else 'v%d' % (132+r)}")
        self.gate_tail()
        self.drain(len(self.bg) - 1)
        a.wait(vm="EP")
        a.e(f"v_readfirstlane_b32 {sEP}, v2")
        self.epoch_get(issued=True)
        a.e(f"s_lshl_b32 s10, s71, 7\ns_add_u32 s10, s10, {WS_TF}\nv_mov_b32 v10, 1")
        a.wait(vm="Ust")
        a.e("s_mov_b64 exec, 1")
        a.e(f"ds_add_rtn_u32 v10, v3, v10 offset:{L_CNT+4}")
        a.e("s_mov_b64 exec, -1")
        a.wait(lg=0)
        a.e("v_readfirstlane_b32 s8, v10\ns_cmp_eq_u32 s8, 3\ns_cbranch_scc0 L_ntp")
        if self.o.get("sat", 1):
            self.publish("s10")
        else:
            a.e("v_lshlrev_b32 v8, 2, v1\ns_mov_b32 exec_hi, 0")
            a.raw(f"buffer_store_dword v2, v8, {R_WS}, s10 offen sc1")
            a.e("s_mov_b32 exec_hi, -1")
        a.label("L_ntp")
        self.stamp("tpub")
        self.drain()
        a.e(f"s_setprio {o.get('sprio', 0)}")
        a.e(f"s_mul_i32 s9, s70, {14*1024}")
        for k in range(14 if o.get("w2warm", 1) else 0):
            a.e(f"buffer_load_dwordx4 {v(192+4*k,4)}, v7, {R_W2}, s9 offen offset:{(k%4)*1024}", tag="WW")
            if k % 4 == 3:
                a.e("s_add_u32 s9, s9, 4096")
        a.e(f"s_lshl_b32 s9, s70, 7\ns_add_u32 s9, s9, {WS_GF}")
        a.wait(vm="Tst")
        self.publish("s9", line=True)
        self.gpub = True
        a.e(f"""
        s_mul_i32 s8, {sW}, {28*16384}
        s_sub_u32 s9, {sI}, 28
        s_lshl_b32 s9, s9, 12
        s_add_u32 s8, s8, s9
        """)
        steps = [x for k_ in range(o.get("pf0", 14), 14) for x in (k_, k_ + 14)]
        for n_, st in enumerate(steps):
            a.e(f"s_add_u32 s9, s8, {st*16384}")
            for k in range(4):
                a.e(f"buffer_load_dwordx4 {v(32+16*(n_%4)+4*k,4)}, v7, {R_W2}, s9 offen offset:{k*1024}", tag="WW")
        self.stamp("pfd")
        a.e(f"s_setprio {o.get('sprio2', 2)}")

    def push_b_issue(self):
        i = self.b_iss
        if i >= 28:
            return
        assert i - self.b_con < BSN
        self.b_iss += 1
        if i >= BSN and not self.no_lg:
            self.pushw(lg=f"BR{i-BSN}")
        if i >= self.o.get("bskip", 99):
            self.pushf(lambda: self.a.vm.append(f"B{i}"))
            self.pushf(lambda: self.a.vm.pop())
            self.skipped.add(i)
            return
        self.push(f"""
        s_add_u32 m0, {sBS}, {(i % BSN)*8192}
        s_add_u32 s14, {sBB[0 if self.o.get('bfake') else i//7]}, {(i%(6 if self.o.get('bfake') else 7))*16384}
        buffer_load_dwordx4 v10, {R_W2}, s14 offen lds
        buffer_load_dwordx4 v11, {R_W2}, s14 offen offset:1024 lds
        """, tag=f"B{i}")

    def push_b_consume(self):
        i = self.b_con
        if i >= 28:
            return
        assert i < self.b_iss
        self.b_con += 1
        if i not in self.skipped:
            self.pushw(vm=f"B{i}")
        p = (i % BSN) * 8192
        ad, off = (vBL, p) if p < 65536 else (vBH, p - 65536)
        for cb in range(2):
            for hh in range(2):
                self.push(f"ds_read_b64_tr_b16 {v(vB0+8*(i%NBR)+4*cb+2*hh,2)}, v{ad+cb} offset:{off+hh*1024}", tag=f"BR{i}")

    def g1(self):
        a = self.a

        def reads(kap):
            s, ks = divmod(kap, 4)
            slot = s % 3
            b = 32 + 16 * (kap % 2)
            L = []
            for fb in range(2):
                wa, wo = (28 + fb, WPOS[slot] - WPOS[0]) if slot < 2 else (vW2 + fb, 0)
                for hh in range(2):
                    L.append(f"ds_read_b64_tr_b16 {v(b+8+4*fb+2*hh,2)}, v{wa} offset:{wo+ks*4096+hh*1024}")
                L.append(f"ds_read_b128 {v(b+4*fb,4)}, v{24+ks} offset:{XPOS[slot]-XPOS[2]+fb*4096}")
            return L

        def mf(kap, fb, tb):
            b = 32 + 16 * (kap % 2)
            d = 192 + 16 * (2 * fb + tb)
            c = "0" if kap == 0 else v(d, 16)
            return f"v_mfma_f32_32x32x16_bf16 {v(d,16)}, {v(b+8+4*fb,4)}, {v(b+4*tb,4)}, {c}"

        a.e("v_mov_b32 v9, 1")
        a.wait(vm="D0")
        a.e("s_barrier")
        self.stamp("g1s")
        for r in reads(0):
            a.e(r, tag="R0")
        nb = {5: 2, 6: 4}
        for kap in range(32):
            s, ks = divmod(kap, 4)
            if ks == 3 and kap < 31:
                a.wait(vm=f"D{s+1}" if f"D{s+1}" in a.vm else None, lg=0)
                if s + 1 < self.o.get("nb", 8):
                    a.e("s_barrier")
                else:
                    self.arrive("v3", "v9", L_CNT + 4)
                    self.acount += 4
                self.stamp(f"st{s+1}")
                if s == self.o.get("bub", -1):
                    a.e("s_sleep 10")
                if s + 1 < self.o.get("nb", 8):
                    for _ in range(nb.get(s, 0) if self.o.get("bearly", 1) else 0):
                        self.push_b_issue()
            elif kap == 29 and self.o.get("nb", 8) == 7 and self.o.get("bearly", 1):
                self.await_("v3", L_CNT + 4, 4)
                for _ in range(self.o.get("be2", 3)):
                    self.push_b_issue()
            else:
                a.wait(lg=f"R{kap}")
            nxt = reads(kap + 1) if kap < 31 else []
            ms = [mf(kap, 0, 0), mf(kap, 0, 1), mf(kap, 1, 0), mf(kap, 1, 1)]
            per = [2, 2, 2, 0]
            for i, m in enumerate(ms):
                a.e(m if not (self.o.get("g1half") and i % 2) else "s_nop 7")
                for _ in range(per[i]):
                    if nxt:
                        a.e(nxt.pop(0), tag=f"R{kap+1}")
                self.drain(1)
        self.drain()
        self.arrive("v3", "v9", L_CNT + 4)
        self.acount += 4
        self.stamp("g1e")

    def h_stores(self, hook=None):
        a = self.a
        hd = self.o.get("hdiag", 0)
        if hd == 1:
            a.e(f"s_mov_b32 {sH0}, {WS_SIZE}\ns_mov_b32 {sH1}, {WS_SIZE}")
        if hd == 2:
            a.e(f"s_mul_i32 s8, {sX}, 112\ns_lshl2_add_u32 s8, {sI}, s8\ns_add_u32 s8, s8, {sW}\ns_lshl_b32 s8, s8, 13\ns_add_u32 {sH0}, s8, {WS_H}\ns_add_u32 {sH1}, {sH0}, 4096")
        k = 0
        for fb in range(2):
            for tb in range(2):
                d = 192 + 16 * (2 * fb + tb)
                for half in range(2):
                    t = 32 + 4 * k
                    k += 1
                    for j in range(4):
                        a.e(f"v_cvt_pk_bf16_f32 v{t+j}, v{d+8*half+2*j}, v{d+8*half+2*j+1}")
                    for j in range(4):
                        a.e(f"v_pk_max_i16 v{t+j}, v{t+j}, 0" if hd != 3 else f"v_mov_b32 v{t+j}, 0")
                    a.e(f"buffer_store_dwordx4 {v(t,4)}, v7, {R_WS}, {sH0 if tb == 0 else sH1} offen offset:{(2*fb+half)*1024} {['sc1', 'sc0 sc1', 'sc1 nt'][self.o.get('hfl', 0)]}", tag="Hst")
                    if hook:
                        hook(k)
        self.stamp("hiss")

    def a_load(self, i):
        r = vA0 + 8 * (i % NAR)
        return f"""
        s_add_u32 s15, {sAB[0 if self.o.get('afake') else i//7]}, {(i%7)*1024}
        buffer_load_dwordx4 {v(r,4)}, v12, {R_WS}, s15 offen {["sc1", "", "nt", "sc0 sc1"][self.o.get("afl", 0)]}
        buffer_load_dwordx4 {v(r+4,4)}, v13, {R_WS}, s15 offen {["sc1", "", "nt", "sc0 sc1"][self.o.get("afl", 0)]}
        """

    def g2(self, PRE):
        a = self.a
        o = self.o
        TAIL = o.get("tail", 3)
        apos, achk = o.get("apos", 17), o.get("achk", 28 - PRE)
        mf = lambda i, rb, par: a.e(f"v_mfma_f32_32x32x16_bf16 {v(192+16*(2*rb+par),16)}, {v(vA0+8*(i%NAR)+4*rb,4)}, {v(vB0+8*(i%NBR)+4*par,4)}, {'0' if i == 0 else v(192+16*(2*rb+par),16)}")

        def rw(lam):
            rb, hf = lam >> 1, lam & 1
            for par in range(2):
                for q in range(2):
                    d = 192 + 16 * (2 * rb + par) + 8 * hf + 4 * q
                    self.push(f"ds_write_b128 v23, {v(d,4)} offset:{(2*(lam-1)+par)*8192+q*1024}", tag="RW")

        for i in range(28):
            ld = lines(self.a_load(i + PRE)) if i + PRE < 28 else []
            if i == apos:
                if o.get("asc", 1):
                    assert i > 16
                    self.spoll_issue("s74", 16)
                else:
                    a.e(f"buffer_load_dword v28, v29, {R_WS}, 0 offen sc1", tag="VA")
            if i == achk:
                self.drain()
                self.stamp("apre")
                if o.get("asc", 1):
                    self.spoll("s74", 16, sleep=4, issued=True)
                else:
                    a.wait(vm="VA")
                    a.e(f"v_cmp_ne_u32 vcc, {sEP}, v28")
                    a.e(f"s_cbranch_vccz L_pollx{self.npoll}")
                    self.vpoll("v29", "v28", sleep=4)
                self.stamp("apoll")
                a.e(f"buffer_load_dwordx4 {v(vAG,4)}, v16, {R_WS}, 0 offen sc1", tag="AL")
                a.e(f"buffer_load_dwordx4 {v(vAG+4,4)}, v17, {R_WS}, 0 offen sc1", tag="AL")
                a.e(f"buffer_load_dwordx4 {v(vAG+8,4)}, v19, {R_WS}, 0 offen sc1", tag="AL")
                a.e(f"buffer_load_dwordx4 {v(vAG+12,4)}, v19, {R_WS}, 0 offen offset:32 sc1", tag="AL")
            if a.lg.count(f"BR{i}") < 4:
                while self.b_con <= i:
                    if self.b_iss <= self.b_con:
                        self.push_b_issue()
                    self.push_b_consume()
                self.drain()
            a.wait(vm=f"A{i}", lg=f"BR{i}" if i < 17 else None)
            if i == 16:
                assert self.b_con == 28 and not self.bg
                a.wait(lg=0)
            if i == 0:
                self.stamp("g2s")
            self.stamp(f"q{i}")
            if self.b_iss < 28 and self.b_iss - self.b_con < BSN:
                self.push_b_issue()
            if self.b_con < 28 and self.b_con - i < NBR and self.b_con < self.b_iss and (self.b_iss - self.b_con >= o.get("blag", 4) or self.b_iss == 28):
                self.push_b_consume()
            k = 0
            for rb in ((0, 1) if i < 28 - TAIL else (1,)):
                for par in range(2):
                    mf(i, rb, par)
                    if ld and k == 0:
                        a.e(ld[0])
                        a.e(ld[1], tag=f"A{i+PRE}")
                        a.e(ld[2], tag=f"A{i+PRE}")
                    self.drain(3)
                    k += 1
        self.drain()
        rw(2)
        rw(3)
        n = 0
        for i in range(28 - TAIL, 28):
            for par in range(2):
                mf(i, 0, par)
                n += 1
                if n >= 2:
                    self.drain(2)
        self.stamp("g2e")
        self.drain()
        a.wait(vm=0)
        a.e(f"ds_write_b128 v18, {v(vAG,4)} offset:{6*8192}", tag="AW")
        a.e(f"ds_write_b128 v18, {v(vAG+4,4)} offset:{7*8192}", tag="AW")
        rw(1)
        self.drain()

    def final(self):
        a = self.a
        a.wait(lg=0)
        a.e("s_barrier")
        self.stamp("fbar")
        for par in range(2):
            for q in range(2):
                a.e(f"ds_read_b64 {v(80+4*par+2*q,2)}, v20 offset:{6*8192+par*4096+16*q}", tag="AR")
        for q in range(2):
            for lam in range(1, 4):
                for par in range(2):
                    a.e(f"ds_read_b128 {v(32+16*(lam-1)+8*par+4*q,4)}, v{23+lam} offset:{(2*(lam-1)+par)*8192+q*1024}", tag=f"RR{q}{lam}")
        a.wait(lg="AR")
        for q in range(2):
            for par in range(2):
                s_ = 80 + 4 * par + 2 * q
                d_ = 224 + 8 * par + 4 * q
                a.e(f"v_lshlrev_b32 v{d_}, 16, v{s_}")
                a.e(f"v_and_b32 v{d_+1}, 0xffff0000, v{s_}")
                a.e(f"v_lshlrev_b32 v{d_+2}, 16, v{s_+1}")
                a.e(f"v_and_b32 v{d_+3}, 0xffff0000, v{s_+1}")
        for q in range(2):
            hs = (2 * q, 2 * q + 1)
            for lam in range(1, 4):
                a.wait(lg=f"RR{q}{lam}")
                for par in range(2):
                    for h in hs:
                        d = 192 + 16 * par + 2 * h
                        a.e(f"v_pk_add_f32 {v(d,2)}, {v(d,2)}, {v(32+16*(lam-1)+8*par+2*h,2)}")
            for par in range(2):
                for h in hs:
                    d = 192 + 16 * par + 2 * h
                    s_ = 224 + 8 * par + 2 * h
                    a.e(f"v_pk_add_f32 {v(s_,2)}, {v(s_,2)}, {v(d,2)} neg_lo:[0,1] neg_hi:[0,1]")
            for h in hs:
                for par in range(2):
                    d = 192 + 16 * par + 2 * h
                    s_ = 224 + 8 * par + 2 * h
                    a.e(f"v_pk_fma_f32 {v(d,2)}, {v(s_,2)}, {v(vAG+8+2*h,2)}, {v(d,2)}")
            for r in range(4 * q, 4 * q + 4):
                a.e(f"v_cvt_pk_bf16_f32 v{240+r}, v{192+r}, v{208+r}")
            for r in range(4 * q, 4 * q + 4):
                so = 's70' if r < 4 else 's71'
                a.e(f"buffer_store_short v{240+r}, v21, {R_OUT}, {so} offen offset:{(r%4)*1024}", tag="O")
                a.e(f"buffer_store_short_d16_hi v{240+r}, v21, {R_OUT}, {so} offen offset:{(r%4)*1024+64}", tag="O")

    def role_a(self):
        a = self.a
        o = self.o
        self.a_prologue()
        a.e(f"s_cmp_ge_u32 {sI}, 28")
        a.e("s_cbranch_scc1 L_spare")
        vm0, lg0 = list(a.vm), list(a.lg)
        ops = self.dma_ops(0, False) + self.dma_ops(1)
        if o.get("a2", 1):
            ops += self.dma_ops(2)
        n1 = o.get("n1", 11)
        for k_, (x, t) in enumerate(ops[:n1]):
            a.e(x, tag=t)
            self.stamp(f"i{k_}")
            if k_ + 1 == o.get("pb", 1):
                a.e("s_barrier")
        self.stamp("d0iss")
        self.a_prologue2()
        self.a_setup_g1()
        if o.get("ftouch", 0):
            a.e(f"buffer_load_dword v6, v3, {R_WS}, {sHF} offen sc1", tag="FT")
        self.a_setup_g2()
        for x, t in ops[n1:]:
            a.e(x, tag=t)
        self.stamp("d2iss")
        self.g1()
        nearly = self.b_iss

        def ring_free():
            for _ in range(nearly):
                self.push_b_consume()
            self.drain()
            self.await_("v3", L_CNT + 4, self.acount)

        def issue(n):
            for _ in range(n):
                self.push_b_issue()
            self.drain()

        def pub():
            self.await_("v3", L_CNT + 8, 1)
            a.e(f"s_mov_b32 {sEP}, s8\nv_mov_b32 v2, v8\ns_mov_b32 s68, s8\ns_mov_b32 s69, s8")
            a.wait(vm="Hst")
            self.publish(sHF)
            self.stamp("hpub")

        sg = o.get("stag", 0)
        if sg:
            a.e(f"s_bitcmp1_b32 {sI}, 0")
            a.e("s_cbranch_scc0 L_st0")
            keep = (list(a.vm), list(a.lg), self.b_iss, self.b_con)
            ring_free()
            issue(sg)
            self.h_stores()
            pub()
            a.e("s_branch L_join")
            a.label("L_st0")
            a.e("s_nop 7")
            a.vm, a.lg, self.b_iss, self.b_con = keep
        if o.get("pace", 0):
            def hook(k):
                if k == 2:
                    ring_free()
                if k in (2, 4, 6):
                    issue(o["pace"])
            self.h_stores(hook)
        else:
            self.h_stores()
            ring_free()
        issue(o.get("bh", 5))
        pub()
        issue(max(0, sg - o.get("bh", 5)))
        a.e("s_branch L_join")
        a.label("L_spare")
        vm_main, lg_main = list(a.vm), list(a.lg)
        bi = self.b_iss
        a.vm, a.lg = vm0, lg0
        self.b_iss = self.b_con = 0
        self.a_prologue2()
        self.t_job()
        self.a_setup_g2()
        for _ in range(nearly):
            self.push_b_issue()
        self.drain()
        if not self.gpub:
            a.e(f"s_lshl_b32 s9, s70, 7\ns_add_u32 s9, s9, {WS_GF}")
            a.wait(vm="Tst")
            self.publish("s9", line=True)
        for _ in range(nearly):
            self.push_b_consume()
        while self.b_iss < bi:
            self.push_b_issue()
        self.drain()
        a.wait(vm=0, lg=0)
        a.vm, a.lg = vm_main, lg_main
        a.label("L_join")
        self.a_setup_late()
        bt = o.get("bt", NBR + BSN)
        hq = o.get("hq", 3)
        while self.b_iss < bt:
            if self.b_iss == bt - hq:
                assert bt - self.b_con <= BSN
                self.pushw(lg=0)
                self.pushf(lambda: self.spoll_issue("s72", 8))
                self.no_lg = True
            if not self.no_lg and self.b_con < NBR and self.b_iss - self.b_con >= o.get("blag0", 5):
                self.push_b_consume()
            self.push_b_issue()
        self.no_lg = False
        self.drain()
        self.stamp("biss")
        self.spoll("s72", 8, sleep=3, issued=True)
        self.stamp("hpoll")
        a.e(f"s_setprio {o.get('gprio', 0)}")
        PRE = o.get("g2pre", NAR - 1)
        for i in range(PRE):
            a.e(self.a_load(i), tag=f"A{i}")
            if self.b_con < NBR and self.b_con < self.b_iss:
                self.push_b_consume()
                self.drain()
        self.g2(PRE)
        self.final()

    def role_b(self):
        a = self.a
        o = self.o
        a.vm, a.lg = ["P"] * 8, []
        if not o.get("bnear", 0):
            a.vm = []
            a.label("L_roleB0")
            self.b_first()
        a.label("L_roleB")
        self.common2()
        a.e("s_mov_b64 s[48:49], s[16:17]")
        a.e(f"ds_write_b32 v3, v3 offset:{L_CNT}", tag="Z")
        a.e(f"ds_write_b32 v3, v3 offset:{L_CNT+4}", tag="Z")
        a.e(f"ds_write_b32 v3, v3 offset:{L_CNT+8}", tag="Z")
        a.wait(lg=0)
        a.e(f"s_cmp_lt_u32 {sI}, 28")
        a.e("s_cbranch_scc1 L_nzb")
        a.e("s_barrier")
        a.label("L_nzb")
        self.tlb_touch()
        self.dma_voffs()
        a.e(f"""
        s_mov_b64 s[52:53], s[36:37]
        s_lshl_b32 {sTM0}, {sW}, 8
        s_add_u32 {sTM1}, {sTM0}, {TSPLIT*TROW}
        s_lshr_b32 s8, {sW}, 1             ; channel
        s_lshl_b32 s9, s8, 9
        v_and_b32 v8, 15, v1
        v_lshrrev_b32 v9, 4, v1
        v_lshl_add_u32 v10, v9, 4, s9      ; base + g*16
        s_movk_i32 s10, {TROW}
        v_add_u32 v12, {XB}, v8
        v_mad_u32_u24 v{vKX}, v12, s10, v10
        s_and_b32 s11, {sW}, 1
        s_cmp_eq_u32 s11, 0
        s_cselect_b64 vcc, -1, 0
        v_lshrrev_b32 v11, 2, v8           ; gi
        v_and_b32 v4, 3, v8                ; r
        v_min_u32 v5, 2, v4                ; min(r,2)
        v_lshrrev_b32 v13, 1, v11
        v_lshl_add_u32 v12, v11, 1, v13
        v_add3_u32 v12, v12, v5, {YB[2]}
        v_add_u32 v13, {YB[0]}, v8
        v_cndmask_b32 v12, v12, v13, vcc
        v_mad_u32_u24 v{vKY}, v12, s10, v10
        v_mad_u32_u24 v12, v11, 3, v5
        v_add_u32 v12, {YB[4]}, v12
        v_min_u32 v13, 14, v8
        v_add_u32 v13, {YB[0]+4}, v13
        v_cndmask_b32 v12, v12, v13, vcc
        v_mad_u32_u24 v{vKY+1}, v12, s10, v10
        v_lshl_add_u32 v12, v11, 1, v4
        v_add_u32 v12, {YB[1]}, v12
        v_mad_u32_u24 v{vKY+2}, v12, s10, v10
        s_mul_i32 s9, s8, {4*KCP}
        v_lshlrev_b32 v11, 5, v8           ; 32j
        v_sub_u32 v11, s9, v11             ; base - 32j
        v_lshlrev_b32 v12, 3, v9
        v_sub_u32 v12, v11, v12
        v_add_u32 v12, {4088-512}, v12
        v_lshrrev_b32 v13, 1, v9
        v_lshlrev_b32 v13, 9, v13
        v_and_b32 v4, 1, v9
        v_lshl_add_u32 v13, v4, 4, v13     ; 512(g>>1) + 16(g&1)
        v_sub_u32 v13, v11, v13
        v_add_u32 v13, {4080-1024}, v13
        v_cndmask_b32 v{vKWA}, v13, v12, vcc
        v_lshlrev_b32 v13, 9, v9
        v_sub_u32 v13, v11, v13
        v_add_u32 v{vKWB}, {4064-2048}, v13
        s_movk_i32 s10, {KCP}
        v_lshrrev_b32 v11, 3, v1
        v_and_b32 v12, 7, v1
        v_lshlrev_b32 v12, 3, v12
        v_mad_u32_u24 v12, v11, s10, v12
        s_add_u32 s12, s9, 4096
        v_add_u32 v{vKZ}, s12, v12
        v_add_u32 v11, 1, v8
        v_and_b32 v11, 3, v11              ; sigma
        v_sub_u32 v12, 18, v8
        v_and_b32 v12, 28, v12
        v_lshl_add_u32 v12, v9, 3, v12
        v_lshlrev_b32 v12, 1, v12
        v_mad_u32_u24 v12, v11, s10, v12
        s_xor_b32 s13, s11, 1
        s_lshl_b32 s13, s13, 8             ; hw=0 (q0 0..3) -> +256 B
        s_add_u32 s12, s9, s13
        v_add_u32 v{vCA}, s12, v12
        v_lshlrev_b32 v12, 5, v8
        v_lshl_add_u32 v12, v9, 4, v12
        s_mul_i32 s12, s8, {UP}
        s_add_u32 s12, s12, {L_U}
        s_add_u32 s13, s12, s13
        v_add_u32 v{vCB}, s13, v12
        v_min_u32 v11, 59, v1
        v_lshl_add_u32 v{vUZ}, v11, 3, s12
        v_mov_b32 v5, 1
        """)
        a.e(f"""
        v_lshrrev_b32 v8, 1, v1
        v_and_b32 v9, 1, v1
        v_and_b32 v10, 7, v8
        v_lshlrev_b32 v10, 7, v10
        s_lshl_b32 s9, {sI}, 5
        v_xor_b32 v10, s9, v10
        v_lshl_add_u32 v10, v8, 10, v10
        v_lshl_add_u32 v{vUG}, v9, 4, v10
        s_lshl_b32 s8, {sW}, 16            ; 64w*1024
        s_lshl_b32 s9, {sX}, 18
        s_add_u32 s8, s8, s9
        s_add_u32 {sUG0}, s8, {WS_UT}
        s_add_u32 {sUG1}, {sUG0}, {32*1024}
        s_movk_i32 s8, {UP}
        v_lshlrev_b32 v8, 4, v8
        v_mad_u32_u24 v8, v9, s8, v8
        s_lshl_b32 s8, {sW}, 10
        s_add_u32 s9, s8, {L_U + 480}
        v_add_u32 v{vUW}, s9, v8
        s_lshl_b32 s8, {sW}, 10
        s_add_u32 s8, s8, {WS_TF}
        v_and_b32 v8, 7, v1
        v_lshl_add_u32 v{vTF}, v8, 7, s8
        s_lshl_b32 s8, s77, 10
        s_lshl_b32 s10, s11, 20
        s_add_u32 s8, s8, s10
        s_add_u32 {sAT}, s8, {WS_AT}
        s_add_u32 s38, {sAT}, 0x80000
        s_lshl_b32 s8, {sX}, 7             ; d & 7 = x
        v_xor_b32 v255, s8, v7
        """)
        if o.get("asc", 1):
            a.e(f"""
            s_lshl_b32 s8, s11, 12
            s_lshr_b32 s10, s77, 4
            s_lshl_b32 s10, s10, 7
            s_add_u32 s8, s8, s10
            s_and_b32 s10, s77, 15
            s_lshl2_add_u32 s8, s10, s8
            s_add_u32 {sAF}, s8, {WS_AF}
            """)
        else:
            a.e(f"""
            s_lshl_b32 s8, s11, 16
            s_lshl_b32 s10, s77, 7
            s_add_u32 s8, s8, s10
            s_add_u32 {sAF}, s8, {WS_AF}
            """)
        if o.get("atouch", 0):
            a.e(f"buffer_load_dword v6, v3, {R_WS}, {sAF} offen sc1", tag="FT")
        a.e(f"""
        s_lshl_b32 s8, {sW}, 12
        s_add_u32 s8, s8, {L_EX}
        v_add_u32 v{vEXO}, s8, v7
        s_xor_b32 s8, {sW}, 1
        s_lshl_b32 s8, s8, 12
        s_add_u32 s8, s8, {L_EX}
        v_add_u32 v{vEXD}, s8, v7
        """)
        self.push_kgen()
        chunk = o.get("kch", 64)

        def gather():
            if o.get("noug", 0):
                return
            a.raw(f"buffer_load_dwordx4 v[176:179], v{vUG}, {R_WS}, {sUG0} offen sc1")
            a.raw(f"buffer_load_dwordx4 v[236:239], v{vUG}, {R_WS}, {sUG1} offen sc1")

        def look():
            a.e(f"global_load_dword v2, v3, {P_DBG} sc1", tag="PT")
            a.e(f"buffer_load_dword v9, v{vTF}, {R_WS}, 0 offen sc1", tag="PT")

        def tag():
            a.wait(vm=0)
            a.e(f"v_readfirstlane_b32 {sEP}, v2")
            self.epoch_get(issued=True)
            a.e(f"ds_write_b32 v3, v2 offset:{L_CNT+8}")

        def check(lab):
            a.wait(vm=0)
            a.e(f"v_cmp_ne_u32 vcc, {sEP}, v9")
            a.e(f"s_cbranch_vccz {lab}y")
            a.raw(f"buffer_load_dword v9, v{vTF}, {R_WS}, 0 offen sc1")
            a.e(f"s_branch {lab}")
            a.label(f"{lab}y")
            a.e("s_mov_b32 s14, 0")
            gather()

        def kmf():
            a.e(f"""
            s_and_b32 s8, {sW}, 1
            s_lshl_b32 s8, s8, 6
            v_cmp_eq_u32 vcc, s8, v1
            v_mov_b32 v217, 0
            v_mov_b32 v218, 0
            v_mov_b32 v219, 0
            v_cndmask_b32 v216, 0, v183, vcc
            """)
            self.push_kmfma()
            self.drain()

        tp = o.get("tp", 6)
        tb = o.get("tb", 6)
        NB = 8
        if o.get("sphold", 1):
            a.e(f"s_cmp_lt_u32 {sI}, 28")
            a.e("s_cbranch_scc1 L_nh0")
            a.e("s_setprio 0")
            a.label("L_nh0")
        a.wait(vm="P")
        self.stamp("kgs")
        a.label(".p2align 3")
        self.drain()
        self.stamp("kge")
        ta, tb_ = o.get("ta", 62), o.get("tb", 62)
        rows = {-1: (0, ta), 0: (ta, tb_), 1: (tb_, o.get("tc", 62)), 2: (o.get("tc", 62), 62), 6: (62, NROW)}
        if o.get("sphold", 1):
            a.e(f"s_cmp_lt_u32 {sI}, 28")
            a.e("s_cbranch_scc1 L_nh1")
            self.await_("v3", L_CNT + 4, 4, sleep=2)
            a.label("L_nh1")
        self.tables(*rows[-1])
        for s in range(NB):
            a.e(f"s_cmp_lt_u32 {sI}, 28")
            a.e(f"s_cbranch_scc0 L_nl{s}")
            if f"D{s}" in a.vm:
                a.wait(vm=f"D{s}")
            a.e("s_barrier")
            if s + 2 < 8 and (s >= 1 or not o.get("a2", 1)):
                for x, t in self.dma_ops(s + 2):
                    a.e(x, tag=t)
            a.label(f"L_nl{s}")
            if s == tp + 1:
                tag()
                check("L_c1")
                a.label("L_c1")
            if s == tp:
                look()
            if s == 0:
                a.e(f"s_setprio {o.get('bprio2', 1)}")
            if s in rows:
                self.tables(*rows[s])
        self.stamp("tabd")
        self.bsync()
        kmf()
        a.e(f"s_setprio {o.get('bprio3', 3)}")
        a.e("s_cmp_eq_u32 s14, 0")
        a.e("s_cbranch_scc1 L_c2")
        check("L_c2")
        a.label("L_c2")
        self.bsync()
        self.stamp("kme")
        a.e(f"s_bitcmp1_b32 {sW}, 0")
        a.e("s_nop 4")
        a.e("s_cbranch_scc1 L_sk1")
        self.push_kexpand(0)
        self.drain()
        a.e("s_branch L_skj")
        a.label("L_sk1")
        self.push_kexpand(1)
        self.drain()
        a.label("L_skj")
        self.stamp("kw")
        a.e("s_cmp_eq_u32 s14, 0")
        a.e("s_cbranch_scc1 L_haveu")
        a.wait(vm=0)
        a.e(f"v_cmp_ne_u32 vcc, {sEP}, v9")
        a.e(f"s_cbranch_vccz L_pollx{self.npoll}")
        self.vpoll(f"v{vTF}", "v9", sleep=o.get("tsl", 2))
        gather()
        a.label("L_haveu")
        a.e("v_mov_b32 v10, 0\nv_mov_b32 v11, 0")
        a.e(f"ds_write_b64 v{vUZ}, v[10:11]", tag="Z")
        a.wait(vm=0)
        a.e(f"ds_write_b128 v{vUW}, v[176:179]", tag="UW")
        a.e(f"ds_write_b128 v{vUW}, v[236:239] offset:512", tag="UW")
        self.bsync()
        self.stamp("convs")
        a.e(f"s_setprio {self.o.get('cprio', 1)}")
        if not o.get("noconv"):
            self.conv({})
        self.stamp("conve")
        a.e(f"s_setprio {o.get('eprio', 3)}")
        self.conv_out()
        self.conv_out2()
        a.wait(vm=0)
        self.publish(sAF, line=True)
        self.stamp("apub")

    def tail(self):
        a = self.a
        o = self.o
        if o.get("amp"):
            self.stamp("end")
            a.e(f"""
            s_waitcnt lgkmcnt(0)
            s_sub_u32 s8, s82, s80
            s_lshl_b32 s8, s8, 2
            s_add_u32 s8, s8, 3000
            s_cmp_lg_u32 s2, {o['amp']}
            s_cbranch_scc1 L_end
            """)
            a.label("L_pad")
            a.e("""
            s_memrealtime s[98:99]
            s_waitcnt lgkmcnt(0)
            s_sub_u32 s98, s98, s80
            s_cmp_lt_u32 s98, s8
            s_cbranch_scc1 L_pad
            """)
        elif self.stamps:
            a.e("s_memrealtime s[100:101]" if o.get("rt") else "s_memtime s[100:101]")
            a.e("s_memrealtime s[72:73]")
            a.e("s_waitcnt lgkmcnt(0)")
            a.e(f"""
            v_readfirstlane_b32 s3, v0
            s_and_b32 s3, s3, 256
            s_add_u32 s3, s3, s2
            s_lshl_b32 s3, s3, 2
            s_add_u32 s3, s3, {sW}
            s_lshl_b32 s3, s3, 6
            s_add_u32 s3, s3, {WS_STAMP}
            s_mov_b64 exec, 1
            """)
            for k in list(range(1, len(self.names))) + [10]:
                a.e(f"s_sub_u32 s8, s{80+2*k}, s80\nv_mov_b32 v8, s8\nbuffer_store_dword v8, v3, {R_WS}, s3 offen offset:{4*k}")
            a.e(f"v_mov_b32 v8, s78\nbuffer_store_dword v8, v3, {R_WS}, s3 offen offset:44")
            a.e(f"v_mov_b32 v8, s72\nbuffer_store_dword v8, v3, {R_WS}, s3 offen offset:48")

    def build(self):
        a = self.a
        self.prologue()
        self.role_a()
        a.e("s_branch L_tail" if self.stamps else "s_endpgm")
        self.role_b()
        a.label("L_tail")
        self.tail()
        a.label("L_end")
        a.e("s_endpgm")
        hdr = open("gated_mix__ssm_conv_s4__dense_activation_relu__prompt.s.ref").read().split("; Override launch")[0]
        s = hdr + f"; @launch grid=(256,1,1) block=(512,1,1) lds={LDS_BYTES}\n"
        s += '.amdgcn_target "amdgcn-amd-amdhsa--gfx950"\n.text\n'
        s += f".globl {KNAME}\n.p2align 8\n.type {KNAME},@function\n{KNAME}:\n"
        s += a.text().replace(".p2align 3:", ".p2align 3")
        s += f""".section .rodata,"a"
.p2align 6
.amdhsa_kernel {KNAME}
  .amdhsa_next_free_vgpr 256
  .amdhsa_next_free_sgpr 102
  .amdhsa_accum_offset 256
  .amdhsa_group_segment_fixed_size 0
  .amdhsa_kernarg_size 128
  .amdhsa_user_sgpr_count 2
  .amdhsa_user_sgpr_kernarg_segment_ptr 1
  .amdhsa_system_sgpr_workgroup_id_x 1
.end_amdhsa_kernel
"""
        return s


if __name__ == "__main__":
    out = sys.argv[1]
    stamps = None
    opts = {}
    for x in sys.argv[2:]:
        if x.startswith("--stamps="):
            stamps = x.split("=")[1].split(",")
        elif "=" in x:
            opts[x.split("=")[0]] = int(x.split("=")[1])
    g = Gen(stamps=stamps, opts=opts)
    s = g.build()
    open(out, "w").write(s)
    print("instructions", sum(1 for i in g.a.ins if i.kind != "label"), "auto nops", g.a.nops, "stamps", g.names)
```

```python
import sys
from collections import deque
from emit import Asm

KNAME = "gated_mix__ssm_conv_s4__dense_activation_relu__prompt_kernel"

WS_TF = 0x1000
WS_GF = 0x5000
WS_HF = 0x40000
WS_AF = 0x60000
WS_G = 0x12000
WS_STAMP = 0x20000
WS_UT = 0x100000
WS_AT = 0x300000
WS_H = 0x500000
WS_SIZE = 0xC00000

LDS_BYTES = 163840
XPOS = [98304, 131072, 81920]
WPOS = [114688, 147456, 65536]
L_BS = 81920
BSN = 8
L_CNT = 64384
NAR = 4
NBR = 6
vA0, vB0 = 32, 96
TROW = 1056
NROW = 67
L_TAB = 0
TSPLIT = 34
L_KC = 0
KCP = 4160
L_U = 70784
UP = 4608
L_EX = 33280
XB = 51
YB = {0: 0, 1: 19, 2: 29, 3: 34, 4: 39, 5: 42, 6: 45, 7: 48}

sX, sI, sW, sEP = "s4", "s5", "s6", "s7"
P_U, P_ARE, P_AIM, P_BRE, P_BIM, P_CRE, P_CIM, P_LDT = [f"s[{16+2*i}:{17+2*i}]" for i in range(8)]
P_DSK, P_BX, P_W1, P_W2, P_GW, P_OUT, P_DBG, P_WS = [f"s[{32+2*i}:{33+2*i}]" for i in range(8)]
R_U, R_W1, R_W2, R_OUT, R_WS = "s[48:51]", "s[52:55]", "s[56:59]", "s[60:63]", "s[64:67]"
sE2 = "s[68:69]"
sH0, sH1, sHF, sUG0, sUG1, sAT, sAF, sTM0, sTM1 = "s32", "s33", "s34", "s32", "s33", "s34", "s35", "s36", "s37"
sBB = ["s36", "s37", "s38", "s39"]
sAB = ["s40", "s41", "s42", "s43"]
sBS = "s76"
sM, sN = "s30", "s31"
vKX, vKY, vKWA, vKWB, vUW, vCA, vCB, vEXD, vEXO, vUG, vKZ, vTF, vUZ, vCN = 240, 241, 244, 245, 246, 247, 248, 249, 250, 251, 252, 253, 254, 255
KRES = list(range(32, 80)) + list(range(216, 235))
vBR = 24
vAV = 12


def v(a, n=1):
    return f"v{a}" if n == 1 else f"v[{a}:{a+n-1}]"


def lines(t):
    return [x.strip() for x in t.strip().split("\n") if x.strip() and not x.strip().startswith(";")]


class Gen:
    def __init__(self, stamps=None, opts=None):
        self.a = Asm()
        self.stamps = stamps
        self.names = []
        self.o = opts or {}
        self.npoll = 0
        self.b_iss = 0
        self.b_con = 0
        self.bg = deque()
        self.lg_idle = False
        self.no_lg = False
        self.nsync = 0
        self.gpub = False
        self.skipped = set()
        self.acount = 0
        self.kc0 = 0

    def stamp(self, name):
        if self.stamps and (name == "start" or name in self.stamps):
            if name not in self.names:
                self.names.append(name)
            k = self.names.index(name)
            assert k < 10
            self.a.e(f"{'s_memrealtime' if (self.o.get('amp') or self.o.get('rt')) else 's_memtime'} s[{80+2*k}:{81+2*k}]")

    def push(self, text, tag=None):
        L = lines(text)
        k = 0
        while k < len(L):
            u = [L[k]]
            if L[k].startswith("s_cmp"):
                while k + 1 < len(L) and L[k + 1].startswith("s_cselect"):
                    k += 1
                    u.append(L[k])
            k += 1
            self.bg.append(lambda u="\n".join(u), tag=tag: self.a.e(u, tag=tag))

    def pushf(self, f):
        self.bg.append(f)

    def pushw(self, **kw):
        self.bg.append(lambda: self.a.wait(**kw))

    def drain(self, n=10**9):
        while n > 0 and self.bg:
            self.bg.popleft()()
            n -= 1

    def publish(self, soff, mask="1", voff="v3", line=False):
        a = self.a
        if self.o.get("sat", 1):
            a.e(f"s_atomic_swap {sEP}, {P_WS}, {soff}")
            return
        if line and self.o.get("fline", 1):
            a.e("v_lshlrev_b32 v8, 2, v1\ns_mov_b32 exec_hi, 0")
            a.e(f"buffer_store_dword v2, v8, {R_WS}, {soff} offen sc1", tag="flag")
            a.e("s_mov_b32 exec_hi, -1")
            return
        a.e(f"s_mov_b64 exec, {mask}")
        a.e(f"buffer_store_dword v2, {voff}, {R_WS}, {soff} offen sc1", tag="flag")
        a.e("s_mov_b64 exec, -1")

    def spoll_issue(self, soff, n):
        if self.o.get("vp", 0):
            self.a.e(f"v_min_u32 v27, 6, v1\nv_lshl_add_u32 v27, v27, 2, {soff}")
            self.a.e(f"buffer_load_dword v28, v27, {R_WS}, 0 offen sc1", tag="VP")
            return
        dst = "s16" if n == 1 else f"s[16:{15+n}]"
        self.a.e(f"s_load_dword{'' if n == 1 else 'x%d' % n} {dst}, {P_WS}, {soff} glc")
        if n == 16:
            self.a.e(f"s_load_dword s32, {P_WS}, s75 glc")

    def spoll(self, soff, n, sleep=2, issued=False):
        a = self.a
        sleep = self.o.get("psl", sleep)
        if self.o.get("vp", 0):
            a.wait(vm="VP")
            a.e(f"v_cmp_ne_u32 vcc, {sEP}, v28")
            a.e(f"s_cbranch_vccz L_pollx{self.npoll}")
            self.vpoll("v27", "v28", sleep=sleep)
            return
        k = self.npoll
        self.npoll += 1
        a.e("s_mov_b32 s3, 0")
        if not issued:
            self.spoll_issue(soff, n)
        a.label(f"L_poll{k}")
        a.e("s_waitcnt lgkmcnt(0)")
        if n == 8:
            a.e("s_mov_b32 s23, s22")
        else:
            a.e("s_mov_b32 s33, s32")
            n = 18
        for q in range(n // 2):
            a.e(f"s_xor_b64 s[{16+2*q}:{17+2*q}], s[{16+2*q}:{17+2*q}], {sE2}")
        for q in range(1, n // 2):
            a.e(f"s_or_b64 s[16:17], s[16:17], s[{16+2*q}:{17+2*q}]")
        a.e(f"s_cbranch_scc0 L_pollx{k}")
        a.e("s_add_u32 s3, s3, 1")
        a.e("s_cmp_gt_u32 s3, 4000")
        a.e(f"s_cbranch_scc1 L_pollx{k}")
        a.e(f"s_sleep {sleep}")
        self.spoll_issue(soff, min(n, 16))
        a.e(f"s_branch L_poll{k}")
        a.label(f"L_pollx{k}")

    def epoch_master(self):
        a = self.a
        a.e(f"""
        s_lshl_b32 s3, s2, 2
        s_add_u32 s3, s3, {sW}
        s_cmp_lg_u32 s3, 1023
        s_cbranch_scc1 L_nomaster
        """)
        if self.o.get("clk", 1):
            a.e("""
            s_memrealtime s[10:11]
            s_waitcnt lgkmcnt(0)
            s_max_u32 s3, s10, 1
            """)
        else:
            a.e(f"""
            s_load_dword s3, {P_WS}, 0
            s_waitcnt lgkmcnt(0)
            s_mul_i32 s3, s3, 1664525
            s_add_u32 s3, s3, 1013904223
            s_max_u32 s3, s3, 1
            """)
        a.e("v_mov_b32 v8, s3\ns_mov_b64 exec, 1")
        a.raw(f"global_store_dword v3, v8, {P_DBG} sc1")
        if not self.o.get("clk", 1):
            a.raw(f"global_store_dword v3, v8, {P_WS} sc1")
        a.e("s_mov_b64 exec, -1")
        a.label("L_nomaster")

    def epoch_issue(self):
        self.a.e(f"s_load_dword {sEP}, {P_DBG}, 0")

    def epoch_get(self, issued=False):
        a = self.a
        k = self.npoll
        self.npoll += 1
        if not issued:
            self.epoch_issue()
        a.e("s_mov_b32 s3, 0")
        a.e("s_waitcnt lgkmcnt(0)")
        a.label(f"L_ep{k}")
        a.e(f"s_cmp_lg_u32 {sEP}, 0")
        a.e(f"s_cbranch_scc1 L_epx{k}")
        a.e("s_add_u32 s3, s3, 1")
        a.e("s_cmp_gt_u32 s3, 4000")
        a.e(f"s_cbranch_scc1 L_epx{k}")
        a.e("s_sleep 2")
        a.raw(f"global_load_dword v2, v3, {P_DBG} sc1")
        a.wait(vm=0)
        a.e(f"v_readfirstlane_b32 {sEP}, v2")
        a.e("s_nop 1")
        a.e(f"s_branch L_ep{k}")
        a.label(f"L_epx{k}")
        a.e(f"s_mov_b32 s68, {sEP}\ns_mov_b32 s69, {sEP}\nv_mov_b32 v2, {sEP}")

    def vpoll(self, voff, tmp, sleep=2):
        a = self.a
        n = self.npoll
        self.npoll += 1
        a.e("s_mov_b32 s3, 0")
        a.label(f"L_poll{n}")
        a.raw(f"buffer_load_dword {tmp}, {voff}, {R_WS}, 0 offen sc1")
        a.e("s_add_u32 s3, s3, 1")
        a.wait(vm=0)
        a.e(f"v_cmp_ne_u32 vcc, {sEP}, {tmp}")
        a.e("s_cmp_gt_u32 s3, 4000")
        a.e(f"s_cbranch_scc1 L_pollx{n}")
        a.e(f"s_cbranch_vccz L_pollx{n}")
        a.e(f"s_sleep {sleep}")
        a.e(f"s_branch L_poll{n}")
        a.label(f"L_pollx{n}")

    def params_load(self):
        a = self.a
        for k, p in enumerate((P_ARE, P_AIM, P_BRE, P_BIM, P_CRE, P_CIM)):
            a.e(f"global_load_short_d16_hi v{176+k}, v24, {p}", tag="P")
        a.e(f"global_load_short_d16_hi v182, v25, {P_LDT}", tag="P")
        a.e(f"global_load_short_d16_hi v183, v25, {P_DSK}", tag="P")

    def tlb_touch(self):
        a = self.a
        if not self.o.get("tlb", 1):
            return
        a.e(f"""
        s_cmp_eq_u32 {sW}, 1
        s_cselect_b64 s[8:9], {P_W2}, {P_WS}
        s_cmp_eq_u32 {sW}, 2
        s_cselect_b64 s[8:9], {P_OUT}, s[8:9]
        s_cmp_eq_u32 {sW}, 3
        s_cselect_b64 s[8:9], {P_DBG}, s[8:9]
        s_cmp_eq_u32 {sW}, 0
        s_cselect_b32 s10, 5, 0
        s_mov_b32 s11, 21
        """)
        if self.o.get("tlb", 1) == 2:
            a.e(f"""
            s_cselect_b32 s10, 47, 27
            s_cselect_b32 s11, 18, 16
            s_cmp_eq_u32 {sW}, 3
            s_cselect_b32 s10, 0, s10
            """)
        a.e("""
        v_min_u32 v8, s10, v1
        v_lshlrev_b32 v8, s11, v8
        """)
        a.e("global_load_dword v6, v8, s[8:9] offset:128", tag="TLB")
        if self.o.get("stlb", 0):
            a.e(f"s_load_dword s60, {P_DBG}, 128")
            a.e(f"s_load_dword s61, {P_WS}, 128")

    def gate_tail(self):
        P = self.push
        for q in range(4):
            for r in range(8, 16):
                P(f"v_dot2_f32_bf16 v{132+r}, v{32+4*r+q}, v{96+q}, {'0' if q == 0 else 'v%d' % (132+r)}")
        prs = [(4*j+e_, 4*j+e_+2) for j in range(4) for e_ in range(2)]
        for p, q in prs:
            P(f"v_permlane32_swap_b32 v{132+p}, v{132+q}")
        for p, q in prs:
            P(f"v_add_f32 v{132+p}, v{132+p}, v{132+q}")
        for j in range(4):
            P(f"v_permlane16_swap_b32 v{132+4*j}, v{133+4*j}")
        for j in range(4):
            P(f"v_add_f32 v{132+4*j}, v{132+4*j}, v{133+4*j}")
        for r in (8, 4, 2, 1):
            for j in range(4):
                P(f"v_add_f32_dpp v{132+4*j}, v{132+4*j}, v{132+4*j} row_ror:{r} row_mask:0xf bank_mask:0xf")
        P(f"""
        v_and_b32 v8, 3, v1
        v_cmp_eq_u32 vcc, 1, v8
        v_cndmask_b32 v132, v132, v136, vcc
        v_cmp_eq_u32 vcc, 2, v8
        v_cndmask_b32 v132, v132, v140, vcc
        v_cmp_eq_u32 vcc, 3, v8
        v_cndmask_b32 v132, v132, v144, vcc
        v_mul_f32 v132, 0xbfb8aa3b, v132
        v_exp_f32 v132, v132
        v_lshrrev_b32 v9, 4, v1
        v_lshlrev_b32 v9, 2, v9
        v_add_f32 v132, 1.0, v132
        v_rcp_f32 v132, v132
        v_lshl_add_u32 v9, v8, 4, v9
        s_lshl_b32 s9, s70, 6
        s_add_u32 s9, s9, {WS_G}
        """)

        def st():
            a = self.a
            a.e("s_mov_b32 exec_lo, 0x000f000f\ns_mov_b32 exec_hi, 0x000f000f")
            a.e(f"buffer_store_dword v132, v9, {R_WS}, s9 offen sc1", tag="Tst")
            a.e("s_mov_b64 exec, -1")
        self.pushf(st)

    def push_kgen(self):
        P = self.push
        E = lambda k: 80 + 2 * (k - 1)
        F = lambda c: 116 + 2 * (c - 1)
        X0 = 130
        P(f"""
        v_mul_f32 v134, 0x3fb8aa3b, v182
        v_exp_f32 v134, v134
        v_pk_mul_f32 v[138:139], v[180:181], v[178:179] op_sel_hi:[1,0]
        v_cvt_pk_bf16_f32 v134, v134, v134
        v_pk_fma_f32 v[138:139], v[180:181], v[178:179], v[138:139] op_sel:[1,1,0] op_sel_hi:[0,1,1] neg_lo:[1,0,0]
        v_and_b32 v134, 0xffff0000, v134
        v_mov_b32 v{KRES[YB[0]]}, 0x3f80
        v_mul_f32 v135, v134, v176         ; zr
        v_mul_f32 v136, v134, v177         ; zi
        v_pk_mul_f32 v[{X0}:{X0+1}], v[138:139], v[134:135] op_sel_hi:[1,0]
        v_mul_f32 v135, 0x3fb8aa3b, v135
        v_mul_f32 v136, 0.15915494, v136   ; revolutions
        v_mul_f32 v142, 0x41800000, v135
        v_mul_f32 v143, 0x41800000, v136
        v_mul_f32 v144, 0x43800000, v135
        v_mul_f32 v145, 0x43800000, v136
        v_fract_f32 v141, v136
        v_fract_f32 v143, v143
        v_fract_f32 v145, v145
        v_exp_f32 v140, v135
        v_exp_f32 v142, v142
        v_exp_f32 v144, v144
        """)
        for dst, t in ((E(1), 140), (E(16), 142), (F(1), 144)):
            P(f"v_cos_f32 v{dst}, v{t+1}\nv_sin_f32 v{dst+1}, v{t+1}")
        for dst, t in ((E(1), 140), (E(16), 142), (F(1), 144)):
            P(f"v_pk_mul_f32 {v(dst,2)}, {v(dst,2)}, {v(t,2)} op_sel_hi:[1,0]")
        src = {2: (1, 1), 3: (2, 1), 4: (2, 2), 5: (4, 1), 6: (4, 2), 7: (4, 3), 8: (4, 4), 17: (16, 1), 18: (16, 2)}
        for k in range(9, 16):
            src[k] = (8, k - 8)
        ej = [(E(k), E(src[k][0]), E(src[k][1]), YB[0] + k, False) for k in (2, 17, 3, 4, 18, 5, 6, 7, 8, 9, 10, 11, 12, 13, 14, 15)]
        fsrc = {2: (1, 1), 3: (2, 1), 4: (2, 2), 5: (4, 1), 6: (4, 2), 7: (4, 3)}
        fj = [(F(c), F(fsrc[c][0]), F(fsrc[c][1]), YB[c], False) for c in range(2, 8)]
        xj = [(X0 + 2 * (k % 2), X0 + 2 * ((k - 1) % 2), E(16), XB + k, True) for k in range(1, 16)]
        pj = []
        tmp = list(range(146, 170, 2))
        ti = 0
        for c in range(1, 8):
            step = {1: 2, 2: 4, 3: 4}.get(c, 8)
            top = 19 if c == 1 else 17
            for n_, rho in enumerate(range(step, top, step)):
                pj.append((tmp[ti % len(tmp)], F(c), E(rho), YB[c] + 1 + n_, False))
                ti += 1
        others = []
        q1, q2 = list(ej), list(fj)
        while q1 or q2:
            if q1:
                others.append(q1.pop(0))
            if q2:
                others.append(q2.pop(0))
        others += pj
        order = []
        xs = list(xj)
        while others or xs:
            grp = []
            if xs:
                grp.append(xs.pop(0))
            while others and len(grp) < 4:
                j = others[0]
                if any(g[0] in (j[1], j[2]) or g[0] == j[0] for g in grp):
                    break
                grp.append(others.pop(0))
            order.append(grp)
        put = lambda reg, row, neg: P(f"v_cvt_pk_bf16_f32 v{KRES[row]}, v{reg}, {'-' if neg else ''}v{reg+1}")
        prev = [(X0, 0, 0, XB, True), (E(1), 0, 0, YB[0] + 1, False), (E(16), 0, 0, YB[0] + 16, False), (F(1), 0, 0, YB[1], False)]
        for gi, grp in enumerate(order):
            pk = gi < self.o.get("pkg", 99)
            for (d, x, y, row, neg) in grp:
                if pk:
                    P(f"v_pk_mul_f32 {v(d,2)}, {v(x,2)}, {v(y,2)} op_sel_hi:[1,0]")
                else:
                    P(f"v_mul_f32 v{d}, v{x}, v{y}\nv_mul_f32 v{d+1}, v{x+1}, v{y}")
            for (d, x, y, row, neg) in prev:
                put(d, row, neg)
            for (d, x, y, row, neg) in grp:
                if pk:
                    P(f"v_pk_fma_f32 {v(d,2)}, {v(x,2)}, {v(y,2)}, {v(d,2)} op_sel:[1,1,0] op_sel_hi:[0,1,1] neg_lo:[1,0,0]")
                else:
                    P(f"v_fma_f32 v{d}, -v{x+1}, v{y+1}, v{d}\nv_fmac_f32 v{d+1}, v{x}, v{y+1}")
            prev = grp
            if gi + 1 == self.o.get("pkg", 99):
                self.kc0 = len(self.bg)
        for (d, x, y, row, neg) in prev:
            put(d, row, neg)

    def tables(self, r0, r1):
        a = self.a
        for row in range(r0, r1):
            if row in (r0, TSPLIT):
                a.e(f"s_mov_b32 m0, {sTM1 if row >= TSPLIT else sTM0}")
            a.e(f"ds_write_addtid_b32 v{KRES[row]} offset:{(row - (TSPLIT if row >= TSPLIT else 0)) * TROW}", tag="TB")

    def arrive(self, vaddr, vone, off):
        a = self.a
        a.e("s_mov_b64 exec, 1")
        a.e(f"ds_add_u32 {vaddr}, {vone} offset:{off}")
        a.e("s_mov_b64 exec, -1")

    def await_(self, vaddr, off, count, sleep=0):
        a = self.a
        k = self.npoll
        self.npoll += 1
        a.e("s_mov_b32 s3, 0")
        a.label(f"L_bs{k}")
        if sleep:
            a.e(f"s_sleep {sleep}")
        a.e(f"ds_read_b32 v8, {vaddr} offset:{off}")
        a.e("s_add_u32 s3, s3, 1")
        a.wait(lg=0)
        a.e("v_readfirstlane_b32 s8, v8")
        a.e("s_cmp_gt_u32 s3, 100000")
        a.e(f"s_cbranch_scc1 L_bsx{k}")
        a.e(f"s_cmp_lt_u32 s8, {count}")
        a.e(f"s_cbranch_scc1 L_bs{k}")
        a.label(f"L_bsx{k}")

    def bsync(self):
        self.nsync += 1
        self.a.wait(lg=0)
        self.arrive("v3", "v5", L_CNT)
        self.await_("v3", L_CNT, 4 * self.nsync)

    def push_kmfma(self):
        YR = [64, 68, 72, 76] + list(range(184, 216, 4))
        NY = len(YR)
        AH = 8
        seq = [(ks, c) for ks in range(8) for c in range(3)]
        for ks in range(8):
            self.push(f"ds_read_b128 {v(32+4*ks,4)}, v{vKX} offset:{64*ks}", tag="KX")
        yr = lambda n_: self.push(f"ds_read_b128 {v(YR[n_%NY],4)}, v{vKY+seq[n_][1]} offset:{64*seq[n_][0]}", tag=f"KY{n_}")
        for n_ in range(AH):
            yr(n_)
        for n_, (ks, c) in enumerate(seq):
            d = 216 + 4 * c
            cc = "0" if (ks == 0 and c != 0) else v(d, 4)

            def f(n_=n_, d=d, cc=cc, ks=ks):
                self.a.wait(lg=f"KY{n_}")
                self.a.e(f"v_mfma_f32_16x16x32_bf16 {v(d,4)}, {v(YR[n_%NY],4)}, {v(32+4*ks,4)}, {cc}")
            self.pushf(f)
            if n_ + AH < 24:
                yr(n_ + AH)

    def push_kexpand(self, hw):
        P = self.push
        cv = lambda dst, hi_lag, lo_lag: P(f"v_cvt_pk_bf16_f32 v{dst}, {hi_lag}, {lo_lag}")
        if hw == 0:
            P("""
            v_cmp_eq_u32 vcc, 63, v1
            v_cndmask_b32 v221, v221, v220, vcc
            v_cndmask_b32 v227, v227, v226, vcc
            """)
            k0 = [f"v{216+n}" for n in range(7)]
            k1 = ["v224", "v224", "v225", "v226", "v226", "v226", "v227"]
            for si, (k, off) in enumerate(((k0, 512), (k1, 0))):
                for sg in range(4):
                    t = 32 + 8 * si + 2 * sg
                    cv(t, k[sg + 3], k[sg + 2])
                    cv(t + 1, k[sg + 1], k[sg])
                    P(f"ds_write_b64 v{vKWA}, {v(t,2)} offset:{off+sg*KCP}", tag="KW")
            P("""
            v_readfirstlane_b32 s8, v33        ; (K1 | K0<<16)
            v_readfirstlane_b32 s9, v35        ; (K2 | K1<<16)
            v_mov_b32 v48, 0
            v_mov_b32 v49, 0
            s_lshr_b32 s10, s8, 16             ; K0
            v_writelane_b32 v48, s10, 8
            v_writelane_b32 v48, s8, 16
            v_writelane_b32 v48, s9, 24
            v_writelane_b32 v49, s10, 24
            """)
            self.pushf(lambda: self.a.e(f"s_mov_b32 exec_hi, 0\nds_write_b64 v{vKZ}, v[48:49]\ns_mov_b32 exec_hi, -1", tag="KW"))
        else:
            k2 = ["v216"] * 3 + ["v217"] * 3 + ["v218"] * 5
            k3 = ["v220"] * 5 + ["v221"] * 7 + ["v222"] * 7
            t = 32
            for sg in range(4):
                for q in range(4):
                    cv(t + q, k2[sg + 7 - 2 * q], k2[sg + 6 - 2 * q])
                P(f"ds_write_b128 v{vKWA}, {v(t,4)} offset:{sg*KCP}", tag="KW")
                t += 4
                for hf in range(2):
                    for q in range(4):
                        cv(t + q, k3[sg + 15 - 8 * hf - 2 * q], k3[sg + 14 - 8 * hf - 2 * q])
                    P(f"ds_write_b128 v{vKWB}, {v(t,4)} offset:{sg*KCP+16*hf}", tag="KW")
                    t += 4

    def conv(self, fill):
        a = self.a

        def reads(st):
            A0 = 32 + 64 * (st % 2)
            B0 = 64 + 64 * (st % 2)
            L = []
            for k in range(8):
                offA = 512 * (7 - k) + 64 * (3 - st)
                offB = 512 * k + 64 * (3 - st)
                L.append((f"ds_read_b64 {v(A0+4*k,2)}, v{vCA} offset:{offA}", f"C{st}_{k}"))
                L.append((f"ds_read_b64 {v(A0+4*k+2,2)}, v{vCA} offset:{offA+8}", f"C{st}_{k}"))
                L.append((f"ds_read_b128 {v(B0+4*k,4)}, v{vCB} offset:{offB}", f"C{st}_{k}"))
            return L

        first = set()
        for c_, t_ in reads(0):
            a.e(c_, tag=t_)
        for st in range(4):
            A0 = 32 + 64 * (st % 2)
            B0 = 64 + 64 * (st % 2)
            nxt = reads(st + 1) if st < 3 else []
            pairs = sorted([(q1, m) for q1 in range(8) for m in range(8) if q1 + m <= 7], key=lambda p: (max(p), p[0] + p[1]))
            have = -1
            for n_, (q1, m) in enumerate(pairs):
                used = 0
                if max(q1, m) > have:
                    have = max(q1, m) if st == 0 else 7
                    a.wait(lg=f"C{st}_{have}")
                    used += 1
                c = q1 + m
                d = 160 + 4 * c
                cc = v(d, 4) if c in first else "0"
                first.add(c)
                a.e(f"v_mfma_f32_16x16x32_bf16 {v(d,4)}, {v(A0+4*q1,4)}, {v(B0+4*m,4)}, {cc}")
                if nxt and n_ >= 4:
                    c_, t_ = nxt.pop(0)
                    a.e(c_, tag=t_)
                    used += 1
                for f in fill.get(36 * st + n_, []):
                    f()
                self.drain(2 - used)
            assert not nxt
        self.drain()

    def conv_out(self):
        a = self.a
        a.e(f"""
        s_bitcmp1_b32 {sW}, 0
        s_nop 7
        s_cbranch_scc1 L_hw1
        """)
        for k in range(4):
            a.e(f"ds_write_b128 v{vEXD}, {v(176+4*k,4)} offset:{1024*k}", tag="EX")
        a.e("s_branch L_hwj")
        a.label("L_hw1")
        for k in range(4):
            a.raw(f"ds_write_b128 v{vEXD}, {v(160+4*k,4)} offset:{1024*k}")
        a.wait(lg=0)
        for k in range(16):
            a.e(f"v_mov_b32 v{160+k}, v{176+k}")
        a.label("L_hwj")

    def conv_out2(self):
        a = self.a
        self.bsync()
        for k in range(4):
            a.e(f"ds_read_b128 {v(176+4*k,4)}, v{vEXO} offset:{1024*k}", tag=f"EY{k}")
        for cp in range(2):
            for cl in range(2):
                k = 2 * cp + cl
                a.wait(lg=f"EY{k}")
                for q in range(4):
                    a.e(f"v_add_f32 v{160+4*k+q}, v{160+4*k+q}, v{176+4*k+q}")
                a.e(f"v_cvt_pk_bf16_f32 v{20+4*cp+2*cl}, v{160+4*k}, v{161+4*k}")
                a.e(f"v_cvt_pk_bf16_f32 v{21+4*cp+2*cl}, v{162+4*k}, v{163+4*k}")
            a.e(f"v_permlane16_swap_b32 v{20+4*cp}, v{22+4*cp}")
            a.e(f"v_permlane16_swap_b32 v{21+4*cp}, v{23+4*cp}")
            a.e(f"buffer_store_dwordx4 {v(20+4*cp,4)}, v255, {R_WS}, {'s38' if cp else sAT} offen sc1", tag="Ast")

    def prologue(self):
        a = self.a
        a.e("s_cmp_ge_u32 s2, 256\ns_cbranch_scc1 L_end")
        self.stamp("start")
        if self.stamps and not self.o.get("amp"):
            a.e("s_memrealtime s[78:79]")
        a.e(f"""
        s_lshr_b32 {sI}, s2, 3
        s_min_u32 s3, {sI}, 15
        s_lshl_b32 s3, s3, 3
        s_load_dwordx2 s[68:69], s[0:1], s3
        s_load_dwordx16 s[16:31], s[0:1], 0
        s_load_dwordx16 s[32:47], s[0:1], 64
        s_getpc_b64 s[8:9]
        L_pc:
        s_lshl_b32 s3, {sI}, 10
        v_lshl_add_u32 v6, v0, 2, s3
        v_min_u32 v6, L_end-L_pc, v6
        v_readfirstlane_b32 s14, v0
        v_and_b32 v1, 63, v0
        v_bfe_u32 v4, v0, 6, 2
        s_and_b32 {sX}, s2, 7
        s_mul_i32 s77, {sI}, 37
        s_lshr_b32 s77, s77, 8
        s_bfe_u32 {sW}, s14, 0x20006
        s_mul_i32 s13, s77, 7
        s_sub_u32 s15, {sI}, s13           ; ct
        s_and_b32 s11, {sX}, 6
        s_lshl1_add_u32 s11, s11, s77
        s_lshl_b32 s70, s11, 17
        s_and_b32 s11, {sX}, 1
        s_mul_i32 s11, s11, 7
        s_add_u32 s11, s11, s15
        s_lshl_b32 s71, s11, 8
        """)
        g = self.o.get("g1rot", 2)
        if g == 8:
            a.e("s_lshl1_add_u32 s72, s77, s15")
        elif g == 4:
            a.e("s_add_u32 s72, s77, s15\ns_lshl_b32 s72, s72, 1")
        elif g == 2:
            a.e("s_add_u32 s72, s77, s15\ns_lshl_b32 s72, s72, 2")
        if self.o.get("xrot", 0) == 1:
            a.e(f"s_add_u32 s72, s72, {sX}")
        if self.o.get("xrot", 0) == 2:
            a.e(f"s_and_b32 s11, {sX}, 1\ns_lshl1_add_u32 s72, s11, s72\ns_lshr_b32 s11, {sX}, 1\ns_add_u32 s72, s72, s11")
        a.e(f"""
        s_lshl_b32 s73, {sW}, 12           ; wave*4096
        s_mov_b32 s50, {2048*1024}
        s_mov_b32 s51, 0x00020000
        s_mov_b32 s54, {512*3584}
        s_mov_b32 s55, s51
        s_bitcmp1_b32 s14, 8
        """)
        if not self.o.get("bnear", 0):
            a.e("s_cbranch_scc1 L_roleB0")
            return
        a.e("s_cbranch_scc0 L_roleA")
        self.b_first()
        a.e("s_branch L_roleB")
        a.label("L_roleA")
        a.vm = []

    def b_first(self):
        a = self.a
        a.e(f"s_setprio {self.o.get('bprio', 3)}")
        a.e(f"""
        s_lshr_b32 s9, {sW}, 1
        s_lshl1_add_u32 s8, {sI}, s9
        s_lshl3_add_u32 s77, s8, {sX}
        s_and_b32 s9, {sW}, 1
        s_lshl1_add_u32 s8, s77, s9
        s_lshl_b32 s8, s8, 7
        v_lshl_add_u32 v24, v1, 1, s8      ; d*256 + (64*(w&1)+l)*2
        v_lshlrev_b32 v25, 1, s77
        """)
        for k in range(4):
            a.e(f"v_pk_mov_b32 v[{176+2*k}:{177+2*k}], 0, 0")
        a.e("s_waitcnt lgkmcnt(0)")
        self.stamp("bk")
        if self.o.get("pb", 1):
            a.e("s_barrier")
        self.params_load()

    def dma_voffs(self):
        self.a.e(f"""
        v_lshrrev_b32 v8, 3, v1            ; l>>3
        v_lshl_add_u32 v8, v4, 5, v8       ; 32w + (l>>3)
        v_lshlrev_b32 v8, 10, v8           ; *1024
        v_lshrrev_b32 v9, 4, v1            ; l>>4
        v_and_b32 v10, 7, v1
        v_xor_b32 v10, v10, v9             ; pos ^ (l>>4)
        v_lshl_add_u32 v16, v10, 4, v8
        v_xor_b32 v10, 4, v10
        v_lshl_add_u32 v17, v10, 4, v8
        v_add_u32 v17, {8192-1024}, v17
        v_add_u32 v18, {2*(8192-1024)}, v16
        v_add_u32 v19, {2*(8192-1024)}, v17
        v_lshl_add_u32 v8, v4, 4, v9       ; 16w + (l>>4)
        v_mul_u32_u24 v8, 3584, v8
        v_and_b32 v10, 15, v1
        v_lshlrev_b32 v11, 2, v9
        v_xor_b32 v10, v10, v11
        v_lshl_add_u32 v20, v10, 4, v8
        v_add_u32 v21, {4*3584-1024}, v20
        v_xor_b32 v10, 2, v10
        v_lshl_add_u32 v8, v10, 4, v8
        v_add_u32 v22, {2*(4*3584-1024)}, v8
        v_add_u32 v23, {3*(4*3584-1024)}, v8
        """)

    def common2(self):
        self.a.e(f"""
        v_mov_b32 v3, 0
        v_lshlrev_b32 v7, 4, v1            ; lane*16
        s_mov_b32 s66, {WS_SIZE}
        s_mov_b32 s67, 0x00020000
        s_mov_b64 s[64:65], s[46:47]
        """)

    def a_prologue(self):
        a = self.a
        a.e("global_load_dword v6, v6, s[8:9]", tag="CPF")
        a.e(f"""
        s_max_u32 s3, {sI}, 15
        s_min_u32 s3, s3, 20
        s_sub_u32 s3, s3, 15
        v_lshlrev_b32 v12, 21, s3
        """)
        self.dma_voffs()
        a.e(self.dma_setup(0))
        a.e("s_waitcnt lgkmcnt(0)")
        self.stamp("karg")
        a.e("global_load_dword v6, v12, s[68:69] offset:128", tag="FAN")
        a.e(f"""
        s_mov_b64 s[48:49], s[16:17]
        s_mov_b64 s[52:53], s[36:37]
        """)

    def a_prologue2(self):
        a = self.a
        a.e(f"s_setprio {self.o.get('prio', 2)}")
        self.common2()
        a.e(f"""
        s_lshl_b32 {sBS}, {sW}, 11         ; wave*2048
        s_add_u32 {sBS}, {sBS}, {L_BS}
        s_mov_b32 s58, {1792*1024}
        s_mov_b32 s59, 0x00020000
        s_mov_b32 s62, {2048*1024}
        s_mov_b32 s63, 0x00020000
        s_mov_b64 s[56:57], s[38:39]
        s_mov_b64 s[60:61], s[42:43]
        """)
        if not self.o.get("vp", 0):
            a.e(f"s_load_dword s16, {P_WS}, 128")

    def dma_setup(self, s):
        return f"""
        s_add_u32 s74, s72, {s}
        s_and_b32 s74, s74, 7
        s_mul_i32 s75, s74, {64*3584}
        s_add_u32 s75, s75, s71
        s_lshl_b32 s74, s74, 7
        s_add_u32 s74, s74, s70
        """

    def dma_ops(self, s, setup=True):
        slot = s % 3
        ops = []
        for i in range(4):
            pre = ((self.dma_setup(s) if setup else "") + f"s_add_u32 m0, s73, {XPOS[slot]}\n") if i == 0 else ""
            ops.append((pre + f"buffer_load_dwordx4 v{16+i}, {R_U}, s74 offen offset:{i*1024} lds", f"D{s}"))
        for i in range(4):
            pre = f"s_add_u32 m0, s73, {WPOS[slot]}\n" if i == 0 else ""
            ops.append((pre + f"buffer_load_dwordx4 v{20+i}, {R_W1}, s75 offen offset:{i*1024} lds", f"D{s}"))
        return ops

    def a_setup_g1(self):
        self.a.e(f"""
        v_and_b32 v8, 15, v1               ; t
        v_lshrrev_b32 v9, 4, v1            ; g
        v_lshrrev_b32 v10, 1, v8
        v_xor_b32 v10, v10, v9             ; g ^ (t>>1)
        s_lshr_b32 s8, {sW}, 1
        s_lshl_b32 s8, s8, 13              ; wm*64*128
        s_add_u32 s8, s8, {XPOS[2]}
        v_lshl_add_u32 v8, v8, 7, s8
        v_lshl_add_u32 v4, v10, 4, v8
        v_xor_b32 v5, 64, v4
        v_bfe_u32 v8, v1, 2, 2             ; r
        v_lshl_add_u32 v10, v9, 3, v8      ; 8g + r
        v_lshlrev_b32 v10, 8, v10          ; *256
        v_and_b32 v9, 1, v9
        v_lshl_or_b32 v8, v8, 1, v9        ; 2r | (g&1)
        s_and_b32 s8, {sW}, 1
        s_lshl_b32 s8, s8, 2
        v_xor_b32 v8, s8, v8               ; (4wn) ^ s
        v_lshl_add_u32 v10, v8, 5, v10
        v_and_b32 v8, 3, v1
        v_lshl_add_u32 v10, v8, 3, v10
        v_add_u32 v24, {WPOS[0]}, v10
        v_xor_b32 v25, 32, v24
        v_xor_b32 v26, 64, v24
        v_xor_b32 v27, 96, v24
        v_add_u32 v28, {WPOS[2]}, v10
        v_xor_b32 v29, 32, v28
        v_xor_b32 v30, 64, v28
        v_xor_b32 v31, 96, v28
        s_lshl2_add_u32 s8, {sX}, s77      ; 4x + rt
        s_lshr_b32 s9, {sW}, 1
        s_lshl1_add_u32 s8, s8, s9
        s_mul_i32 s8, s8, {4*28}
        s_and_b32 s10, {sW}, 1
        s_lshl1_add_u32 s10, s15, s10
        s_lshl1_add_u32 s8, s10, s8
        s_lshl_b32 s8, s8, 10
        s_add_u32 {sH0}, s8, {WS_H}
        s_and_b32 s8, {sX}, 6
        s_lshl1_add_u32 s8, s8, s77        ; 4R + rt
        s_lshl1_add_u32 s8, s8, s9         ; *2 + wm
        s_and_b32 s9, {sX}, 1
        s_lshl1_add_u32 s8, s8, s9         ; *2 + ch
        s_lshl_b32 s8, s8, 8               ; *2 groups*128B
        s_cmp_ge_u32 s10, 7
        s_cselect_b32 s9, {128-28}, 0
        s_lshl2_add_u32 s8, s10, s8
        s_add_u32 s8, s8, s9
        s_add_u32 {sHF}, s8, {WS_HF}
        """)

    def a_setup_g2(self):
        a = self.a
        a.e(f"""
        v_lshrrev_b32 v8, 3, v1
        v_lshlrev_b32 v8, 10, v8
        v_lshrrev_b32 v9, 4, v1
        v_lshlrev_b32 v9, 1, v9
        v_and_b32 v10, 7, v1
        v_xor_b32 v10, v10, v9
        v_lshl_add_u32 v10, v10, 4, v8
        v_add_u32 v11, {8192-1024}, v10
        s_cmp_ge_u32 s15, 3
        s_addc_u32 s8, s15, 0
        s_cmp_ge_u32 {sI}, 28
        s_cselect_b32 {sN}, 3, s8
        s_cselect_b32 {sM}, s15, s77       ; m
        s_mul_i32 s12, {sW}, {28*16384}
        s_lshl_b32 s10, {sN}, 7
        s_add_u32 s12, s12, s10            ; w2 base
        s_and_b32 s10, {sX}, 6
        s_lshr_b32 s11, {sW}, 1
        s_add_u32 s10, s10, s11
        s_and_b32 s11, {sX}, 1
        s_lshl1_add_u32 s10, s10, s11
        s_lshl2_add_u32 s10, s10, {sM}     ; 8xp + 4(x&1) + m
        s_mul_i32 s10, s10, {4*28}
        s_and_b32 s11, {sW}, 1
        s_mul_i32 s3, s11, 14
        s_add_u32 s10, s10, s3
        s_lshl_b32 s10, s10, 10
        s_add_u32 s13, s10, {WS_H}         ; h base
        """)
        for lam in range(4):
            a.e(f"s_xor_b32 s3, {sW}, {lam}\ns_mul_i32 s3, s3, {28*1024}\nv_add_u32 v{vAV+lam}, s3, v7")
        if self.o.get("g2rot", 1) == 2:
            a.e(f"s_add_u32 s10, {sN}, {sM}")
        else:
            a.e("s_mov_b32 s10, 0")
        for k in range(2):
            a.e(f"""
            s_add_u32 s11, s10, {k}
            s_and_b32 s11, s11, 1
            s_mul_i32 s3, s11, {14*16384}
            s_add_u32 {sBB[k]}, s12, s3
            s_mul_i32 s3, s11, {7*1024}
            s_add_u32 {sAB[k]}, s13, s3
            """)

    def a_setup_br(self):
        self.a.e(f"""
        v_lshrrev_b32 v8, 2, v1            ; row = 4g + r
        v_lshl_add_u32 v9, v8, 7, {sBS}
        v_bfe_u32 v8, v1, 3, 2             ; (row>>1)&3
        v_lshl_add_u32 v9, v8, 5, v9
        v_and_b32 v8, 3, v1
        v_lshl_add_u32 v{vBR}, v8, 3, v9
        v_xor_b32 v{vBR+1}, 32, v{vBR}
        v_xor_b32 v{vBR+2}, 64, v{vBR}
        v_xor_b32 v{vBR+3}, 96, v{vBR}
        """)

    def a_setup_late(self):
        self.a.e(f"""
        s_lshl2_add_u32 s12, {sN}, {sW}
        s_lshr_b32 s8, {sX}, 2
        s_lshl_b32 s8, s8, 5
        s_add_u32 s8, s8, s12
        s_lshl_b32 s8, s8, 7
        s_add_u32 s74, s8, {WS_AF}         ; a flags
        s_lshl_b32 s8, s12, 14
        s_lshr_b32 s13, {sX}, 1
        s_lshl_b32 s13, s13, 19
        s_add_u32 s8, s8, s13
        s_add_u32 s8, s8, {WS_AT}
        s_and_b32 s13, {sX}, 1
        s_lshl2_add_u32 s13, s13, {sM}
        s_lshl_b32 s13, s13, 6
        v_lshrrev_b32 v8, 3, v1            ; dl
        v_bfe_u32 v9, v1, 2, 1             ; hf
        v_and_b32 v4, 3, v1                ; jj
        v_lshl_add_u32 v16, v9, 9, s13
        v_lshl_add_u32 v16, v4, 4, v16
        v_lshlrev_b32 v17, 7, v8
        v_xor_b32 v16, v16, v17
        v_lshl_add_u32 v16, v8, 10, v16
        v_add_u32 v16, s8, v16
        v_lshl_add_u32 v4, v4, 1, v9
        v_and_b32 v9, 6, v8
        v_xor_b32 v4, v4, v9               ; ^ ((row>>1)&3)<<1
        v_add_u32 v17, {sBS}, v17
        v_lshl_add_u32 v18, v4, 4, v17
        v_add_u32 v17, {8*1024}, v16
        s_lshl2_add_u32 s10, {sX}, {sM}
        s_lshl2_add_u32 s10, s10, {sW}
        s_lshl_b32 s8, s10, 7
        s_add_u32 s72, s8, {WS_HF}         ; h flags
        s_add_u32 s75, s8, {WS_GF}
        s_lshl_b32 s8, s10, 6
        s_add_u32 s8, s8, {WS_G}
        v_and_b32 v8, 15, v1
        v_lshl_add_u32 v19, v8, 2, s8
        s_lshl_b32 s8, {sW}, 5
        v_xor_b32 v20, s8, v{vBR}
        s_lshl_b32 s8, {sW}, 11
        v_subrev_u32 v20, s8, v20
        v_bfe_u32 v9, v1, 4, 1
        v_lshlrev_b32 v21, 10, v8
        v_lshl_add_u32 v21, v9, 5, v21
        v_lshrrev_b32 v9, 5, v1
        v_lshl_add_u32 v21, v9, 4, v21
        s_lshl_b32 s70, s10, 14
        s_lshl_b32 s13, {sN}, 7
        s_add_u32 s70, s70, s13
        v_add_u32 v28, {sBS}, v7
        v_xor_b32 v29, 0x800, v28
        v_xor_b32 v30, 0x1000, v28
        v_xor_b32 v31, 0x1800, v28
        """)

    def t_job(self):
        a = self.a
        o = self.o
        a.e(f"""
        s_sub_u32 s8, {sI}, 28
        s_lshl_b32 s9, {sX}, 2
        s_add_u32 s71, s8, s9
        s_lshl_b32 s8, s71, 2
        s_add_u32 s70, s8, {sW}
        s_lshl_b32 s72, s70, 11
        s_add_u32 s72, s72, {WS_UT}
        s_lshl_b32 s8, s70, 8
        s_and_b32 s8, s8, 0x300
        v_xor_b32 v14, s8, v7
        v_xor_b32 v15, 0x80, v14
        s_lshl_b32 s8, s70, 14
        """)
        for q in range(4):
            for r in range(4):
                a.e(f"buffer_load_dwordx4 {v(32+16*q+4*r,4)}, v7, {R_U}, s8 offen offset:{r*1024}", tag=f"T{q//2}")
            a.e("s_add_u32 s8, s8, 4096")
            if q == 0 and o.get("pb", 1):
                a.e("s_barrier")
            if q == o.get("spb", 2):
                a.e("s_barrier")
            if q == 1:
                self.epoch_master()
                a.e("v_and_b32 v8, 1, v1\nv_lshlrev_b32 v8, 21, v8")
                a.e(f"buffer_load_dword v6, v8, {R_WS}, 0 offen offset:128", tag="TL")
        a.e(f"global_load_dwordx4 v[96:99], v7, {P_GW}", tag="GW")
        if o.get("x3", 0):
            a.e("""
            s_xor_b32 s10, s70, 16
            s_lshl_b32 s10, s10, 14
            s_add_u32 s9, s10, 8192
            v_lshrrev_b32 v8, 3, v1
            v_lshlrev_b32 v8, 10, v8
            v_and_b32 v9, 7, v1
            v_lshl_add_u32 v8, v9, 4, v8
            """)
            a.e(f"buffer_load_dwordx4 v[248:251], v8, {R_U}, s10 offen offset:384", tag="X3")
            a.e(f"buffer_load_dwordx4 v[252:255], v8, {R_U}, s9 offen offset:384", tag="X3")
        a.e("""
        s_mov_b32 s12, 0x05040100
        s_mov_b32 s13, 0x07060302
        """)
        for blk in range(2):
            a.wait(vm=f"T{blk}")
            self.stamp(f"t{blk}")
            if blk == 1:
                a.e(f"global_load_dword v2, v3, {P_DBG} sc1", tag="EP")
            for c8 in range(8):
                t = 100 + 4 * c8
                for k in range(4):
                    r0 = 32 + 32 * blk + 8 * k + c8 // 2
                    a.e(f"v_perm_b32 v{t+k}, v{r0+4}, v{r0}, s{12+(c8&1)}")
                a.e(f"s_add_u32 s8, s72, {c8*262144 + (WS_SIZE if o.get('not') else 0)}")
                a.e(f"buffer_store_dwordx4 {v(t,4)}, v{14+blk}, {R_WS}, s8 offen offset:{blk*1024} {['sc1', 'sc0 sc1', 'sc1 nt', 'sc0 sc1 nt'][o.get('tfl', 0)]}", tag="Ust")
        self.stamp("tst")
        a.wait(vm="GW")
        for q in range(4):
            for r in range(8):
                a.e(f"v_dot2_f32_bf16 v{132+r}, v{32+4*r+q}, v{96+q}, {'0' if q == 0 else 'v%d' % (132+r)}")
        self.gate_tail()
        self.drain(len(self.bg) - 1)
        a.wait(vm="EP")
        a.e(f"v_readfirstlane_b32 {sEP}, v2")
        self.epoch_get(issued=True)
        a.e(f"s_lshl_b32 s10, s71, 7\ns_add_u32 s10, s10, {WS_TF}\nv_mov_b32 v10, 1")
        a.wait(vm="Ust")
        a.e("s_mov_b64 exec, 1")
        a.e(f"ds_add_rtn_u32 v10, v3, v10 offset:{L_CNT+4}")
        a.e("s_mov_b64 exec, -1")
        a.wait(lg=0)
        a.e("v_readfirstlane_b32 s8, v10\ns_cmp_eq_u32 s8, 3\ns_cbranch_scc0 L_ntp")
        if self.o.get("sat", 1):
            self.publish("s10")
        else:
            a.e("v_lshlrev_b32 v8, 2, v1\ns_mov_b32 exec_hi, 0")
            a.raw(f"buffer_store_dword v2, v8, {R_WS}, s10 offen sc1")
            a.e("s_mov_b32 exec_hi, -1")
        a.label("L_ntp")
        self.stamp("tpub")
        self.drain()
        a.e(f"s_setprio {o.get('sprio', 0)}")
        a.e(f"s_mul_i32 s9, s70, {14*1024}")
        for k in range(14 if o.get("w2warm", 0) else 0):
            a.e(f"buffer_load_dwordx4 {v(192+4*k,4)}, v7, {R_W2}, s9 offen offset:{(k%4)*1024}", tag="WW")
            if k % 4 == 3:
                a.e("s_add_u32 s9, s9, 4096")
        for k in range(o.get("bxr", 0)):
            a.e(f"s_lshl_b32 s9, s70, 14\nv_add_u32 v8, s9, v7")
            a.e(f"global_load_dwordx4 {v(192+4*k,4)}, v8, {P_BX} offset:{(k%4)*1024}" if k < 4 else f"v_add_u32 v8, {(k//4)*4096}, v8\nglobal_load_dwordx4 {v(192+4*k,4)}, v8, {P_BX} offset:{(k%4)*1024}", tag="WW")
        a.e(f"s_lshl_b32 s9, s70, 7\ns_add_u32 s9, s9, {WS_GF}")
        a.wait(vm="Tst")
        self.publish("s9", line=True)
        self.gpub = True
        a.e(f"""
        s_mul_i32 s8, {sW}, {28*16384}
        s_sub_u32 s9, {sI}, 28
        s_lshl_b32 s9, s9, 12
        s_add_u32 s8, s8, s9
        """)
        steps = [x for k_ in range(o.get("pf0", 14), 14) for x in (k_, k_ + 14)]
        for n_, st in enumerate(steps):
            a.e(f"s_add_u32 s9, s8, {st*16384}")
            for k in range(4):
                a.e(f"buffer_load_dwordx4 {v(32+16*(n_%4)+4*k,4)}, v7, {R_W2}, s9 offen offset:{k*1024}", tag="WW")
        self.stamp("pfd")
        a.e(f"s_setprio {o.get('sprio2', 0)}")

    def push_b_issue(self):
        i = self.b_iss
        if i >= 28:
            return
        assert i - self.b_con < BSN
        self.b_iss += 1
        if i >= BSN and not self.no_lg:
            self.pushw(lg=f"BR{i-BSN}")
        self.push(f"""
        s_add_u32 m0, {sBS}, {(i % BSN)*8192}
        s_add_u32 s14, {sBB[i//14]}, {(i%14)*16384}
        buffer_load_dwordx4 v10, {R_W2}, s14 offen lds
        buffer_load_dwordx4 v11, {R_W2}, s14 offen offset:1024 lds
        """, tag=f"B{i}")

    def push_b_consume(self):
        i = self.b_con
        if i >= 28:
            return
        assert i < self.b_iss
        self.b_con += 1
        self.pushw(vm=f"B{i}")
        for db in range(4):
            self.push(f"ds_read_b64_tr_b16 {v(vB0+16*((i//2)%NBR)+4*db+2*(i%2),2)}, v{vBR+db} offset:{(i % BSN)*8192}", tag=f"BR{i}")

    def g1(self):
        a = self.a

        def reads(kap):
            s, kk = divmod(kap, 2)
            slot = s % 3
            b = 32 + 32 * (kap % 2)
            L = []
            for q in range(4):
                wa, wo = (24 + q, WPOS[slot] - WPOS[0]) if slot < 2 else (28 + q, 0)
                L.append(f"ds_read_b128 {v(b+4*q,4)}, v{4+kk} offset:{XPOS[slot]-XPOS[2]+q*2048}")
                for hh in range(2):
                    L.append(f"ds_read_b64_tr_b16 {v(b+16+4*q+2*hh,2)}, v{wa} offset:{wo+kk*8192+hh*1024}")
            return L

        a.e("v_mov_b32 v9, 1")
        a.wait(vm="D0")
        a.e("s_barrier")
        self.stamp("g1s")
        for r in reads(0):
            a.e(r, tag="R0")
        nb = {5: 2, 6: self.o.get("e6", 4)}
        for kap in range(16):
            s, kk = divmod(kap, 2)
            if kk == 1 and kap < 15:
                a.wait(vm=f"D{s+1}" if f"D{s+1}" in a.vm else None, lg=0)
                a.e("s_barrier")
                self.stamp(f"st{s+1}")
                for _ in range(nb.get(s, 0) if self.o.get("bearly", 1) else 0):
                    self.push_b_issue()
            else:
                a.wait(lg=f"R{kap}")
            nxt = reads(kap + 1) if kap < 15 else []
            b = 32 + 32 * (kap % 2)
            for n_ in range(16):
                tb, fa = divmod(n_, 4)
                d = 192 + 16 * tb + 4 * fa
                a.e(f"v_mfma_f32_16x16x32_bf16 {v(d,4)}, {v(b+16+4*fa,4)}, {v(b+4*tb,4)}, {'0' if kap == 0 else v(d,4)}")
                if nxt:
                    a.e(nxt.pop(0), tag=f"R{kap+1}")
                    if n_ % 3 == 2:
                        self.drain(1)
                else:
                    self.drain(1)
        self.drain()
        self.arrive("v3", "v9", L_CNT + 4)
        self.acount += 4
        self.stamp("g1e")

    def h_stores(self):
        a = self.a
        for tb in range(4):
            if tb:
                a.e(f"s_add_u32 {sH0}, {sH0}, {28*1024}")
            for j in range(2):
                d = 192 + 16 * tb + 8 * j
                t = 32 + 8 * tb + 4 * j
                for q in range(4):
                    a.e(f"v_cvt_pk_bf16_f32 v{t+q}, v{d+2*q}, v{d+2*q+1}")
                for q in range(4):
                    a.e(f"v_pk_max_i16 v{t+q}, v{t+q}, 0")
                a.e(f"buffer_store_dwordx4 {v(t,4)}, v7, {R_WS}, {sH0} offen offset:{j*1024} sc1", tag="Hst")
        self.stamp("hiss")

    def a_load(self, i):
        r = vA0 + 16 * (i % NAR)
        L = [f"s_add_u32 s15, {sAB[i//7]}, {(i%7)*1024}"]
        for tb in (3, 2, 1, 0):
            L.append(f"buffer_load_dwordx4 {v(r+4*tb,4)}, v{vAV+tb}, {R_WS}, s15 offen sc1")
        return L

    def g2(self):
        a = self.a
        o = self.o
        PRE = NAR - 1
        TAIL = o.get("tail", 2)
        vAG = vB0 + 16 * 2
        self.vAG = vAG
        apos, achk = o.get("apos", 9), o.get("achk", 11)

        def mf(i, tb, db):
            d = 192 + 16 * tb + 4 * db
            a.e(f"v_mfma_f32_16x16x32_bf16 {v(d,4)}, {v(vB0+16*(i%NBR)+4*db,4)}, {v(vA0+16*(i%NAR)+4*tb,4)}, {'0' if i == 0 else v(d,4)}")

        def rw(lam):
            for db in range(4):
                self.push(f"ds_write_b128 v28, {v(192+16*lam+4*db,4)} offset:{(2*(lam-1)+db//2)*8192+(db%2)*1024}", tag="RW")

        for i in range(14 - TAIL):
            ld = self.a_load(i + PRE) if i + PRE < 14 else []
            if i == apos:
                assert self.b_con == 28
                self.drain()
                a.wait(lg=0)
                self.spoll_issue("s74", 16)
            if i == achk:
                self.stamp("apre")
                self.spoll("s74", 16, sleep=4, issued=True)
                self.stamp("apoll")
                a.e(f"buffer_load_dwordx4 {v(vAG,4)}, v16, {R_WS}, 0 offen sc1", tag="AL")
                a.e(f"buffer_load_dwordx4 {v(vAG+4,4)}, v17, {R_WS}, 0 offen sc1", tag="AL")
                a.e(f"buffer_load_dword v{vAG+8}, v19, {R_WS}, 0 offen sc1", tag="AL")
            if a.lg.count(f"BR{2*i+1}") < 4:
                while self.b_con <= 2 * i + 1:
                    if self.b_iss <= self.b_con:
                        self.push_b_issue()
                    self.push_b_consume()
                self.drain()
            if i < apos:
                a.wait(lg=f"BR{2*i+1}")
            for _ in range(2):
                if self.b_iss < 28 and self.b_iss - self.b_con < BSN:
                    self.push_b_issue()
                if self.b_con < 28 and self.b_con // 2 - i < NBR and self.b_con < self.b_iss and (self.b_iss - self.b_con >= o.get("blag", 4) or self.b_iss == 28):
                    self.push_b_consume()
            for tb in (3, 2, 1, 0):
                a.wait(vm=f"A{i}_{tb}")
                if i == 0 and tb == 3:
                    self.stamp("g2s")
                if tb == 3:
                    self.stamp(f"q{2*i}")
                for db in range(4):
                    mf(i, tb, db)
                    if ld and db == 0:
                        if tb == 3:
                            a.e(ld[0])
                        a.e(ld[4 - tb], tag=f"A{i+PRE}_{tb}")
                    else:
                        self.drain(2)
        self.drain()
        for tb in (3, 2, 1, 0):
            n_ = 0
            for i in range(14 - TAIL, 14):
                a.wait(vm=f"A{i}_{tb}")
                for db in range(4):
                    mf(i, tb, db)
                    n_ += 1
                    if n_ >= 3 and n_ % max(1, TAIL - 1) == 0:
                        self.drain(1)
            self.drain()
            if tb:
                rw(tb)
        self.stamp("g2e")
        a.wait(vm=0)
        a.e(f"ds_write_b128 v18, {v(vAG,4)} offset:{6*8192}", tag="AW")
        a.e(f"ds_write_b128 v18, {v(vAG+4,4)} offset:{6*8192+1024}", tag="AW")

    def final(self):
        a = self.a
        vG = self.vAG + 8
        a.wait(lg=0)
        a.e("s_barrier")
        self.stamp("fbar")
        for db in range(4):
            a.e(f"ds_read_b64_tr_b16 {v(80+2*db,2)}, v20 offset:{6*8192+db*2048}", tag="AR")
        for p in range(2):
            for lam in range(1, 4):
                for db in (2 * p, 2 * p + 1):
                    a.e(f"ds_read_b128 {v(32+16*(lam-1)+4*db,4)}, v{28+lam} offset:{(2*(lam-1)+db//2)*8192+(db%2)*1024}", tag=f"RR{p}{lam}")
        a.wait(lg="AR")
        for db in range(4):
            s_, d_ = 80 + 2 * db, 224 + 4 * db
            a.e(f"v_lshlrev_b32 v{d_}, 16, v{s_}")
            a.e(f"v_and_b32 v{d_+1}, 0xffff0000, v{s_}")
            a.e(f"v_lshlrev_b32 v{d_+2}, 16, v{s_+1}")
            a.e(f"v_and_b32 v{d_+3}, 0xffff0000, v{s_+1}")
        for p in range(2):
            hs = range(4 * p, 4 * p + 4)
            for lam in range(1, 4):
                a.wait(lg=f"RR{p}{lam}")
                for h in hs:
                    a.e(f"v_pk_add_f32 {v(192+2*h,2)}, {v(192+2*h,2)}, {v(32+16*(lam-1)+2*h,2)}")
            for h in hs:
                a.e(f"v_pk_add_f32 {v(224+2*h,2)}, {v(224+2*h,2)}, {v(192+2*h,2)} neg_lo:[0,1] neg_hi:[0,1]")
            for h in hs:
                a.e(f"v_pk_fma_f32 {v(192+2*h,2)}, {v(224+2*h,2)}, {v(vG,2)}, {v(192+2*h,2)} op_sel_hi:[1,0,1]")
            for h in hs:
                a.e(f"v_cvt_pk_bf16_f32 v{240+h}, v{192+2*h}, v{193+2*h}")
            a.e(f"v_permlane16_swap_b32 v{240+4*p}, v{242+4*p}")
            a.e(f"v_permlane16_swap_b32 v{241+4*p}, v{243+4*p}")
            a.e(f"buffer_store_dwordx4 {v(240+4*p,4)}, v21, {R_OUT}, s70 offen offset:{64*p}", tag="O")

    def role_a(self):
        a = self.a
        o = self.o
        self.a_prologue()
        a.e(f"s_cmp_ge_u32 {sI}, 28")
        a.e("s_cbranch_scc1 L_spare")
        vm0, lg0 = list(a.vm), list(a.lg)
        ops = self.dma_ops(0, False) + self.dma_ops(1) + self.dma_ops(2)
        n1 = o.get("n1", 11)
        for k_, (x, t) in enumerate(ops[:n1]):
            a.e(x, tag=t)
            if k_ + 1 == o.get("pb", 1):
                a.e("s_barrier")
        self.stamp("d0iss")
        self.a_prologue2()
        self.a_setup_g1()
        self.a_setup_g2()
        for x, t in ops[n1:]:
            a.e(x, tag=t)
        a.e(f"s_lshl_b32 s8, s2, 13\ns_lshl_b32 s9, {sW}, 11\ns_add_u32 s8, s8, s9")
        a.e(f"buffer_load_dwordx4 v[96:99], v7, {R_W2}, s8 offen", tag="WA")
        a.e(f"buffer_load_dwordx4 v[100:103], v7, {R_W2}, s8 offen offset:1024", tag="WA")
        self.stamp("d2iss")
        self.g1()
        nearly = self.b_iss
        self.h_stores()
        self.a_setup_br()
        for _ in range(nearly):
            self.push_b_consume()
        self.drain()
        self.await_("v3", L_CNT + 4, self.acount)
        for _ in range(o.get("bh", 5)):
            self.push_b_issue()
        self.drain()
        self.await_("v3", L_CNT + 8, 1)
        a.e(f"s_mov_b32 {sEP}, s8\ns_mov_b32 s68, s8\ns_mov_b32 s69, s8")
        a.wait(vm="Hst")
        self.publish(sHF)
        self.stamp("hpub")
        if "pprio" in o:
            a.e(f"s_setprio {o['pprio']}")
        a.e("s_branch L_join")
        a.label("L_spare")
        vm_main, lg_main = list(a.vm), list(a.lg)
        bi = self.b_iss
        a.vm, a.lg = vm0, lg0
        self.b_iss = self.b_con = 0
        self.a_prologue2()
        self.t_job()
        self.a_setup_g2()
        self.a_setup_br()
        for _ in range(nearly):
            self.push_b_issue()
        while self.b_iss < bi or self.b_con < nearly:
            if self.b_con < nearly:
                self.push_b_consume()
            if self.b_iss < bi:
                self.push_b_issue()
        self.drain()
        a.wait(lg=0)
        a.vm, a.lg = vm_main, lg_main
        a.label("L_join")
        self.a_setup_late()
        bt = o.get("bt", 2 * NBR + BSN)
        hq = o.get("hq", 3)
        while self.b_iss < bt:
            if self.b_iss == bt - hq:
                assert bt - self.b_con <= BSN
                self.pushw(lg=0)
                self.pushf(lambda: self.spoll_issue("s72", 8))
                self.no_lg = True
            if not self.no_lg and self.b_con < 2 * NBR and self.b_iss - self.b_con >= o.get("blag0", 5):
                self.push_b_consume()
            self.push_b_issue()
        self.no_lg = False
        self.drain()
        self.stamp("biss")
        self.spoll("s72", 8, sleep=3, issued=True)
        self.stamp("hpoll")
        a.e(f"s_setprio {o.get('gprio', 0)}")
        for i in range(NAR - 1):
            L = self.a_load(i)
            a.e(L[0])
            for tb in (3, 2, 1, 0):
                a.e(L[4 - tb], tag=f"A{i}_{tb}")
        self.g2()
        self.final()

    def role_b(self):
        a = self.a
        o = self.o
        a.vm, a.lg = ["P"] * 8, []
        if not o.get("bnear", 0):
            a.vm = []
            a.label("L_roleB0")
            self.b_first()
        a.label("L_roleB")
        self.common2()
        a.e("s_mov_b64 s[48:49], s[16:17]")
        a.e(f"ds_write_b32 v3, v3 offset:{L_CNT}", tag="Z")
        a.e(f"ds_write_b32 v3, v3 offset:{L_CNT+4}", tag="Z")
        a.e(f"ds_write_b32 v3, v3 offset:{L_CNT+8}", tag="Z")
        a.wait(lg=0)
        a.e(f"s_cmp_lt_u32 {sI}, 28")
        a.e("s_cbranch_scc1 L_nzb")
        a.e("s_barrier")
        a.label("L_nzb")
        self.tlb_touch()
        self.dma_voffs()
        a.e(f"""
        s_mov_b64 s[52:53], s[36:37]
        s_lshl_b32 {sTM0}, {sW}, 8
        s_add_u32 {sTM1}, {sTM0}, {TSPLIT*TROW}
        s_lshr_b32 s8, {sW}, 1             ; channel
        s_lshl_b32 s9, s8, 9
        v_and_b32 v8, 15, v1
        v_lshrrev_b32 v9, 4, v1
        v_lshl_add_u32 v10, v9, 4, s9      ; base + g*16
        s_movk_i32 s10, {TROW}
        v_add_u32 v12, {XB}, v8
        v_mad_u32_u24 v{vKX}, v12, s10, v10
        s_and_b32 s11, {sW}, 1
        s_cmp_eq_u32 s11, 0
        s_cselect_b64 vcc, -1, 0
        v_lshrrev_b32 v11, 2, v8           ; gi
        v_and_b32 v4, 3, v8                ; r
        v_min_u32 v5, 2, v4                ; min(r,2)
        v_lshrrev_b32 v13, 1, v11
        v_lshl_add_u32 v12, v11, 1, v13
        v_add3_u32 v12, v12, v5, {YB[2]}
        v_add_u32 v13, {YB[0]}, v8
        v_cndmask_b32 v12, v12, v13, vcc
        v_mad_u32_u24 v{vKY}, v12, s10, v10
        v_mad_u32_u24 v12, v11, 3, v5
        v_add_u32 v12, {YB[4]}, v12
        v_min_u32 v13, 14, v8
        v_add_u32 v13, {YB[0]+4}, v13
        v_cndmask_b32 v12, v12, v13, vcc
        v_mad_u32_u24 v{vKY+1}, v12, s10, v10
        v_lshl_add_u32 v12, v11, 1, v4
        v_add_u32 v12, {YB[1]}, v12
        v_mad_u32_u24 v{vKY+2}, v12, s10, v10
        s_mul_i32 s9, s8, {4*KCP}
        v_lshlrev_b32 v11, 5, v8           ; 32j
        v_sub_u32 v11, s9, v11             ; base - 32j
        v_lshlrev_b32 v12, 3, v9
        v_sub_u32 v12, v11, v12
        v_add_u32 v12, {4088-512}, v12
        v_lshrrev_b32 v13, 1, v9
        v_lshlrev_b32 v13, 9, v13
        v_and_b32 v4, 1, v9
        v_lshl_add_u32 v13, v4, 4, v13     ; 512(g>>1) + 16(g&1)
        v_sub_u32 v13, v11, v13
        v_add_u32 v13, {4080-1024}, v13
        v_cndmask_b32 v{vKWA}, v13, v12, vcc
        v_lshlrev_b32 v13, 9, v9
        v_sub_u32 v13, v11, v13
        v_add_u32 v{vKWB}, {4064-2048}, v13
        s_movk_i32 s10, {KCP}
        v_lshrrev_b32 v11, 3, v1
        v_and_b32 v12, 7, v1
        v_lshlrev_b32 v12, 3, v12
        v_mad_u32_u24 v12, v11, s10, v12
        s_add_u32 s12, s9, 4096
        v_add_u32 v{vKZ}, s12, v12
        v_add_u32 v11, 1, v8
        v_and_b32 v11, 3, v11              ; sigma
        v_sub_u32 v12, 18, v8
        v_and_b32 v12, 28, v12
        v_lshl_add_u32 v12, v9, 3, v12
        v_lshlrev_b32 v12, 1, v12
        v_mad_u32_u24 v12, v11, s10, v12
        s_xor_b32 s13, s11, 1
        s_lshl_b32 s13, s13, 8             ; hw=0 (q0 0..3) -> +256 B
        s_add_u32 s12, s9, s13
        v_add_u32 v{vCA}, s12, v12
        v_lshlrev_b32 v12, 5, v8
        v_lshl_add_u32 v12, v9, 4, v12
        s_mul_i32 s12, s8, {UP}
        s_add_u32 s12, s12, {L_U}
        s_add_u32 s13, s12, s13
        v_add_u32 v{vCB}, s13, v12
        v_min_u32 v11, 59, v1
        v_lshl_add_u32 v{vUZ}, v11, 3, s12
        v_mov_b32 v5, 1
        """)
        a.e(f"""
        v_lshrrev_b32 v8, 1, v1
        v_and_b32 v9, 1, v1
        v_and_b32 v10, 7, v8
        v_lshlrev_b32 v10, 7, v10
        s_lshl_b32 s9, {sI}, 5
        v_xor_b32 v10, s9, v10
        v_lshl_add_u32 v10, v8, 10, v10
        v_lshl_add_u32 v{vUG}, v9, 4, v10
        s_lshl_b32 s8, {sW}, 16            ; 64w*1024
        s_lshl_b32 s9, {sX}, 18
        s_add_u32 s8, s8, s9
        s_add_u32 {sUG0}, s8, {WS_UT}
        s_add_u32 {sUG1}, {sUG0}, {32*1024}
        s_movk_i32 s8, {UP}
        v_lshlrev_b32 v8, 4, v8
        v_mad_u32_u24 v8, v9, s8, v8
        s_lshl_b32 s8, {sW}, 10
        s_add_u32 s9, s8, {L_U + 480}
        v_add_u32 v{vUW}, s9, v8
        s_lshl_b32 s8, {sW}, 10
        s_add_u32 s8, s8, {WS_TF}
        v_and_b32 v8, 7, v1
        v_lshl_add_u32 v{vTF}, v8, 7, s8
        s_lshl_b32 s8, s77, 10
        s_lshl_b32 s10, s11, 20
        s_add_u32 s8, s8, s10
        s_add_u32 {sAT}, s8, {WS_AT}
        s_add_u32 s38, {sAT}, 0x80000
        s_lshl_b32 s8, {sX}, 7             ; d & 7 = x
        v_xor_b32 v255, s8, v7
        """)
        if o.get("asc", 1):
            a.e(f"""
            s_lshl_b32 s8, s11, 12
            s_lshr_b32 s10, s77, 4
            s_lshl_b32 s10, s10, 7
            s_add_u32 s8, s8, s10
            s_and_b32 s10, s77, 15
            s_lshl2_add_u32 s8, s10, s8
            s_add_u32 {sAF}, s8, {WS_AF}
            """)
        else:
            a.e(f"""
            s_lshl_b32 s8, s11, 16
            s_lshl_b32 s10, s77, 7
            s_add_u32 s8, s8, s10
            s_add_u32 {sAF}, s8, {WS_AF}
            """)
        if o.get("atouch", 0):
            a.e(f"buffer_load_dword v6, v3, {R_WS}, {sAF} offen sc1", tag="FT")
        a.e(f"""
        s_lshl_b32 s8, {sW}, 12
        s_add_u32 s8, s8, {L_EX}
        v_add_u32 v{vEXO}, s8, v7
        s_xor_b32 s8, {sW}, 1
        s_lshl_b32 s8, s8, 12
        s_add_u32 s8, s8, {L_EX}
        v_add_u32 v{vEXD}, s8, v7
        """)
        self.push_kgen()
        chunk = o.get("kch", 64)

        def gather():
            if o.get("noug", 0):
                return
            a.raw(f"buffer_load_dwordx4 v[176:179], v{vUG}, {R_WS}, {sUG0} offen sc1")
            a.raw(f"buffer_load_dwordx4 v[236:239], v{vUG}, {R_WS}, {sUG1} offen sc1")

        def look():
            a.e(f"global_load_dword v2, v3, {P_DBG} sc1", tag="PT")
            a.e(f"buffer_load_dword v9, v{vTF}, {R_WS}, 0 offen sc1", tag="PT")

        def tag():
            a.wait(vm=0)
            a.e(f"v_readfirstlane_b32 {sEP}, v2")
            self.epoch_get(issued=True)
            a.e(f"ds_write_b32 v3, v2 offset:{L_CNT+8}")

        def check(lab):
            a.wait(vm=0)
            a.e(f"v_cmp_ne_u32 vcc, {sEP}, v9")
            a.e(f"s_cbranch_vccz {lab}y")
            a.raw(f"buffer_load_dword v9, v{vTF}, {R_WS}, 0 offen sc1")
            a.e(f"s_branch {lab}")
            a.label(f"{lab}y")
            a.e("s_mov_b32 s14, 0")
            gather()

        def kmf():
            a.e(f"""
            s_and_b32 s8, {sW}, 1
            s_lshl_b32 s8, s8, 6
            v_cmp_eq_u32 vcc, s8, v1
            v_mov_b32 v217, 0
            v_mov_b32 v218, 0
            v_mov_b32 v219, 0
            v_cndmask_b32 v216, 0, v183, vcc
            """)
            self.push_kmfma()
            self.drain()

        tp = o.get("tp", 6)
        tb = o.get("tb", 6)
        NB = 8
        if o.get("sphold", 1):
            a.e(f"s_cmp_lt_u32 {sI}, 28")
            a.e("s_cbranch_scc1 L_nh0")
            a.e("s_setprio 0")
            a.label("L_nh0")
        a.wait(vm="P")
        self.stamp("kgs")
        a.label(".p2align 3")
        self.drain()
        self.stamp("kge")
        ta, tb_ = o.get("ta", 62), o.get("tb", 62)
        rows = {-1: (0, ta), 0: (ta, tb_), 1: (tb_, o.get("tc", 62)), 2: (o.get("tc", 62), 62), 6: (62, NROW)}
        if o.get("sphold", 1):
            a.e(f"s_cmp_lt_u32 {sI}, 28")
            a.e("s_cbranch_scc1 L_nh1")
            self.await_("v3", L_CNT + 4, 4, sleep=2)
            a.label("L_nh1")
        self.tables(*rows[-1])
        for s in range(NB):
            a.e(f"s_cmp_lt_u32 {sI}, 28")
            a.e(f"s_cbranch_scc0 L_nl{s}")
            if f"D{s}" in a.vm:
                a.wait(vm=f"D{s}")
            a.e("s_barrier")
            if s + 2 < 8 and (s >= 1 or not o.get("a2", 1)):
                for x, t in self.dma_ops(s + 2):
                    a.e(x, tag=t)
            a.label(f"L_nl{s}")
            if s == tp + 1:
                tag()
                check("L_c1")
                a.label("L_c1")
            if s == tp:
                look()
            if s == 0:
                a.e(f"s_setprio {o.get('bprio2', 1)}")
            if s in rows:
                self.tables(*rows[s])
        self.stamp("tabd")
        self.bsync()
        kmf()
        a.e(f"s_setprio {o.get('bprio3', 3)}")
        a.e("s_cmp_eq_u32 s14, 0")
        a.e("s_cbranch_scc1 L_c2")
        check("L_c2")
        a.label("L_c2")
        self.bsync()
        self.stamp("kme")
        a.e(f"s_bitcmp1_b32 {sW}, 0")
        a.e("s_nop 4")
        a.e("s_cbranch_scc1 L_sk1")
        self.push_kexpand(0)
        self.drain()
        a.e("s_branch L_skj")
        a.label("L_sk1")
        self.push_kexpand(1)
        self.drain()
        a.label("L_skj")
        self.stamp("kw")
        a.e("s_cmp_eq_u32 s14, 0")
        a.e("s_cbranch_scc1 L_haveu")
        a.wait(vm=0)
        a.e(f"v_cmp_ne_u32 vcc, {sEP}, v9")
        a.e(f"s_cbranch_vccz L_pollx{self.npoll}")
        self.vpoll(f"v{vTF}", "v9", sleep=o.get("tsl", 2))
        gather()
        a.label("L_haveu")
        a.e("v_mov_b32 v10, 0\nv_mov_b32 v11, 0")
        a.e(f"ds_write_b64 v{vUZ}, v[10:11]", tag="Z")
        a.wait(vm=0)
        a.e(f"ds_write_b128 v{vUW}, v[176:179]", tag="UW")
        a.e(f"ds_write_b128 v{vUW}, v[236:239] offset:512", tag="UW")
        self.bsync()
        self.stamp("convs")
        a.e(f"s_setprio {self.o.get('cprio', 1)}")
        if not o.get("noconv"):
            self.conv({})
        self.stamp("conve")
        a.e(f"s_setprio {o.get('eprio', 3)}")
        self.conv_out()
        self.conv_out2()
        a.wait(vm=0)
        self.publish(sAF, line=True)
        self.stamp("apub")

    def tail(self):
        a = self.a
        o = self.o
        if o.get("amp"):
            self.stamp("end")
            a.e(f"""
            s_waitcnt lgkmcnt(0)
            s_sub_u32 s8, s82, s80
            s_lshl_b32 s8, s8, 2
            s_add_u32 s8, s8, 3000
            s_cmp_lg_u32 s2, {o['amp']}
            s_cbranch_scc1 L_end
            """)
            a.label("L_pad")
            a.e("""
            s_memrealtime s[98:99]
            s_waitcnt lgkmcnt(0)
            s_sub_u32 s98, s98, s80
            s_cmp_lt_u32 s98, s8
            s_cbranch_scc1 L_pad
            """)
        elif self.stamps:
            a.e("s_memrealtime s[100:101]" if o.get("rt") else "s_memtime s[100:101]")
            a.e("s_memrealtime s[72:73]")
            a.e("s_waitcnt lgkmcnt(0)")
            a.e(f"""
            v_readfirstlane_b32 s3, v0
            s_and_b32 s3, s3, 256
            s_add_u32 s3, s3, s2
            s_lshl_b32 s3, s3, 2
            s_add_u32 s3, s3, {sW}
            s_lshl_b32 s3, s3, 6
            s_add_u32 s3, s3, {WS_STAMP}
            s_mov_b64 exec, 1
            """)
            for k in list(range(1, len(self.names))) + [10]:
                a.e(f"s_sub_u32 s8, s{80+2*k}, s80\nv_mov_b32 v8, s8\nbuffer_store_dword v8, v3, {R_WS}, s3 offen offset:{4*k}")
            a.e(f"v_mov_b32 v8, s78\nbuffer_store_dword v8, v3, {R_WS}, s3 offen offset:44")
            a.e(f"v_mov_b32 v8, s72\nbuffer_store_dword v8, v3, {R_WS}, s3 offen offset:48")

    def build(self):
        a = self.a
        self.prologue()
        self.role_a()
        a.e("s_branch L_tail" if self.stamps else "s_endpgm")
        self.role_b()
        a.label("L_tail")
        self.tail()
        a.label("L_end")
        a.e("s_endpgm")
        hdr = open("gated_mix__ssm_conv_s4__dense_activation_relu__prompt.s.ref").read().split("; Override launch")[0]
        s = hdr + f"; @launch grid=(256,1,1) block=(512,1,1) lds={LDS_BYTES}\n"
        s += '.amdgcn_target "amdgcn-amd-amdhsa--gfx950"\n.text\n'
        s += f".globl {KNAME}\n.p2align 8\n.type {KNAME},@function\n{KNAME}:\n"
        s += a.text().replace(".p2align 3:", ".p2align 3")
        s += f""".section .rodata,"a"
.p2align 6
.amdhsa_kernel {KNAME}
  .amdhsa_next_free_vgpr 256
  .amdhsa_next_free_sgpr 102
  .amdhsa_accum_offset 256
  .amdhsa_group_segment_fixed_size 0
  .amdhsa_kernarg_size 128
  .amdhsa_user_sgpr_count 2
  .amdhsa_user_sgpr_kernarg_segment_ptr 1
  .amdhsa_system_sgpr_workgroup_id_x 1
.end_amdhsa_kernel
"""
        return s


if __name__ == "__main__":
    out = sys.argv[1]
    stamps = None
    opts = {}
    for x in sys.argv[2:]:
        if x.startswith("--stamps="):
            stamps = x.split("=")[1].split(",")
        elif "=" in x:
            opts[x.split("=")[0]] = int(x.split("=")[1])
    g = Gen(stamps=stamps, opts=opts)
    s = g.build()
    open(out, "w").write(s)
    print("instructions", sum(1 for i in g.a.ins if i.kind != "label"), "auto nops", g.a.nops, "stamps", g.names)
```

```python
import sys
from collections import deque
from emit import Asm

KNAME = "gated_mix__ssm_conv_s4__dense_activation_relu__prompt_kernel"

WS_TF = 0x1000
WS_GF = 0x5000
WS_HF = 0x40000
WS_AF = 0x60000
WS_G = 0x12000
WS_STAMP = 0x20000
WS_UT = 0x100000
WS_AT = 0x300000
WS_H = 0x500000
WS_SIZE = 0xC00000

LDS_BYTES = 163840
XPOS = [98304, 131072, 81920]
WPOS = [114688, 147456, 65536]
L_BS = 81920
BSN = 8
L_CNT = 64384
NAR = 4
NBR = 6
vA0, vB0 = 32, 96
TROW = 1056
NROW = 62
L_TAB = 0
TSPLIT = 34
L_KC = 0
KCP = 4160
L_U = 70784
UP = 4608
L_EX = 33280
XB = 46
YB = {0: 0, 1: 16, 2: 24, 3: 29, 4: 34, 5: 37, 6: 40, 7: 43}

sX, sI, sW, sEP = "s4", "s5", "s6", "s7"
P_U, P_ARE, P_AIM, P_BRE, P_BIM, P_CRE, P_CIM, P_LDT = [f"s[{16+2*i}:{17+2*i}]" for i in range(8)]
P_DSK, P_BX, P_W1, P_W2, P_GW, P_OUT, P_DBG, P_WS = [f"s[{32+2*i}:{33+2*i}]" for i in range(8)]
R_U, R_W1, R_W2, R_OUT, R_WS = "s[48:51]", "s[52:55]", "s[56:59]", "s[60:63]", "s[64:67]"
sE2 = "s[68:69]"
sH0, sH1, sHF, sUG0, sUG1, sAT, sAF, sTM0, sTM1 = "s32", "s33", "s34", "s32", "s33", "s34", "s35", "s36", "s37"
sBB = ["s36", "s37", "s38", "s39"]
sAB = ["s40", "s41", "s42", "s43"]
sBS = "s76"
sM, sN = "s30", "s31"
vKX, vKY, vKWA, vKWB, vUW, vCA, vCB, vEXD, vEXO, vUG, vKZ, vTF, vUZ, vCN = 240, 241, 244, 245, 246, 247, 248, 249, 250, 251, 252, 253, 254, 255
KRES = list(range(32, 80)) + list(range(216, 235))
vBR = 24
vAV = 12


def v(a, n=1):
    return f"v{a}" if n == 1 else f"v[{a}:{a+n-1}]"


def lines(t):
    return [x.strip() for x in t.strip().split("\n") if x.strip() and not x.strip().startswith(";")]


class Gen:
    def __init__(self, stamps=None, opts=None):
        self.a = Asm()
        self.stamps = stamps
        self.names = []
        self.o = opts or {}
        self.npoll = 0
        self.b_iss = 0
        self.b_con = 0
        self.bg = deque()
        self.lg_idle = False
        self.no_lg = False
        self.nsync = 0
        self.gpub = False
        self.skipped = set()
        self.acount = 0
        self.kc0 = 0

    def stamp(self, name):
        if self.stamps and (name == "start" or name in self.stamps):
            if name not in self.names:
                self.names.append(name)
            k = self.names.index(name)
            assert k < 10
            self.a.e(f"{'s_memrealtime' if (self.o.get('amp') or self.o.get('rt')) else 's_memtime'} s[{80+2*k}:{81+2*k}]")

    def push(self, text, tag=None):
        L = lines(text)
        k = 0
        while k < len(L):
            u = [L[k]]
            if L[k].startswith("s_cmp"):
                while k + 1 < len(L) and L[k + 1].startswith("s_cselect"):
                    k += 1
                    u.append(L[k])
            k += 1
            self.bg.append(lambda u="\n".join(u), tag=tag: self.a.e(u, tag=tag))

    def pushf(self, f):
        self.bg.append(f)

    def pushw(self, **kw):
        self.bg.append(lambda: self.a.wait(**kw))

    def drain(self, n=10**9):
        while n > 0 and self.bg:
            self.bg.popleft()()
            n -= 1

    def publish(self, soff, mask="1", voff="v3", line=False):
        a = self.a
        if self.o.get("sat", 1):
            a.e(f"s_atomic_swap {sEP}, {P_WS}, {soff}")
            return
        if line and self.o.get("fline", 1):
            a.e("v_lshlrev_b32 v8, 2, v1\ns_mov_b32 exec_hi, 0")
            a.e(f"buffer_store_dword v2, v8, {R_WS}, {soff} offen sc1", tag="flag")
            a.e("s_mov_b32 exec_hi, -1")
            return
        a.e(f"s_mov_b64 exec, {mask}")
        a.e(f"buffer_store_dword v2, {voff}, {R_WS}, {soff} offen sc1", tag="flag")
        a.e("s_mov_b64 exec, -1")

    def spoll_issue(self, soff, n):
        if self.o.get("vp", 0):
            self.a.e(f"v_min_u32 v27, 6, v1\nv_lshl_add_u32 v27, v27, 2, {soff}")
            self.a.e(f"buffer_load_dword v28, v27, {R_WS}, 0 offen sc1", tag="VP")
            return
        dst = "s16" if n == 1 else f"s[16:{15+n}]"
        self.a.e(f"s_load_dword{'' if n == 1 else 'x%d' % n} {dst}, {P_WS}, {soff} glc")
        if n == 16:
            self.a.e(f"s_load_dword s32, {P_WS}, s75 glc")

    def spoll(self, soff, n, sleep=2, issued=False):
        a = self.a
        sleep = self.o.get("psl", sleep)
        if self.o.get("vp", 0):
            a.wait(vm="VP")
            a.e(f"v_cmp_ne_u32 vcc, {sEP}, v28")
            a.e(f"s_cbranch_vccz L_pollx{self.npoll}")
            self.vpoll("v27", "v28", sleep=sleep)
            return
        k = self.npoll
        self.npoll += 1
        a.e("s_mov_b32 s3, 0")
        if not issued:
            self.spoll_issue(soff, n)
        a.label(f"L_poll{k}")
        a.e("s_waitcnt lgkmcnt(0)")
        if n == 8:
            a.e("s_mov_b32 s23, s22")
        else:
            a.e("s_mov_b32 s33, s32")
            n = 18
        for q in range(n // 2):
            a.e(f"s_xor_b64 s[{16+2*q}:{17+2*q}], s[{16+2*q}:{17+2*q}], {sE2}")
        for q in range(1, n // 2):
            a.e(f"s_or_b64 s[16:17], s[16:17], s[{16+2*q}:{17+2*q}]")
        a.e(f"s_cbranch_scc0 L_pollx{k}")
        a.e("s_add_u32 s3, s3, 1")
        a.e("s_cmp_gt_u32 s3, 4000")
        a.e(f"s_cbranch_scc1 L_pollx{k}")
        a.e(f"s_sleep {sleep}")
        self.spoll_issue(soff, min(n, 16))
        a.e(f"s_branch L_poll{k}")
        a.label(f"L_pollx{k}")

    def epoch_master(self):
        a = self.a
        a.e(f"""
        s_lshl_b32 s3, s2, 2
        s_add_u32 s3, s3, {sW}
        s_cmp_lg_u32 s3, 1023
        s_cbranch_scc1 L_nomaster
        """)
        if self.o.get("clk", 1):
            a.e("""
            s_memrealtime s[10:11]
            s_waitcnt lgkmcnt(0)
            s_max_u32 s3, s10, 1
            """)
        else:
            a.e(f"""
            s_load_dword s3, {P_WS}, 0
            s_waitcnt lgkmcnt(0)
            s_mul_i32 s3, s3, 1664525
            s_add_u32 s3, s3, 1013904223
            s_max_u32 s3, s3, 1
            """)
        a.e("v_mov_b32 v8, s3\ns_mov_b64 exec, 1")
        a.raw(f"global_store_dword v3, v8, {P_DBG} sc1")
        if not self.o.get("clk", 1):
            a.raw(f"global_store_dword v3, v8, {P_WS} sc1")
        a.e("s_mov_b64 exec, -1")
        a.label("L_nomaster")

    def epoch_issue(self):
        self.a.e(f"s_load_dword {sEP}, {P_DBG}, 0")

    def epoch_get(self, issued=False):
        a = self.a
        k = self.npoll
        self.npoll += 1
        if not issued:
            self.epoch_issue()
        a.e("s_mov_b32 s3, 0")
        a.e("s_waitcnt lgkmcnt(0)")
        a.label(f"L_ep{k}")
        a.e(f"s_cmp_lg_u32 {sEP}, 0")
        a.e(f"s_cbranch_scc1 L_epx{k}")
        a.e("s_add_u32 s3, s3, 1")
        a.e("s_cmp_gt_u32 s3, 4000")
        a.e(f"s_cbranch_scc1 L_epx{k}")
        a.e("s_sleep 2")
        a.raw(f"global_load_dword v2, v3, {P_DBG} sc1")
        a.wait(vm=0)
        a.e(f"v_readfirstlane_b32 {sEP}, v2")
        a.e("s_nop 1")
        a.e(f"s_branch L_ep{k}")
        a.label(f"L_epx{k}")
        a.e(f"s_mov_b32 s68, {sEP}\ns_mov_b32 s69, {sEP}\nv_mov_b32 v2, {sEP}")

    def vpoll(self, voff, tmp, sleep=2):
        a = self.a
        n = self.npoll
        self.npoll += 1
        a.e("s_mov_b32 s3, 0")
        a.label(f"L_poll{n}")
        a.raw(f"buffer_load_dword {tmp}, {voff}, {R_WS}, 0 offen sc1")
        a.e("s_add_u32 s3, s3, 1")
        a.wait(vm=0)
        a.e(f"v_cmp_ne_u32 vcc, {sEP}, {tmp}")
        a.e("s_cmp_gt_u32 s3, 4000")
        a.e(f"s_cbranch_scc1 L_pollx{n}")
        a.e(f"s_cbranch_vccz L_pollx{n}")
        a.e(f"s_sleep {sleep}")
        a.e(f"s_branch L_poll{n}")
        a.label(f"L_pollx{n}")

    def params_load(self):
        a = self.a
        for k, p in enumerate((P_ARE, P_AIM, P_BRE, P_BIM, P_CRE, P_CIM)):
            a.e(f"global_load_short_d16_hi v{176+k}, v24, {p}", tag="P")
        a.e(f"global_load_short_d16_hi v182, v25, {P_LDT}", tag="P")
        a.e(f"global_load_short_d16_hi v183, v25, {P_DSK}", tag="P")

    def tlb_touch(self):
        a = self.a
        if not self.o.get("tlb", 1):
            return
        a.e(f"""
        s_cmp_eq_u32 {sW}, 1
        s_cselect_b64 s[8:9], {P_W2}, {P_WS}
        s_cmp_eq_u32 {sW}, 2
        s_cselect_b64 s[8:9], {P_OUT}, s[8:9]
        s_cmp_eq_u32 {sW}, 3
        s_cselect_b64 s[8:9], {P_DBG}, s[8:9]
        s_cmp_eq_u32 {sW}, 0
        s_cselect_b32 s10, 5, 0
        s_mov_b32 s11, 21
        """)
        if self.o.get("tlb", 1) == 2:
            a.e(f"""
            s_cselect_b32 s10, 47, 27
            s_cselect_b32 s11, 18, 16
            s_cmp_eq_u32 {sW}, 3
            s_cselect_b32 s10, 0, s10
            """)
        a.e("""
        v_min_u32 v8, s10, v1
        v_lshlrev_b32 v8, s11, v8
        """)
        a.e("global_load_dword v6, v8, s[8:9] offset:128", tag="TLB")
        if self.o.get("stlb", 0):
            a.e(f"s_load_dword s60, {P_DBG}, 128")
            a.e(f"s_load_dword s61, {P_WS}, 128")

    def gate_tail(self):
        P = self.push
        for q in range(4):
            for r in range(8):
                P(f"v_dot2_f32_bf16 v{132+r}, v{64+4*r+q}, v{148+q}, v{132+r}")
        for j in range(4):
            P(f"v_permlane16_swap_b32 v{132+2*j}, v{133+2*j}")
        for j in range(4):
            P(f"v_add_f32 v{132+2*j}, v{132+2*j}, v{133+2*j}")
        for r in (8, 4, 2, 1):
            for j in range(4):
                P(f"v_add_f32_dpp v{132+2*j}, v{132+2*j}, v{132+2*j} row_ror:{r} row_mask:0xf bank_mask:0xf")
        P(f"""
        v_and_b32 v8, 3, v1
        v_cmp_eq_u32 vcc, 1, v8
        v_cndmask_b32 v132, v132, v134, vcc
        v_cmp_eq_u32 vcc, 2, v8
        v_cndmask_b32 v132, v132, v136, vcc
        v_cmp_eq_u32 vcc, 3, v8
        v_cndmask_b32 v132, v132, v138, vcc
        v_mul_f32 v132, 0xbfb8aa3b, v132
        v_exp_f32 v132, v132
        v_lshrrev_b32 v9, 5, v1
        v_lshl_add_u32 v9, v9, 2, v8
        v_add_f32 v132, 1.0, v132
        v_rcp_f32 v132, v132
        v_bfe_u32 v8, v1, 4, 1
        v_lshl_add_u32 v9, v9, 1, v8
        v_lshlrev_b32 v9, 2, v9
        s_lshl_b32 s9, s70, 6
        s_add_u32 s9, s9, {WS_G}
        """)

        def st():
            a = self.a
            a.e("s_mov_b32 exec_lo, 0x000f000f\ns_mov_b32 exec_hi, 0x000f000f")
            a.e(f"buffer_store_dword v132, v9, {R_WS}, s9 offen sc1", tag="Tst")
            a.e("s_mov_b64 exec, -1")
        self.pushf(st)

    def push_kgen(self):
        P = self.push
        E = lambda k: 80 + 2 * (k - 1)
        F = lambda c: 116 + 2 * (c - 1)
        X0 = 130
        P(f"""
        v_mul_f32 v134, 0x3fb8aa3b, v182
        v_exp_f32 v134, v134
        v_pk_mul_f32 v[138:139], v[180:181], v[178:179] op_sel_hi:[1,0]
        v_cvt_pk_bf16_f32 v134, v134, v134
        v_pk_fma_f32 v[138:139], v[180:181], v[178:179], v[138:139] op_sel:[1,1,0] op_sel_hi:[0,1,1] neg_lo:[1,0,0]
        v_and_b32 v134, 0xffff0000, v134
        v_mov_b32 v{KRES[YB[0]]}, 0x3f80
        v_mul_f32 v135, v134, v176         ; zr
        v_mul_f32 v136, v134, v177         ; zi
        v_pk_mul_f32 v[{X0}:{X0+1}], v[138:139], v[134:135] op_sel_hi:[1,0]
        v_mul_f32 v135, 0x3fb8aa3b, v135
        v_mul_f32 v136, 0.15915494, v136   ; revolutions
        v_mul_f32 v142, 0x41800000, v135
        v_mul_f32 v143, 0x41800000, v136
        v_mul_f32 v144, 0x43800000, v135
        v_mul_f32 v145, 0x43800000, v136
        v_fract_f32 v141, v136
        v_fract_f32 v143, v143
        v_fract_f32 v145, v145
        v_exp_f32 v140, v135
        v_exp_f32 v142, v142
        v_exp_f32 v144, v144
        """)
        for dst, t in ((E(1), 140), (E(16), 142), (F(1), 144)):
            P(f"v_cos_f32 v{dst}, v{t+1}\nv_sin_f32 v{dst+1}, v{t+1}")
        for dst, t in ((E(1), 140), (E(16), 142), (F(1), 144)):
            P(f"v_pk_mul_f32 {v(dst,2)}, {v(dst,2)}, {v(t,2)} op_sel_hi:[1,0]")
        src = {2: (1, 1), 3: (2, 1), 4: (2, 2), 5: (4, 1), 6: (4, 2), 7: (4, 3), 8: (4, 4), 17: (16, 1), 18: (16, 2)}
        for k in range(9, 16):
            src[k] = (8, k - 8)
        ej = [(E(k), E(src[k][0]), E(src[k][1]), YB[0] + k, False) for k in range(2, 16)]
        fsrc = {2: (1, 1), 3: (2, 1), 4: (2, 2), 5: (4, 1), 6: (4, 2), 7: (4, 3)}
        fj = [(F(c), F(fsrc[c][0]), F(fsrc[c][1]), YB[c], False) for c in range(2, 8)]
        xj = [(X0 + 2 * (k % 2), X0 + 2 * ((k - 1) % 2), E(16), XB + k, True) for k in range(1, 16)]
        pj = []
        tmp = list(range(146, 170, 2))
        ti = 0
        for c in range(1, 8):
            step = {1: 2, 2: 4, 3: 4}.get(c, 8)
            top = 15 if c == 1 else 17
            for n_, rho in enumerate(range(step, top, step)):
                pj.append((tmp[ti % len(tmp)], F(c), E(rho), YB[c] + 1 + n_, False))
                ti += 1
        others = []
        q1, q2 = list(ej), list(fj)
        while q1 or q2:
            if q1:
                others.append(q1.pop(0))
            if q2:
                others.append(q2.pop(0))
        others += pj
        order = []
        xs = list(xj)
        while others or xs:
            grp = []
            if xs:
                grp.append(xs.pop(0))
            while others and len(grp) < 4:
                j = others[0]
                if any(g[0] in (j[1], j[2]) or g[0] == j[0] for g in grp):
                    break
                grp.append(others.pop(0))
            order.append(grp)
        put = lambda reg, row, neg: P(f"v_cvt_pk_bf16_f32 v{KRES[row]}, v{reg}, {'-' if neg else ''}v{reg+1}")
        prev = [(X0, 0, 0, XB, True), (E(1), 0, 0, YB[0] + 1, False), (F(1), 0, 0, YB[1], False)]
        for gi, grp in enumerate(order):
            pk = gi < self.o.get("pkg", 99)
            for (d, x, y, row, neg) in grp:
                if pk:
                    P(f"v_pk_mul_f32 {v(d,2)}, {v(x,2)}, {v(y,2)} op_sel_hi:[1,0]")
                else:
                    P(f"v_mul_f32 v{d}, v{x}, v{y}\nv_mul_f32 v{d+1}, v{x+1}, v{y}")
            for (d, x, y, row, neg) in prev:
                put(d, row, neg)
            for (d, x, y, row, neg) in grp:
                if pk:
                    P(f"v_pk_fma_f32 {v(d,2)}, {v(x,2)}, {v(y,2)}, {v(d,2)} op_sel:[1,1,0] op_sel_hi:[0,1,1] neg_lo:[1,0,0]")
                else:
                    P(f"v_fma_f32 v{d}, -v{x+1}, v{y+1}, v{d}\nv_fmac_f32 v{d+1}, v{x}, v{y+1}")
            prev = grp
            if gi + 1 == self.o.get("pkg", 99):
                self.kc0 = len(self.bg)
        for (d, x, y, row, neg) in prev:
            put(d, row, neg)

    def tables(self):
        a = self.a
        a.e(f"s_mov_b32 m0, {sTM0}")
        for row in range(NROW):
            a.e(f"ds_write_addtid_b32 v{KRES[row]} offset:{row * TROW}", tag="TB")

    def arrive(self, vaddr, vone, off):
        a = self.a
        a.e("s_mov_b64 exec, 1")
        a.e(f"ds_add_u32 {vaddr}, {vone} offset:{off}")
        a.e("s_mov_b64 exec, -1")

    def await_(self, vaddr, off, count, sleep=0):
        a = self.a
        k = self.npoll
        self.npoll += 1
        a.e("s_mov_b32 s3, 0")
        a.label(f"L_bs{k}")
        if sleep:
            a.e(f"s_sleep {sleep}")
        a.e(f"ds_read_b32 v8, {vaddr} offset:{off}")
        a.e("s_add_u32 s3, s3, 1")
        a.wait(lg=0)
        a.e("v_readfirstlane_b32 s8, v8")
        a.e("s_cmp_gt_u32 s3, 100000")
        a.e(f"s_cbranch_scc1 L_bsx{k}")
        a.e(f"s_cmp_lt_u32 s8, {count}")
        a.e(f"s_cbranch_scc1 L_bs{k}")
        a.label(f"L_bsx{k}")

    def bsync(self):
        self.nsync += 1
        self.a.wait(lg=0)
        self.arrive("v3", "v5", L_CNT)
        self.await_("v3", L_CNT, 4 * self.nsync)

    def push_kmfma(self):
        YR = [64, 68, 72, 76] + list(range(184, 216, 4))
        NY = len(YR)
        AH = 8
        seq = [(ks, c) for ks in range(8) for c in range(2)]
        for ks in range(8):
            self.push(f"ds_read_b128 {v(32+4*ks,4)}, v{vKX} offset:{64*ks}", tag="KX")
        yr = lambda n_: self.push(f"ds_read_b128 {v(YR[n_%NY],4)}, v{vKY+seq[n_][1]} offset:{64*seq[n_][0]}", tag=f"KY{n_}")
        for n_ in range(AH):
            yr(n_)
        for n_, (ks, c) in enumerate(seq):
            d = 216 + 4 * c
            cc = "0" if (ks == 0 and c != 0) else v(d, 4)

            def f(n_=n_, d=d, cc=cc, ks=ks):
                self.a.wait(lg=f"KY{n_}")
                self.a.e(f"v_mfma_f32_16x16x32_bf16 {v(d,4)}, {v(YR[n_%NY],4)}, {v(32+4*ks,4)}, {cc}")
            self.pushf(f)
            if n_ + AH < 16:
                yr(n_ + AH)

    def push_kexpand(self, hw):
        P = self.push
        cv = lambda dst, hi_lag, lo_lag: P(f"v_cvt_pk_bf16_f32 v{dst}, {hi_lag}, {lo_lag}")
        if hw == 0:
            for dst, src_ in ((224, 216), (225, 217), (226, 218), (227, 220), (228, 221)):
                P(f"ds_bpermute_b32 v{dst}, v{vKY+2}, v{src_}", tag="NB")
            P("""
            v_readfirstlane_b32 s8, v220       ; V(256)
            v_readfirstlane_b32 s9, v221       ; V(258)
            v_readfirstlane_b32 s10, v222      ; V(512)
            """)
            self.pushw(lg="NB")
            P("""
            v_writelane_b32 v224, s8, 63
            v_writelane_b32 v225, s8, 63
            v_writelane_b32 v226, s9, 63
            v_writelane_b32 v227, s10, 63
            v_writelane_b32 v228, s10, 63
            """)
            k0 = ["v216", "v217", "v218", "v219", "v224", "v225", "v226"]
            k1 = ["v220", "v220", "v221", "v227", "v227", "v227", "v228"]
            for si, (k, off) in enumerate(((k0, 512), (k1, 0))):
                for sg in range(4):
                    t = 32 + 8 * si + 2 * sg
                    cv(t, k[sg + 3], k[sg + 2])
                    cv(t + 1, k[sg + 1], k[sg])
                    P(f"ds_write_b64 v{vKWA}, {v(t,2)} offset:{off+sg*KCP}", tag="KW")
            P("""
            v_readfirstlane_b32 s8, v33        ; (K1 | K0<<16)
            v_readfirstlane_b32 s9, v35        ; (K2 | K1<<16)
            v_mov_b32 v48, 0
            v_mov_b32 v49, 0
            s_lshr_b32 s10, s8, 16             ; K0
            v_writelane_b32 v48, s10, 8
            v_writelane_b32 v48, s8, 16
            v_writelane_b32 v48, s9, 24
            v_writelane_b32 v49, s10, 24
            """)
            self.pushf(lambda: self.a.e(f"s_mov_b32 exec_hi, 0\nds_write_b64 v{vKZ}, v[48:49]\ns_mov_b32 exec_hi, -1", tag="KW"))
        else:
            k2 = ["v216"] * 3 + ["v217"] * 3 + ["v218"] * 5
            k3 = ["v220"] * 5 + ["v221"] * 7 + ["v222"] * 7
            t = 32
            for sg in range(4):
                for q in range(4):
                    cv(t + q, k2[sg + 7 - 2 * q], k2[sg + 6 - 2 * q])
                P(f"ds_write_b128 v{vKWA}, {v(t,4)} offset:{sg*KCP}", tag="KW")
                t += 4
                for hf in range(2):
                    for q in range(4):
                        cv(t + q, k3[sg + 15 - 8 * hf - 2 * q], k3[sg + 14 - 8 * hf - 2 * q])
                    P(f"ds_write_b128 v{vKWB}, {v(t,4)} offset:{sg*KCP+16*hf}", tag="KW")
                    t += 4

    def conv(self, fill):
        a = self.a

        def reads(st):
            A0 = 32 + 64 * (st % 2)
            B0 = 64 + 64 * (st % 2)
            L = []
            for k in range(8):
                offA = 512 * (7 - k) + 64 * (3 - st)
                offB = 512 * k + 64 * (3 - st)
                L.append((f"ds_read_b64 {v(A0+4*k,2)}, v{vCA} offset:{offA}", f"C{st}_{k}"))
                L.append((f"ds_read_b64 {v(A0+4*k+2,2)}, v{vCA} offset:{offA+8}", f"C{st}_{k}"))
                L.append((f"ds_read_b128 {v(B0+4*k,4)}, v{vCB} offset:{offB}", f"C{st}_{k}"))
            return L

        first = set()
        for c_, t_ in reads(0):
            a.e(c_, tag=t_)
        for st in range(4):
            A0 = 32 + 64 * (st % 2)
            B0 = 64 + 64 * (st % 2)
            nxt = reads(st + 1) if st < 3 else []
            pairs = sorted([(q1, m) for q1 in range(8) for m in range(8) if q1 + m <= 7], key=lambda p: (max(p), p[0] + p[1]))
            have = -1
            for n_, (q1, m) in enumerate(pairs):
                used = 0
                if max(q1, m) > have:
                    have = max(q1, m) if st == 0 else 7
                    a.wait(lg=f"C{st}_{have}")
                    used += 1
                c = q1 + m
                d = 160 + 4 * c
                cc = v(d, 4) if c in first else "0"
                first.add(c)
                a.e(f"v_mfma_f32_16x16x32_bf16 {v(d,4)}, {v(A0+4*q1,4)}, {v(B0+4*m,4)}, {cc}")
                if nxt and n_ >= 4:
                    c_, t_ = nxt.pop(0)
                    a.e(c_, tag=t_)
                    used += 1
                for f in fill.get(36 * st + n_, []):
                    f()
                self.drain(2 - used)
            assert not nxt
        self.drain()

    def conv_out(self):
        a = self.a
        a.e(f"""
        s_bitcmp1_b32 {sW}, 0
        s_nop 7
        s_cbranch_scc1 L_hw1
        """)
        for k in range(4):
            a.e(f"ds_write_b128 v{vEXD}, {v(176+4*k,4)} offset:{1024*k}", tag="EX")
        a.e("s_branch L_hwj")
        a.label("L_hw1")
        for k in range(4):
            a.raw(f"ds_write_b128 v{vEXD}, {v(160+4*k,4)} offset:{1024*k}")
        a.wait(lg=0)
        for k in range(16):
            a.e(f"v_mov_b32 v{160+k}, v{176+k}")
        a.label("L_hwj")

    def conv_out2(self):
        a = self.a
        self.bsync()
        for k in range(4):
            a.e(f"ds_read_b128 {v(176+4*k,4)}, v{vEXO} offset:{1024*k}", tag=f"EY{k}")
        for cp in range(2):
            for cl in range(2):
                k = 2 * cp + cl
                a.wait(lg=f"EY{k}")
                for q in range(4):
                    a.e(f"v_add_f32 v{160+4*k+q}, v{160+4*k+q}, v{176+4*k+q}")
                a.e(f"v_cvt_pk_bf16_f32 v{20+4*cp+2*cl}, v{160+4*k}, v{161+4*k}")
                a.e(f"v_cvt_pk_bf16_f32 v{21+4*cp+2*cl}, v{162+4*k}, v{163+4*k}")
            a.e(f"v_permlane16_swap_b32 v{20+4*cp}, v{22+4*cp}")
            a.e(f"v_permlane16_swap_b32 v{21+4*cp}, v{23+4*cp}")
            a.e(f"buffer_store_dwordx4 {v(20+4*cp,4)}, v255, {R_WS}, {'s38' if cp else sAT} offen sc1", tag="Ast")

    def prologue(self):
        a = self.a
        a.e("s_cmp_ge_u32 s2, 256\ns_cbranch_scc1 L_end")
        self.stamp("start")
        if self.stamps and not self.o.get("amp"):
            a.e("s_memrealtime s[78:79]")
        a.e(f"""
        s_lshr_b32 {sI}, s2, 3
        s_min_u32 s3, {sI}, 15
        s_lshl_b32 s3, s3, 3
        s_load_dwordx2 s[68:69], s[0:1], s3
        s_load_dwordx16 s[16:31], s[0:1], 0
        s_load_dwordx16 s[32:47], s[0:1], 64
        s_getpc_b64 s[8:9]
        L_pc:
        s_lshl_b32 s3, {sI}, 10
        v_lshl_add_u32 v6, v0, 2, s3
        v_min_u32 v6, L_end-L_pc, v6
        v_readfirstlane_b32 s14, v0
        v_and_b32 v1, 63, v0
        v_bfe_u32 v4, v0, 6, 2
        s_and_b32 {sX}, s2, 7
        s_mul_i32 s77, {sI}, 37
        s_lshr_b32 s77, s77, 8
        s_bfe_u32 {sW}, s14, 0x20006
        s_mul_i32 s13, s77, 7
        s_sub_u32 s15, {sI}, s13           ; ct
        s_and_b32 s11, {sX}, 6
        s_lshl1_add_u32 s11, s11, s77
        s_lshl_b32 s70, s11, 17
        s_and_b32 s11, {sX}, 1
        s_mul_i32 s11, s11, 7
        s_add_u32 s11, s11, s15
        s_lshl_b32 s71, s11, 8
        """)
        g = self.o.get("g1rot", 2)
        if g == 8:
            a.e("s_lshl1_add_u32 s72, s77, s15")
        elif g == 4:
            a.e("s_add_u32 s72, s77, s15\ns_lshl_b32 s72, s72, 1")
        elif g == 2:
            a.e("s_add_u32 s72, s77, s15\ns_lshl_b32 s72, s72, 2")
        if self.o.get("xrot", 0) == 1:
            a.e(f"s_add_u32 s72, s72, {sX}")
        if self.o.get("xrot", 0) == 2:
            a.e(f"s_and_b32 s11, {sX}, 1\ns_lshl1_add_u32 s72, s11, s72\ns_lshr_b32 s11, {sX}, 1\ns_add_u32 s72, s72, s11")
        a.e(f"""
        s_lshl_b32 s73, {sW}, 12           ; wave*4096
        s_mov_b32 s50, {2048*1024}
        s_mov_b32 s51, 0x00020000
        s_mov_b32 s54, {512*3584}
        s_mov_b32 s55, s51
        s_bitcmp1_b32 s14, 8
        """)
        if not self.o.get("bnear", 0):
            a.e("s_cbranch_scc1 L_roleB0")
            return
        a.e("s_cbranch_scc0 L_roleA")
        self.b_first()
        a.e("s_branch L_roleB")
        a.label("L_roleA")
        a.vm = []

    def b_first(self):
        a = self.a
        a.e(f"s_setprio {self.o.get('bprio', 3)}")
        a.e(f"""
        s_lshr_b32 s9, {sW}, 1
        s_lshl1_add_u32 s8, {sI}, s9
        s_lshl3_add_u32 s77, s8, {sX}
        s_and_b32 s9, {sW}, 1
        s_lshl1_add_u32 s8, s77, s9
        s_lshl_b32 s8, s8, 7
        v_lshl_add_u32 v24, v1, 1, s8      ; d*256 + (64*(w&1)+l)*2
        v_lshlrev_b32 v25, 1, s77
        """)
        for k in range(4):
            a.e(f"v_pk_mov_b32 v[{176+2*k}:{177+2*k}], 0, 0")
        a.e("s_waitcnt lgkmcnt(0)")
        self.stamp("bk")
        if self.o.get("pb", 1):
            a.e("s_barrier")
        self.params_load()

    def dma_voffs(self):
        self.a.e(f"""
        v_lshrrev_b32 v8, 3, v1            ; l>>3
        v_lshl_add_u32 v8, v4, 5, v8       ; 32w + (l>>3)
        v_lshlrev_b32 v8, 10, v8           ; *1024
        v_lshrrev_b32 v9, 4, v1            ; l>>4
        v_and_b32 v10, 7, v1
        v_xor_b32 v10, v10, v9             ; pos ^ (l>>4)
        v_lshl_add_u32 v16, v10, 4, v8
        v_xor_b32 v10, 4, v10
        v_lshl_add_u32 v17, v10, 4, v8
        v_add_u32 v17, {8192-1024}, v17
        v_add_u32 v18, {2*(8192-1024)}, v16
        v_add_u32 v19, {2*(8192-1024)}, v17
        v_lshl_add_u32 v8, v4, 4, v9       ; 16w + (l>>4)
        v_mul_u32_u24 v8, 3584, v8
        v_and_b32 v10, 15, v1
        v_lshlrev_b32 v11, 2, v9
        v_xor_b32 v10, v10, v11
        v_lshl_add_u32 v20, v10, 4, v8
        v_add_u32 v21, {4*3584-1024}, v20
        v_xor_b32 v10, 2, v10
        v_lshl_add_u32 v8, v10, 4, v8
        v_add_u32 v22, {2*(4*3584-1024)}, v8
        v_add_u32 v23, {3*(4*3584-1024)}, v8
        """)

    def common2(self):
        self.a.e(f"""
        v_mov_b32 v3, 0
        v_lshlrev_b32 v7, 4, v1            ; lane*16
        s_mov_b32 s66, {WS_SIZE}
        s_mov_b32 s67, 0x00020000
        s_mov_b64 s[64:65], s[46:47]
        """)

    def a_prologue(self):
        a = self.a
        a.e("global_load_dword v6, v6, s[8:9]", tag="CPF")
        a.e(f"""
        s_max_u32 s3, {sI}, 15
        s_min_u32 s3, s3, 20
        s_sub_u32 s3, s3, 15
        v_lshlrev_b32 v12, 21, s3
        """)
        self.dma_voffs()
        a.e(self.dma_setup(0))
        a.e("s_waitcnt lgkmcnt(0)")
        self.stamp("karg")
        a.e("global_load_dword v6, v12, s[68:69] offset:128", tag="FAN")
        a.e(f"""
        s_mov_b64 s[48:49], s[16:17]
        s_mov_b64 s[52:53], s[36:37]
        """)

    def a_prologue2(self):
        a = self.a
        a.e(f"s_setprio {self.o.get('prio', 2)}")
        self.common2()
        a.e(f"""
        s_lshl_b32 {sBS}, {sW}, 11         ; wave*2048
        s_add_u32 {sBS}, {sBS}, {L_BS}
        s_mov_b32 s58, {1792*1024}
        s_mov_b32 s59, 0x00020000
        s_mov_b32 s62, {2048*1024}
        s_mov_b32 s63, 0x00020000
        s_mov_b64 s[56:57], s[38:39]
        s_mov_b64 s[60:61], s[42:43]
        """)
        if not self.o.get("vp", 0):
            a.e(f"s_load_dword s16, {P_WS}, 128")

    def dma_setup(self, s):
        return f"""
        s_add_u32 s74, s72, {s}
        s_and_b32 s74, s74, 7
        s_mul_i32 s75, s74, {64*3584}
        s_add_u32 s75, s75, s71
        s_lshl_b32 s74, s74, 7
        s_add_u32 s74, s74, s70
        """

    def dma_ops(self, s, setup=True):
        slot = s % 3
        ops = []
        for i in range(4):
            pre = ((self.dma_setup(s) if setup else "") + f"s_add_u32 m0, s73, {XPOS[slot]}\n") if i == 0 else ""
            ops.append((pre + f"buffer_load_dwordx4 v{16+i}, {R_U}, s74 offen offset:{i*1024} lds", f"D{s}"))
        for i in range(4):
            pre = f"s_add_u32 m0, s73, {WPOS[slot]}\n" if i == 0 else ""
            ops.append((pre + f"buffer_load_dwordx4 v{20+i}, {R_W1}, s75 offen offset:{i*1024} lds", f"D{s}"))
        return ops

    def a_setup_g1(self):
        self.a.e(f"""
        v_and_b32 v8, 15, v1               ; t
        v_lshrrev_b32 v9, 4, v1            ; g
        v_lshrrev_b32 v10, 1, v8
        v_xor_b32 v10, v10, v9             ; g ^ (t>>1)
        s_lshr_b32 s8, {sW}, 1
        s_lshl_b32 s8, s8, 13              ; wm*64*128
        s_add_u32 s8, s8, {XPOS[2]}
        v_lshl_add_u32 v8, v8, 7, s8
        v_lshl_add_u32 v4, v10, 4, v8
        v_xor_b32 v5, 64, v4
        v_bfe_u32 v8, v1, 2, 2             ; r
        v_lshl_add_u32 v10, v9, 3, v8      ; 8g + r
        v_lshlrev_b32 v10, 8, v10          ; *256
        v_and_b32 v9, 1, v9
        v_lshl_or_b32 v8, v8, 1, v9        ; 2r | (g&1)
        s_and_b32 s8, {sW}, 1
        s_lshl_b32 s8, s8, 2
        v_xor_b32 v8, s8, v8               ; (4wn) ^ s
        v_lshl_add_u32 v10, v8, 5, v10
        v_and_b32 v8, 3, v1
        v_lshl_add_u32 v10, v8, 3, v10
        v_add_u32 v24, {WPOS[0]}, v10
        v_xor_b32 v25, 32, v24
        v_xor_b32 v26, 64, v24
        v_xor_b32 v27, 96, v24
        v_add_u32 v28, {WPOS[2]}, v10
        v_xor_b32 v29, 32, v28
        v_xor_b32 v30, 64, v28
        v_xor_b32 v31, 96, v28
        s_lshl2_add_u32 s8, {sX}, s77      ; 4x + rt
        s_lshr_b32 s9, {sW}, 1
        s_lshl1_add_u32 s8, s8, s9
        s_mul_i32 s8, s8, {4*28}
        s_and_b32 s10, {sW}, 1
        s_lshl1_add_u32 s10, s15, s10
        s_lshl1_add_u32 s8, s10, s8
        s_lshl_b32 s8, s8, 10
        s_add_u32 {sH0}, s8, {WS_H}
        s_and_b32 s8, {sX}, 6
        s_lshl1_add_u32 s8, s8, s77        ; 4R + rt
        s_lshl1_add_u32 s8, s8, s9         ; *2 + wm
        s_and_b32 s9, {sX}, 1
        s_lshl1_add_u32 s8, s8, s9         ; *2 + ch
        s_lshl_b32 s8, s8, 8               ; *2 groups*128B
        s_cmp_ge_u32 s10, 7
        s_cselect_b32 s9, {128-28}, 0
        s_lshl2_add_u32 s8, s10, s8
        s_add_u32 s8, s8, s9
        s_add_u32 {sHF}, s8, {WS_HF}
        """)

    def a_setup_g2(self):
        a = self.a
        a.e(f"""
        v_lshrrev_b32 v8, 3, v1
        v_lshlrev_b32 v8, 10, v8
        v_lshrrev_b32 v9, 4, v1
        v_lshlrev_b32 v9, 1, v9
        v_and_b32 v10, 7, v1
        v_xor_b32 v10, v10, v9
        v_lshl_add_u32 v10, v10, 4, v8
        v_add_u32 v11, {8192-1024}, v10
        s_cmp_ge_u32 s15, 3
        s_addc_u32 s8, s15, 0
        s_cmp_ge_u32 {sI}, 28
        s_cselect_b32 {sN}, 3, s8
        s_cselect_b32 {sM}, s15, s77       ; m
        s_mul_i32 s12, {sW}, {28*16384}
        s_lshl_b32 s10, {sN}, 7
        s_add_u32 s12, s12, s10            ; w2 base
        s_and_b32 s10, {sX}, 6
        s_lshr_b32 s11, {sW}, 1
        s_add_u32 s10, s10, s11
        s_and_b32 s11, {sX}, 1
        s_lshl1_add_u32 s10, s10, s11
        s_lshl2_add_u32 s10, s10, {sM}     ; 8xp + 4(x&1) + m
        s_mul_i32 s10, s10, {4*28}
        s_and_b32 s11, {sW}, 1
        s_mul_i32 s3, s11, 14
        s_add_u32 s10, s10, s3
        s_lshl_b32 s10, s10, 10
        s_add_u32 s13, s10, {WS_H}         ; h base
        """)
        for lam in range(4):
            a.e(f"s_xor_b32 s3, {sW}, {lam}\ns_mul_i32 s3, s3, {28*1024}\nv_add_u32 v{vAV+lam}, s3, v7")
        if self.o.get("g2rot", 1) == 2:
            a.e(f"s_add_u32 s10, {sN}, {sM}")
        else:
            a.e("s_mov_b32 s10, 0")
        for k in range(2):
            a.e(f"""
            s_add_u32 s11, s10, {k}
            s_and_b32 s11, s11, 1
            s_mul_i32 s3, s11, {14*16384}
            s_add_u32 {sBB[k]}, s12, s3
            s_mul_i32 s3, s11, {7*1024}
            s_add_u32 {sAB[k]}, s13, s3
            """)

    def a_setup_br(self):
        self.a.e(f"""
        v_lshrrev_b32 v8, 2, v1            ; row = 4g + r
        v_lshl_add_u32 v9, v8, 7, {sBS}
        v_bfe_u32 v8, v1, 3, 2             ; (row>>1)&3
        v_lshl_add_u32 v9, v8, 5, v9
        v_and_b32 v8, 3, v1
        v_lshl_add_u32 v{vBR}, v8, 3, v9
        v_xor_b32 v{vBR+1}, 32, v{vBR}
        v_xor_b32 v{vBR+2}, 64, v{vBR}
        v_xor_b32 v{vBR+3}, 96, v{vBR}
        """)

    def a_setup_late(self):
        self.a.e(f"""
        s_lshl2_add_u32 s12, {sN}, {sW}
        s_lshr_b32 s8, {sX}, 2
        s_lshl_b32 s8, s8, 5
        s_add_u32 s8, s8, s12
        s_lshl_b32 s8, s8, 7
        s_add_u32 s74, s8, {WS_AF}         ; a flags
        s_lshl_b32 s8, s12, 14
        s_lshr_b32 s13, {sX}, 1
        s_lshl_b32 s13, s13, 19
        s_add_u32 s8, s8, s13
        s_add_u32 s8, s8, {WS_AT}
        s_and_b32 s13, {sX}, 1
        s_lshl2_add_u32 s13, s13, {sM}
        s_lshl_b32 s13, s13, 7
        v_lshrrev_b32 v8, 3, v1            ; dl
        v_bfe_u32 v9, v1, 2, 1             ; hf
        v_and_b32 v4, 3, v1                ; jj
        v_lshl_add_u32 v16, v9, 6, s13
        v_lshl_add_u32 v16, v4, 4, v16
        v_lshlrev_b32 v17, 7, v8
        v_xor_b32 v16, v16, v17
        v_lshl_add_u32 v16, v8, 10, v16
        v_add_u32 v16, s8, v16
        v_lshl_add_u32 v4, v4, 1, v9
        v_and_b32 v9, 6, v8
        v_xor_b32 v4, v4, v9               ; ^ ((row>>1)&3)<<1
        v_add_u32 v17, {sBS}, v17
        v_lshl_add_u32 v18, v4, 4, v17
        v_add_u32 v17, {8*1024}, v16
        s_lshl2_add_u32 s10, {sX}, {sM}
        s_lshl2_add_u32 s10, s10, {sW}
        s_lshl_b32 s8, s10, 7
        s_add_u32 s72, s8, {WS_HF}         ; h flags
        s_add_u32 s75, s8, {WS_GF}
        s_lshl_b32 s8, s10, 6
        s_add_u32 s8, s8, {WS_G}
        v_and_b32 v8, 15, v1
        v_lshl_add_u32 v19, v8, 2, s8
        s_lshl_b32 s8, {sW}, 5
        v_xor_b32 v20, s8, v{vBR}
        s_lshl_b32 s8, {sW}, 11
        v_subrev_u32 v20, s8, v20
        v_bfe_u32 v9, v1, 4, 1
        v_lshlrev_b32 v21, 10, v8
        v_lshl_add_u32 v21, v9, 5, v21
        v_lshrrev_b32 v9, 5, v1
        v_lshl_add_u32 v21, v9, 4, v21
        s_lshl_b32 s70, s10, 14
        s_lshl_b32 s13, {sN}, 7
        s_add_u32 s70, s70, s13
        v_add_u32 v28, {sBS}, v7
        v_xor_b32 v29, 0x800, v28
        v_xor_b32 v30, 0x1000, v28
        v_xor_b32 v31, 0x1800, v28
        """)

    def t_job(self):
        a = self.a
        o = self.o
        a.e(f"""
        s_sub_u32 s8, {sI}, 28
        s_lshl_b32 s9, {sX}, 2
        s_add_u32 s71, s8, s9
        s_lshl_b32 s8, s71, 2
        s_add_u32 s70, s8, {sW}
        s_lshl_b32 s72, s70, 11
        s_add_u32 s72, s72, {WS_UT}
        v_lshrrev_b32 v9, 5, v1            ; octet
        v_and_b32 v8, 31, v1
        v_lshlrev_b32 v15, 4, v8
        v_lshl_add_u32 v13, v9, 13, v15
        s_lshl_b32 s8, s70, 14
        s_add_u32 s9, s8, 4096
        """)
        for blk in range(2):
            for tt in range(8):
                a.e(f"buffer_load_dwordx4 {v(32+32*blk+4*tt,4)}, v13, {R_U}, {'s8' if tt < 4 else 's9'} offen offset:{(tt%4)*1024+blk*512}", tag=f"T{blk}")
                if blk == 0 and tt == 3 and o.get("pb", 1):
                    a.e("s_barrier")
                if blk == 1 and tt == 3:
                    a.e("s_barrier")
            if blk == 0:
                self.epoch_master()
                a.e("v_and_b32 v8, 1, v1\nv_lshlrev_b32 v8, 21, v8")
                a.e(f"buffer_load_dword v6, v8, {R_WS}, 0 offen offset:128", tag="TL")
        a.e(f"global_load_dwordx4 v[96:99], v15, {P_GW}", tag="GW")
        a.e(f"global_load_dwordx4 v[148:151], v15, {P_GW} offset:512", tag="GW")
        a.e("""
        s_mov_b32 s12, 0x05040100
        s_mov_b32 s13, 0x07060302
        v_bfe_u32 v8, v1, 2, 3
        s_and_b32 s8, s70, 7
        v_xor_b32 v8, s8, v8
        v_lshl_add_u32 v8, v8, 1, v9
        v_and_b32 v9, 3, v1
        v_lshl_add_u32 v8, v8, 2, v9
        v_lshlrev_b32 v14, 4, v8
        """)
        for blk in range(2):
            a.wait(vm=f"T{blk}")
            self.stamp(f"t{blk}")
            if blk == 1:
                a.e(f"global_load_dword v2, v3, {P_DBG} sc1", tag="EP")
            for c8 in range(8):
                t = 100 + 4 * c8
                for k in range(4):
                    r0 = 32 + 32 * blk + 8 * k + c8 // 2
                    a.e(f"v_perm_b32 v{t+k}, v{r0+4}, v{r0}, s{12+(c8&1)}")
                a.e(f"s_add_u32 s8, s72, {c8*262144}")
                a.e(f"buffer_store_dwordx4 {v(t,4)}, v14, {R_WS}, s8 offen offset:{blk*1024} sc1", tag="Ust")
        self.stamp("tst")
        a.wait(vm="GW")
        for q in range(4):
            for r in range(8):
                a.e(f"v_dot2_f32_bf16 v{132+r}, v{32+4*r+q}, v{96+q}, {'0' if q == 0 else 'v%d' % (132+r)}")
        self.gate_tail()
        self.drain(len(self.bg) - 1)
        a.wait(vm="EP")
        a.e(f"v_readfirstlane_b32 {sEP}, v2")
        self.epoch_get(issued=True)
        a.e(f"s_lshl_b32 s10, s71, 7\ns_add_u32 s10, s10, {WS_TF}\nv_mov_b32 v10, 1")
        a.wait(vm="Ust")
        a.e("s_mov_b64 exec, 1")
        a.e(f"ds_add_rtn_u32 v10, v3, v10 offset:{L_CNT+4}")
        a.e("s_mov_b64 exec, -1")
        a.wait(lg=0)
        a.e("v_readfirstlane_b32 s8, v10\ns_cmp_eq_u32 s8, 3\ns_cbranch_scc0 L_ntp")
        if self.o.get("sat", 1):
            self.publish("s10")
        else:
            a.e("v_lshlrev_b32 v8, 2, v1\ns_mov_b32 exec_hi, 0")
            a.raw(f"buffer_store_dword v2, v8, {R_WS}, s10 offen sc1")
            a.e("s_mov_b32 exec_hi, -1")
        a.label("L_ntp")
        self.stamp("tpub")
        self.drain()
        a.e(f"s_setprio {o.get('sprio', 0)}")
        a.e(f"s_mul_i32 s9, s70, {14*1024}")
        for k in range(14 if o.get("w2warm", 0) else 0):
            a.e(f"buffer_load_dwordx4 {v(192+4*k,4)}, v7, {R_W2}, s9 offen offset:{(k%4)*1024}", tag="WW")
            if k % 4 == 3:
                a.e("s_add_u32 s9, s9, 4096")
        for k in range(o.get("bxr", 0)):
            a.e(f"s_lshl_b32 s9, s70, 14\nv_add_u32 v8, s9, v7")
            a.e(f"global_load_dwordx4 {v(192+4*k,4)}, v8, {P_BX} offset:{(k%4)*1024}" if k < 4 else f"v_add_u32 v8, {(k//4)*4096}, v8\nglobal_load_dwordx4 {v(192+4*k,4)}, v8, {P_BX} offset:{(k%4)*1024}", tag="WW")
        a.e(f"s_lshl_b32 s9, s70, 7\ns_add_u32 s9, s9, {WS_GF}")
        a.wait(vm="Tst")
        self.publish("s9", line=True)
        self.gpub = True
        a.e(f"""
        s_mul_i32 s8, {sW}, {28*16384}
        s_sub_u32 s9, {sI}, 28
        s_lshl_b32 s9, s9, 12
        s_add_u32 s8, s8, s9
        """)
        steps = list(range(o.get("pfa", 28), o.get("pfb", 28)))
        for n_, st in enumerate(steps):
            a.e(f"s_add_u32 s9, s8, {st*16384}")
            for k in range(4):
                a.e(f"buffer_load_dwordx4 {v(32+16*(n_%4)+4*k,4)}, v7, {R_W2}, s9 offen offset:{k*1024}", tag="WW")
        self.stamp("pfd")
        a.e(f"s_setprio {o.get('sprio2', 0)}")

    def push_b_issue(self):
        i = self.b_iss
        if i >= 28:
            return
        assert i - self.b_con < BSN
        self.b_iss += 1
        if i >= BSN and not self.no_lg:
            self.pushw(lg=f"BR{i-BSN}")
        self.push(f"""
        s_add_u32 m0, {sBS}, {(i % BSN)*8192}
        s_add_u32 s14, {sBB[i//14]}, {(i%14)*16384}
        buffer_load_dwordx4 v10, {R_W2}, s14 offen lds
        buffer_load_dwordx4 v11, {R_W2}, s14 offen offset:1024 lds
        """, tag=f"B{i}")

    def push_b_consume(self):
        i = self.b_con
        if i >= 28:
            return
        assert i < self.b_iss
        self.b_con += 1
        self.pushw(vm=f"B{i}")
        for db in range(4):
            self.push(f"ds_read_b64_tr_b16 {v(vB0+16*((i//2)%NBR)+4*db+2*(i%2),2)}, v{vBR+db} offset:{(i % BSN)*8192}", tag=f"BR{i}")

    def g1(self):
        a = self.a

        def reads(kap):
            s, kk = divmod(kap, 2)
            slot = s % 3
            b = 32 + 32 * (kap % 2)
            L = []
            for q in range(4):
                wa, wo = (24 + q, WPOS[slot] - WPOS[0]) if slot < 2 else (28 + q, 0)
                L.append(f"ds_read_b128 {v(b+4*q,4)}, v{4+kk} offset:{XPOS[slot]-XPOS[2]+q*2048}")
                for hh in range(2):
                    L.append(f"ds_read_b64_tr_b16 {v(b+16+4*q+2*hh,2)}, v{wa} offset:{wo+kk*8192+hh*1024}")
            return L

        a.e("v_mov_b32 v9, 1")
        a.wait(vm="D0")
        a.e("s_barrier")
        self.stamp("g1s")
        for r in reads(0):
            a.e(r, tag="R0")
        nb = {5: 2, 6: self.o.get("e6", 3)}
        for kap in range(16):
            s, kk = divmod(kap, 2)
            if kk == 1 and kap < 15:
                a.wait(vm=f"D{s+1}" if f"D{s+1}" in a.vm else None, lg=0)
                a.e("s_barrier")
                self.stamp(f"st{s+1}")
                for _ in range(nb.get(s, 0) if self.o.get("bearly", 1) else 0):
                    self.push_b_issue()
            else:
                a.wait(lg=f"R{kap}")
            nxt = reads(kap + 1) if kap < 15 else []
            b = 32 + 32 * (kap % 2)
            for n_ in range(16):
                tb, fa = divmod(n_, 4)
                d = 192 + 16 * tb + 4 * fa
                a.e(f"v_mfma_f32_16x16x32_bf16 {v(d,4)}, {v(b+16+4*fa,4)}, {v(b+4*tb,4)}, {'0' if kap == 0 else v(d,4)}")
                if nxt:
                    a.e(nxt.pop(0), tag=f"R{kap+1}")
                    if n_ % 3 == 2:
                        self.drain(1)
                else:
                    self.drain(1)
        self.drain()
        self.arrive("v3", "v9", L_CNT + 4)
        self.acount += 4
        self.stamp("g1e")

    def h_stores(self):
        a = self.a
        for tb in range(4):
            if tb:
                a.e(f"s_add_u32 {sH0}, {sH0}, {28*1024}")
            for j in range(2):
                d = 192 + 16 * tb + 8 * j
                t = 32 + 8 * tb + 4 * j
                for q in range(4):
                    a.e(f"v_cvt_pk_bf16_f32 v{t+q}, v{d+2*q}, v{d+2*q+1}")
                for q in range(4):
                    a.e(f"v_pk_max_i16 v{t+q}, v{t+q}, 0")
                a.e(f"buffer_store_dwordx4 {v(t,4)}, v7, {R_WS}, {sH0} offen offset:{j*1024} sc1", tag="Hst")
        self.stamp("hiss")

    def a_load(self, i):
        r = vA0 + 16 * (i % NAR)
        L = [f"s_add_u32 s15, {sAB[i//7]}, {(i%7)*1024}"]
        for tb in (3, 2, 1, 0):
            L.append(f"buffer_load_dwordx4 {v(r+4*tb,4)}, v{vAV+tb}, {R_WS}, s15 offen sc1")
        return L

    def g2(self):
        a = self.a
        o = self.o
        PRE = NAR - 1
        TAIL = o.get("tail", 2)
        vAG = vB0 + 16 * 2
        self.vAG = vAG
        apos, achk = o.get("apos", 9), o.get("achk", 11)

        def mf(i, tb, db):
            d = 192 + 16 * tb + 4 * db
            a.e(f"v_mfma_f32_16x16x32_bf16 {v(d,4)}, {v(vB0+16*(i%NBR)+4*db,4)}, {v(vA0+16*(i%NAR)+4*tb,4)}, {'0' if i == 0 else v(d,4)}")

        def rw(lam):
            for db in range(4):
                self.push(f"ds_write_b128 v28, {v(192+16*lam+4*db,4)} offset:{(2*(lam-1)+db//2)*8192+(db%2)*1024}", tag="RW")

        for i in range(14 - TAIL):
            ld = self.a_load(i + PRE) if i + PRE < 14 else []
            if i == apos:
                assert self.b_con == 28
                self.drain()
                a.wait(lg=0)
                self.spoll_issue("s74", 16)
            if i == achk:
                self.stamp("apre")
                self.spoll("s74", 16, sleep=4, issued=True)
                self.stamp("apoll")
                a.e(f"buffer_load_dwordx4 {v(vAG,4)}, v16, {R_WS}, 0 offen sc1", tag="AL")
                a.e(f"buffer_load_dwordx4 {v(vAG+4,4)}, v17, {R_WS}, 0 offen sc1", tag="AL")
                a.e(f"buffer_load_dword v{vAG+8}, v19, {R_WS}, 0 offen sc1", tag="AL")
            if a.lg.count(f"BR{2*i+1}") < 4:
                while self.b_con <= 2 * i + 1:
                    if self.b_iss <= self.b_con:
                        self.push_b_issue()
                    self.push_b_consume()
                self.drain()
            if i < apos:
                a.wait(lg=f"BR{2*i+1}")
            for _ in range(2):
                if self.b_iss < 28 and self.b_iss - self.b_con < BSN:
                    self.push_b_issue()
                if self.b_con < 28 and self.b_con // 2 - i < NBR and self.b_con < self.b_iss and (self.b_iss - self.b_con >= o.get("blag", 4) or self.b_iss == 28):
                    self.push_b_consume()
            for tb in (3, 2, 1, 0):
                a.wait(vm=f"A{i}_{tb}")
                if i == 0 and tb == 3:
                    self.stamp("g2s")
                if tb == 3:
                    self.stamp(f"q{2*i}")
                for db in range(4):
                    mf(i, tb, db)
                    if ld and db == 0:
                        if tb == 3:
                            a.e(ld[0])
                        a.e(ld[4 - tb], tag=f"A{i+PRE}_{tb}")
                    else:
                        self.drain(2)
        self.drain()
        for tb in (3, 2, 1, 0):
            n_ = 0
            for i in range(14 - TAIL, 14):
                a.wait(vm=f"A{i}_{tb}")
                for db in range(4):
                    mf(i, tb, db)
                    n_ += 1
                    if n_ >= 3 and n_ % max(1, TAIL - 1) == 0:
                        self.drain(1)
            self.drain()
            if tb:
                rw(tb)
        self.stamp("g2e")
        a.wait(vm=0)
        a.e(f"ds_write_b128 v18, {v(vAG,4)} offset:{6*8192}", tag="AW")
        a.e(f"ds_write_b128 v18, {v(vAG+4,4)} offset:{6*8192+1024}", tag="AW")

    def final(self):
        a = self.a
        vG = self.vAG + 8
        a.wait(lg=0)
        a.e("s_barrier")
        self.stamp("fbar")
        for db in range(4):
            a.e(f"ds_read_b64_tr_b16 {v(80+2*db,2)}, v20 offset:{6*8192+db*2048}", tag="AR")
        for p in range(2):
            for lam in range(1, 4):
                for db in (2 * p, 2 * p + 1):
                    a.e(f"ds_read_b128 {v(32+16*(lam-1)+4*db,4)}, v{28+lam} offset:{(2*(lam-1)+db//2)*8192+(db%2)*1024}", tag=f"RR{p}{lam}")
        a.wait(lg="AR")
        for db in range(4):
            s_, d_ = 80 + 2 * db, 224 + 4 * db
            a.e(f"v_lshlrev_b32 v{d_}, 16, v{s_}")
            a.e(f"v_and_b32 v{d_+1}, 0xffff0000, v{s_}")
            a.e(f"v_lshlrev_b32 v{d_+2}, 16, v{s_+1}")
            a.e(f"v_and_b32 v{d_+3}, 0xffff0000, v{s_+1}")
        for p in range(2):
            hs = range(4 * p, 4 * p + 4)
            for lam in range(1, 4):
                a.wait(lg=f"RR{p}{lam}")
                for h in hs:
                    a.e(f"v_pk_add_f32 {v(192+2*h,2)}, {v(192+2*h,2)}, {v(32+16*(lam-1)+2*h,2)}")
            for h in hs:
                a.e(f"v_pk_add_f32 {v(224+2*h,2)}, {v(224+2*h,2)}, {v(192+2*h,2)} neg_lo:[0,1] neg_hi:[0,1]")
            for h in hs:
                a.e(f"v_pk_fma_f32 {v(192+2*h,2)}, {v(224+2*h,2)}, {v(vG,2)}, {v(192+2*h,2)} op_sel_hi:[1,0,1]")
            for h in hs:
                a.e(f"v_cvt_pk_bf16_f32 v{240+h}, v{192+2*h}, v{193+2*h}")
            a.e(f"v_permlane16_swap_b32 v{240+4*p}, v{242+4*p}")
            a.e(f"v_permlane16_swap_b32 v{241+4*p}, v{243+4*p}")
            a.e(f"buffer_store_dwordx4 {v(240+4*p,4)}, v21, {R_OUT}, s70 offen offset:{64*p}", tag="O")

    def role_a(self):
        a = self.a
        o = self.o
        self.a_prologue()
        a.e(f"s_cmp_ge_u32 {sI}, 28")
        a.e("s_cbranch_scc1 L_spare")
        vm0, lg0 = list(a.vm), list(a.lg)
        ops = self.dma_ops(0, False) + self.dma_ops(1) + self.dma_ops(2)
        n1 = o.get("n1", 11)
        for k_, (x, t) in enumerate(ops[:n1]):
            a.e(x, tag=t)
            if k_ + 1 == o.get("pb", 1):
                a.e("s_barrier")
        self.stamp("d0iss")
        self.a_prologue2()
        self.a_setup_g1()
        self.a_setup_g2()
        for x, t in ops[n1:]:
            a.e(x, tag=t)
        a.e(f"s_lshl_b32 s8, s2, 13\ns_lshl_b32 s9, {sW}, 11\ns_add_u32 s8, s8, s9")
        a.e(f"buffer_load_dwordx4 v[96:99], v7, {R_W2}, s8 offen", tag="WA")
        a.e(f"buffer_load_dwordx4 v[100:103], v7, {R_W2}, s8 offen offset:1024", tag="WA")
        self.stamp("d2iss")
        self.g1()
        nearly = self.b_iss
        self.h_stores()
        self.a_setup_br()
        for _ in range(nearly):
            self.push_b_consume()
        self.drain()
        self.await_("v3", L_CNT + 4, self.acount)
        for _ in range(o.get("bh", 5)):
            self.push_b_issue()
        self.drain()
        self.await_("v3", L_CNT + 8, 1)
        a.e(f"s_mov_b32 {sEP}, s8\ns_mov_b32 s68, s8\ns_mov_b32 s69, s8")
        a.wait(vm="Hst")
        self.publish(sHF)
        self.stamp("hpub")
        if "pprio" in o:
            a.e(f"s_setprio {o['pprio']}")
        a.e("s_branch L_join")
        a.label("L_spare")
        vm_main, lg_main = list(a.vm), list(a.lg)
        bi = self.b_iss
        a.vm, a.lg = vm0, lg0
        self.b_iss = self.b_con = 0
        self.a_prologue2()
        self.t_job()
        self.a_setup_g2()
        self.a_setup_br()
        if o.get("c3", 1):
            a.e(f"s_lshl_b32 s8, {sM}, 15\ns_add_u32 s8, s8, {sBB[1]}\ns_add_u32 s8, s8, {6*16384}")
            for k in range(4):
                a.e(f"buffer_load_dwordx4 {v(32+4*k,4)}, v10, {R_W2}, s8 offen", tag="WW")
                a.e("s_add_u32 s8, s8, 8192")
        for _ in range(nearly):
            self.push_b_issue()
        while self.b_iss < bi or self.b_con < nearly:
            if self.b_con < nearly:
                self.push_b_consume()
            if self.b_iss < bi:
                self.push_b_issue()
        self.drain()
        a.wait(lg=0)
        a.vm, a.lg = vm_main, lg_main
        a.label("L_join")
        self.a_setup_late()
        bt = o.get("bt", 2 * NBR + BSN)
        hq = o.get("hq", 3)
        while self.b_iss < bt:
            if self.b_iss == bt - hq:
                assert bt - self.b_con <= BSN
                self.pushw(lg=0)
                self.pushf(lambda: self.spoll_issue("s72", 8))
                self.no_lg = True
            if not self.no_lg and self.b_con < 2 * NBR and self.b_iss - self.b_con >= o.get("blag0", 5):
                self.push_b_consume()
            self.push_b_issue()
        self.no_lg = False
        self.drain()
        self.stamp("biss")
        self.spoll("s72", 8, sleep=3, issued=True)
        self.stamp("hpoll")
        a.e(f"s_setprio {o.get('gprio', 0)}")
        for i in range(NAR - 1):
            L = self.a_load(i)
            a.e(L[0])
            for tb in (3, 2, 1, 0):
                a.e(L[4 - tb], tag=f"A{i}_{tb}")
        self.g2()
        self.final()

    def role_b(self):
        a = self.a
        o = self.o
        a.vm, a.lg = ["P"] * 8, []
        if not o.get("bnear", 0):
            a.vm = []
            a.label("L_roleB0")
            self.b_first()
        a.label("L_roleB")
        self.common2()
        a.e("s_mov_b64 s[48:49], s[16:17]")
        a.e(f"ds_write_b32 v3, v3 offset:{L_CNT}", tag="Z")
        a.e(f"ds_write_b32 v3, v3 offset:{L_CNT+4}", tag="Z")
        a.e(f"ds_write_b32 v3, v3 offset:{L_CNT+8}", tag="Z")
        a.wait(lg=0)
        a.e(f"s_cmp_lt_u32 {sI}, 28")
        a.e("s_cbranch_scc1 L_nzb")
        a.e("s_barrier")
        a.label("L_nzb")
        self.tlb_touch()
        self.dma_voffs()
        a.e(f"""
        s_mov_b64 s[52:53], s[36:37]
        s_lshl_b32 {sTM0}, {sW}, 8
        s_lshr_b32 s8, {sW}, 1             ; channel
        s_lshl_b32 s9, s8, 9
        v_and_b32 v8, 15, v1
        v_lshrrev_b32 v9, 4, v1
        v_lshl_add_u32 v10, v9, 4, s9      ; base + g*16
        s_movk_i32 s10, {TROW}
        v_add_u32 v12, {XB}, v8
        v_mad_u32_u24 v{vKX}, v12, s10, v10
        s_and_b32 s11, {sW}, 1
        s_cmp_eq_u32 s11, 0
        s_cselect_b64 vcc, -1, 0
        v_lshrrev_b32 v11, 2, v8           ; gi
        v_and_b32 v4, 3, v8                ; r
        v_min_u32 v5, 2, v4                ; min(r,2)
        v_lshrrev_b32 v13, 1, v11
        v_lshl_add_u32 v12, v11, 1, v13
        v_add3_u32 v12, v12, v5, {YB[2]}
        v_add_u32 v13, {YB[0]}, v8
        v_cndmask_b32 v12, v12, v13, vcc
        v_mad_u32_u24 v{vKY}, v12, s10, v10
        v_mad_u32_u24 v12, v11, 3, v5
        v_add_u32 v12, {YB[4]}, v12
        v_lshl_add_u32 v13, v11, 1, v4
        v_add_u32 v13, {YB[1]}, v13
        v_cmp_gt_u32 s[12:13], 2, v4
        v_cndmask_b32 v13, {YB[2]}, v13, s[12:13]
        v_cndmask_b32 v12, v12, v13, vcc
        v_mad_u32_u24 v{vKY+1}, v12, s10, v10
        v_add_u32 v12, 16, v1
        v_subrev_u32 v13, 47, v1
        v_cmp_gt_u32 s[12:13], 48, v1
        v_cndmask_b32 v12, v13, v12, s[12:13]
        v_lshlrev_b32 v{vKY+2}, 2, v12
        s_mul_i32 s9, s8, {4*KCP}
        v_lshlrev_b32 v11, 5, v8           ; 32j
        v_sub_u32 v11, s9, v11             ; base - 32j
        v_lshlrev_b32 v12, 3, v9
        v_sub_u32 v12, v11, v12
        v_add_u32 v12, {4088-512}, v12
        v_lshrrev_b32 v13, 1, v9
        v_lshlrev_b32 v13, 9, v13
        v_and_b32 v4, 1, v9
        v_lshl_add_u32 v13, v4, 4, v13     ; 512(g>>1) + 16(g&1)
        v_sub_u32 v13, v11, v13
        v_add_u32 v13, {4080-1024}, v13
        v_cndmask_b32 v{vKWA}, v13, v12, vcc
        v_lshlrev_b32 v13, 9, v9
        v_sub_u32 v13, v11, v13
        v_add_u32 v{vKWB}, {4064-2048}, v13
        s_movk_i32 s10, {KCP}
        v_lshrrev_b32 v11, 3, v1
        v_and_b32 v12, 7, v1
        v_lshlrev_b32 v12, 3, v12
        v_mad_u32_u24 v12, v11, s10, v12
        s_add_u32 s12, s9, 4096
        v_add_u32 v{vKZ}, s12, v12
        v_add_u32 v11, 1, v8
        v_and_b32 v11, 3, v11              ; sigma
        v_sub_u32 v12, 18, v8
        v_and_b32 v12, 28, v12
        v_lshl_add_u32 v12, v9, 3, v12
        v_lshlrev_b32 v12, 1, v12
        v_mad_u32_u24 v12, v11, s10, v12
        s_xor_b32 s13, s11, 1
        s_lshl_b32 s13, s13, 8             ; hw=0 (q0 0..3) -> +256 B
        s_add_u32 s12, s9, s13
        v_add_u32 v{vCA}, s12, v12
        v_lshlrev_b32 v12, 5, v8
        v_lshl_add_u32 v12, v9, 4, v12
        s_mul_i32 s12, s8, {UP}
        s_add_u32 s12, s12, {L_U}
        s_add_u32 s13, s12, s13
        v_add_u32 v{vCB}, s13, v12
        v_min_u32 v11, 59, v1
        v_lshl_add_u32 v{vUZ}, v11, 3, s12
        v_mov_b32 v5, 1
        """)
        a.e(f"""
        v_lshrrev_b32 v8, 1, v1
        v_and_b32 v9, 1, v1
        v_bfe_u32 v10, v1, 2, 3
        s_lshr_b32 s9, {sI}, 1
        v_xor_b32 v10, s9, v10
        v_lshrrev_b32 v11, 2, v1
        v_lshl_add_u32 v10, v11, 4, v10    ; line
        v_and_b32 v11, 1, v8
        v_lshl_add_u32 v10, v10, 1, v11    ; octet
        s_and_b32 s9, {sI}, 1
        v_lshl_add_u32 v10, v10, 1, s9
        v_lshl_add_u32 v10, v10, 1, v9
        v_lshlrev_b32 v{vUG}, 4, v10
        s_lshl_b32 s8, {sW}, 16            ; 64w*1024
        s_lshl_b32 s9, {sX}, 18
        s_add_u32 s8, s8, s9
        s_add_u32 {sUG0}, s8, {WS_UT}
        s_add_u32 {sUG1}, {sUG0}, {32*1024}
        s_movk_i32 s8, {UP}
        v_lshlrev_b32 v8, 4, v8
        v_mad_u32_u24 v8, v9, s8, v8
        s_lshl_b32 s8, {sW}, 10
        s_add_u32 s9, s8, {L_U + 480}
        v_add_u32 v{vUW}, s9, v8
        s_lshl_b32 s8, {sW}, 10
        s_add_u32 s8, s8, {WS_TF}
        v_and_b32 v8, 7, v1
        v_lshl_add_u32 v{vTF}, v8, 7, s8
        s_lshl_b32 s8, s77, 10
        s_lshl_b32 s10, s11, 20
        s_add_u32 s8, s8, s10
        s_add_u32 {sAT}, s8, {WS_AT}
        s_add_u32 s38, {sAT}, 0x80000
        v_bfe_u32 v8, v1, 2, 3             ; (cl, j>>2)
        v_xor_b32 v8, {sX}, v8             ; ^ (d & 7 = x)
        v_lshrrev_b32 v9, 5, v1            ; hf
        v_lshl_add_u32 v8, v8, 1, v9
        v_and_b32 v9, 3, v1
        v_lshl_add_u32 v8, v8, 2, v9
        v_lshlrev_b32 v255, 4, v8
        """)
        if o.get("asc", 1):
            a.e(f"""
            s_lshl_b32 s8, s11, 12
            s_lshr_b32 s10, s77, 4
            s_lshl_b32 s10, s10, 7
            s_add_u32 s8, s8, s10
            s_and_b32 s10, s77, 15
            s_lshl2_add_u32 s8, s10, s8
            s_add_u32 {sAF}, s8, {WS_AF}
            """)
        else:
            a.e(f"""
            s_lshl_b32 s8, s11, 16
            s_lshl_b32 s10, s77, 7
            s_add_u32 s8, s8, s10
            s_add_u32 {sAF}, s8, {WS_AF}
            """)
        if o.get("atouch", 0):
            a.e(f"buffer_load_dword v6, v3, {R_WS}, {sAF} offen sc1", tag="FT")
        a.e(f"""
        s_lshl_b32 s8, {sW}, 12
        s_add_u32 s8, s8, {L_EX}
        v_add_u32 v{vEXO}, s8, v7
        s_xor_b32 s8, {sW}, 1
        s_lshl_b32 s8, s8, 12
        s_add_u32 s8, s8, {L_EX}
        v_add_u32 v{vEXD}, s8, v7
        """)
        self.push_kgen()
        chunk = o.get("kch", 64)

        def gather():
            if o.get("noug", 0):
                return
            a.raw(f"buffer_load_dwordx4 v[176:179], v{vUG}, {R_WS}, {sUG0} offen sc1")
            a.raw(f"buffer_load_dwordx4 v[236:239], v{vUG}, {R_WS}, {sUG1} offen sc1")

        def look():
            if o.get("nolook"):
                a.e(f"global_load_dword v2, v3, {P_DBG} sc1", tag="PT")
                a.e(f"global_load_dword v9, v3, {P_DBG} sc1", tag="PT")
                return
            a.e(f"global_load_dword v2, v3, {P_DBG} sc1", tag="PT")
            a.e(f"buffer_load_dword v9, v{vTF}, {R_WS}, 0 offen sc1", tag="PT")

        def tag():
            a.wait(vm=0)
            a.e(f"v_readfirstlane_b32 {sEP}, v2")
            self.epoch_get(issued=True)
            a.e(f"ds_write_b32 v3, v2 offset:{L_CNT+8}")

        def check(lab):
            a.wait(vm=0)
            a.e(f"v_cmp_ne_u32 vcc, {sEP}, v9")
            a.e(f"s_cbranch_vccz {lab}y")
            a.raw(f"buffer_load_dword v9, v{vTF}, {R_WS}, 0 offen sc1")
            a.e(f"s_branch {lab}")
            a.label(f"{lab}y")
            a.e("s_mov_b32 s14, 0")
            gather()

        def kmf():
            a.e(f"""
            s_and_b32 s8, {sW}, 1
            s_lshl_b32 s8, s8, 6
            v_cmp_eq_u32 vcc, s8, v1
            v_mov_b32 v217, 0
            v_mov_b32 v218, 0
            v_mov_b32 v219, 0
            v_cndmask_b32 v216, 0, v183, vcc
            """)
            self.push_kmfma()
            self.drain()

        tp = o.get("tp", 6)
        tb = o.get("tb", 6)
        NB = 8
        if o.get("sphold", 1):
            a.e(f"s_cmp_lt_u32 {sI}, 28")
            a.e("s_cbranch_scc1 L_nh0")
            a.e("s_setprio 0")
            a.label("L_nh0")
        a.wait(vm="P")
        self.stamp("kgs")
        a.label(".p2align 3")
        self.drain()
        self.stamp("kge")
        if o.get("sphold", 1):
            a.e(f"s_cmp_lt_u32 {sI}, 28")
            a.e("s_cbranch_scc1 L_nh1")
            self.await_("v3", L_CNT + 4, 4, sleep=2)
            a.label("L_nh1")
        self.tables()
        self.stamp("tabd")
        a.wait(lg=0)
        self.arrive("v3", "v5", L_CNT)
        self.nsync += 1

        def ktiles():
            self.await_("v3", L_CNT, 4 * self.nsync)
            kmf()
            self.arrive("v3", "v5", L_CNT)
            self.nsync += 1
            self.stamp("kme")

        def expand():
            self.await_("v3", L_CNT, 4 * self.nsync)
            a.e(f"s_bitcmp1_b32 {sW}, 0")
            a.e("s_cbranch_scc1 L_sk1")
            self.push_kexpand(0)
            self.drain()
            a.e("s_branch L_skj")
            a.label("L_sk1")
            self.push_kexpand(1)
            self.drain()
            a.label("L_skj")
            self.stamp("kx")

        ks_, xs_, xn = o.get("ks", 7), o.get("xs", 7), o.get("xn", 4)
        for s in range(NB):
            a.e(f"s_cmp_lt_u32 {sI}, 28")
            a.e(f"s_cbranch_scc0 L_nl{s}")
            if f"D{s}" in a.vm:
                a.wait(vm=f"D{s}")
            a.e("s_barrier")
            ops = self.dma_ops(s + 2) if 1 <= s < 6 else []
            cut = xn if s == xs_ else 8
            for x, t in ops[:cut]:
                a.e(x, tag=t)
            a.label(f"L_nl{s}")
            if s == 0:
                a.e(f"s_setprio {o.get('bprio2', 1)}")
            if s == tp + 1:
                tag()
                check("L_c1")
                a.label("L_c1")
            if s == tp:
                look()
            if s == ks_:
                ktiles()
            if s == xs_:
                expand()
                if ops[cut:]:
                    a.e(f"s_cmp_lt_u32 {sI}, 28")
                    a.e(f"s_cbranch_scc0 L_nm{s}")
                    for x, t in ops[cut:]:
                        a.e(x, tag=t)
                    a.label(f"L_nm{s}")
        a.e(f"s_setprio {o.get('bprio3', 3)}")
        self.stamp("kw")
        a.e("s_cmp_eq_u32 s14, 0")
        a.e("s_cbranch_scc1 L_haveu")
        a.wait(vm=0)
        a.e(f"v_cmp_ne_u32 vcc, {sEP}, v9")
        a.e(f"s_cbranch_vccz L_pollx{self.npoll}")
        self.vpoll(f"v{vTF}", "v9", sleep=o.get("tsl", 2))
        gather()
        a.label("L_haveu")
        a.e("v_mov_b32 v10, 0\nv_mov_b32 v11, 0")
        a.e(f"ds_write_b64 v{vUZ}, v[10:11]", tag="Z")
        a.wait(vm=0)
        a.e(f"ds_write_b128 v{vUW}, v[176:179]", tag="UW")
        a.e(f"ds_write_b128 v{vUW}, v[236:239] offset:512", tag="UW")
        self.bsync()
        self.stamp("convs")
        a.e(f"s_setprio {self.o.get('cprio', 1)}")
        if not o.get("noconv"):
            self.conv({})
        self.stamp("conve")
        a.e(f"s_setprio {o.get('eprio', 3)}")
        self.conv_out()
        self.conv_out2()
        a.wait(vm=0)
        self.publish(sAF, line=True)
        self.stamp("apub")

    def tail(self):
        a = self.a
        o = self.o
        if o.get("amp"):
            self.stamp("end")
            a.e(f"""
            s_waitcnt lgkmcnt(0)
            s_sub_u32 s8, s82, s80
            s_lshl_b32 s8, s8, 2
            s_add_u32 s8, s8, 3000
            s_cmp_lg_u32 s2, {o['amp']}
            s_cbranch_scc1 L_end
            """)
            a.label("L_pad")
            a.e("""
            s_memrealtime s[98:99]
            s_waitcnt lgkmcnt(0)
            s_sub_u32 s98, s98, s80
            s_cmp_lt_u32 s98, s8
            s_cbranch_scc1 L_pad
            """)
        elif self.stamps:
            a.e("s_memrealtime s[100:101]" if o.get("rt") else "s_memtime s[100:101]")
            a.e("s_memrealtime s[72:73]")
            a.e("s_waitcnt lgkmcnt(0)")
            a.e(f"""
            v_readfirstlane_b32 s3, v0
            s_and_b32 s3, s3, 256
            s_add_u32 s3, s3, s2
            s_lshl_b32 s3, s3, 2
            s_add_u32 s3, s3, {sW}
            s_lshl_b32 s3, s3, 6
            s_add_u32 s3, s3, {WS_STAMP}
            s_mov_b64 exec, 1
            """)
            for k in list(range(1, len(self.names))) + [10]:
                a.e(f"s_sub_u32 s8, s{80+2*k}, s80\nv_mov_b32 v8, s8\nbuffer_store_dword v8, v3, {R_WS}, s3 offen offset:{4*k}")
            a.e(f"v_mov_b32 v8, s78\nbuffer_store_dword v8, v3, {R_WS}, s3 offen offset:44")
            a.e(f"v_mov_b32 v8, s72\nbuffer_store_dword v8, v3, {R_WS}, s3 offen offset:48")

    def build(self):
        a = self.a
        self.prologue()
        self.role_a()
        a.e("s_branch L_tail" if self.stamps else "s_endpgm")
        self.role_b()
        a.label("L_tail")
        self.tail()
        a.label("L_end")
        a.e("s_endpgm")
        hdr = open("gated_mix__ssm_conv_s4__dense_activation_relu__prompt.s.ref").read().split("; Override launch")[0]
        s = hdr + f"; @launch grid=(256,1,1) block=(512,1,1) lds={LDS_BYTES}\n"
        s += '.amdgcn_target "amdgcn-amd-amdhsa--gfx950"\n.text\n'
        s += f".globl {KNAME}\n.p2align 8\n.type {KNAME},@function\n{KNAME}:\n"
        s += a.text().replace(".p2align 3:", ".p2align 3")
        s += f""".section .rodata,"a"
.p2align 6
.amdhsa_kernel {KNAME}
  .amdhsa_next_free_vgpr 256
  .amdhsa_next_free_sgpr 102
  .amdhsa_accum_offset 256
  .amdhsa_group_segment_fixed_size 0
  .amdhsa_kernarg_size 128
  .amdhsa_user_sgpr_count 2
  .amdhsa_user_sgpr_kernarg_segment_ptr 1
  .amdhsa_system_sgpr_workgroup_id_x 1
.end_amdhsa_kernel
"""
        return s


if __name__ == "__main__":
    out = sys.argv[1]
    stamps = None
    opts = {}
    for x in sys.argv[2:]:
        if x.startswith("--stamps="):
            stamps = x.split("=")[1].split(",")
        elif "=" in x:
            opts[x.split("=")[0]] = int(x.split("=")[1])
    g = Gen(stamps=stamps, opts=opts)
    s = g.build()
    open(out, "w").write(s)
    print("instructions", sum(1 for i in g.a.ins if i.kind != "label"), "auto nops", g.a.nops, "stamps", g.names)
```

```python
import sys
from collections import deque
from emit import Asm

KNAME = "gated_mix__ssm_conv_s4__dense_activation_relu__prompt_kernel"

WS_TF = 0x1000
WS_GF = 0x5000
WS_HF = 0x40000
WS_AF = 0x60000
WS_G = 0x12000
WS_STAMP = 0x20000
WS_UT = 0x100000
WS_AT = 0x300000
WS_H = 0x500000
WS_SIZE = 0xC00000

LDS_BYTES = 163840
XPOS = [98304, 131072, 81920]
WPOS = [114688, 147456, 65536]
L_BS = 81920
BSN = 8
L_CNT = 64384
NAR = 4
NBR = 6
vA0, vB0 = 32, 96
TROW = 1056
NROW = 62
L_TAB = 0
TSPLIT = 34
L_KC = 0
KCP = 4160
L_U = 70784
UP = 4608
L_EX = 33280
XB = 46
YB = {0: 0, 1: 16, 2: 24, 3: 29, 4: 34, 5: 37, 6: 40, 7: 43}

sX, sI, sW, sEP = "s4", "s5", "s6", "s7"
P_U, P_ARE, P_AIM, P_BRE, P_BIM, P_CRE, P_CIM, P_LDT = [f"s[{16+2*i}:{17+2*i}]" for i in range(8)]
P_DSK, P_BX, P_W1, P_W2, P_GW, P_OUT, P_DBG, P_WS = [f"s[{32+2*i}:{33+2*i}]" for i in range(8)]
R_U, R_W1, R_W2, R_OUT, R_WS = "s[48:51]", "s[52:55]", "s[56:59]", "s[60:63]", "s[64:67]"
sE2 = "s[68:69]"
sH0, sH1, sHF, sUG0, sUG1, sAT, sAF, sTM0, sTM1 = "s32", "s33", "s34", "s32", "s33", "s34", "s35", "s36", "s37"
sBB = ["s36", "s37", "s38", "s39"]
sAB = ["s40", "s41", "s42", "s43"]
sBS = "s76"
sM, sN = "s30", "s31"
vKX, vKY, vKWA, vKWB, vUW, vCA, vCB, vEXD, vEXO, vUG, vKZ, vTF, vUZ, vCN = 240, 241, 244, 245, 246, 247, 248, 249, 250, 251, 252, 253, 254, 255
KRES = list(range(32, 80)) + list(range(216, 235))
vBR = 24
vAV = 12


def v(a, n=1):
    return f"v{a}" if n == 1 else f"v[{a}:{a+n-1}]"


def lines(t):
    return [x.strip() for x in t.strip().split("\n") if x.strip() and not x.strip().startswith(";")]


class Gen:
    def __init__(self, stamps=None, opts=None):
        self.a = Asm()
        self.stamps = stamps
        self.names = []
        self.o = opts or {}
        self.npoll = 0
        self.b_iss = 0
        self.b_con = 0
        self.bg = deque()
        self.lg_idle = False
        self.no_lg = False
        self.nsync = 0
        self.gpub = False
        self.skipped = set()
        self.acount = 0
        self.kc0 = 0

    def stamp(self, name):
        if self.stamps and (name == "start" or name in self.stamps):
            if name not in self.names:
                self.names.append(name)
            k = self.names.index(name)
            assert k < 10
            self.a.e(f"{'s_memrealtime' if (self.o.get('amp') or self.o.get('rt')) else 's_memtime'} s[{80+2*k}:{81+2*k}]")

    def push(self, text, tag=None):
        L = lines(text)
        k = 0
        while k < len(L):
            u = [L[k]]
            if L[k].startswith("s_cmp"):
                while k + 1 < len(L) and L[k + 1].startswith("s_cselect"):
                    k += 1
                    u.append(L[k])
            k += 1
            self.bg.append(lambda u="\n".join(u), tag=tag: self.a.e(u, tag=tag))

    def pushf(self, f):
        self.bg.append(f)

    def pushw(self, **kw):
        self.bg.append(lambda: self.a.wait(**kw))

    def drain(self, n=10**9):
        while n > 0 and self.bg:
            self.bg.popleft()()
            n -= 1

    def publish(self, soff, mask="1", voff="v3", line=False):
        a = self.a
        if self.o.get("sat", 1):
            a.e(f"s_atomic_swap {sEP}, {P_WS}, {soff}")
            return
        if line and self.o.get("fline", 1):
            a.e("v_lshlrev_b32 v8, 2, v1\ns_mov_b32 exec_hi, 0")
            a.e(f"buffer_store_dword v2, v8, {R_WS}, {soff} offen sc1", tag="flag")
            a.e("s_mov_b32 exec_hi, -1")
            return
        a.e(f"s_mov_b64 exec, {mask}")
        a.e(f"buffer_store_dword v2, {voff}, {R_WS}, {soff} offen sc1", tag="flag")
        a.e("s_mov_b64 exec, -1")

    def spoll_issue(self, soff, n):
        if self.o.get("vp", 0):
            self.a.e(f"v_min_u32 v27, 6, v1\nv_lshl_add_u32 v27, v27, 2, {soff}")
            self.a.e(f"buffer_load_dword v28, v27, {R_WS}, 0 offen sc1", tag="VP")
            return
        dst = "s16" if n == 1 else f"s[16:{15+n}]"
        self.a.e(f"s_load_dword{'' if n == 1 else 'x%d' % n} {dst}, {P_WS}, {soff} glc")
        if n == 16:
            self.a.e(f"s_load_dword s32, {P_WS}, s75 glc")

    def spoll(self, soff, n, sleep=2, issued=False):
        a = self.a
        sleep = self.o.get("psl", sleep)
        if self.o.get("vp", 0):
            a.wait(vm="VP")
            a.e(f"v_cmp_ne_u32 vcc, {sEP}, v28")
            a.e(f"s_cbranch_vccz L_pollx{self.npoll}")
            self.vpoll("v27", "v28", sleep=sleep)
            return
        k = self.npoll
        self.npoll += 1
        a.e("s_mov_b32 s3, 0")
        if not issued:
            self.spoll_issue(soff, n)
        a.label(f"L_poll{k}")
        a.e("s_waitcnt lgkmcnt(0)")
        if n == 8:
            a.e("s_mov_b32 s23, s22")
        else:
            a.e("s_mov_b32 s33, s32")
            n = 18
        for q in range(n // 2):
            a.e(f"s_xor_b64 s[{16+2*q}:{17+2*q}], s[{16+2*q}:{17+2*q}], {sE2}")
        for q in range(1, n // 2):
            a.e(f"s_or_b64 s[16:17], s[16:17], s[{16+2*q}:{17+2*q}]")
        a.e(f"s_cbranch_scc0 L_pollx{k}")
        a.e("s_add_u32 s3, s3, 1")
        a.e("s_cmp_gt_u32 s3, 4000")
        a.e(f"s_cbranch_scc1 L_pollx{k}")
        a.e(f"s_sleep {sleep}")
        self.spoll_issue(soff, min(n, 16))
        a.e(f"s_branch L_poll{k}")
        a.label(f"L_pollx{k}")

    def epoch_master(self):
        a = self.a
        a.e(f"""
        s_lshl_b32 s3, s2, 2
        s_add_u32 s3, s3, {sW}
        s_cmp_lg_u32 s3, 1023
        s_cbranch_scc1 L_nomaster
        """)
        if self.o.get("clk", 1):
            a.e("""
            s_memrealtime s[10:11]
            s_waitcnt lgkmcnt(0)
            s_max_u32 s3, s10, 1
            """)
        else:
            a.e(f"""
            s_load_dword s3, {P_WS}, 0
            s_waitcnt lgkmcnt(0)
            s_mul_i32 s3, s3, 1664525
            s_add_u32 s3, s3, 1013904223
            s_max_u32 s3, s3, 1
            """)
        a.e("v_mov_b32 v8, s3\ns_mov_b64 exec, 1")
        a.raw(f"global_store_dword v3, v8, {P_DBG} sc1")
        if not self.o.get("clk", 1):
            a.raw(f"global_store_dword v3, v8, {P_WS} sc1")
        a.e("s_mov_b64 exec, -1")
        a.label("L_nomaster")

    def epoch_issue(self):
        self.a.e(f"s_load_dword {sEP}, {P_DBG}, 0")

    def epoch_get(self, issued=False):
        a = self.a
        k = self.npoll
        self.npoll += 1
        if not issued:
            self.epoch_issue()
        a.e("s_mov_b32 s3, 0")
        a.e("s_waitcnt lgkmcnt(0)")
        a.label(f"L_ep{k}")
        a.e(f"s_cmp_lg_u32 {sEP}, 0")
        a.e(f"s_cbranch_scc1 L_epx{k}")
        a.e("s_add_u32 s3, s3, 1")
        a.e("s_cmp_gt_u32 s3, 4000")
        a.e(f"s_cbranch_scc1 L_epx{k}")
        a.e("s_sleep 2")
        a.raw(f"global_load_dword v2, v3, {P_DBG} sc1")
        a.wait(vm=0)
        a.e(f"v_readfirstlane_b32 {sEP}, v2")
        a.e("s_nop 1")
        a.e(f"s_branch L_ep{k}")
        a.label(f"L_epx{k}")
        a.e(f"s_mov_b32 s68, {sEP}\ns_mov_b32 s69, {sEP}\nv_mov_b32 v2, {sEP}")

    def vpoll(self, voff, tmp, sleep=2):
        a = self.a
        n = self.npoll
        self.npoll += 1
        a.e("s_mov_b32 s3, 0")
        a.label(f"L_poll{n}")
        a.raw(f"buffer_load_dword {tmp}, {voff}, {R_WS}, 0 offen sc1")
        a.e("s_add_u32 s3, s3, 1")
        a.wait(vm=0)
        a.e(f"v_cmp_ne_u32 vcc, {sEP}, {tmp}")
        a.e("s_cmp_gt_u32 s3, 4000")
        a.e(f"s_cbranch_scc1 L_pollx{n}")
        a.e(f"s_cbranch_vccz L_pollx{n}")
        a.e(f"s_sleep {sleep}")
        a.e(f"s_branch L_poll{n}")
        a.label(f"L_pollx{n}")

    def params_load(self):
        a = self.a
        for k, p in enumerate((P_ARE, P_AIM, P_BRE, P_BIM, P_CRE, P_CIM)):
            a.e(f"global_load_short_d16_hi v{176+k}, v24, {p}", tag="P")
        a.e(f"global_load_short_d16_hi v182, v25, {P_LDT}", tag="P")
        a.e(f"global_load_short_d16_hi v183, v25, {P_DSK}", tag="P")

    def tlb_touch(self):
        a = self.a
        if not self.o.get("tlb", 1):
            return
        a.e(f"""
        s_cmp_eq_u32 {sW}, 1
        s_cselect_b64 s[8:9], {P_W2}, {P_WS}
        s_cmp_eq_u32 {sW}, 2
        s_cselect_b64 s[8:9], {P_OUT}, s[8:9]
        s_cmp_eq_u32 {sW}, 3
        s_cselect_b64 s[8:9], {P_DBG}, s[8:9]
        s_cmp_eq_u32 {sW}, 0
        s_cselect_b32 s10, 5, 0
        s_mov_b32 s11, 21
        """)
        if self.o.get("tlb", 1) == 2:
            a.e(f"""
            s_cselect_b32 s10, 47, 27
            s_cselect_b32 s11, 18, 16
            s_cmp_eq_u32 {sW}, 3
            s_cselect_b32 s10, 0, s10
            """)
        a.e("""
        v_min_u32 v8, s10, v1
        v_lshlrev_b32 v8, s11, v8
        """)
        a.e("global_load_dword v6, v8, s[8:9] offset:128", tag="TLB")
        if self.o.get("stlb", 0):
            a.e(f"s_load_dword s60, {P_DBG}, 128")
            a.e(f"s_load_dword s61, {P_WS}, 128")

    def gate_tail(self):
        P = self.push
        for q in range(4):
            for r in range(8):
                P(f"v_dot2_f32_bf16 v{132+r}, v{64+4*r+q}, v{148+q}, v{132+r}")
        for j in range(4):
            P(f"v_permlane16_swap_b32 v{132+2*j}, v{133+2*j}")
        for j in range(4):
            P(f"v_add_f32 v{132+2*j}, v{132+2*j}, v{133+2*j}")
        for r in (8, 4, 2, 1):
            for j in range(4):
                P(f"v_add_f32_dpp v{132+2*j}, v{132+2*j}, v{132+2*j} row_ror:{r} row_mask:0xf bank_mask:0xf")
        P(f"""
        v_and_b32 v8, 3, v1
        v_cmp_eq_u32 vcc, 1, v8
        v_cndmask_b32 v132, v132, v134, vcc
        v_cmp_eq_u32 vcc, 2, v8
        v_cndmask_b32 v132, v132, v136, vcc
        v_cmp_eq_u32 vcc, 3, v8
        v_cndmask_b32 v132, v132, v138, vcc
        v_mul_f32 v132, 0xbfb8aa3b, v132
        v_exp_f32 v132, v132
        v_lshrrev_b32 v9, 5, v1
        v_lshl_add_u32 v9, v9, 2, v8
        v_add_f32 v132, 1.0, v132
        v_rcp_f32 v132, v132
        v_bfe_u32 v8, v1, 4, 1
        v_lshl_add_u32 v9, v9, 1, v8
        v_lshlrev_b32 v9, 2, v9
        s_lshl_b32 s9, s70, 6
        s_add_u32 s9, s9, {WS_G}
        """)

        def st():
            a = self.a
            a.e("s_mov_b32 exec_lo, 0x000f000f\ns_mov_b32 exec_hi, 0x000f000f")
            a.e(f"buffer_store_dword v132, v9, {R_WS}, s9 offen sc1", tag="Tst")
            a.e("s_mov_b64 exec, -1")
        self.pushf(st)

    def push_kgen(self):
        P = self.push
        E = lambda k: 80 + 2 * (k - 1)
        F = lambda c: 116 + 2 * (c - 1)
        X0 = 130
        P(f"""
        v_mul_f32 v134, 0x3fb8aa3b, v182
        v_exp_f32 v134, v134
        v_pk_mul_f32 v[138:139], v[180:181], v[178:179] op_sel_hi:[1,0]
        v_cvt_pk_bf16_f32 v134, v134, v134
        v_pk_fma_f32 v[138:139], v[180:181], v[178:179], v[138:139] op_sel:[1,1,0] op_sel_hi:[0,1,1] neg_lo:[1,0,0]
        v_and_b32 v134, 0xffff0000, v134
        v_mov_b32 v{KRES[YB[0]]}, 0x3f80
        v_mul_f32 v135, v134, v176         ; zr
        v_mul_f32 v136, v134, v177         ; zi
        v_pk_mul_f32 v[{X0}:{X0+1}], v[138:139], v[134:135] op_sel_hi:[1,0]
        v_mul_f32 v135, 0x3fb8aa3b, v135
        v_mul_f32 v136, 0.15915494, v136   ; revolutions
        v_mul_f32 v142, 0x41800000, v135
        v_mul_f32 v143, 0x41800000, v136
        v_mul_f32 v144, 0x43800000, v135
        v_mul_f32 v145, 0x43800000, v136
        v_fract_f32 v141, v136
        v_fract_f32 v143, v143
        v_fract_f32 v145, v145
        v_exp_f32 v140, v135
        v_exp_f32 v142, v142
        v_exp_f32 v144, v144
        """)
        for dst, t in ((E(1), 140), (E(16), 142), (F(1), 144)):
            P(f"v_cos_f32 v{dst}, v{t+1}\nv_sin_f32 v{dst+1}, v{t+1}")
        for dst, t in ((E(1), 140), (E(16), 142), (F(1), 144)):
            P(f"v_pk_mul_f32 {v(dst,2)}, {v(dst,2)}, {v(t,2)} op_sel_hi:[1,0]")
        src = {2: (1, 1), 3: (2, 1), 4: (2, 2), 5: (4, 1), 6: (4, 2), 7: (4, 3), 8: (4, 4), 17: (16, 1), 18: (16, 2)}
        for k in range(9, 16):
            src[k] = (8, k - 8)
        ej = [(E(k), E(src[k][0]), E(src[k][1]), YB[0] + k, False) for k in range(2, 16)]
        fsrc = {2: (1, 1), 3: (2, 1), 4: (2, 2), 5: (4, 1), 6: (4, 2), 7: (4, 3)}
        fj = [(F(c), F(fsrc[c][0]), F(fsrc[c][1]), YB[c], False) for c in range(2, 8)]
        xj = [(X0 + 2 * (k % 2), X0 + 2 * ((k - 1) % 2), E(16), XB + k, True) for k in range(1, 16)]
        pj = []
        tmp = list(range(146, 170, 2))
        ti = 0
        for c in range(1, 8):
            step = {1: 2, 2: 4, 3: 4}.get(c, 8)
            top = 15 if c == 1 else 17
            for n_, rho in enumerate(range(step, top, step)):
                pj.append((tmp[ti % len(tmp)], F(c), E(rho), YB[c] + 1 + n_, False))
                ti += 1
        others = []
        q1, q2 = list(ej), list(fj)
        while q1 or q2:
            if q1:
                others.append(q1.pop(0))
            if q2:
                others.append(q2.pop(0))
        others += pj
        order = []
        xs = list(xj)
        while others or xs:
            grp = []
            if xs:
                grp.append(xs.pop(0))
            while others and len(grp) < 4:
                j = others[0]
                if any(g[0] in (j[1], j[2]) or g[0] == j[0] for g in grp):
                    break
                grp.append(others.pop(0))
            order.append(grp)
        put = lambda reg, row, neg: P(f"v_cvt_pk_bf16_f32 v{KRES[row]}, v{reg}, {'-' if neg else ''}v{reg+1}")
        prev = [(X0, 0, 0, XB, True), (E(1), 0, 0, YB[0] + 1, False), (F(1), 0, 0, YB[1], False)]
        for gi, grp in enumerate(order):
            pk = gi < self.o.get("pkg", 99)
            for (d, x, y, row, neg) in grp:
                if pk:
                    P(f"v_pk_mul_f32 {v(d,2)}, {v(x,2)}, {v(y,2)} op_sel_hi:[1,0]")
                else:
                    P(f"v_mul_f32 v{d}, v{x}, v{y}\nv_mul_f32 v{d+1}, v{x+1}, v{y}")
            for (d, x, y, row, neg) in prev:
                put(d, row, neg)
            for (d, x, y, row, neg) in grp:
                if pk:
                    P(f"v_pk_fma_f32 {v(d,2)}, {v(x,2)}, {v(y,2)}, {v(d,2)} op_sel:[1,1,0] op_sel_hi:[0,1,1] neg_lo:[1,0,0]")
                else:
                    P(f"v_fma_f32 v{d}, -v{x+1}, v{y+1}, v{d}\nv_fmac_f32 v{d+1}, v{x}, v{y+1}")
            prev = grp
            if gi + 1 == self.o.get("pkg", 99):
                self.kc0 = len(self.bg)
        for (d, x, y, row, neg) in prev:
            put(d, row, neg)

    def tables(self):
        a = self.a
        a.e(f"s_mov_b32 m0, {sTM0}")
        for row in range(NROW):
            a.e(f"ds_write_addtid_b32 v{KRES[row]} offset:{row * TROW}", tag="TB")

    def arrive(self, vaddr, vone, off):
        a = self.a
        a.e("s_mov_b64 exec, 1")
        a.e(f"ds_add_u32 {vaddr}, {vone} offset:{off}")
        a.e("s_mov_b64 exec, -1")

    def await_(self, vaddr, off, count, sleep=0):
        a = self.a
        k = self.npoll
        self.npoll += 1
        a.e("s_mov_b32 s3, 0")
        a.label(f"L_bs{k}")
        if sleep:
            a.e(f"s_sleep {sleep}")
        a.e(f"ds_read_b32 v8, {vaddr} offset:{off}")
        a.e("s_add_u32 s3, s3, 1")
        a.wait(lg=0)
        a.e("v_readfirstlane_b32 s8, v8")
        a.e("s_cmp_gt_u32 s3, 100000")
        a.e(f"s_cbranch_scc1 L_bsx{k}")
        a.e(f"s_cmp_lt_u32 s8, {count}")
        a.e(f"s_cbranch_scc1 L_bs{k}")
        a.label(f"L_bsx{k}")

    def bsync(self):
        self.nsync += 1
        self.a.wait(lg=0)
        self.arrive("v3", "v5", L_CNT)
        self.await_("v3", L_CNT, 4 * self.nsync)

    def push_kmfma(self):
        YR = [64, 68, 72, 76] + list(range(184, 216, 4))
        NY = len(YR)
        AH = 8
        seq = [(ks, c) for ks in range(8) for c in range(2)]
        for ks in range(8):
            self.push(f"ds_read_b128 {v(32+4*ks,4)}, v{vKX} offset:{64*ks}", tag="KX")
        yr = lambda n_: self.push(f"ds_read_b128 {v(YR[n_%NY],4)}, v{vKY+seq[n_][1]} offset:{64*seq[n_][0]}", tag=f"KY{n_}")
        for n_ in range(AH):
            yr(n_)
        for n_, (ks, c) in enumerate(seq):
            d = 216 + 4 * c
            cc = "0" if (ks == 0 and c != 0) else v(d, 4)

            def f(n_=n_, d=d, cc=cc, ks=ks):
                self.a.wait(lg=f"KY{n_}")
                self.a.e(f"v_mfma_f32_16x16x32_bf16 {v(d,4)}, {v(YR[n_%NY],4)}, {v(32+4*ks,4)}, {cc}")
            self.pushf(f)
            if n_ + AH < 16:
                yr(n_ + AH)

    def push_kexpand(self, hw):
        P = self.push
        cv = lambda dst, hi_lag, lo_lag: P(f"v_cvt_pk_bf16_f32 v{dst}, {hi_lag}, {lo_lag}")
        if hw == 0:
            for dst, src_ in ((224, 216), (225, 217), (226, 218), (227, 220), (228, 221)):
                P(f"ds_bpermute_b32 v{dst}, v{vKY+2}, v{src_}", tag="NB")
            P("""
            v_readfirstlane_b32 s8, v220       ; V(256)
            v_readfirstlane_b32 s9, v221       ; V(258)
            v_readfirstlane_b32 s10, v222      ; V(512)
            """)
            self.pushw(lg="NB")
            P("""
            v_writelane_b32 v224, s8, 63
            v_writelane_b32 v225, s8, 63
            v_writelane_b32 v226, s9, 63
            v_writelane_b32 v227, s10, 63
            v_writelane_b32 v228, s10, 63
            """)
            k0 = ["v216", "v217", "v218", "v219", "v224", "v225", "v226"]
            k1 = ["v220", "v220", "v221", "v227", "v227", "v227", "v228"]
            for si, (k, off) in enumerate(((k0, 512), (k1, 0))):
                for sg in range(4):
                    t = 32 + 8 * si + 2 * sg
                    cv(t, k[sg + 3], k[sg + 2])
                    cv(t + 1, k[sg + 1], k[sg])
                    P(f"ds_write_b64 v{vKWA}, {v(t,2)} offset:{off+sg*KCP}", tag="KW")
            P("""
            v_readfirstlane_b32 s8, v33        ; (K1 | K0<<16)
            v_readfirstlane_b32 s9, v35        ; (K2 | K1<<16)
            v_mov_b32 v48, 0
            v_mov_b32 v49, 0
            s_lshr_b32 s10, s8, 16             ; K0
            v_writelane_b32 v48, s10, 8
            v_writelane_b32 v48, s8, 16
            v_writelane_b32 v48, s9, 24
            v_writelane_b32 v49, s10, 24
            """)
            self.pushf(lambda: self.a.e(f"s_mov_b32 exec_hi, 0\nds_write_b64 v{vKZ}, v[48:49]\ns_mov_b32 exec_hi, -1", tag="KW"))
        else:
            k2 = ["v216"] * 3 + ["v217"] * 3 + ["v218"] * 5
            k3 = ["v220"] * 5 + ["v221"] * 7 + ["v222"] * 7
            t = 32
            for sg in range(4):
                for q in range(4):
                    cv(t + q, k2[sg + 7 - 2 * q], k2[sg + 6 - 2 * q])
                P(f"ds_write_b128 v{vKWA}, {v(t,4)} offset:{sg*KCP}", tag="KW")
                t += 4
                for hf in range(2):
                    for q in range(4):
                        cv(t + q, k3[sg + 15 - 8 * hf - 2 * q], k3[sg + 14 - 8 * hf - 2 * q])
                    P(f"ds_write_b128 v{vKWB}, {v(t,4)} offset:{sg*KCP+16*hf}", tag="KW")
                    t += 4

    def conv(self, fill):
        a = self.a

        def reads(st):
            A0 = 32 + 64 * (st % 2)
            B0 = 64 + 64 * (st % 2)
            L = []
            for k in range(8):
                offA = 512 * (7 - k) + 64 * (3 - st)
                offB = 512 * k + 64 * (3 - st)
                L.append((f"ds_read_b64 {v(A0+4*k,2)}, v{vCA} offset:{offA}", f"C{st}_{k}"))
                L.append((f"ds_read_b64 {v(A0+4*k+2,2)}, v{vCA} offset:{offA+8}", f"C{st}_{k}"))
                L.append((f"ds_read_b128 {v(B0+4*k,4)}, v{vCB} offset:{offB}", f"C{st}_{k}"))
            return L

        first = set()
        for c_, t_ in reads(0):
            a.e(c_, tag=t_)
        for st in range(4):
            A0 = 32 + 64 * (st % 2)
            B0 = 64 + 64 * (st % 2)
            nxt = reads(st + 1) if st < 3 else []
            pairs = sorted([(q1, m) for q1 in range(8) for m in range(8) if q1 + m <= 7], key=lambda p: (max(p), p[0] + p[1]))
            have = -1
            for n_, (q1, m) in enumerate(pairs):
                used = 0
                if max(q1, m) > have:
                    have = max(q1, m) if st == 0 else 7
                    a.wait(lg=f"C{st}_{have}")
                    used += 1
                c = q1 + m
                d = 160 + 4 * c
                cc = v(d, 4) if c in first else "0"
                first.add(c)
                a.e(f"v_mfma_f32_16x16x32_bf16 {v(d,4)}, {v(A0+4*q1,4)}, {v(B0+4*m,4)}, {cc}")
                if nxt and n_ >= 4:
                    c_, t_ = nxt.pop(0)
                    a.e(c_, tag=t_)
                    used += 1
                for f in fill.get(36 * st + n_, []):
                    f()
                self.drain(2 - used)
            assert not nxt
        self.drain()

    def conv_out(self):
        a = self.a
        a.e(f"""
        s_bitcmp1_b32 {sW}, 0
        s_nop 7
        s_cbranch_scc1 L_hw1
        """)
        for k in range(4):
            a.e(f"ds_write_b128 v{vEXD}, {v(176+4*k,4)} offset:{1024*k}", tag="EX")
        a.e("s_branch L_hwj")
        a.label("L_hw1")
        for k in range(4):
            a.raw(f"ds_write_b128 v{vEXD}, {v(160+4*k,4)} offset:{1024*k}")
        a.wait(lg=0)
        for k in range(16):
            a.e(f"v_mov_b32 v{160+k}, v{176+k}")
        a.label("L_hwj")

    def conv_out2(self):
        a = self.a
        self.bsync()
        for k in range(4):
            a.e(f"ds_read_b128 {v(176+4*k,4)}, v{vEXO} offset:{1024*k}", tag=f"EY{k}")
        for cp in range(2):
            for cl in range(2):
                k = 2 * cp + cl
                a.wait(lg=f"EY{k}")
                for q in range(4):
                    a.e(f"v_add_f32 v{160+4*k+q}, v{160+4*k+q}, v{176+4*k+q}")
                a.e(f"v_cvt_pk_bf16_f32 v{20+4*cp+2*cl}, v{160+4*k}, v{161+4*k}")
                a.e(f"v_cvt_pk_bf16_f32 v{21+4*cp+2*cl}, v{162+4*k}, v{163+4*k}")
            a.e(f"v_permlane16_swap_b32 v{20+4*cp}, v{22+4*cp}")
            a.e(f"v_permlane16_swap_b32 v{21+4*cp}, v{23+4*cp}")
            a.e(f"buffer_store_dwordx4 {v(20+4*cp,4)}, v255, {R_WS}, {'s38' if cp else sAT} offen sc1", tag="Ast")

    def prologue(self):
        a = self.a
        a.e("s_cmp_ge_u32 s2, 256\ns_cbranch_scc1 L_end")
        self.stamp("start")
        if self.stamps and not self.o.get("amp"):
            a.e("s_memrealtime s[78:79]")
        a.e(f"""
        s_lshr_b32 {sI}, s2, 3
        s_min_u32 s3, {sI}, 15
        s_lshl_b32 s3, s3, 3
        s_load_dwordx2 s[68:69], s[0:1], s3
        s_load_dwordx16 s[16:31], s[0:1], 0
        s_load_dwordx16 s[32:47], s[0:1], 64
        s_getpc_b64 s[8:9]
        L_pc:
        s_lshl_b32 s3, {sI}, 10
        v_lshl_add_u32 v6, v0, 2, s3
        v_min_u32 v6, L_end-L_pc, v6
        v_readfirstlane_b32 s14, v0
        v_and_b32 v1, 63, v0
        v_bfe_u32 v4, v0, 6, 2
        s_and_b32 {sX}, s2, 7
        s_mul_i32 s77, {sI}, 37
        s_lshr_b32 s77, s77, 8
        s_bfe_u32 {sW}, s14, 0x20006
        s_mul_i32 s13, s77, 7
        s_sub_u32 s15, {sI}, s13           ; ct
        s_and_b32 s11, {sX}, 6
        s_lshl1_add_u32 s11, s11, s77
        s_lshl_b32 s70, s11, 17
        s_and_b32 s11, {sX}, 1
        s_mul_i32 s11, s11, 7
        s_add_u32 s11, s11, s15
        s_lshl_b32 s71, s11, 8
        """)
        g = self.o.get("g1rot", 2)
        if g == 8:
            a.e("s_lshl1_add_u32 s72, s77, s15")
        elif g == 4:
            a.e("s_add_u32 s72, s77, s15\ns_lshl_b32 s72, s72, 1")
        elif g == 2:
            a.e("s_add_u32 s72, s77, s15\ns_lshl_b32 s72, s72, 2")
        if self.o.get("xrot", 0) == 1:
            a.e(f"s_add_u32 s72, s72, {sX}")
        if self.o.get("xrot", 0) == 2:
            a.e(f"s_and_b32 s11, {sX}, 1\ns_lshl1_add_u32 s72, s11, s72\ns_lshr_b32 s11, {sX}, 1\ns_add_u32 s72, s72, s11")
        a.e(f"""
        s_lshl_b32 s73, {sW}, 12           ; wave*4096
        s_mov_b32 s50, {2048*1024}
        s_mov_b32 s51, 0x00020000
        s_mov_b32 s54, {512*3584}
        s_mov_b32 s55, s51
        s_bitcmp1_b32 s14, 8
        """)
        if not self.o.get("bnear", 0):
            a.e("s_cbranch_scc1 L_roleB0")
            return
        a.e("s_cbranch_scc0 L_roleA")
        self.b_first()
        a.e("s_branch L_roleB")
        a.label("L_roleA")
        a.vm = []

    def b_first(self):
        a = self.a
        a.e(f"s_setprio {self.o.get('bprio', 3)}")
        a.e(f"""
        s_lshr_b32 s9, {sW}, 1
        s_lshl1_add_u32 s8, {sI}, s9
        s_lshl3_add_u32 s77, s8, {sX}
        s_and_b32 s9, {sW}, 1
        s_lshl1_add_u32 s8, s77, s9
        s_lshl_b32 s8, s8, 7
        v_lshl_add_u32 v24, v1, 1, s8      ; d*256 + (64*(w&1)+l)*2
        v_lshlrev_b32 v25, 1, s77
        """)
        for k in range(4):
            a.e(f"v_pk_mov_b32 v[{176+2*k}:{177+2*k}], 0, 0")
        a.e("s_waitcnt lgkmcnt(0)")
        self.stamp("bk")
        if self.o.get("pb", 1):
            a.e("s_barrier")
        self.params_load()

    def dma_voffs(self):
        self.a.e(f"""
        v_lshrrev_b32 v8, 3, v1            ; l>>3
        v_lshl_add_u32 v8, v4, 5, v8       ; 32w + (l>>3)
        v_lshlrev_b32 v8, 10, v8           ; *1024
        v_lshrrev_b32 v9, 4, v1            ; l>>4
        v_and_b32 v10, 7, v1
        v_xor_b32 v10, v10, v9             ; pos ^ (l>>4)
        v_lshl_add_u32 v16, v10, 4, v8
        v_xor_b32 v10, 4, v10
        v_lshl_add_u32 v17, v10, 4, v8
        v_add_u32 v17, {8192-1024}, v17
        v_add_u32 v18, {2*(8192-1024)}, v16
        v_add_u32 v19, {2*(8192-1024)}, v17
        v_lshl_add_u32 v8, v4, 4, v9       ; 16w + (l>>4)
        v_mul_u32_u24 v8, 3584, v8
        v_and_b32 v10, 15, v1
        v_lshlrev_b32 v11, 2, v9
        v_xor_b32 v10, v10, v11
        v_lshl_add_u32 v20, v10, 4, v8
        v_add_u32 v21, {4*3584-1024}, v20
        v_xor_b32 v10, 2, v10
        v_lshl_add_u32 v8, v10, 4, v8
        v_add_u32 v22, {2*(4*3584-1024)}, v8
        v_add_u32 v23, {3*(4*3584-1024)}, v8
        """)

    def common2(self):
        self.a.e(f"""
        v_mov_b32 v3, 0
        v_lshlrev_b32 v7, 4, v1            ; lane*16
        s_mov_b32 s66, {WS_SIZE}
        s_mov_b32 s67, 0x00020000
        s_mov_b64 s[64:65], s[46:47]
        """)

    def a_prologue(self):
        a = self.a
        a.e("global_load_dword v6, v6, s[8:9]", tag="CPF")
        a.e(f"""
        s_max_u32 s3, {sI}, 15
        s_min_u32 s3, s3, 20
        s_sub_u32 s3, s3, 15
        v_lshlrev_b32 v12, 21, s3
        """)
        self.dma_voffs()
        a.e(self.dma_setup(0))
        a.e("s_waitcnt lgkmcnt(0)")
        self.stamp("karg")
        if self.o.get("fan", 1):
            a.e("global_load_dword v6, v12, s[68:69] offset:128", tag="FAN")
        a.e(f"""
        s_mov_b64 s[48:49], s[16:17]
        s_mov_b64 s[52:53], s[36:37]
        """)

    def a_prologue2(self):
        a = self.a
        a.e(f"s_setprio {self.o.get('prio', 2)}")
        self.common2()
        a.e(f"""
        s_lshl_b32 {sBS}, {sW}, 11         ; wave*2048
        s_add_u32 {sBS}, {sBS}, {L_BS}
        s_mov_b32 s58, {1792*1024}
        s_mov_b32 s59, 0x00020000
        s_mov_b32 s62, {2048*1024}
        s_mov_b32 s63, 0x00020000
        s_mov_b64 s[56:57], s[38:39]
        s_mov_b64 s[60:61], s[42:43]
        """)
        if not self.o.get("vp", 0):
            a.e(f"s_load_dword s16, {P_WS}, 128")

    def dma_setup(self, s):
        return f"""
        s_add_u32 s74, s72, {s}
        s_and_b32 s74, s74, 7
        s_mul_i32 s75, s74, {64*3584}
        s_add_u32 s75, s75, s71
        s_lshl_b32 s74, s74, 7
        s_add_u32 s74, s74, s70
        """

    def dma_ops(self, s, setup=True):
        slot = s % 3
        ops = []
        for i in range(4):
            pre = ((self.dma_setup(s) if setup else "") + f"s_add_u32 m0, s73, {XPOS[slot]}\n") if i == 0 else ""
            ops.append((pre + f"buffer_load_dwordx4 v{16+i}, {R_U}, s74 offen offset:{i*1024} lds", f"D{s}"))
        for i in range(4):
            pre = f"s_add_u32 m0, s73, {WPOS[slot]}\n" if i == 0 else ""
            ops.append((pre + f"buffer_load_dwordx4 v{20+i}, {R_W1}, s75 offen offset:{i*1024} lds", f"D{s}"))
        return ops

    def a_setup_g1(self):
        self.a.e(f"""
        v_and_b32 v8, 15, v1               ; t
        v_lshrrev_b32 v9, 4, v1            ; g
        v_lshrrev_b32 v10, 1, v8
        v_xor_b32 v10, v10, v9             ; g ^ (t>>1)
        s_lshr_b32 s8, {sW}, 1
        s_lshl_b32 s8, s8, 13              ; wm*64*128
        s_add_u32 s8, s8, {XPOS[2]}
        v_lshl_add_u32 v8, v8, 7, s8
        v_lshl_add_u32 v4, v10, 4, v8
        v_xor_b32 v5, 64, v4
        v_bfe_u32 v8, v1, 2, 2             ; r
        v_lshl_add_u32 v10, v9, 3, v8      ; 8g + r
        v_lshlrev_b32 v10, 8, v10          ; *256
        v_and_b32 v9, 1, v9
        v_lshl_or_b32 v8, v8, 1, v9        ; 2r | (g&1)
        s_and_b32 s8, {sW}, 1
        s_lshl_b32 s8, s8, 2
        v_xor_b32 v8, s8, v8               ; (4wn) ^ s
        v_lshl_add_u32 v10, v8, 5, v10
        v_and_b32 v8, 3, v1
        v_lshl_add_u32 v10, v8, 3, v10
        v_add_u32 v24, {WPOS[0]}, v10
        v_xor_b32 v25, 32, v24
        v_xor_b32 v26, 64, v24
        v_xor_b32 v27, 96, v24
        v_add_u32 v28, {WPOS[2]}, v10
        v_xor_b32 v29, 32, v28
        v_xor_b32 v30, 64, v28
        v_xor_b32 v31, 96, v28
        s_lshl2_add_u32 s8, {sX}, s77      ; 4x + rt
        s_lshr_b32 s9, {sW}, 1
        s_lshl1_add_u32 s8, s8, s9
        s_mul_i32 s8, s8, {4*28}
        s_and_b32 s10, {sW}, 1
        s_lshl1_add_u32 s10, s15, s10
        s_lshl1_add_u32 s8, s10, s8
        s_lshl_b32 s8, s8, 10
        s_add_u32 {sH0}, s8, {WS_H}
        s_and_b32 s8, {sX}, 6
        s_lshl1_add_u32 s8, s8, s77        ; 4R + rt
        s_lshl1_add_u32 s8, s8, s9         ; *2 + wm
        s_and_b32 s9, {sX}, 1
        s_lshl1_add_u32 s8, s8, s9         ; *2 + ch
        s_lshl_b32 s8, s8, 8               ; *2 groups*128B
        s_cmp_ge_u32 s10, 7
        s_cselect_b32 s9, {128-28}, 0
        s_lshl2_add_u32 s8, s10, s8
        s_add_u32 s8, s8, s9
        s_add_u32 {sHF}, s8, {WS_HF}
        """)

    def a_setup_g2(self):
        a = self.a
        a.e(f"""
        v_lshrrev_b32 v8, 3, v1
        v_lshlrev_b32 v8, 10, v8
        v_lshrrev_b32 v9, 4, v1
        v_lshlrev_b32 v9, 1, v9
        v_and_b32 v10, 7, v1
        v_xor_b32 v10, v10, v9
        v_lshl_add_u32 v10, v10, 4, v8
        v_add_u32 v11, {8192-1024}, v10
        s_cmp_ge_u32 s15, 3
        s_addc_u32 s8, s15, 0
        s_cmp_ge_u32 {sI}, 28
        s_cselect_b32 {sN}, 3, s8
        s_cselect_b32 {sM}, s15, s77       ; m
        s_mul_i32 s12, {sW}, {28*16384}
        s_lshl_b32 s10, {sN}, 7
        s_add_u32 s12, s12, s10            ; w2 base
        s_and_b32 s10, {sX}, 6
        s_lshr_b32 s11, {sW}, 1
        s_add_u32 s10, s10, s11
        s_and_b32 s11, {sX}, 1
        s_lshl1_add_u32 s10, s10, s11
        s_lshl2_add_u32 s10, s10, {sM}     ; 8xp + 4(x&1) + m
        s_mul_i32 s10, s10, {4*28}
        s_and_b32 s11, {sW}, 1
        s_mul_i32 s3, s11, 14
        s_add_u32 s10, s10, s3
        s_lshl_b32 s10, s10, 10
        s_add_u32 s13, s10, {WS_H}         ; h base
        """)
        for lam in range(4):
            a.e(f"s_xor_b32 s3, {sW}, {lam}\ns_mul_i32 s3, s3, {28*1024}\nv_add_u32 v{vAV+lam}, s3, v7")
        if self.o.get("g2rot", 1) == 2:
            a.e(f"s_add_u32 s10, {sN}, {sM}")
        else:
            a.e("s_mov_b32 s10, 0")
        for k in range(2):
            a.e(f"""
            s_add_u32 s11, s10, {k}
            s_and_b32 s11, s11, 1
            s_mul_i32 s3, s11, {14*16384}
            s_add_u32 {sBB[k]}, s12, s3
            s_mul_i32 s3, s11, {7*1024}
            s_add_u32 {sAB[k]}, s13, s3
            """)

    def a_setup_br(self):
        self.a.e(f"""
        v_lshrrev_b32 v8, 2, v1            ; row = 4g + r
        v_lshl_add_u32 v9, v8, 7, {sBS}
        v_bfe_u32 v8, v1, 3, 2             ; (row>>1)&3
        v_lshl_add_u32 v9, v8, 5, v9
        v_and_b32 v8, 3, v1
        v_lshl_add_u32 v{vBR}, v8, 3, v9
        v_xor_b32 v{vBR+1}, 32, v{vBR}
        v_xor_b32 v{vBR+2}, 64, v{vBR}
        v_xor_b32 v{vBR+3}, 96, v{vBR}
        """)

    def a_setup_late(self):
        self.a.e(f"""
        s_lshl2_add_u32 s12, {sN}, {sW}
        s_lshr_b32 s8, {sX}, 2
        s_lshl_b32 s8, s8, 5
        s_add_u32 s8, s8, s12
        s_lshl_b32 s8, s8, 7
        s_add_u32 s74, s8, {WS_AF}         ; a flags
        s_lshl_b32 s8, s12, 14
        s_lshr_b32 s13, {sX}, 1
        s_lshl_b32 s13, s13, 19
        s_add_u32 s8, s8, s13
        s_add_u32 s8, s8, {WS_AT}
        s_and_b32 s13, {sX}, 1
        s_lshl2_add_u32 s13, s13, {sM}
        s_lshl_b32 s13, s13, 7
        v_lshrrev_b32 v8, 3, v1            ; dl
        v_bfe_u32 v9, v1, 2, 1             ; hf
        v_and_b32 v4, 3, v1                ; jj
        v_lshl_add_u32 v16, v9, 6, s13
        v_lshl_add_u32 v16, v4, 4, v16
        v_lshlrev_b32 v17, 7, v8
        v_xor_b32 v16, v16, v17
        v_lshl_add_u32 v16, v8, 10, v16
        v_add_u32 v16, s8, v16
        v_lshl_add_u32 v4, v4, 1, v9
        v_and_b32 v9, 6, v8
        v_xor_b32 v4, v4, v9               ; ^ ((row>>1)&3)<<1
        v_add_u32 v17, {sBS}, v17
        v_lshl_add_u32 v18, v4, 4, v17
        v_add_u32 v17, {8*1024}, v16
        s_lshl2_add_u32 s10, {sX}, {sM}
        s_lshl2_add_u32 s10, s10, {sW}
        s_lshl_b32 s8, s10, 7
        s_add_u32 s72, s8, {WS_HF}         ; h flags
        s_add_u32 s75, s8, {WS_GF}
        s_lshl_b32 s8, s10, 6
        s_add_u32 s8, s8, {WS_G}
        v_and_b32 v8, 15, v1
        v_lshl_add_u32 v19, v8, 2, s8
        s_lshl_b32 s8, {sW}, 5
        v_xor_b32 v20, s8, v{vBR}
        s_lshl_b32 s8, {sW}, 11
        v_subrev_u32 v20, s8, v20
        v_bfe_u32 v9, v1, 4, 1
        v_lshlrev_b32 v21, 10, v8
        v_lshl_add_u32 v21, v9, 5, v21
        v_lshrrev_b32 v9, 5, v1
        v_lshl_add_u32 v21, v9, 4, v21
        s_lshl_b32 s70, s10, 14
        s_lshl_b32 s13, {sN}, 7
        s_add_u32 s70, s70, s13
        v_add_u32 v28, {sBS}, v7
        v_xor_b32 v29, 0x800, v28
        v_xor_b32 v30, 0x1000, v28
        v_xor_b32 v31, 0x1800, v28
        """)

    def t_job(self):
        a = self.a
        o = self.o
        a.e(f"""
        s_sub_u32 s8, {sI}, 28
        s_lshl_b32 s9, {sX}, 2
        s_add_u32 s71, s8, s9
        s_lshl_b32 s8, s71, 2
        s_add_u32 s70, s8, {sW}
        s_lshl_b32 s72, s70, 11
        s_add_u32 s72, s72, {WS_UT}
        v_lshrrev_b32 v9, 5, v1            ; octet
        v_and_b32 v8, 31, v1
        v_lshlrev_b32 v15, 4, v8
        v_lshl_add_u32 v13, v9, 13, v15
        s_lshl_b32 s8, s70, 14
        s_add_u32 s9, s8, 4096
        """)
        for blk in range(2):
            for tt in range(8):
                a.e(f"buffer_load_dwordx4 {v(32+32*blk+4*tt,4)}, v13, {R_U}, {'s8' if tt < 4 else 's9'} offen offset:{(tt%4)*1024+blk*512}", tag=f"T{blk}")
                if blk == 0 and tt == 3 and o.get("pb", 1):
                    a.e("s_barrier")
                if blk == 1 and tt == 3:
                    a.e("s_barrier")
            if blk == 0:
                self.epoch_master()
                a.e("v_and_b32 v8, 1, v1\nv_lshlrev_b32 v8, 21, v8")
                a.e(f"buffer_load_dword v6, v8, {R_WS}, 0 offen offset:128", tag="TL")
        a.e(f"global_load_dwordx4 v[96:99], v15, {P_GW}", tag="GW")
        a.e(f"global_load_dwordx4 v[148:151], v15, {P_GW} offset:512", tag="GW")
        a.e("""
        s_mov_b32 s12, 0x05040100
        s_mov_b32 s13, 0x07060302
        v_bfe_u32 v8, v1, 2, 3
        s_and_b32 s8, s70, 7
        v_xor_b32 v8, s8, v8
        v_lshl_add_u32 v8, v8, 1, v9
        v_and_b32 v9, 3, v1
        v_lshl_add_u32 v8, v8, 2, v9
        v_lshlrev_b32 v14, 4, v8
        """)
        for blk in range(2):
            a.wait(vm=f"T{blk}")
            self.stamp(f"t{blk}")
            if blk == 1:
                a.e(f"global_load_dword v2, v3, {P_DBG} sc1", tag="EP")
            for c8 in range(8):
                t = 100 + 4 * c8
                for k in range(4):
                    r0 = 32 + 32 * blk + 8 * k + c8 // 2
                    a.e(f"v_perm_b32 v{t+k}, v{r0+4}, v{r0}, s{12+(c8&1)}")
                a.e(f"s_add_u32 s8, s72, {c8*262144}")
                a.e(f"buffer_store_dwordx4 {v(t,4)}, v14, {R_WS}, s8 offen offset:{blk*1024} sc1", tag="Ust")
        self.stamp("tst")
        a.wait(vm="GW")
        for q in range(4):
            for r in range(8):
                a.e(f"v_dot2_f32_bf16 v{132+r}, v{32+4*r+q}, v{96+q}, {'0' if q == 0 else 'v%d' % (132+r)}")
        self.gate_tail()
        self.drain(len(self.bg) - 1)
        a.wait(vm="EP")
        a.e(f"v_readfirstlane_b32 {sEP}, v2")
        self.epoch_get(issued=True)
        a.e(f"s_lshl_b32 s10, s71, 7\ns_add_u32 s10, s10, {WS_TF}\nv_mov_b32 v10, 1")
        a.wait(vm="Ust")
        a.e("s_mov_b64 exec, 1")
        a.e(f"ds_add_rtn_u32 v10, v3, v10 offset:{L_CNT+4}")
        a.e("s_mov_b64 exec, -1")
        a.wait(lg=0)
        a.e("v_readfirstlane_b32 s8, v10\ns_cmp_eq_u32 s8, 3\ns_cbranch_scc0 L_ntp")
        if self.o.get("sat", 1):
            self.publish("s10")
        else:
            a.e("v_lshlrev_b32 v8, 2, v1\ns_mov_b32 exec_hi, 0")
            a.raw(f"buffer_store_dword v2, v8, {R_WS}, s10 offen sc1")
            a.e("s_mov_b32 exec_hi, -1")
        a.label("L_ntp")
        self.stamp("tpub")
        self.drain()
        a.e(f"s_setprio {o.get('sprio', 0)}")
        a.e(f"s_mul_i32 s9, s70, {14*1024}")
        for k in range(14 if o.get("w2warm", 0) else 0):
            a.e(f"buffer_load_dwordx4 {v(192+4*k,4)}, v7, {R_W2}, s9 offen offset:{(k%4)*1024}", tag="WW")
            if k % 4 == 3:
                a.e("s_add_u32 s9, s9, 4096")
        for k in range(o.get("bxr", 0)):
            a.e(f"s_lshl_b32 s9, s70, 14\nv_add_u32 v8, s9, v7")
            a.e(f"global_load_dwordx4 {v(192+4*k,4)}, v8, {P_BX} offset:{(k%4)*1024}" if k < 4 else f"v_add_u32 v8, {(k//4)*4096}, v8\nglobal_load_dwordx4 {v(192+4*k,4)}, v8, {P_BX} offset:{(k%4)*1024}", tag="WW")
        a.e(f"s_lshl_b32 s9, s70, 7\ns_add_u32 s9, s9, {WS_GF}")
        a.wait(vm="Tst")
        self.publish("s9", line=True)
        self.gpub = True
        a.e(f"""
        s_mul_i32 s8, {sW}, {28*16384}
        s_sub_u32 s9, {sI}, 28
        s_lshl_b32 s9, s9, 12
        s_add_u32 s8, s8, s9
        """)
        steps = list(range(o.get("pfa", 28), o.get("pfb", 28)))
        for n_, st in enumerate(steps):
            a.e(f"s_add_u32 s9, s8, {st*16384}")
            for k in range(4):
                a.e(f"buffer_load_dwordx4 {v(32+16*(n_%4)+4*k,4)}, v7, {R_W2}, s9 offen offset:{k*1024}", tag="WW")
        self.stamp("pfd")
        a.e(f"s_setprio {o.get('sprio2', 0)}")

    def push_b_issue(self):
        i = self.b_iss
        if i >= 28:
            return
        assert i - self.b_con < BSN
        self.b_iss += 1
        if i >= BSN and not self.no_lg:
            self.pushw(lg=f"BR{i-BSN}")
        self.push(f"""
        s_add_u32 m0, {sBS}, {(i % BSN)*8192}
        s_add_u32 s14, {sBB[i//14]}, {(i%14)*16384}
        buffer_load_dwordx4 v10, {R_W2}, s14 offen lds
        buffer_load_dwordx4 v11, {R_W2}, s14 offen offset:1024 lds
        """, tag=f"B{i}")

    def push_b_consume(self):
        i = self.b_con
        if i >= 28:
            return
        assert i < self.b_iss
        self.b_con += 1
        self.pushw(vm=f"B{i}")
        for db in range(4):
            self.push(f"ds_read_b64_tr_b16 {v(vB0+16*((i//2)%NBR)+4*db+2*(i%2),2)}, v{vBR+db} offset:{(i % BSN)*8192}", tag=f"BR{i}")

    def g1(self):
        a = self.a

        def reads(kap):
            s, kk = divmod(kap, 2)
            slot = s % 3
            b = 32 + 32 * (kap % 2)
            L = []
            for q in range(4):
                wa, wo = (24 + q, WPOS[slot] - WPOS[0]) if slot < 2 else (28 + q, 0)
                L.append(f"ds_read_b128 {v(b+4*q,4)}, v{4+kk} offset:{XPOS[slot]-XPOS[2]+q*2048}")
                for hh in range(2):
                    L.append(f"ds_read_b64_tr_b16 {v(b+16+4*q+2*hh,2)}, v{wa} offset:{wo+kk*8192+hh*1024}")
            return L

        a.e("v_mov_b32 v9, 1")
        a.wait(vm="D0")
        a.e("s_barrier")
        self.stamp("g1s")
        for r in reads(0):
            a.e(r, tag="R0")
        nb = {5: 2, 6: self.o.get("e6", 3)}
        for kap in range(16):
            s, kk = divmod(kap, 2)
            if kk == 1 and kap < 15:
                a.wait(vm=f"D{s+1}" if f"D{s+1}" in a.vm else None, lg=0)
                a.e("s_barrier")
                self.stamp(f"st{s+1}")
                for _ in range(nb.get(s, 0) if self.o.get("bearly", 1) else 0):
                    self.push_b_issue()
            else:
                a.wait(lg=f"R{kap}")
            nxt = reads(kap + 1) if kap < 15 else []
            b = 32 + 32 * (kap % 2)
            for n_ in range(16):
                tb, fa = divmod(n_, 4)
                d = 192 + 16 * tb + 4 * fa
                a.e(f"v_mfma_f32_16x16x32_bf16 {v(d,4)}, {v(b+16+4*fa,4)}, {v(b+4*tb,4)}, {'0' if kap == 0 else v(d,4)}")
                if nxt:
                    a.e(nxt.pop(0), tag=f"R{kap+1}")
                    if n_ % 3 == 2:
                        self.drain(1)
                else:
                    self.drain(1)
        self.drain()
        self.arrive("v3", "v9", L_CNT + 4)
        self.acount += 4
        self.stamp("g1e")

    def h_stores(self):
        a = self.a
        for tb in range(4):
            if tb:
                a.e(f"s_add_u32 {sH0}, {sH0}, {28*1024}")
            for j in range(2):
                d = 192 + 16 * tb + 8 * j
                t = 32 + 8 * tb + 4 * j
                for q in range(4):
                    a.e(f"v_cvt_pk_bf16_f32 v{t+q}, v{d+2*q}, v{d+2*q+1}")
                for q in range(4):
                    a.e(f"v_pk_max_i16 v{t+q}, v{t+q}, 0")
                a.e(f"buffer_store_dwordx4 {v(t,4)}, v7, {R_WS}, {sH0} offen offset:{j*1024} sc1", tag="Hst")
        self.stamp("hiss")

    def a_load(self, i):
        r = vA0 + 16 * (i % NAR)
        L = [f"s_add_u32 s15, {sAB[i//7]}, {(i%7)*1024}"]
        for tb in (3, 2, 1, 0):
            L.append(f"buffer_load_dwordx4 {v(r+4*tb,4)}, v{vAV+tb}, {R_WS}, s15 offen sc1")
        return L

    def g2(self):
        a = self.a
        o = self.o
        PRE = NAR - 1
        TAIL = o.get("tail", 2)
        vAG = vB0 + 16 * 2
        self.vAG = vAG
        apos, achk = o.get("apos", 9), o.get("achk", 11)

        def mf(i, tb, db):
            d = 192 + 16 * tb + 4 * db
            a.e(f"v_mfma_f32_16x16x32_bf16 {v(d,4)}, {v(vB0+16*(i%NBR)+4*db,4)}, {v(vA0+16*(i%NAR)+4*tb,4)}, {'0' if i == 0 else v(d,4)}")

        def rw(lam):
            for db in range(4):
                self.push(f"ds_write_b128 v28, {v(192+16*lam+4*db,4)} offset:{(2*(lam-1)+db//2)*8192+(db%2)*1024}", tag="RW")

        for i in range(14 - TAIL):
            ld = self.a_load(i + PRE) if i + PRE < 14 else []
            if i == apos:
                assert self.b_con == 28
                self.drain()
                a.wait(lg=0)
                self.spoll_issue("s74", 16)
            if i == achk:
                self.stamp("apre")
                self.spoll("s74", 16, sleep=4, issued=True)
                self.stamp("apoll")
                a.e(f"buffer_load_dwordx4 {v(vAG,4)}, v16, {R_WS}, 0 offen sc1", tag="AL")
                a.e(f"buffer_load_dwordx4 {v(vAG+4,4)}, v17, {R_WS}, 0 offen sc1", tag="AL")
                a.e(f"buffer_load_dword v{vAG+8}, v19, {R_WS}, 0 offen sc1", tag="AL")
            if a.lg.count(f"BR{2*i+1}") < 4:
                while self.b_con <= 2 * i + 1:
                    if self.b_iss <= self.b_con:
                        self.push_b_issue()
                    self.push_b_consume()
                self.drain()
            if i < apos:
                a.wait(lg=f"BR{2*i+1}")
            for _ in range(2):
                if self.b_iss < 28 and self.b_iss - self.b_con < BSN:
                    self.push_b_issue()
                if self.b_con < 28 and self.b_con // 2 - i < NBR and self.b_con < self.b_iss and (self.b_iss - self.b_con >= o.get("blag", 4) or self.b_iss == 28):
                    self.push_b_consume()
            for tb in (3, 2, 1, 0):
                a.wait(vm=f"A{i}_{tb}")
                if i == 0 and tb == 3:
                    self.stamp("g2s")
                if tb == 3:
                    self.stamp(f"q{2*i}")
                for db in range(4):
                    mf(i, tb, db)
                    if ld and db == 0:
                        if tb == 3:
                            a.e(ld[0])
                        a.e(ld[4 - tb], tag=f"A{i+PRE}_{tb}")
                    else:
                        self.drain(2)
        self.drain()
        for tb in (3, 2, 1, 0):
            n_ = 0
            for i in range(14 - TAIL, 14):
                a.wait(vm=f"A{i}_{tb}")
                for db in range(4):
                    mf(i, tb, db)
                    n_ += 1
                    if n_ >= 3 and n_ % max(1, TAIL - 1) == 0:
                        self.drain(1)
            self.drain()
            if tb:
                rw(tb)
        self.stamp("g2e")
        a.wait(vm=0)
        a.e(f"ds_write_b128 v18, {v(vAG,4)} offset:{6*8192}", tag="AW")
        a.e(f"ds_write_b128 v18, {v(vAG+4,4)} offset:{6*8192+1024}", tag="AW")

    def final(self):
        a = self.a
        vG = self.vAG + 8
        a.wait(lg=0)
        a.e("s_barrier")
        self.stamp("fbar")
        for db in range(4):
            a.e(f"ds_read_b64_tr_b16 {v(80+2*db,2)}, v20 offset:{6*8192+db*2048}", tag="AR")
        for p in range(2):
            for lam in range(1, 4):
                for db in (2 * p, 2 * p + 1):
                    a.e(f"ds_read_b128 {v(32+16*(lam-1)+4*db,4)}, v{28+lam} offset:{(2*(lam-1)+db//2)*8192+(db%2)*1024}", tag=f"RR{p}{lam}")
        a.wait(lg="AR")
        for db in range(4):
            s_, d_ = 80 + 2 * db, 224 + 4 * db
            a.e(f"v_lshlrev_b32 v{d_}, 16, v{s_}")
            a.e(f"v_and_b32 v{d_+1}, 0xffff0000, v{s_}")
            a.e(f"v_lshlrev_b32 v{d_+2}, 16, v{s_+1}")
            a.e(f"v_and_b32 v{d_+3}, 0xffff0000, v{s_+1}")
        for p in range(2):
            hs = range(4 * p, 4 * p + 4)
            for lam in range(1, 4):
                a.wait(lg=f"RR{p}{lam}")
                for h in hs:
                    a.e(f"v_pk_add_f32 {v(192+2*h,2)}, {v(192+2*h,2)}, {v(32+16*(lam-1)+2*h,2)}")
            for h in hs:
                a.e(f"v_pk_add_f32 {v(224+2*h,2)}, {v(224+2*h,2)}, {v(192+2*h,2)} neg_lo:[0,1] neg_hi:[0,1]")
            for h in hs:
                a.e(f"v_pk_fma_f32 {v(192+2*h,2)}, {v(224+2*h,2)}, {v(vG,2)}, {v(192+2*h,2)} op_sel_hi:[1,0,1]")
            for h in hs:
                a.e(f"v_cvt_pk_bf16_f32 v{240+h}, v{192+2*h}, v{193+2*h}")
            a.e(f"v_permlane16_swap_b32 v{240+4*p}, v{242+4*p}")
            a.e(f"v_permlane16_swap_b32 v{241+4*p}, v{243+4*p}")
            a.e(f"buffer_store_dwordx4 {v(240+4*p,4)}, v21, {R_OUT}, s70 offen offset:{64*p} {['', 'sc1', 'nt', 'sc0 sc1', 'sc1 nt'][self.o.get('ofl', 0)]}", tag="O")

    def role_a(self):
        a = self.a
        o = self.o
        self.a_prologue()
        a.e(f"s_cmp_ge_u32 {sI}, 28")
        a.e("s_cbranch_scc1 L_spare")
        vm0, lg0 = list(a.vm), list(a.lg)
        ops = self.dma_ops(0, False) + self.dma_ops(1) + self.dma_ops(2)
        n1 = o.get("n1", 11)
        for k_, (x, t) in enumerate(ops[:n1]):
            a.e(x, tag=t)
            if k_ + 1 == o.get("pb", 1):
                a.e("s_barrier")
        self.stamp("d0iss")
        self.a_prologue2()
        self.a_setup_g1()
        self.a_setup_g2()
        for x, t in ops[n1:]:
            a.e(x, tag=t)
        a.e(f"s_lshl_b32 s8, s2, 13\ns_lshl_b32 s9, {sW}, 11\ns_add_u32 s8, s8, s9")
        a.e(f"buffer_load_dwordx4 v[96:99], v7, {R_W2}, s8 offen", tag="WA")
        a.e(f"buffer_load_dwordx4 v[100:103], v7, {R_W2}, s8 offen offset:1024", tag="WA")
        self.stamp("d2iss")
        self.g1()
        nearly = self.b_iss
        self.h_stores()
        self.a_setup_br()
        for _ in range(nearly):
            self.push_b_consume()
        self.drain()
        self.await_("v3", L_CNT + 4, self.acount)
        for _ in range(o.get("bh", 5)):
            self.push_b_issue()
        self.drain()
        self.await_("v3", L_CNT + 8, 1)
        a.e(f"s_mov_b32 {sEP}, s8\ns_mov_b32 s68, s8\ns_mov_b32 s69, s8")
        a.wait(vm="Hst")
        self.publish(sHF)
        self.stamp("hpub")
        if "pprio" in o:
            a.e(f"s_setprio {o['pprio']}")
        a.e("s_branch L_join")
        a.label("L_spare")
        vm_main, lg_main = list(a.vm), list(a.lg)
        bi = self.b_iss
        a.vm, a.lg = vm0, lg0
        self.b_iss = self.b_con = 0
        self.a_prologue2()
        self.t_job()
        self.a_setup_g2()
        self.a_setup_br()
        if o.get("c3", 1):
            a.e(f"s_lshl_b32 s8, {sM}, 15\ns_add_u32 s8, s8, {sBB[1]}\ns_add_u32 s8, s8, {6*16384}")
            for k in range(4):
                a.e(f"buffer_load_dwordx4 {v(32+4*k,4)}, v10, {R_W2}, s8 offen", tag="WW")
                a.e("s_add_u32 s8, s8, 8192")
        for _ in range(nearly):
            self.push_b_issue()
        while self.b_iss < bi or self.b_con < nearly:
            if self.b_con < nearly:
                self.push_b_consume()
            if self.b_iss < bi:
                self.push_b_issue()
        self.drain()
        a.wait(lg=0)
        a.vm, a.lg = vm_main, lg_main
        a.label("L_join")
        self.a_setup_late()
        bt = o.get("bt", 2 * NBR + BSN)
        hq = o.get("hq", 3)
        while self.b_iss < bt:
            if self.b_iss == bt - hq:
                assert bt - self.b_con <= BSN
                self.pushw(lg=0)
                self.pushf(lambda: self.spoll_issue("s72", 8))
                self.no_lg = True
            if not self.no_lg and self.b_con < 2 * NBR and self.b_iss - self.b_con >= o.get("blag0", 5):
                self.push_b_consume()
            self.push_b_issue()
        self.no_lg = False
        self.drain()
        self.stamp("biss")
        self.spoll("s72", 8, sleep=3, issued=True)
        self.stamp("hpoll")
        a.e(f"s_setprio {o.get('gprio', 0)}")
        for i in range(NAR - 1):
            L = self.a_load(i)
            a.e(L[0])
            for tb in (3, 2, 1, 0):
                a.e(L[4 - tb], tag=f"A{i}_{tb}")
        self.g2()
        self.final()

    def role_b(self):
        a = self.a
        o = self.o
        a.vm, a.lg = ["P"] * 8, []
        if not o.get("bnear", 0):
            a.vm = []
            a.label("L_roleB0")
            self.b_first()
        a.label("L_roleB")
        self.common2()
        a.e("s_mov_b64 s[48:49], s[16:17]")
        a.e(f"ds_write_b32 v3, v3 offset:{L_CNT}", tag="Z")
        a.e(f"ds_write_b32 v3, v3 offset:{L_CNT+4}", tag="Z")
        a.e(f"ds_write_b32 v3, v3 offset:{L_CNT+8}", tag="Z")
        a.wait(lg=0)
        a.e(f"s_cmp_lt_u32 {sI}, 28")
        a.e("s_cbranch_scc1 L_nzb")
        a.e("s_barrier")
        a.label("L_nzb")
        self.tlb_touch()
        self.dma_voffs()
        a.e(f"""
        s_mov_b64 s[52:53], s[36:37]
        s_lshl_b32 {sTM0}, {sW}, 8
        s_lshr_b32 s8, {sW}, 1             ; channel
        s_lshl_b32 s9, s8, 9
        v_and_b32 v8, 15, v1
        v_lshrrev_b32 v9, 4, v1
        v_lshl_add_u32 v10, v9, 4, s9      ; base + g*16
        s_movk_i32 s10, {TROW}
        v_add_u32 v12, {XB}, v8
        v_mad_u32_u24 v{vKX}, v12, s10, v10
        s_and_b32 s11, {sW}, 1
        s_cmp_eq_u32 s11, 0
        s_cselect_b64 vcc, -1, 0
        v_lshrrev_b32 v11, 2, v8           ; gi
        v_and_b32 v4, 3, v8                ; r
        v_min_u32 v5, 2, v4                ; min(r,2)
        v_lshrrev_b32 v13, 1, v11
        v_lshl_add_u32 v12, v11, 1, v13
        v_add3_u32 v12, v12, v5, {YB[2]}
        v_add_u32 v13, {YB[0]}, v8
        v_cndmask_b32 v12, v12, v13, vcc
        v_mad_u32_u24 v{vKY}, v12, s10, v10
        v_mad_u32_u24 v12, v11, 3, v5
        v_add_u32 v12, {YB[4]}, v12
        v_lshl_add_u32 v13, v11, 1, v4
        v_add_u32 v13, {YB[1]}, v13
        v_cmp_gt_u32 s[12:13], 2, v4
        v_cndmask_b32 v13, {YB[2]}, v13, s[12:13]
        v_cndmask_b32 v12, v12, v13, vcc
        v_mad_u32_u24 v{vKY+1}, v12, s10, v10
        v_add_u32 v12, 16, v1
        v_subrev_u32 v13, 47, v1
        v_cmp_gt_u32 s[12:13], 48, v1
        v_cndmask_b32 v12, v13, v12, s[12:13]
        v_lshlrev_b32 v{vKY+2}, 2, v12
        s_mul_i32 s9, s8, {4*KCP}
        v_lshlrev_b32 v11, 5, v8           ; 32j
        v_sub_u32 v11, s9, v11             ; base - 32j
        v_lshlrev_b32 v12, 3, v9
        v_sub_u32 v12, v11, v12
        v_add_u32 v12, {4088-512}, v12
        v_lshrrev_b32 v13, 1, v9
        v_lshlrev_b32 v13, 9, v13
        v_and_b32 v4, 1, v9
        v_lshl_add_u32 v13, v4, 4, v13     ; 512(g>>1) + 16(g&1)
        v_sub_u32 v13, v11, v13
        v_add_u32 v13, {4080-1024}, v13
        v_cndmask_b32 v{vKWA}, v13, v12, vcc
        v_lshlrev_b32 v13, 9, v9
        v_sub_u32 v13, v11, v13
        v_add_u32 v{vKWB}, {4064-2048}, v13
        s_movk_i32 s10, {KCP}
        v_lshrrev_b32 v11, 3, v1
        v_and_b32 v12, 7, v1
        v_lshlrev_b32 v12, 3, v12
        v_mad_u32_u24 v12, v11, s10, v12
        s_add_u32 s12, s9, 4096
        v_add_u32 v{vKZ}, s12, v12
        v_add_u32 v11, 1, v8
        v_and_b32 v11, 3, v11              ; sigma
        v_sub_u32 v12, 18, v8
        v_and_b32 v12, 28, v12
        v_lshl_add_u32 v12, v9, 3, v12
        v_lshlrev_b32 v12, 1, v12
        v_mad_u32_u24 v12, v11, s10, v12
        s_xor_b32 s13, s11, 1
        s_lshl_b32 s13, s13, 8             ; hw=0 (q0 0..3) -> +256 B
        s_add_u32 s12, s9, s13
        v_add_u32 v{vCA}, s12, v12
        v_lshlrev_b32 v12, 5, v8
        v_lshl_add_u32 v12, v9, 4, v12
        s_mul_i32 s12, s8, {UP}
        s_add_u32 s12, s12, {L_U}
        s_add_u32 s13, s12, s13
        v_add_u32 v{vCB}, s13, v12
        v_min_u32 v11, 59, v1
        v_lshl_add_u32 v{vUZ}, v11, 3, s12
        v_mov_b32 v5, 1
        """)
        a.e(f"""
        v_lshrrev_b32 v8, 1, v1
        v_and_b32 v9, 1, v1
        v_bfe_u32 v10, v1, 2, 3
        s_lshr_b32 s9, {sI}, 1
        v_xor_b32 v10, s9, v10
        v_lshrrev_b32 v11, 2, v1
        v_lshl_add_u32 v10, v11, 4, v10    ; line
        v_and_b32 v11, 1, v8
        v_lshl_add_u32 v10, v10, 1, v11    ; octet
        s_and_b32 s9, {sI}, 1
        v_lshl_add_u32 v10, v10, 1, s9
        v_lshl_add_u32 v10, v10, 1, v9
        v_lshlrev_b32 v{vUG}, 4, v10
        s_lshl_b32 s8, {sW}, 16            ; 64w*1024
        s_lshl_b32 s9, {sX}, 18
        s_add_u32 s8, s8, s9
        s_add_u32 {sUG0}, s8, {WS_UT}
        s_add_u32 {sUG1}, {sUG0}, {32*1024}
        s_movk_i32 s8, {UP}
        v_lshlrev_b32 v8, 4, v8
        v_mad_u32_u24 v8, v9, s8, v8
        s_lshl_b32 s8, {sW}, 10
        s_add_u32 s9, s8, {L_U + 480}
        v_add_u32 v{vUW}, s9, v8
        s_lshl_b32 s8, {sW}, 10
        s_add_u32 s8, s8, {WS_TF}
        v_and_b32 v8, 7, v1
        v_lshl_add_u32 v{vTF}, v8, 7, s8
        s_lshl_b32 s8, s77, 10
        s_lshl_b32 s10, s11, 20
        s_add_u32 s8, s8, s10
        s_add_u32 {sAT}, s8, {WS_AT}
        s_add_u32 s38, {sAT}, 0x80000
        v_bfe_u32 v8, v1, 2, 3             ; (cl, j>>2)
        v_xor_b32 v8, {sX}, v8             ; ^ (d & 7 = x)
        v_lshrrev_b32 v9, 5, v1            ; hf
        v_lshl_add_u32 v8, v8, 1, v9
        v_and_b32 v9, 3, v1
        v_lshl_add_u32 v8, v8, 2, v9
        v_lshlrev_b32 v255, 4, v8
        """)
        if o.get("asc", 1):
            a.e(f"""
            s_lshl_b32 s8, s11, 12
            s_lshr_b32 s10, s77, 4
            s_lshl_b32 s10, s10, 7
            s_add_u32 s8, s8, s10
            s_and_b32 s10, s77, 15
            s_lshl2_add_u32 s8, s10, s8
            s_add_u32 {sAF}, s8, {WS_AF}
            """)
        else:
            a.e(f"""
            s_lshl_b32 s8, s11, 16
            s_lshl_b32 s10, s77, 7
            s_add_u32 s8, s8, s10
            s_add_u32 {sAF}, s8, {WS_AF}
            """)
        if o.get("atouch", 0):
            a.e(f"buffer_load_dword v6, v3, {R_WS}, {sAF} offen sc1", tag="FT")
        a.e(f"""
        s_lshl_b32 s8, {sW}, 12
        s_add_u32 s8, s8, {L_EX}
        v_add_u32 v{vEXO}, s8, v7
        s_xor_b32 s8, {sW}, 1
        s_lshl_b32 s8, s8, 12
        s_add_u32 s8, s8, {L_EX}
        v_add_u32 v{vEXD}, s8, v7
        """)
        self.push_kgen()
        chunk = o.get("kch", 64)

        def gather():
            if o.get("noug", 0):
                return
            a.raw(f"buffer_load_dwordx4 v[176:179], v{vUG}, {R_WS}, {sUG0} offen sc1")
            a.raw(f"buffer_load_dwordx4 v[236:239], v{vUG}, {R_WS}, {sUG1} offen sc1")

        def look():
            if o.get("nolook"):
                a.e(f"global_load_dword v2, v3, {P_DBG} sc1", tag="PT")
                a.e(f"global_load_dword v9, v3, {P_DBG} sc1", tag="PT")
                return
            a.e(f"global_load_dword v2, v3, {P_DBG} sc1", tag="PT")
            a.e(f"buffer_load_dword v9, v{vTF}, {R_WS}, 0 offen sc1", tag="PT")

        def tag():
            a.wait(vm=0)
            a.e(f"v_readfirstlane_b32 {sEP}, v2")
            self.epoch_get(issued=True)
            a.e(f"ds_write_b32 v3, v2 offset:{L_CNT+8}")

        def check(lab):
            a.wait(vm=0)
            a.e(f"v_cmp_ne_u32 vcc, {sEP}, v9")
            a.e(f"s_cbranch_vccz {lab}y")
            a.raw(f"buffer_load_dword v9, v{vTF}, {R_WS}, 0 offen sc1")
            a.e(f"s_branch {lab}")
            a.label(f"{lab}y")
            a.e("s_mov_b32 s14, 0")
            gather()

        def kmf():
            a.e(f"""
            s_and_b32 s8, {sW}, 1
            s_lshl_b32 s8, s8, 6
            v_cmp_eq_u32 vcc, s8, v1
            v_mov_b32 v217, 0
            v_mov_b32 v218, 0
            v_mov_b32 v219, 0
            v_cndmask_b32 v216, 0, v183, vcc
            """)
            self.push_kmfma()
            self.drain()

        tp = o.get("tp", 6)
        tb = o.get("tb", 6)
        NB = 8
        if o.get("sphold", 1):
            a.e(f"s_cmp_lt_u32 {sI}, 28")
            a.e("s_cbranch_scc1 L_nh0")
            a.e("s_setprio 0")
            a.label("L_nh0")
        a.wait(vm="P")
        self.stamp("kgs")
        a.label(".p2align 3")
        self.drain()
        self.stamp("kge")
        if o.get("sphold", 1):
            a.e(f"s_cmp_lt_u32 {sI}, 28")
            a.e("s_cbranch_scc1 L_nh1")
            self.await_("v3", L_CNT + 4, 4, sleep=2)
            a.label("L_nh1")
        self.tables()
        self.stamp("tabd")
        a.wait(lg=0)
        self.arrive("v3", "v5", L_CNT)
        self.nsync += 1

        def ktiles():
            self.await_("v3", L_CNT, 4 * self.nsync)
            kmf()
            self.arrive("v3", "v5", L_CNT)
            self.nsync += 1
            self.stamp("kme")

        def expand():
            self.await_("v3", L_CNT, 4 * self.nsync)
            a.e(f"s_bitcmp1_b32 {sW}, 0")
            a.e("s_cbranch_scc1 L_sk1")
            self.push_kexpand(0)
            self.drain()
            a.e("s_branch L_skj")
            a.label("L_sk1")
            self.push_kexpand(1)
            self.drain()
            a.label("L_skj")
            self.stamp("kx")

        ks_, xs_, xn = o.get("ks", 7), o.get("xs", 7), o.get("xn", 4)
        for s in range(NB):
            a.e(f"s_cmp_lt_u32 {sI}, 28")
            a.e(f"s_cbranch_scc0 L_nl{s}")
            if f"D{s}" in a.vm:
                a.wait(vm=f"D{s}")
            a.e("s_barrier")
            ops = self.dma_ops(s + 2) if 1 <= s < 6 else []
            cut = xn if s == xs_ else 8
            for x, t in ops[:cut]:
                a.e(x, tag=t)
            a.label(f"L_nl{s}")
            if s == 0:
                a.e(f"s_setprio {o.get('bprio2', 1)}")
            if s == tp + 1:
                tag()
                check("L_c1")
                a.label("L_c1")
            if s == tp:
                look()
            if s == ks_:
                ktiles()
            if s == xs_:
                expand()
                if ops[cut:]:
                    a.e(f"s_cmp_lt_u32 {sI}, 28")
                    a.e(f"s_cbranch_scc0 L_nm{s}")
                    for x, t in ops[cut:]:
                        a.e(x, tag=t)
                    a.label(f"L_nm{s}")
        a.e(f"s_setprio {o.get('bprio3', 3)}")
        self.stamp("kw")
        a.e("s_cmp_eq_u32 s14, 0")
        a.e("s_cbranch_scc1 L_haveu")
        a.wait(vm=0)
        a.e(f"v_cmp_ne_u32 vcc, {sEP}, v9")
        a.e(f"s_cbranch_vccz L_pollx{self.npoll}")
        self.vpoll(f"v{vTF}", "v9", sleep=o.get("tsl", 2))
        gather()
        a.label("L_haveu")
        a.e("v_mov_b32 v10, 0\nv_mov_b32 v11, 0")
        a.e(f"ds_write_b64 v{vUZ}, v[10:11]", tag="Z")
        a.wait(vm=0)
        a.e(f"ds_write_b128 v{vUW}, v[176:179]", tag="UW")
        a.e(f"ds_write_b128 v{vUW}, v[236:239] offset:512", tag="UW")
        self.bsync()
        self.stamp("convs")
        a.e(f"s_setprio {self.o.get('cprio', 1)}")
        if not o.get("noconv"):
            self.conv({})
        self.stamp("conve")
        a.e(f"s_setprio {o.get('eprio', 3)}")
        self.conv_out()
        self.conv_out2()
        a.wait(vm=0)
        self.publish(sAF, line=True)
        self.stamp("apub")

    def tail(self):
        a = self.a
        o = self.o
        if o.get("amp"):
            self.stamp("end")
            a.e(f"""
            s_waitcnt lgkmcnt(0)
            s_sub_u32 s8, s82, s80
            s_lshl_b32 s8, s8, 2
            s_add_u32 s8, s8, 3000
            s_cmp_lg_u32 s2, {o['amp']}
            s_cbranch_scc1 L_end
            v_readfirstlane_b32 s3, v0
            s_cmp_lg_u32 s3, {o.get('ampw', 0)*64}
            s_cbranch_scc1 L_end
            """)
            a.label("L_pad")
            a.e("""
            s_memrealtime s[98:99]
            s_waitcnt lgkmcnt(0)
            s_sub_u32 s98, s98, s80
            s_cmp_lt_u32 s98, s8
            s_cbranch_scc1 L_pad
            """)
        elif self.stamps:
            a.e("s_memrealtime s[100:101]" if o.get("rt") else "s_memtime s[100:101]")
            a.e("s_memrealtime s[72:73]")
            a.e("s_waitcnt lgkmcnt(0)")
            a.e(f"""
            v_readfirstlane_b32 s3, v0
            s_and_b32 s3, s3, 256
            s_add_u32 s3, s3, s2
            s_lshl_b32 s3, s3, 2
            s_add_u32 s3, s3, {sW}
            s_lshl_b32 s3, s3, 6
            s_add_u32 s3, s3, {WS_STAMP}
            s_mov_b64 exec, 1
            """)
            for k in list(range(1, len(self.names))) + [10]:
                a.e(f"s_sub_u32 s8, s{80+2*k}, s80\nv_mov_b32 v8, s8\nbuffer_store_dword v8, v3, {R_WS}, s3 offen offset:{4*k}")
            a.e(f"v_mov_b32 v8, s78\nbuffer_store_dword v8, v3, {R_WS}, s3 offen offset:44")
            a.e(f"v_mov_b32 v8, s72\nbuffer_store_dword v8, v3, {R_WS}, s3 offen offset:48")

    def build(self):
        a = self.a
        self.prologue()
        self.role_a()
        a.e("s_branch L_tail" if self.stamps else "s_endpgm")
        self.role_b()
        a.label("L_tail")
        self.tail()
        a.label("L_end")
        a.e("s_endpgm")
        hdr = open("gated_mix__ssm_conv_s4__dense_activation_relu__prompt.s.ref").read().split("; Override launch")[0]
        s = hdr + f"; @launch grid=(256,1,1) block=(512,1,1) lds={LDS_BYTES}\n"
        s += '.amdgcn_target "amdgcn-amd-amdhsa--gfx950"\n.text\n'
        s += f".globl {KNAME}\n.p2align 8\n.type {KNAME},@function\n{KNAME}:\n"
        s += a.text().replace(".p2align 3:", ".p2align 3")
        s += f""".section .rodata,"a"
.p2align 6
.amdhsa_kernel {KNAME}
  .amdhsa_next_free_vgpr 256
  .amdhsa_next_free_sgpr 102
  .amdhsa_accum_offset 256
  .amdhsa_group_segment_fixed_size 0
  .amdhsa_kernarg_size 128
  .amdhsa_user_sgpr_count 2
  .amdhsa_user_sgpr_kernarg_segment_ptr 1
  .amdhsa_system_sgpr_workgroup_id_x 1
.end_amdhsa_kernel
"""
        return s


if __name__ == "__main__":
    out = sys.argv[1]
    stamps = None
    opts = {}
    for x in sys.argv[2:]:
        if x.startswith("--stamps="):
            stamps = x.split("=")[1].split(",")
        elif "=" in x:
            opts[x.split("=")[0]] = int(x.split("=")[1])
    g = Gen(stamps=stamps, opts=opts)
    s = g.build()
    open(out, "w").write(s)
    print("instructions", sum(1 for i in g.a.ins if i.kind != "label"), "auto nops", g.a.nops, "stamps", g.names)
```

```python
import sys
from collections import deque
from emit import Asm

KNAME = "gated_mix__ssm_conv_s4__dense_activation_relu__prompt_kernel"

WS_TF = 0x1000
WS_GF = 0x5000
WS_HF = 0x40000
WS_AF = 0x60000
WS_G = 0x12000
WS_STAMP = 0x20000
WS_UT = 0x100000
WS_AT = 0x300000
WS_H = 0x500000
WS_SIZE = 0xC00000

LDS_BYTES = 163840
XPOS = [98304, 131072, 81920]
WPOS = [114688, 147456, 65536]
L_BS = 81920
BSN = 8
L_CNT = 64384
NAR = 4
NBR = 6
vA0, vB0 = 32, 96
TROW = 1056
NROW = 62
L_TAB = 0
TSPLIT = 34
L_KC = 0
KCP = 4160
L_U = 70784
UP = 4608
L_EX = 33280
XB = 46
YB = {0: 0, 1: 16, 2: 24, 3: 29, 4: 34, 5: 37, 6: 40, 7: 43}

sX, sI, sW, sEP = "s4", "s5", "s6", "s7"
P_U, P_ARE, P_AIM, P_BRE, P_BIM, P_CRE, P_CIM, P_LDT = [f"s[{16+2*i}:{17+2*i}]" for i in range(8)]
P_DSK, P_BX, P_W1, P_W2, P_GW, P_OUT, P_DBG, P_WS = [f"s[{32+2*i}:{33+2*i}]" for i in range(8)]
R_U, R_W1, R_W2, R_OUT, R_WS = "s[48:51]", "s[52:55]", "s[56:59]", "s[60:63]", "s[64:67]"
sE2 = "s[68:69]"
sH0, sH1, sHF, sUG0, sUG1, sAT, sAF, sTM0, sTM1 = "s32", "s33", "s34", "s32", "s33", "s34", "s35", "s36", "s37"
sBB = ["s36", "s37", "s38", "s39"]
sAB = ["s40", "s41", "s42", "s43"]
sBS = "s76"
sM, sN = "s30", "s31"
vKX, vKY, vKWA, vKWB, vUW, vCA, vCB, vEXD, vEXO, vUG, vKZ, vTF, vUZ, vCN = 240, 241, 244, 245, 246, 247, 248, 249, 250, 251, 252, 253, 254, 255
KRES = list(range(32, 80)) + list(range(216, 235))
vBR = 24
vAV = 12


def v(a, n=1):
    return f"v{a}" if n == 1 else f"v[{a}:{a+n-1}]"


def lines(t):
    return [x.strip() for x in t.strip().split("\n") if x.strip() and not x.strip().startswith(";")]


class Gen:
    def __init__(self, stamps=None, opts=None):
        self.a = Asm()
        self.stamps = stamps
        self.names = []
        self.o = opts or {}
        self.npoll = 0
        self.b_iss = 0
        self.b_con = 0
        self.bg = deque()
        self.lg_idle = False
        self.no_lg = False
        self.nsync = 0
        self.gpub = False
        self.skipped = set()
        self.acount = 0
        self.kc0 = 0

    def stamp(self, name):
        if self.stamps and (name == "start" or name in self.stamps):
            if name not in self.names:
                self.names.append(name)
            k = self.names.index(name)
            assert k < 10
            self.a.e(f"{'s_memrealtime' if (self.o.get('amp') or self.o.get('rt')) else 's_memtime'} s[{80+2*k}:{81+2*k}]")

    def push(self, text, tag=None):
        L = lines(text)
        k = 0
        while k < len(L):
            u = [L[k]]
            if L[k].startswith("s_cmp"):
                while k + 1 < len(L) and L[k + 1].startswith("s_cselect"):
                    k += 1
                    u.append(L[k])
            k += 1
            self.bg.append(lambda u="\n".join(u), tag=tag: self.a.e(u, tag=tag))

    def pushf(self, f):
        self.bg.append(f)

    def pushw(self, **kw):
        self.bg.append(lambda: self.a.wait(**kw))

    def drain(self, n=10**9):
        while n > 0 and self.bg:
            self.bg.popleft()()
            n -= 1

    def publish(self, soff, mask="1", voff="v3", line=False):
        a = self.a
        if self.o.get("sat", 1):
            a.e(f"s_atomic_swap {sEP}, {P_WS}, {soff}")
            return
        if line and self.o.get("fline", 1):
            a.e("v_lshlrev_b32 v8, 2, v1\ns_mov_b32 exec_hi, 0")
            a.e(f"buffer_store_dword v2, v8, {R_WS}, {soff} offen sc1", tag="flag")
            a.e("s_mov_b32 exec_hi, -1")
            return
        a.e(f"s_mov_b64 exec, {mask}")
        a.e(f"buffer_store_dword v2, {voff}, {R_WS}, {soff} offen sc1", tag="flag")
        a.e("s_mov_b64 exec, -1")

    def spoll_issue(self, soff, n):
        if self.o.get("vp", 0):
            self.a.e(f"v_min_u32 v27, 6, v1\nv_lshl_add_u32 v27, v27, 2, {soff}")
            self.a.e(f"buffer_load_dword v28, v27, {R_WS}, 0 offen sc1", tag="VP")
            return
        dst = "s16" if n == 1 else f"s[16:{15+n}]"
        self.a.e(f"s_load_dword{'' if n == 1 else 'x%d' % n} {dst}, {P_WS}, {soff} glc")
        if n == 16:
            self.a.e(f"s_load_dword s32, {P_WS}, s75 glc")

    def spoll(self, soff, n, sleep=2, issued=False):
        a = self.a
        sleep = self.o.get("psl", sleep)
        if self.o.get("vp", 0):
            a.wait(vm="VP")
            a.e(f"v_cmp_ne_u32 vcc, {sEP}, v28")
            a.e(f"s_cbranch_vccz L_pollx{self.npoll}")
            self.vpoll("v27", "v28", sleep=sleep)
            return
        k = self.npoll
        self.npoll += 1
        a.e("s_mov_b32 s3, 0")
        if not issued:
            self.spoll_issue(soff, n)
        a.label(f"L_poll{k}")
        a.e("s_waitcnt lgkmcnt(0)")
        if n == 8:
            a.e("s_mov_b32 s23, s22")
        else:
            a.e("s_mov_b32 s33, s32")
            n = 18
        for q in range(n // 2):
            a.e(f"s_xor_b64 s[{16+2*q}:{17+2*q}], s[{16+2*q}:{17+2*q}], {sE2}")
        for q in range(1, n // 2):
            a.e(f"s_or_b64 s[16:17], s[16:17], s[{16+2*q}:{17+2*q}]")
        a.e(f"s_cbranch_scc0 L_pollx{k}")
        a.e("s_add_u32 s3, s3, 1")
        a.e("s_cmp_gt_u32 s3, 40000")
        a.e(f"s_cbranch_scc1 L_pollx{k}")
        a.e(f"s_sleep {sleep}")
        self.spoll_issue(soff, min(n, 16))
        a.e(f"s_branch L_poll{k}")
        a.label(f"L_pollx{k}")

    def epoch_master(self):
        a = self.a
        a.e(f"""
        s_lshl_b32 s3, s2, 2
        s_add_u32 s3, s3, {sW}
        s_cmp_lg_u32 s3, 1023
        s_cbranch_scc1 L_nomaster
        """)
        if self.o.get("clk", 1):
            a.e("""
            s_memrealtime s[10:11]
            s_waitcnt lgkmcnt(0)
            s_max_u32 s3, s10, 1
            """)
        else:
            a.e(f"""
            s_load_dword s3, {P_WS}, 0
            s_waitcnt lgkmcnt(0)
            s_mul_i32 s3, s3, 1664525
            s_add_u32 s3, s3, 1013904223
            s_max_u32 s3, s3, 1
            """)
        a.e("v_mov_b32 v8, s3\ns_mov_b64 exec, 1")
        a.raw(f"global_store_dword v3, v8, {P_DBG} sc1")
        if not self.o.get("clk", 1):
            a.raw(f"global_store_dword v3, v8, {P_WS} sc1")
        a.e("s_mov_b64 exec, -1")
        a.label("L_nomaster")

    def epoch_issue(self):
        self.a.e(f"s_load_dword {sEP}, {P_DBG}, 0")

    def epoch_get(self, issued=False):
        a = self.a
        k = self.npoll
        self.npoll += 1
        if not issued:
            self.epoch_issue()
        a.e("s_mov_b32 s3, 0")
        a.e("s_waitcnt lgkmcnt(0)")
        a.label(f"L_ep{k}")
        a.e(f"s_cmp_lg_u32 {sEP}, 0")
        a.e(f"s_cbranch_scc1 L_epx{k}")
        a.e("s_add_u32 s3, s3, 1")
        a.e("s_cmp_gt_u32 s3, 40000")
        a.e(f"s_cbranch_scc1 L_epx{k}")
        a.e("s_sleep 2")
        a.raw(f"global_load_dword v2, v3, {P_DBG} sc1")
        a.wait(vm=0)
        a.e(f"v_readfirstlane_b32 {sEP}, v2")
        a.e("s_nop 1")
        a.e(f"s_branch L_ep{k}")
        a.label(f"L_epx{k}")
        a.e(f"s_mov_b32 s68, {sEP}\ns_mov_b32 s69, {sEP}\nv_mov_b32 v2, {sEP}")

    def vpoll(self, voff, tmp, sleep=2):
        a = self.a
        n = self.npoll
        self.npoll += 1
        a.e("s_mov_b32 s3, 0")
        a.label(f"L_poll{n}")
        a.raw(f"buffer_load_dword {tmp}, {voff}, {R_WS}, 0 offen sc1")
        a.e("s_add_u32 s3, s3, 1")
        a.wait(vm=0)
        a.e(f"v_cmp_ne_u32 vcc, {sEP}, {tmp}")
        a.e("s_cmp_gt_u32 s3, 40000")
        a.e(f"s_cbranch_scc1 L_pollx{n}")
        a.e(f"s_cbranch_vccz L_pollx{n}")
        a.e(f"s_sleep {sleep}")
        a.e(f"s_branch L_poll{n}")
        a.label(f"L_pollx{n}")

    def params_load(self):
        a = self.a
        for k, p in enumerate((P_ARE, P_AIM, P_BRE, P_BIM, P_CRE, P_CIM)):
            a.e(f"global_load_short_d16_hi v{176+k}, v24, {p}", tag="P")
        a.e(f"global_load_short_d16_hi v182, v25, {P_LDT}", tag="P")
        a.e(f"global_load_short_d16_hi v183, v25, {P_DSK}", tag="P")

    def tlb_touch(self):
        a = self.a
        if not self.o.get("tlb", 1):
            return
        a.e(f"""
        s_cmp_eq_u32 {sW}, 1
        s_cselect_b64 s[8:9], {P_W2}, {P_WS}
        s_cmp_eq_u32 {sW}, 2
        s_cselect_b64 s[8:9], {P_OUT}, s[8:9]
        s_cmp_eq_u32 {sW}, 3
        s_cselect_b64 s[8:9], {P_DBG}, s[8:9]
        s_cmp_eq_u32 {sW}, 0
        s_cselect_b32 s10, 5, 0
        s_mov_b32 s11, 21
        """)
        if self.o.get("tlb", 1) == 2:
            a.e(f"""
            s_cselect_b32 s10, 47, 27
            s_cselect_b32 s11, 18, 16
            s_cmp_eq_u32 {sW}, 3
            s_cselect_b32 s10, 0, s10
            """)
        a.e("""
        v_min_u32 v8, s10, v1
        v_lshlrev_b32 v8, s11, v8
        """)
        a.e("global_load_dword v6, v8, s[8:9] offset:128", tag="TLB")
        if self.o.get("stlb", 0):
            a.e(f"s_load_dword s60, {P_DBG}, 128")
            a.e(f"s_load_dword s61, {P_WS}, 128")

    def gate_tail(self):
        P = self.push
        for q in range(4):
            for r in range(8):
                P(f"v_dot2_f32_bf16 v{132+r}, v{64+4*r+q}, v{148+q}, v{132+r}")
        for j in range(4):
            P(f"v_permlane16_swap_b32 v{132+2*j}, v{133+2*j}")
        for j in range(4):
            P(f"v_add_f32 v{132+2*j}, v{132+2*j}, v{133+2*j}")
        for r in (8, 4, 2, 1):
            for j in range(4):
                P(f"v_add_f32_dpp v{132+2*j}, v{132+2*j}, v{132+2*j} row_ror:{r} row_mask:0xf bank_mask:0xf")
        P(f"""
        v_and_b32 v8, 3, v1
        v_cmp_eq_u32 vcc, 1, v8
        v_cndmask_b32 v132, v132, v134, vcc
        v_cmp_eq_u32 vcc, 2, v8
        v_cndmask_b32 v132, v132, v136, vcc
        v_cmp_eq_u32 vcc, 3, v8
        v_cndmask_b32 v132, v132, v138, vcc
        v_mul_f32 v132, 0xbfb8aa3b, v132
        v_exp_f32 v132, v132
        v_lshrrev_b32 v9, 5, v1
        v_lshl_add_u32 v9, v9, 2, v8
        v_add_f32 v132, 1.0, v132
        v_rcp_f32 v132, v132
        v_bfe_u32 v8, v1, 4, 1
        v_lshl_add_u32 v9, v9, 1, v8
        v_lshlrev_b32 v9, 2, v9
        s_lshl_b32 s9, s70, 6
        s_add_u32 s9, s9, {WS_G}
        """)

        def st():
            a = self.a
            a.e("s_mov_b32 exec_lo, 0x000f000f\ns_mov_b32 exec_hi, 0x000f000f")
            a.e(f"buffer_store_dword v132, v9, {R_WS}, s9 offen sc1", tag="Tst")
            a.e("s_mov_b64 exec, -1")
        self.pushf(st)

    def push_kgen(self):
        P = self.push
        E = lambda k: 80 + 2 * (k - 1)
        F = lambda c: 116 + 2 * (c - 1)
        X0 = 130
        P(f"""
        v_mul_f32 v134, 0x3fb8aa3b, v182
        v_exp_f32 v134, v134
        v_pk_mul_f32 v[138:139], v[180:181], v[178:179] op_sel_hi:[1,0]
        v_cvt_pk_bf16_f32 v134, v134, v134
        v_pk_fma_f32 v[138:139], v[180:181], v[178:179], v[138:139] op_sel:[1,1,0] op_sel_hi:[0,1,1] neg_lo:[1,0,0]
        v_and_b32 v134, 0xffff0000, v134
        v_mov_b32 v{KRES[YB[0]]}, 0x3f80
        v_mul_f32 v135, v134, v176         ; zr
        v_mul_f32 v136, v134, v177         ; zi
        v_pk_mul_f32 v[{X0}:{X0+1}], v[138:139], v[134:135] op_sel_hi:[1,0]
        v_mul_f32 v135, 0x3fb8aa3b, v135
        v_mul_f32 v136, 0.15915494, v136   ; revolutions
        v_mul_f32 v142, 0x41800000, v135
        v_mul_f32 v143, 0x41800000, v136
        v_mul_f32 v144, 0x43800000, v135
        v_mul_f32 v145, 0x43800000, v136
        v_fract_f32 v141, v136
        v_fract_f32 v143, v143
        v_fract_f32 v145, v145
        v_exp_f32 v140, v135
        v_exp_f32 v142, v142
        v_exp_f32 v144, v144
        """)
        for dst, t in ((E(1), 140), (E(16), 142), (F(1), 144)):
            P(f"v_cos_f32 v{dst}, v{t+1}\nv_sin_f32 v{dst+1}, v{t+1}")
        for dst, t in ((E(1), 140), (E(16), 142), (F(1), 144)):
            P(f"v_pk_mul_f32 {v(dst,2)}, {v(dst,2)}, {v(t,2)} op_sel_hi:[1,0]")
        src = {2: (1, 1), 3: (2, 1), 4: (2, 2), 5: (4, 1), 6: (4, 2), 7: (4, 3), 8: (4, 4), 17: (16, 1), 18: (16, 2)}
        for k in range(9, 16):
            src[k] = (8, k - 8)
        ej = [(E(k), E(src[k][0]), E(src[k][1]), YB[0] + k, False) for k in range(2, 16)]
        fsrc = {2: (1, 1), 3: (2, 1), 4: (2, 2), 5: (4, 1), 6: (4, 2), 7: (4, 3)}
        fj = [(F(c), F(fsrc[c][0]), F(fsrc[c][1]), YB[c], False) for c in range(2, 8)]
        xj = [(X0 + 2 * (k % 2), X0 + 2 * ((k - 1) % 2), E(16), XB + k, True) for k in range(1, 16)]
        pj = []
        tmp = list(range(146, 170, 2))
        ti = 0
        for c in range(1, 8):
            step = {1: 2, 2: 4, 3: 4}.get(c, 8)
            top = 15 if c == 1 else 17
            for n_, rho in enumerate(range(step, top, step)):
                pj.append((tmp[ti % len(tmp)], F(c), E(rho), YB[c] + 1 + n_, False))
                ti += 1
        others = []
        q1, q2 = list(ej), list(fj)
        while q1 or q2:
            if q1:
                others.append(q1.pop(0))
            if q2:
                others.append(q2.pop(0))
        others += pj
        order = []
        xs = list(xj)
        while others or xs:
            grp = []
            if xs:
                grp.append(xs.pop(0))
            while others and len(grp) < 4:
                j = others[0]
                if any(g[0] in (j[1], j[2]) or g[0] == j[0] for g in grp):
                    break
                grp.append(others.pop(0))
            order.append(grp)
        put = lambda reg, row, neg: P(f"v_cvt_pk_bf16_f32 v{KRES[row]}, v{reg}, {'-' if neg else ''}v{reg+1}")
        prev = [(X0, 0, 0, XB, True), (E(1), 0, 0, YB[0] + 1, False), (F(1), 0, 0, YB[1], False)]
        for gi, grp in enumerate(order):
            pk = gi < self.o.get("pkg", 99)
            for (d, x, y, row, neg) in grp:
                if pk:
                    P(f"v_pk_mul_f32 {v(d,2)}, {v(x,2)}, {v(y,2)} op_sel_hi:[1,0]")
                else:
                    P(f"v_mul_f32 v{d}, v{x}, v{y}\nv_mul_f32 v{d+1}, v{x+1}, v{y}")
            for (d, x, y, row, neg) in prev:
                put(d, row, neg)
            for (d, x, y, row, neg) in grp:
                if pk:
                    P(f"v_pk_fma_f32 {v(d,2)}, {v(x,2)}, {v(y,2)}, {v(d,2)} op_sel:[1,1,0] op_sel_hi:[0,1,1] neg_lo:[1,0,0]")
                else:
                    P(f"v_fma_f32 v{d}, -v{x+1}, v{y+1}, v{d}\nv_fmac_f32 v{d+1}, v{x}, v{y+1}")
            prev = grp
            if gi + 1 == self.o.get("pkg", 99):
                self.kc0 = len(self.bg)
        for (d, x, y, row, neg) in prev:
            put(d, row, neg)

    def tables(self):
        a = self.a
        a.e(f"s_mov_b32 m0, {sTM0}")
        for row in range(NROW):
            a.e(f"ds_write_addtid_b32 v{KRES[row]} offset:{row * TROW}", tag="TB")

    def arrive(self, vaddr, vone, off):
        a = self.a
        a.e("s_mov_b64 exec, 1")
        a.e(f"ds_add_u32 {vaddr}, {vone} offset:{off}")
        a.e("s_mov_b64 exec, -1")

    def await_(self, vaddr, off, count, sleep=0):
        a = self.a
        k = self.npoll
        self.npoll += 1
        a.e("s_mov_b32 s3, 0")
        a.label(f"L_bs{k}")
        if sleep:
            a.e(f"s_sleep {sleep}")
        a.e(f"ds_read_b32 v8, {vaddr} offset:{off}")
        a.e("s_add_u32 s3, s3, 1")
        a.wait(lg=0)
        a.e("v_readfirstlane_b32 s8, v8")
        a.e("s_cmp_gt_u32 s3, 3000000")
        a.e(f"s_cbranch_scc1 L_bsx{k}")
        a.e(f"s_cmp_lt_u32 s8, {count}")
        a.e(f"s_cbranch_scc1 L_bs{k}")
        a.label(f"L_bsx{k}")

    def bsync(self):
        self.nsync += 1
        self.a.wait(lg=0)
        self.arrive("v3", "v5", L_CNT)
        self.await_("v3", L_CNT, 4 * self.nsync)

    def push_kmfma(self):
        YR = [64, 68, 72, 76] + list(range(184, 216, 4))
        NY = len(YR)
        AH = 8
        seq = [(ks, c) for ks in range(8) for c in range(2)]
        for ks in range(8):
            self.push(f"ds_read_b128 {v(32+4*ks,4)}, v{vKX} offset:{64*ks}", tag="KX")
        yr = lambda n_: self.push(f"ds_read_b128 {v(YR[n_%NY],4)}, v{vKY+seq[n_][1]} offset:{64*seq[n_][0]}", tag=f"KY{n_}")
        for n_ in range(AH):
            yr(n_)
        for n_, (ks, c) in enumerate(seq):
            d = 216 + 4 * c
            cc = "0" if (ks == 0 and c != 0) else v(d, 4)

            def f(n_=n_, d=d, cc=cc, ks=ks):
                self.a.wait(lg=f"KY{n_}")
                self.a.e(f"v_mfma_f32_16x16x32_bf16 {v(d,4)}, {v(YR[n_%NY],4)}, {v(32+4*ks,4)}, {cc}")
            self.pushf(f)
            if n_ + AH < 16:
                yr(n_ + AH)

    def push_kexpand(self, hw):
        P = self.push
        cv = lambda dst, hi_lag, lo_lag: P(f"v_cvt_pk_bf16_f32 v{dst}, {hi_lag}, {lo_lag}")
        if hw == 0:
            for dst, src_ in ((224, 216), (225, 217), (226, 218), (227, 220), (228, 221)):
                P(f"ds_bpermute_b32 v{dst}, v{vKY+2}, v{src_}", tag="NB")
            P("""
            v_readfirstlane_b32 s8, v220       ; V(256)
            v_readfirstlane_b32 s9, v221       ; V(258)
            v_readfirstlane_b32 s10, v222      ; V(512)
            """)
            self.pushw(lg="NB")
            P("""
            v_writelane_b32 v224, s8, 63
            v_writelane_b32 v225, s8, 63
            v_writelane_b32 v226, s9, 63
            v_writelane_b32 v227, s10, 63
            v_writelane_b32 v228, s10, 63
            """)
            k0 = ["v216", "v217", "v218", "v219", "v224", "v225", "v226"]
            k1 = ["v220", "v220", "v221", "v227", "v227", "v227", "v228"]
            for si, (k, off) in enumerate(((k0, 512), (k1, 0))):
                for sg in range(4):
                    t = 32 + 8 * si + 2 * sg
                    cv(t, k[sg + 3], k[sg + 2])
                    cv(t + 1, k[sg + 1], k[sg])
                    P(f"ds_write_b64 v{vKWA}, {v(t,2)} offset:{off+sg*KCP}", tag="KW")
            P("""
            v_readfirstlane_b32 s8, v33        ; (K1 | K0<<16)
            v_readfirstlane_b32 s9, v35        ; (K2 | K1<<16)
            v_mov_b32 v48, 0
            v_mov_b32 v49, 0
            s_lshr_b32 s10, s8, 16             ; K0
            v_writelane_b32 v48, s10, 8
            v_writelane_b32 v48, s8, 16
            v_writelane_b32 v48, s9, 24
            v_writelane_b32 v49, s10, 24
            """)
            self.pushf(lambda: self.a.e(f"s_mov_b32 exec_hi, 0\nds_write_b64 v{vKZ}, v[48:49]\ns_mov_b32 exec_hi, -1", tag="KW"))
        else:
            k2 = ["v216"] * 3 + ["v217"] * 3 + ["v218"] * 5
            k3 = ["v220"] * 5 + ["v221"] * 7 + ["v222"] * 7
            t = 32
            for sg in range(4):
                for q in range(4):
                    cv(t + q, k2[sg + 7 - 2 * q], k2[sg + 6 - 2 * q])
                P(f"ds_write_b128 v{vKWA}, {v(t,4)} offset:{sg*KCP}", tag="KW")
                t += 4
                for hf in range(2):
                    for q in range(4):
                        cv(t + q, k3[sg + 15 - 8 * hf - 2 * q], k3[sg + 14 - 8 * hf - 2 * q])
                    P(f"ds_write_b128 v{vKWB}, {v(t,4)} offset:{sg*KCP+16*hf}", tag="KW")
                    t += 4

    def conv(self, fill):
        a = self.a

        def reads(st):
            A0 = 32 + 64 * (st % 2)
            B0 = 64 + 64 * (st % 2)
            L = []
            for k in range(8):
                offA = 512 * (7 - k) + 64 * (3 - st)
                offB = 512 * k + 64 * (3 - st)
                L.append((f"ds_read_b64 {v(A0+4*k,2)}, v{vCA} offset:{offA}", f"C{st}_{k}"))
                L.append((f"ds_read_b64 {v(A0+4*k+2,2)}, v{vCA} offset:{offA+8}", f"C{st}_{k}"))
                L.append((f"ds_read_b128 {v(B0+4*k,4)}, v{vCB} offset:{offB}", f"C{st}_{k}"))
            return L

        first = set()
        for c_, t_ in reads(0):
            a.e(c_, tag=t_)
        for st in range(4):
            A0 = 32 + 64 * (st % 2)
            B0 = 64 + 64 * (st % 2)
            nxt = reads(st + 1) if st < 3 else []
            pairs = sorted([(q1, m) for q1 in range(8) for m in range(8) if q1 + m <= 7], key=lambda p: (max(p), p[0] + p[1]))
            have = -1
            for n_, (q1, m) in enumerate(pairs):
                used = 0
                if max(q1, m) > have:
                    have = max(q1, m) if st == 0 else 7
                    a.wait(lg=f"C{st}_{have}")
                    used += 1
                c = q1 + m
                d = 160 + 4 * c
                cc = v(d, 4) if c in first else "0"
                first.add(c)
                a.e(f"v_mfma_f32_16x16x32_bf16 {v(d,4)}, {v(A0+4*q1,4)}, {v(B0+4*m,4)}, {cc}")
                if nxt and n_ >= 4:
                    c_, t_ = nxt.pop(0)
                    a.e(c_, tag=t_)
                    used += 1
                for f in fill.get(36 * st + n_, []):
                    f()
                self.drain(2 - used)
            assert not nxt
        self.drain()

    def conv_out(self):
        a = self.a
        a.e(f"""
        s_bitcmp1_b32 {sW}, 0
        s_nop 7
        s_cbranch_scc1 L_hw1
        """)
        for k in range(4):
            a.e(f"ds_write_b128 v{vEXD}, {v(176+4*k,4)} offset:{1024*k}", tag="EX")
        a.e("s_branch L_hwj")
        a.label("L_hw1")
        for k in range(4):
            a.raw(f"ds_write_b128 v{vEXD}, {v(160+4*k,4)} offset:{1024*k}")
        a.wait(lg=0)
        for k in range(16):
            a.e(f"v_mov_b32 v{160+k}, v{176+k}")
        a.label("L_hwj")

    def conv_out2(self):
        a = self.a
        self.bsync()
        for k in range(4):
            a.e(f"ds_read_b128 {v(176+4*k,4)}, v{vEXO} offset:{1024*k}", tag=f"EY{k}")
        for cp in range(2):
            for cl in range(2):
                k = 2 * cp + cl
                a.wait(lg=f"EY{k}")
                for q in range(4):
                    a.e(f"v_add_f32 v{160+4*k+q}, v{160+4*k+q}, v{176+4*k+q}")
                a.e(f"v_cvt_pk_bf16_f32 v{20+4*cp+2*cl}, v{160+4*k}, v{161+4*k}")
                a.e(f"v_cvt_pk_bf16_f32 v{21+4*cp+2*cl}, v{162+4*k}, v{163+4*k}")
            a.e(f"v_permlane16_swap_b32 v{20+4*cp}, v{22+4*cp}")
            a.e(f"v_permlane16_swap_b32 v{21+4*cp}, v{23+4*cp}")
            a.e(f"buffer_store_dwordx4 {v(20+4*cp,4)}, v255, {R_WS}, {'s38' if cp else sAT} offen sc1", tag="Ast")

    def prologue(self):
        a = self.a
        a.e("s_cmp_ge_u32 s2, 256\ns_cbranch_scc1 L_end")
        self.stamp("start")
        if self.stamps and not self.o.get("amp"):
            a.e("s_memrealtime s[78:79]")
        a.e(f"""
        s_lshr_b32 {sI}, s2, 3
        s_min_u32 s3, {sI}, 15
        s_lshl_b32 s3, s3, 3
        s_load_dwordx2 s[68:69], s[0:1], s3
        s_load_dwordx16 s[16:31], s[0:1], 0
        s_load_dwordx16 s[32:47], s[0:1], 64
        s_getpc_b64 s[8:9]
        L_pc:
        s_lshl_b32 s3, {sI}, 10
        v_lshl_add_u32 v6, v0, 2, s3
        v_min_u32 v6, L_end-L_pc, v6
        v_readfirstlane_b32 s14, v0
        v_and_b32 v1, 63, v0
        v_bfe_u32 v4, v0, 6, 2
        s_and_b32 {sX}, s2, 7
        s_mul_i32 s77, {sI}, 37
        s_lshr_b32 s77, s77, 8
        s_bfe_u32 {sW}, s14, 0x20006
        s_mul_i32 s13, s77, 7
        s_sub_u32 s15, {sI}, s13           ; ct
        s_and_b32 s11, {sX}, 6
        s_lshl1_add_u32 s11, s11, s77
        s_lshl_b32 s70, s11, 17
        s_and_b32 s11, {sX}, 1
        s_mul_i32 s11, s11, 7
        s_add_u32 s11, s11, s15
        s_lshl_b32 s71, s11, 8
        """)
        g = self.o.get("g1rot", 2)
        if g == 8:
            a.e("s_lshl1_add_u32 s72, s77, s15")
        elif g == 4:
            a.e("s_add_u32 s72, s77, s15\ns_lshl_b32 s72, s72, 1")
        elif g == 2:
            a.e("s_add_u32 s72, s77, s15\ns_lshl_b32 s72, s72, 2")
        if self.o.get("xrot", 0) == 1:
            a.e(f"s_add_u32 s72, s72, {sX}")
        if self.o.get("xrot", 0) == 2:
            a.e(f"s_and_b32 s11, {sX}, 1\ns_lshl1_add_u32 s72, s11, s72\ns_lshr_b32 s11, {sX}, 1\ns_add_u32 s72, s72, s11")
        a.e(f"""
        s_lshl_b32 s73, {sW}, 12           ; wave*4096
        s_mov_b32 s50, {2048*1024}
        s_mov_b32 s51, 0x00020000
        s_mov_b32 s54, {512*3584}
        s_mov_b32 s55, s51
        s_bitcmp1_b32 s14, 8
        """)
        if not self.o.get("bnear", 0):
            a.e("s_cbranch_scc1 L_roleB0")
            return
        a.e("s_cbranch_scc0 L_roleA")
        self.b_first()
        a.e("s_branch L_roleB")
        a.label("L_roleA")
        a.vm = []

    def b_first(self):
        a = self.a
        a.e(f"s_setprio {self.o.get('bprio', 3)}")
        a.e(f"""
        s_lshr_b32 s9, {sW}, 1
        s_lshl1_add_u32 s8, {sI}, s9
        s_lshl3_add_u32 s77, s8, {sX}
        s_and_b32 s9, {sW}, 1
        s_lshl1_add_u32 s8, s77, s9
        s_lshl_b32 s8, s8, 7
        v_lshl_add_u32 v24, v1, 1, s8      ; d*256 + (64*(w&1)+l)*2
        v_lshlrev_b32 v25, 1, s77
        """)
        for k in range(4):
            a.e(f"v_pk_mov_b32 v[{176+2*k}:{177+2*k}], 0, 0")
        a.e(f"ds_write_b128 v176, v[176:179] offset:{L_CNT}", tag="Z")
        a.e("s_waitcnt lgkmcnt(0)")
        self.stamp("bk")
        if self.o.get("pb", 1):
            a.e("s_barrier")
        self.params_load()

    def dma_voffs(self):
        self.a.e(f"""
        v_lshrrev_b32 v8, 3, v1            ; l>>3
        v_lshl_add_u32 v8, v4, 5, v8       ; 32w + (l>>3)
        v_lshlrev_b32 v8, 10, v8           ; *1024
        v_lshrrev_b32 v9, 4, v1            ; l>>4
        v_and_b32 v10, 7, v1
        v_xor_b32 v10, v10, v9             ; pos ^ (l>>4)
        v_lshl_add_u32 v16, v10, 4, v8
        v_xor_b32 v10, 4, v10
        v_lshl_add_u32 v17, v10, 4, v8
        v_add_u32 v17, {8192-1024}, v17
        v_add_u32 v18, {2*(8192-1024)}, v16
        v_add_u32 v19, {2*(8192-1024)}, v17
        v_lshl_add_u32 v8, v4, 4, v9       ; 16w + (l>>4)
        v_mul_u32_u24 v8, 3584, v8
        v_and_b32 v10, 15, v1
        v_lshlrev_b32 v11, 2, v9
        v_xor_b32 v10, v10, v11
        v_lshl_add_u32 v20, v10, 4, v8
        v_add_u32 v21, {4*3584-1024}, v20
        v_xor_b32 v10, 2, v10
        v_lshl_add_u32 v8, v10, 4, v8
        v_add_u32 v22, {2*(4*3584-1024)}, v8
        v_add_u32 v23, {3*(4*3584-1024)}, v8
        """)

    def common2(self):
        self.a.e(f"""
        v_mov_b32 v3, 0
        v_lshlrev_b32 v7, 4, v1            ; lane*16
        s_mov_b32 s66, {WS_SIZE}
        s_mov_b32 s67, 0x00020000
        s_mov_b64 s[64:65], s[46:47]
        """)

    def a_prologue(self):
        a = self.a
        a.e("global_load_dword v6, v6, s[8:9]", tag="CPF")
        a.e(f"""
        s_max_u32 s3, {sI}, 15
        s_min_u32 s3, s3, 20
        s_sub_u32 s3, s3, 15
        v_lshlrev_b32 v12, 21, s3
        """)
        self.dma_voffs()
        a.e(self.dma_setup(0))
        a.e("s_waitcnt lgkmcnt(0)")
        self.stamp("karg")
        if self.o.get("fan", 1):
            a.e("global_load_dword v6, v12, s[68:69] offset:128", tag="FAN")
        a.e(f"""
        s_mov_b64 s[48:49], s[16:17]
        s_mov_b64 s[52:53], s[36:37]
        """)

    def a_prologue2(self):
        a = self.a
        a.e(f"s_setprio {self.o.get('prio', 2)}")
        self.common2()
        a.e(f"""
        s_lshl_b32 {sBS}, {sW}, 11         ; wave*2048
        s_add_u32 {sBS}, {sBS}, {L_BS}
        s_mov_b32 s58, {1792*1024}
        s_mov_b32 s59, 0x00020000
        s_mov_b32 s62, {2048*1024}
        s_mov_b32 s63, 0x00020000
        s_mov_b64 s[56:57], s[38:39]
        s_mov_b64 s[60:61], s[42:43]
        """)
        if not self.o.get("vp", 0):
            a.e(f"s_load_dword s16, {P_WS}, 128")

    def dma_setup(self, s):
        return f"""
        s_add_u32 s74, s72, {s}
        s_and_b32 s74, s74, 7
        s_mul_i32 s75, s74, {64*3584}
        s_add_u32 s75, s75, s71
        s_lshl_b32 s74, s74, 7
        s_add_u32 s74, s74, s70
        """

    def dma_ops(self, s, setup=True):
        slot = s % 3
        ops = []
        for i in range(4):
            pre = ((self.dma_setup(s) if setup else "") + f"s_add_u32 m0, s73, {XPOS[slot]}\n") if i == 0 else ""
            ops.append((pre + f"buffer_load_dwordx4 v{16+i}, {R_U}, s74 offen offset:{i*1024} lds", f"D{s}"))
        for i in range(4):
            pre = f"s_add_u32 m0, s73, {WPOS[slot]}\n" if i == 0 else ""
            ops.append((pre + f"buffer_load_dwordx4 v{20+i}, {R_W1}, s75 offen offset:{i*1024} lds", f"D{s}"))
        return ops

    def a_setup_g1(self):
        self.a.e(f"""
        v_and_b32 v8, 15, v1               ; t
        v_lshrrev_b32 v9, 4, v1            ; g
        v_lshrrev_b32 v10, 1, v8
        v_xor_b32 v10, v10, v9             ; g ^ (t>>1)
        s_lshr_b32 s8, {sW}, 1
        s_lshl_b32 s8, s8, 13              ; wm*64*128
        s_add_u32 s8, s8, {XPOS[2]}
        v_lshl_add_u32 v8, v8, 7, s8
        v_lshl_add_u32 v4, v10, 4, v8
        v_xor_b32 v5, 64, v4
        v_bfe_u32 v8, v1, 2, 2             ; r
        v_lshl_add_u32 v10, v9, 3, v8      ; 8g + r
        v_lshlrev_b32 v10, 8, v10          ; *256
        v_and_b32 v9, 1, v9
        v_lshl_or_b32 v8, v8, 1, v9        ; 2r | (g&1)
        s_and_b32 s8, {sW}, 1
        s_lshl_b32 s8, s8, 2
        v_xor_b32 v8, s8, v8               ; (4wn) ^ s
        v_lshl_add_u32 v10, v8, 5, v10
        v_and_b32 v8, 3, v1
        v_lshl_add_u32 v10, v8, 3, v10
        v_add_u32 v24, {WPOS[0]}, v10
        v_xor_b32 v25, 32, v24
        v_xor_b32 v26, 64, v24
        v_xor_b32 v27, 96, v24
        v_add_u32 v28, {WPOS[2]}, v10
        v_xor_b32 v29, 32, v28
        v_xor_b32 v30, 64, v28
        v_xor_b32 v31, 96, v28
        s_lshl2_add_u32 s8, {sX}, s77      ; 4x + rt
        s_lshr_b32 s9, {sW}, 1
        s_lshl1_add_u32 s8, s8, s9
        s_mul_i32 s8, s8, {4*28}
        s_and_b32 s10, {sW}, 1
        s_lshl1_add_u32 s10, s15, s10
        s_lshl1_add_u32 s8, s10, s8
        s_lshl_b32 s8, s8, 10
        s_add_u32 {sH0}, s8, {WS_H}
        s_and_b32 s8, {sX}, 6
        s_lshl1_add_u32 s8, s8, s77        ; 4R + rt
        s_lshl1_add_u32 s8, s8, s9         ; *2 + wm
        s_and_b32 s9, {sX}, 1
        s_lshl1_add_u32 s8, s8, s9         ; *2 + ch
        s_lshl_b32 s8, s8, 8               ; *2 groups*128B
        s_cmp_ge_u32 s10, 7
        s_cselect_b32 s9, {128-28}, 0
        s_lshl2_add_u32 s8, s10, s8
        s_add_u32 s8, s8, s9
        s_add_u32 {sHF}, s8, {WS_HF}
        """)

    def a_setup_g2(self):
        a = self.a
        a.e(f"""
        v_lshrrev_b32 v8, 3, v1
        v_lshlrev_b32 v8, 10, v8
        v_lshrrev_b32 v9, 4, v1
        v_lshlrev_b32 v9, 1, v9
        v_and_b32 v10, 7, v1
        v_xor_b32 v10, v10, v9
        v_lshl_add_u32 v10, v10, 4, v8
        v_add_u32 v11, {8192-1024}, v10
        s_cmp_ge_u32 s15, 3
        s_addc_u32 s8, s15, 0
        s_cmp_ge_u32 {sI}, 28
        s_cselect_b32 {sN}, 3, s8
        s_cselect_b32 {sM}, s15, s77       ; m
        s_mul_i32 s12, {sW}, {28*16384}
        s_lshl_b32 s10, {sN}, 7
        s_add_u32 s12, s12, s10            ; w2 base
        s_and_b32 s10, {sX}, 6
        s_lshr_b32 s11, {sW}, 1
        s_add_u32 s10, s10, s11
        s_and_b32 s11, {sX}, 1
        s_lshl1_add_u32 s10, s10, s11
        s_lshl2_add_u32 s10, s10, {sM}     ; 8xp + 4(x&1) + m
        s_mul_i32 s10, s10, {4*28}
        s_and_b32 s11, {sW}, 1
        s_mul_i32 s3, s11, 14
        s_add_u32 s10, s10, s3
        s_lshl_b32 s10, s10, 10
        s_add_u32 s13, s10, {WS_H}         ; h base
        """)
        for lam in range(4):
            a.e(f"s_xor_b32 s3, {sW}, {lam}\ns_mul_i32 s3, s3, {28*1024}\nv_add_u32 v{vAV+lam}, s3, v7")
        if self.o.get("g2rot", 1) == 2:
            a.e(f"s_add_u32 s10, {sN}, {sM}")
        else:
            a.e("s_mov_b32 s10, 0")
        for k in range(2):
            a.e(f"""
            s_add_u32 s11, s10, {k}
            s_and_b32 s11, s11, 1
            s_mul_i32 s3, s11, {14*16384}
            s_add_u32 {sBB[k]}, s12, s3
            s_mul_i32 s3, s11, {7*1024}
            s_add_u32 {sAB[k]}, s13, s3
            """)

    def a_setup_br(self):
        self.a.e(f"""
        v_lshrrev_b32 v8, 2, v1            ; row = 4g + r
        v_lshl_add_u32 v9, v8, 7, {sBS}
        v_bfe_u32 v8, v1, 3, 2             ; (row>>1)&3
        v_lshl_add_u32 v9, v8, 5, v9
        v_and_b32 v8, 3, v1
        v_lshl_add_u32 v{vBR}, v8, 3, v9
        v_xor_b32 v{vBR+1}, 32, v{vBR}
        v_xor_b32 v{vBR+2}, 64, v{vBR}
        v_xor_b32 v{vBR+3}, 96, v{vBR}
        """)

    def a_setup_late(self):
        self.a.e(f"""
        s_lshl2_add_u32 s12, {sN}, {sW}
        s_lshr_b32 s8, {sX}, 2
        s_lshl_b32 s8, s8, 5
        s_add_u32 s8, s8, s12
        s_lshl_b32 s8, s8, 7
        s_add_u32 s74, s8, {WS_AF}         ; a flags
        s_lshl_b32 s8, s12, 14
        s_lshr_b32 s13, {sX}, 1
        s_lshl_b32 s13, s13, 19
        s_add_u32 s8, s8, s13
        s_add_u32 s8, s8, {WS_AT}
        s_and_b32 s13, {sX}, 1
        s_lshl2_add_u32 s13, s13, {sM}
        s_lshl_b32 s13, s13, 7
        v_lshrrev_b32 v8, 3, v1            ; dl
        v_bfe_u32 v9, v1, 2, 1             ; hf
        v_and_b32 v4, 3, v1                ; jj
        v_lshl_add_u32 v16, v9, 6, s13
        v_lshl_add_u32 v16, v4, 4, v16
        v_lshlrev_b32 v17, 7, v8
        v_xor_b32 v16, v16, v17
        v_lshl_add_u32 v16, v8, 10, v16
        v_add_u32 v16, s8, v16
        v_lshl_add_u32 v4, v4, 1, v9
        v_and_b32 v9, 6, v8
        v_xor_b32 v4, v4, v9               ; ^ ((row>>1)&3)<<1
        v_add_u32 v17, {sBS}, v17
        v_lshl_add_u32 v18, v4, 4, v17
        v_add_u32 v17, {8*1024}, v16
        s_lshl2_add_u32 s10, {sX}, {sM}
        s_lshl2_add_u32 s10, s10, {sW}
        s_lshl_b32 s8, s10, 7
        s_add_u32 s72, s8, {WS_HF}         ; h flags
        s_add_u32 s75, s8, {WS_GF}
        s_lshl_b32 s8, s10, 6
        s_add_u32 s8, s8, {WS_G}
        v_and_b32 v8, 15, v1
        v_lshl_add_u32 v19, v8, 2, s8
        s_lshl_b32 s8, {sW}, 5
        v_xor_b32 v20, s8, v{vBR}
        s_lshl_b32 s8, {sW}, 11
        v_subrev_u32 v20, s8, v20
        v_bfe_u32 v9, v1, 4, 1
        v_lshlrev_b32 v21, 10, v8
        v_lshl_add_u32 v21, v9, 5, v21
        v_lshrrev_b32 v9, 5, v1
        v_lshl_add_u32 v21, v9, 4, v21
        s_lshl_b32 s70, s10, 14
        s_lshl_b32 s13, {sN}, 7
        s_add_u32 s70, s70, s13
        v_add_u32 v28, {sBS}, v7
        v_xor_b32 v29, 0x800, v28
        v_xor_b32 v30, 0x1000, v28
        v_xor_b32 v31, 0x1800, v28
        """)

    def t_job(self):
        a = self.a
        o = self.o
        a.e(f"""
        s_sub_u32 s8, {sI}, 28
        s_lshl_b32 s9, {sX}, 2
        s_add_u32 s71, s8, s9
        s_lshl_b32 s8, s71, 2
        s_add_u32 s70, s8, {sW}
        s_lshl_b32 s72, s70, 11
        s_add_u32 s72, s72, {WS_UT}
        v_lshrrev_b32 v9, 5, v1            ; octet
        v_and_b32 v8, 31, v1
        v_lshlrev_b32 v15, 4, v8
        v_lshl_add_u32 v13, v9, 13, v15
        s_lshl_b32 s8, s70, 14
        s_add_u32 s9, s8, 4096
        """)
        for blk in range(2):
            for tt in range(8):
                a.e(f"buffer_load_dwordx4 {v(32+32*blk+4*tt,4)}, v13, {R_U}, {'s8' if tt < 4 else 's9'} offen offset:{(tt%4)*1024+blk*512}", tag=f"T{blk}")
                if blk == 0 and tt == 3 and o.get("pb", 1):
                    a.e("s_barrier")
            if blk == 0:
                self.epoch_master()
                a.e("v_and_b32 v8, 1, v1\nv_lshlrev_b32 v8, 21, v8")
                a.e(f"buffer_load_dword v6, v8, {R_WS}, 0 offen offset:128", tag="TL")
        a.e(f"global_load_dwordx4 v[96:99], v15, {P_GW}", tag="GW")
        a.e(f"global_load_dwordx4 v[148:151], v15, {P_GW} offset:512", tag="GW")
        a.e("""
        s_mov_b32 s12, 0x05040100
        s_mov_b32 s13, 0x07060302
        v_bfe_u32 v8, v1, 2, 3
        s_and_b32 s8, s70, 7
        v_xor_b32 v8, s8, v8
        v_lshl_add_u32 v8, v8, 1, v9
        v_and_b32 v9, 3, v1
        v_lshl_add_u32 v8, v8, 2, v9
        v_lshlrev_b32 v14, 4, v8
        """)
        for blk in range(2):
            a.wait(vm=f"T{blk}")
            self.stamp(f"t{blk}")
            if blk == 1:
                a.e(f"global_load_dword v2, v3, {P_DBG} sc1", tag="EP")
            for c8 in range(8):
                t = 100 + 4 * c8
                for k in range(4):
                    r0 = 32 + 32 * blk + 8 * k + c8 // 2
                    a.e(f"v_perm_b32 v{t+k}, v{r0+4}, v{r0}, s{12+(c8&1)}")
                a.e(f"s_add_u32 s8, s72, {c8*262144}")
                a.e(f"buffer_store_dwordx4 {v(t,4)}, v14, {R_WS}, s8 offen offset:{blk*1024} sc1", tag="Ust")
        self.stamp("tst")
        a.wait(vm="GW")
        for q in range(4):
            for r in range(8):
                a.e(f"v_dot2_f32_bf16 v{132+r}, v{32+4*r+q}, v{96+q}, {'0' if q == 0 else 'v%d' % (132+r)}")
        self.gate_tail()
        self.drain(len(self.bg) - 1)
        a.wait(vm="EP")
        a.e(f"v_readfirstlane_b32 {sEP}, v2")
        self.epoch_get(issued=True)
        a.e(f"s_lshl_b32 s10, s71, 7\ns_add_u32 s10, s10, {WS_TF}\nv_mov_b32 v10, 1")
        a.wait(vm="Ust")
        a.e("s_mov_b64 exec, 1")
        a.e(f"ds_add_rtn_u32 v10, v3, v10 offset:{L_CNT+4}")
        a.e("s_mov_b64 exec, -1")
        a.wait(lg=0)
        a.e("v_readfirstlane_b32 s8, v10\ns_cmp_eq_u32 s8, 3\ns_cbranch_scc0 L_ntp")
        if self.o.get("sat", 1):
            self.publish("s10")
        else:
            a.e("v_lshlrev_b32 v8, 2, v1\ns_mov_b32 exec_hi, 0")
            a.raw(f"buffer_store_dword v2, v8, {R_WS}, s10 offen sc1")
            a.e("s_mov_b32 exec_hi, -1")
        a.label("L_ntp")
        self.stamp("tpub")
        self.drain()
        a.e(f"s_setprio {o.get('sprio', 0)}")
        if o.get("w2warm", 0):
            a.e(f"s_mul_i32 s9, s70, {14*1024}")
        for k in range(14 if o.get("w2warm", 0) else 0):
            a.e(f"buffer_load_dwordx4 {v(192+4*k,4)}, v7, {R_W2}, s9 offen offset:{(k%4)*1024}", tag="WW")
            if k % 4 == 3:
                a.e("s_add_u32 s9, s9, 4096")
        for k in range(o.get("bxr", 0)):
            a.e(f"s_lshl_b32 s9, s70, 14\nv_add_u32 v8, s9, v7")
            a.e(f"global_load_dwordx4 {v(192+4*k,4)}, v8, {P_BX} offset:{(k%4)*1024}" if k < 4 else f"v_add_u32 v8, {(k//4)*4096}, v8\nglobal_load_dwordx4 {v(192+4*k,4)}, v8, {P_BX} offset:{(k%4)*1024}", tag="WW")
        a.e(f"s_lshl_b32 s9, s70, 7\ns_add_u32 s9, s9, {WS_GF}")
        a.wait(vm="Tst")
        self.publish("s9", line=True)
        self.gpub = True
        steps = list(range(o.get("pfa", 28), o.get("pfb", 28)))
        if steps:
            a.e(f"""
            s_mul_i32 s8, {sW}, {28*16384}
            s_sub_u32 s9, {sI}, 28
            s_lshl_b32 s9, s9, 12
            s_add_u32 s8, s8, s9
            """)
        for n_, st in enumerate(steps):
            a.e(f"s_add_u32 s9, s8, {st*16384}")
            for k in range(4):
                a.e(f"buffer_load_dwordx4 {v(32+16*(n_%4)+4*k,4)}, v7, {R_W2}, s9 offen offset:{k*1024}", tag="WW")
        self.stamp("pfd")
        a.e(f"s_setprio {o.get('sprio2', 0)}")

    def push_b_issue(self):
        i = self.b_iss
        if i >= 28:
            return
        assert i - self.b_con < BSN
        self.b_iss += 1
        if i >= BSN and not self.no_lg:
            self.pushw(lg=f"BR{i-BSN}")
        self.push(f"""
        s_add_u32 m0, {sBS}, {(i % BSN)*8192}
        s_add_u32 s14, {sBB[i//14]}, {(i%14)*16384}
        buffer_load_dwordx4 v10, {R_W2}, s14 offen lds
        buffer_load_dwordx4 v11, {R_W2}, s14 offen offset:1024 lds
        """, tag=f"B{i}")

    def push_b_consume(self):
        i = self.b_con
        if i >= 28:
            return
        assert i < self.b_iss
        self.b_con += 1
        self.pushw(vm=f"B{i}")
        for db in range(4):
            self.push(f"ds_read_b64_tr_b16 {v(vB0+16*((i//2)%NBR)+4*db+2*(i%2),2)}, v{vBR+db} offset:{(i % BSN)*8192}", tag=f"BR{i}")

    def g1(self):
        a = self.a

        def reads(kap):
            s, kk = divmod(kap, 2)
            slot = s % 3
            b = 32 + 32 * (kap % 2)
            L = []
            for q in range(4):
                wa, wo = (24 + q, WPOS[slot] - WPOS[0]) if slot < 2 else (28 + q, 0)
                L.append(f"ds_read_b128 {v(b+4*q,4)}, v{4+kk} offset:{XPOS[slot]-XPOS[2]+q*2048}")
                for hh in range(2):
                    L.append(f"ds_read_b64_tr_b16 {v(b+16+4*q+2*hh,2)}, v{wa} offset:{wo+kk*8192+hh*1024}")
            return L

        EA = self.o.get("ea", 0)
        pend = []

        def sync(k):
            if k < EA:
                self.arrive("v3", "v9", L_CNT + 12)
                self.await_("v3", L_CNT + 12, 4 * (k + 1))
            else:
                a.e("s_barrier")

        a.e("v_mov_b32 v9, 1")
        a.wait(vm="D0")
        sync(0)
        if not self.o.get("a2", 1):
            pend += self.dma_ops(2)
        self.stamp("g1s")
        for r in reads(0):
            a.e(r, tag="R0")
        nb = {5: self.o.get("e5", 2), 6: self.o.get("e6", 3)}
        HT = self.o.get("ht", 1)
        for kap in range(14 if HT else 16):
            s, kk = divmod(kap, 2)
            if kk == 1 and kap < 15:
                assert not pend
                a.wait(vm=f"D{s+1}" if f"D{s+1}" in a.vm else None, lg=0)
                sync(s + 1)
                if s + 1 < EA:
                    pend += self.dma_ops(s + 3)
                self.stamp(f"st{s+1}")
                for _ in range(nb.get(s, 0) if self.o.get("bearly", 1) else 0):
                    self.push_b_issue()
            else:
                a.wait(lg=f"R{kap}")
            nxt = reads(kap + 1) if kap < 15 else []
            b = 32 + 32 * (kap % 2)
            for n_ in range(16):
                tb, fa = divmod(n_, 4)
                d = 192 + 16 * tb + 4 * fa
                a.e(f"v_mfma_f32_16x16x32_bf16 {v(d,4)}, {v(b+16+4*fa,4)}, {v(b+4*tb,4)}, {'0' if kap == 0 else v(d,4)}")
                if nxt:
                    a.e(nxt.pop(0), tag=f"R{kap+1}")
                    if n_ % 3 == 2:
                        self.drain(1)
                else:
                    self.drain(1)
                if pend and n_ % 2:
                    x, t = pend.pop(0)
                    a.e(x, tag=t)
                    if not pend and t == f"D{self.o.get('wwat', 2)}":
                        self.wwa()
        self.drain()
        if HT:
            for r in reads(15):
                a.e(r, tag="R15")
            a.wait(lg="R14")
            for tb in range(4):
                for kap in (14, 15):
                    if tb == 0 and kap == 15:
                        a.wait(lg=0)
                        self.arrive("v3", "v9", L_CNT + 4)
                    b = 32 + 32 * (kap % 2)
                    for fa in range(4):
                        d = 192 + 16 * tb + 4 * fa
                        a.e(f"v_mfma_f32_16x16x32_bf16 {v(d,4)}, {v(b+16+4*fa,4)}, {v(b+4*tb,4)}, {v(d,4)}")
                        if kap == 15 or fa >= 1:
                            self.drain(3)
                self.drain()
                self.push_h(tb)
        else:
            self.arrive("v3", "v9", L_CNT + 4)
            for tb in range(4):
                self.push_h(tb)
        self.acount += 4
        self.stamp("g1e")

    def wwa(self):
        a = self.a
        a.e(f"s_lshl_b32 s8, s2, 13\ns_lshl_b32 s9, {sW}, 11\ns_add_u32 s8, s8, s9")
        a.e(f"buffer_load_dwordx4 v[96:99], v7, {R_W2}, s8 offen", tag="WA")
        a.e(f"buffer_load_dwordx4 v[100:103], v7, {R_W2}, s8 offen offset:1024", tag="WA")

    def push_h(self, tb):
        P = self.push
        if tb:
            P(f"s_add_u32 {sH0}, {sH0}, {28*1024}")
        for j in range(2):
            d = 192 + 16 * tb + 8 * j
            t = 160 + 8 * tb + 4 * j
            for q in range(4):
                P(f"v_cvt_pk_bf16_f32 v{t+q}, v{d+2*q}, v{d+2*q+1}")
            for q in range(4):
                P(f"v_pk_max_i16 v{t+q}, v{t+q}, 0")
            P(f"buffer_store_dwordx4 {v(t,4)}, v7, {R_WS}, {sH0} offen offset:{j*1024} sc1", tag="Hst")

    def h_stores(self):
        self.drain()
        self.stamp("hiss")

    def a_load(self, i):
        r = vA0 + 16 * (i % NAR)
        L = [f"s_add_u32 s15, {sAB[i//7]}, {(i%7)*1024}"]
        for tb in (3, 2, 1, 0):
            L.append(f"buffer_load_dwordx4 {v(r+4*tb,4)}, v{vAV+tb}, {R_WS}, s15 offen sc1")
        return L

    def g2(self):
        a = self.a
        o = self.o
        PRE = NAR - 1
        TAIL = o.get("tail", 2)
        vAG = vB0 + 16 * 2
        self.vAG = vAG
        apos, achk = o.get("apos", 9), o.get("achk", 11)

        def mf(i, tb, db):
            d = 192 + 16 * tb + 4 * db
            a.e(f"v_mfma_f32_16x16x32_bf16 {v(d,4)}, {v(vB0+16*(i%NBR)+4*db,4)}, {v(vA0+16*(i%NAR)+4*tb,4)}, {'0' if i == 0 else v(d,4)}")

        def rw(lam):
            for db in range(4):
                self.push(f"ds_write_b128 v28, {v(192+16*lam+4*db,4)} offset:{(2*(lam-1)+db//2)*8192+(db%2)*1024}", tag="RW")

        for i in range(14 - TAIL):
            ld = self.a_load(i + PRE) if i + PRE < 14 else []
            if i == apos:
                assert self.b_con == 28
                self.drain()
                a.wait(lg=0)
                self.spoll_issue("s74", 16)
            if i == achk:
                self.stamp("apre")
                self.spoll("s74", 16, sleep=4, issued=True)
                self.stamp("apoll")
                a.e(f"buffer_load_dwordx4 {v(vAG,4)}, v16, {R_WS}, 0 offen sc1", tag="AL")
                a.e(f"buffer_load_dwordx4 {v(vAG+4,4)}, v17, {R_WS}, 0 offen sc1", tag="AL")
                a.e(f"buffer_load_dword v{vAG+8}, v19, {R_WS}, 0 offen sc1", tag="AL")
            if a.lg.count(f"BR{2*i+1}") < 4:
                while self.b_con <= 2 * i + 1:
                    if self.b_iss <= self.b_con:
                        self.push_b_issue()
                    self.push_b_consume()
                self.drain()
            if i < apos:
                a.wait(lg=f"BR{2*i+1}")
            for _ in range(2):
                if self.b_iss < 28 and self.b_iss - self.b_con < BSN:
                    self.push_b_issue()
                if self.b_con < 28 and self.b_con // 2 - i < NBR and self.b_con < self.b_iss and (self.b_iss - self.b_con >= o.get("blag", 4) or self.b_iss == 28):
                    self.push_b_consume()
            for tb in (3, 2, 1, 0):
                a.wait(vm=f"A{i}_{tb}")
                if i == 0 and tb == 3:
                    self.stamp("g2s")
                if tb == 3:
                    self.stamp(f"q{2*i}")
                for db in range(4):
                    mf(i, tb, db)
                    if ld and db == 0:
                        if tb == 3:
                            a.e(ld[0])
                        a.e(ld[4 - tb], tag=f"A{i+PRE}_{tb}")
                    else:
                        self.drain(2)
        self.drain()
        for tb in (3, 2, 1, 0):
            n_ = 0
            for i in range(14 - TAIL, 14):
                a.wait(vm=f"A{i}_{tb}")
                for db in range(4):
                    mf(i, tb, db)
                    n_ += 1
                    if n_ >= 3 and n_ % max(1, TAIL - 1) == 0:
                        self.drain(1)
            self.drain()
            if tb:
                rw(tb)
        self.stamp("g2e")
        a.wait(vm=0)
        a.e(f"ds_write_b128 v18, {v(vAG,4)} offset:{6*8192}", tag="AW")
        a.e(f"ds_write_b128 v18, {v(vAG+4,4)} offset:{6*8192+1024}", tag="AW")

    def final(self):
        a = self.a
        vG = self.vAG + 8
        a.wait(lg=0)
        a.e("s_barrier")
        self.stamp("fbar")
        for db in range(4):
            a.e(f"ds_read_b64_tr_b16 {v(80+2*db,2)}, v20 offset:{6*8192+db*2048}", tag="AR")
        for p in range(2):
            for lam in range(1, 4):
                for db in (2 * p, 2 * p + 1):
                    a.e(f"ds_read_b128 {v(32+16*(lam-1)+4*db,4)}, v{28+lam} offset:{(2*(lam-1)+db//2)*8192+(db%2)*1024}", tag=f"RR{p}{lam}")
        a.wait(lg="AR")
        for db in range(4):
            s_, d_ = 80 + 2 * db, 224 + 4 * db
            a.e(f"v_lshlrev_b32 v{d_}, 16, v{s_}")
            a.e(f"v_and_b32 v{d_+1}, 0xffff0000, v{s_}")
            a.e(f"v_lshlrev_b32 v{d_+2}, 16, v{s_+1}")
            a.e(f"v_and_b32 v{d_+3}, 0xffff0000, v{s_+1}")
        for p in range(2):
            hs = range(4 * p, 4 * p + 4)
            for lam in range(1, 4):
                a.wait(lg=f"RR{p}{lam}")
                for h in hs:
                    a.e(f"v_pk_add_f32 {v(192+2*h,2)}, {v(192+2*h,2)}, {v(32+16*(lam-1)+2*h,2)}")
            for h in hs:
                a.e(f"v_pk_add_f32 {v(224+2*h,2)}, {v(224+2*h,2)}, {v(192+2*h,2)} neg_lo:[0,1] neg_hi:[0,1]")
            for h in hs:
                a.e(f"v_pk_fma_f32 {v(192+2*h,2)}, {v(224+2*h,2)}, {v(vG,2)}, {v(192+2*h,2)} op_sel_hi:[1,0,1]")
            for h in hs:
                a.e(f"v_cvt_pk_bf16_f32 v{240+h}, v{192+2*h}, v{193+2*h}")
            a.e(f"v_permlane16_swap_b32 v{240+4*p}, v{242+4*p}")
            a.e(f"v_permlane16_swap_b32 v{241+4*p}, v{243+4*p}")
            a.e(f"buffer_store_dwordx4 {v(240+4*p,4)}, v21, {R_OUT}, s70 offen offset:{64*p} {['', 'sc1', 'nt', 'sc0 sc1', 'sc1 nt'][self.o.get('ofl', 0)]}", tag="O")

    def role_a(self):
        a = self.a
        o = self.o
        self.a_prologue()
        a.e(f"s_cmp_ge_u32 {sI}, 28")
        a.e("s_cbranch_scc1 L_spare")
        vm0, lg0 = list(a.vm), list(a.lg)
        ops = self.dma_ops(0, False) + self.dma_ops(1) + (self.dma_ops(2) if o.get("a2", 1) else [])
        n1 = o.get("n1", 11)
        for k_, (x, t) in enumerate(ops[:n1]):
            a.e(x, tag=t)
            if k_ + 1 == o.get("pb", 1):
                a.e("s_barrier")
        self.stamp("d0iss")
        self.a_prologue2()
        self.a_setup_g1()
        self.a_setup_g2()
        for x, t in ops[n1:]:
            a.e(x, tag=t)
        if o.get("a2", 1) and o.get("wwat", 2) == 2:
            self.wwa()
        self.stamp("d2iss")
        self.g1()
        nearly = self.b_iss
        self.h_stores()
        self.a_setup_br()
        for _ in range(nearly):
            self.push_b_consume()
        self.drain()
        self.await_("v3", L_CNT + 4, self.acount)
        for _ in range(o.get("bh", 5)):
            self.push_b_issue()
        self.drain()
        self.await_("v3", L_CNT + 8, 1)
        a.e(f"s_mov_b32 {sEP}, s8\ns_mov_b32 s68, s8\ns_mov_b32 s69, s8")
        a.wait(vm="Hst")
        self.publish(sHF)
        self.stamp("hpub")
        if "pprio" in o:
            a.e(f"s_setprio {o['pprio']}")
        a.e("s_branch L_join")
        a.label("L_spare")
        vm_main, lg_main = list(a.vm), list(a.lg)
        bi = self.b_iss
        a.vm, a.lg = vm0, lg0
        self.b_iss = self.b_con = 0
        self.a_prologue2()
        self.t_job()
        self.a_setup_g2()
        self.a_setup_br()
        if o.get("c3", 1):
            a.e(f"s_lshl_b32 s8, {sM}, 15\ns_add_u32 s8, s8, {sBB[1]}\ns_add_u32 s8, s8, {6*16384}")
            for k in range(4):
                a.e(f"buffer_load_dwordx4 {v(32+4*k,4)}, v10, {R_W2}, s8 offen", tag="WW")
                a.e("s_add_u32 s8, s8, 8192")
        for _ in range(nearly):
            self.push_b_issue()
        while self.b_iss < bi or self.b_con < nearly:
            if self.b_con < nearly:
                self.push_b_consume()
            if self.b_iss < bi:
                self.push_b_issue()
        self.drain()
        a.wait(lg=0)
        a.vm, a.lg = vm_main, lg_main
        a.label("L_join")
        self.a_setup_late()
        bt = o.get("bt", 2 * NBR + BSN)
        hq = o.get("hq", 3)
        while self.b_iss < bt:
            if self.b_iss == bt - hq:
                assert bt - self.b_con <= BSN
                self.pushw(lg=0)
                self.pushf(lambda: self.spoll_issue("s72", 8))
                self.no_lg = True
            if not self.no_lg and self.b_con < 2 * NBR and self.b_iss - self.b_con >= o.get("blag0", 5):
                self.push_b_consume()
            self.push_b_issue()
        self.no_lg = False
        self.drain()
        self.stamp("biss")
        self.spoll("s72", 8, sleep=3, issued=True)
        self.stamp("hpoll")
        a.e(f"s_setprio {o.get('gprio', 0)}")
        for i in range(NAR - 1):
            L = self.a_load(i)
            a.e(L[0])
            for tb in (3, 2, 1, 0):
                a.e(L[4 - tb], tag=f"A{i}_{tb}")
        self.g2()
        self.final()

    def role_b(self):
        a = self.a
        o = self.o
        a.vm, a.lg = ["P"] * 8, []
        if not o.get("bnear", 0):
            a.vm = []
            a.label("L_roleB0")
            self.b_first()
        a.label("L_roleB")
        self.common2()
        a.e("s_mov_b64 s[48:49], s[16:17]")
        self.tlb_touch()
        self.dma_voffs()
        a.e(f"""
        s_mov_b64 s[52:53], s[36:37]
        s_lshl_b32 {sTM0}, {sW}, 8
        s_lshr_b32 s8, {sW}, 1             ; channel
        s_lshl_b32 s9, s8, 9
        v_and_b32 v8, 15, v1
        v_lshrrev_b32 v9, 4, v1
        v_lshl_add_u32 v10, v9, 4, s9      ; base + g*16
        s_movk_i32 s10, {TROW}
        v_add_u32 v12, {XB}, v8
        v_mad_u32_u24 v{vKX}, v12, s10, v10
        s_and_b32 s11, {sW}, 1
        s_cmp_eq_u32 s11, 0
        s_cselect_b64 vcc, -1, 0
        v_lshrrev_b32 v11, 2, v8           ; gi
        v_and_b32 v4, 3, v8                ; r
        v_min_u32 v5, 2, v4                ; min(r,2)
        v_lshrrev_b32 v13, 1, v11
        v_lshl_add_u32 v12, v11, 1, v13
        v_add3_u32 v12, v12, v5, {YB[2]}
        v_add_u32 v13, {YB[0]}, v8
        v_cndmask_b32 v12, v12, v13, vcc
        v_mad_u32_u24 v{vKY}, v12, s10, v10
        v_mad_u32_u24 v12, v11, 3, v5
        v_add_u32 v12, {YB[4]}, v12
        v_lshl_add_u32 v13, v11, 1, v4
        v_add_u32 v13, {YB[1]}, v13
        v_cmp_gt_u32 s[12:13], 2, v4
        v_cndmask_b32 v13, {YB[2]}, v13, s[12:13]
        v_cndmask_b32 v12, v12, v13, vcc
        v_mad_u32_u24 v{vKY+1}, v12, s10, v10
        v_add_u32 v12, 16, v1
        v_subrev_u32 v13, 47, v1
        v_cmp_gt_u32 s[12:13], 48, v1
        v_cndmask_b32 v12, v13, v12, s[12:13]
        v_lshlrev_b32 v{vKY+2}, 2, v12
        s_mul_i32 s9, s8, {4*KCP}
        v_lshlrev_b32 v11, 5, v8           ; 32j
        v_sub_u32 v11, s9, v11             ; base - 32j
        v_lshlrev_b32 v12, 3, v9
        v_sub_u32 v12, v11, v12
        v_add_u32 v12, {4088-512}, v12
        v_lshrrev_b32 v13, 1, v9
        v_lshlrev_b32 v13, 9, v13
        v_and_b32 v4, 1, v9
        v_lshl_add_u32 v13, v4, 4, v13     ; 512(g>>1) + 16(g&1)
        v_sub_u32 v13, v11, v13
        v_add_u32 v13, {4080-1024}, v13
        v_cndmask_b32 v{vKWA}, v13, v12, vcc
        v_lshlrev_b32 v13, 9, v9
        v_sub_u32 v13, v11, v13
        v_add_u32 v{vKWB}, {4064-2048}, v13
        s_movk_i32 s10, {KCP}
        v_lshrrev_b32 v11, 3, v1
        v_and_b32 v12, 7, v1
        v_lshlrev_b32 v12, 3, v12
        v_mad_u32_u24 v12, v11, s10, v12
        s_add_u32 s12, s9, 4096
        v_add_u32 v{vKZ}, s12, v12
        v_add_u32 v11, 1, v8
        v_and_b32 v11, 3, v11              ; sigma
        v_sub_u32 v12, 18, v8
        v_and_b32 v12, 28, v12
        v_lshl_add_u32 v12, v9, 3, v12
        v_lshlrev_b32 v12, 1, v12
        v_mad_u32_u24 v12, v11, s10, v12
        s_xor_b32 s13, s11, 1
        s_lshl_b32 s13, s13, 8             ; hw=0 (q0 0..3) -> +256 B
        s_add_u32 s12, s9, s13
        v_add_u32 v{vCA}, s12, v12
        v_lshlrev_b32 v12, 5, v8
        v_lshl_add_u32 v12, v9, 4, v12
        s_mul_i32 s12, s8, {UP}
        s_add_u32 s12, s12, {L_U}
        s_add_u32 s13, s12, s13
        v_add_u32 v{vCB}, s13, v12
        v_min_u32 v11, 59, v1
        v_lshl_add_u32 v{vUZ}, v11, 3, s12
        v_mov_b32 v5, 1
        """)
        a.e(f"""
        v_lshrrev_b32 v8, 1, v1
        v_and_b32 v9, 1, v1
        v_bfe_u32 v10, v1, 2, 3
        s_lshr_b32 s9, {sI}, 1
        v_xor_b32 v10, s9, v10
        v_lshrrev_b32 v11, 2, v1
        v_lshl_add_u32 v10, v11, 4, v10    ; line
        v_and_b32 v11, 1, v8
        v_lshl_add_u32 v10, v10, 1, v11    ; octet
        s_and_b32 s9, {sI}, 1
        v_lshl_add_u32 v10, v10, 1, s9
        v_lshl_add_u32 v10, v10, 1, v9
        v_lshlrev_b32 v{vUG}, 4, v10
        s_lshl_b32 s8, {sW}, 16            ; 64w*1024
        s_lshl_b32 s9, {sX}, 18
        s_add_u32 s8, s8, s9
        s_add_u32 {sUG0}, s8, {WS_UT}
        s_add_u32 {sUG1}, {sUG0}, {32*1024}
        s_movk_i32 s8, {UP}
        v_lshlrev_b32 v8, 4, v8
        v_mad_u32_u24 v8, v9, s8, v8
        s_lshl_b32 s8, {sW}, 10
        s_add_u32 s9, s8, {L_U + 480}
        v_add_u32 v{vUW}, s9, v8
        s_lshl_b32 s8, {sW}, 10
        s_add_u32 s8, s8, {WS_TF}
        v_and_b32 v8, 7, v1
        v_lshl_add_u32 v{vTF}, v8, 7, s8
        s_lshl_b32 s8, s77, 10
        s_lshl_b32 s10, s11, 20
        s_add_u32 s8, s8, s10
        s_add_u32 {sAT}, s8, {WS_AT}
        s_add_u32 s38, {sAT}, 0x80000
        v_bfe_u32 v8, v1, 2, 3             ; (cl, j>>2)
        v_xor_b32 v8, {sX}, v8             ; ^ (d & 7 = x)
        v_lshrrev_b32 v9, 5, v1            ; hf
        v_lshl_add_u32 v8, v8, 1, v9
        v_and_b32 v9, 3, v1
        v_lshl_add_u32 v8, v8, 2, v9
        v_lshlrev_b32 v255, 4, v8
        """)
        if o.get("asc", 1):
            a.e(f"""
            s_lshl_b32 s8, s11, 12
            s_lshr_b32 s10, s77, 4
            s_lshl_b32 s10, s10, 7
            s_add_u32 s8, s8, s10
            s_and_b32 s10, s77, 15
            s_lshl2_add_u32 s8, s10, s8
            s_add_u32 {sAF}, s8, {WS_AF}
            """)
        else:
            a.e(f"""
            s_lshl_b32 s8, s11, 16
            s_lshl_b32 s10, s77, 7
            s_add_u32 s8, s8, s10
            s_add_u32 {sAF}, s8, {WS_AF}
            """)
        if o.get("atouch", 0):
            a.e(f"buffer_load_dword v6, v3, {R_WS}, {sAF} offen sc1", tag="FT")
        a.e(f"""
        s_lshl_b32 s8, {sW}, 12
        s_add_u32 s8, s8, {L_EX}
        v_add_u32 v{vEXO}, s8, v7
        s_xor_b32 s8, {sW}, 1
        s_lshl_b32 s8, s8, 12
        s_add_u32 s8, s8, {L_EX}
        v_add_u32 v{vEXD}, s8, v7
        """)
        self.push_kgen()
        chunk = o.get("kch", 64)

        def gather():
            if o.get("noug", 0):
                return
            a.raw(f"buffer_load_dwordx4 v[176:179], v{vUG}, {R_WS}, {sUG0} offen sc1")
            a.raw(f"buffer_load_dwordx4 v[236:239], v{vUG}, {R_WS}, {sUG1} offen sc1")

        def look():
            if o.get("nolook"):
                a.e(f"global_load_dword v2, v3, {P_DBG} sc1", tag="PT")
                a.e(f"global_load_dword v9, v3, {P_DBG} sc1", tag="PT")
                return
            a.e(f"global_load_dword v2, v3, {P_DBG} sc1", tag="PT")
            a.e(f"buffer_load_dword v9, v{vTF}, {R_WS}, 0 offen sc1", tag="PT")

        def tag():
            a.wait(vm=0)
            a.e(f"v_readfirstlane_b32 {sEP}, v2")
            self.epoch_get(issued=True)
            a.e(f"ds_write_b32 v3, v2 offset:{L_CNT+8}")

        def check(lab):
            a.wait(vm=0)
            a.e(f"v_cmp_ne_u32 vcc, {sEP}, v9")
            a.e(f"s_cbranch_vccz {lab}y")
            a.raw(f"buffer_load_dword v9, v{vTF}, {R_WS}, 0 offen sc1")
            a.e(f"s_branch {lab}")
            a.label(f"{lab}y")
            a.e("s_mov_b32 s14, 0")
            gather()

        def kmf():
            a.e(f"""
            s_and_b32 s8, {sW}, 1
            s_lshl_b32 s8, s8, 6
            v_cmp_eq_u32 vcc, s8, v1
            v_mov_b32 v217, 0
            v_mov_b32 v218, 0
            v_mov_b32 v219, 0
            v_cndmask_b32 v216, 0, v183, vcc
            """)
            self.push_kmfma()
            self.drain()

        tp = o.get("tp", 6)
        tb = o.get("tb", 6)
        NB = 8
        if o.get("sphold", 1):
            a.e(f"s_cmp_lt_u32 {sI}, 28")
            a.e("s_cbranch_scc1 L_nh0")
            a.e("s_setprio 0")
            a.label("L_nh0")
        a.wait(vm="P")
        self.stamp("kgs")
        a.label(".p2align 3")
        self.drain()
        self.stamp("kge")
        if o.get("sphold", 1):
            a.e(f"s_cmp_lt_u32 {sI}, 28")
            a.e("s_cbranch_scc1 L_nh1")
            self.await_("v3", L_CNT + 4, 4, sleep=2)
            a.label("L_nh1")
        self.tables()
        self.stamp("tabd")
        a.wait(lg=0)
        self.arrive("v3", "v5", L_CNT)
        self.nsync += 1

        def ktiles():
            self.await_("v3", L_CNT, 4 * self.nsync)
            kmf()
            self.arrive("v3", "v5", L_CNT)
            self.nsync += 1
            self.stamp("kme")

        def expand():
            self.await_("v3", L_CNT, 4 * self.nsync)
            a.e(f"s_bitcmp1_b32 {sW}, 0")
            a.e("s_cbranch_scc1 L_sk1")
            self.push_kexpand(0)
            self.drain()
            a.e("s_branch L_skj")
            a.label("L_sk1")
            self.push_kexpand(1)
            self.drain()
            a.label("L_skj")
            self.stamp("kx")

        ks_, xs_, xn = o.get("ks", 7), o.get("xs", 7), o.get("xn", 4)
        a.e(f"s_setprio {o.get('bprio2', 1)}")
        for s in range(o.get('ea', 0), NB):
            a.e(f"s_cmp_lt_u32 {sI}, 28")
            a.e(f"s_cbranch_scc0 L_nl{s}")
            if f"D{s}" in a.vm:
                a.wait(vm=f"D{s}")
            a.e("s_barrier")
            ops = self.dma_ops(s + 2) if 1 <= s < 6 else []
            cut = xn if s == xs_ else 8
            for x, t in ops[:cut]:
                a.e(x, tag=t)
            a.label(f"L_nl{s}")
            if s == tp + 1:
                tag()
                check("L_c1")
                a.label("L_c1")
            if s == tp:
                look()
            if s == ks_:
                ktiles()
            if s == xs_:
                expand()
                if ops[cut:]:
                    a.e(f"s_cmp_lt_u32 {sI}, 28")
                    a.e(f"s_cbranch_scc0 L_nm{s}")
                    for x, t in ops[cut:]:
                        a.e(x, tag=t)
                    a.label(f"L_nm{s}")
        a.e(f"s_setprio {o.get('bprio3', 3)}")
        self.stamp("kw")
        a.e("s_cmp_eq_u32 s14, 0")
        a.e("s_cbranch_scc1 L_haveu")
        a.wait(vm=0)
        a.e(f"v_cmp_ne_u32 vcc, {sEP}, v9")
        a.e(f"s_cbranch_vccz L_pollx{self.npoll}")
        self.vpoll(f"v{vTF}", "v9", sleep=o.get("tsl", 2))
        gather()
        a.label("L_haveu")
        a.e("v_mov_b32 v10, 0\nv_mov_b32 v11, 0")
        a.e(f"ds_write_b64 v{vUZ}, v[10:11]", tag="Z")
        a.wait(vm=0)
        a.e(f"ds_write_b128 v{vUW}, v[176:179]", tag="UW")
        a.e(f"ds_write_b128 v{vUW}, v[236:239] offset:512", tag="UW")
        self.bsync()
        self.stamp("convs")
        a.e(f"s_setprio {self.o.get('cprio', 1)}")
        if not o.get("noconv"):
            self.conv({})
        self.stamp("conve")
        a.e(f"s_setprio {o.get('eprio', 3)}")
        self.conv_out()
        self.conv_out2()
        a.wait(vm=0)
        self.publish(sAF, line=True)
        a.e("s_waitcnt lgkmcnt(0)")
        self.stamp("apub")

    def tail(self):
        a = self.a
        o = self.o
        if o.get("amp"):
            self.stamp("end")
            a.e(f"""
            s_waitcnt lgkmcnt(0)
            s_sub_u32 s8, s82, s80
            s_lshl_b32 s8, s8, 2
            s_add_u32 s8, s8, 3000
            s_cmp_lg_u32 s2, {o['amp']}
            s_cbranch_scc1 L_end
            v_readfirstlane_b32 s3, v0
            s_cmp_lg_u32 s3, {o.get('ampw', 0)*64}
            s_cbranch_scc1 L_end
            """)
            a.label("L_pad")
            a.e("""
            s_memrealtime s[98:99]
            s_waitcnt lgkmcnt(0)
            s_sub_u32 s98, s98, s80
            s_cmp_lt_u32 s98, s8
            s_cbranch_scc1 L_pad
            """)
        elif self.stamps:
            a.e("s_memrealtime s[100:101]" if o.get("rt") else "s_memtime s[100:101]")
            a.e("s_memrealtime s[72:73]")
            a.e("s_waitcnt lgkmcnt(0)")
            a.e(f"""
            v_readfirstlane_b32 s3, v0
            s_and_b32 s3, s3, 256
            s_add_u32 s3, s3, s2
            s_lshl_b32 s3, s3, 2
            s_add_u32 s3, s3, {sW}
            s_lshl_b32 s3, s3, 6
            s_add_u32 s3, s3, {WS_STAMP}
            s_mov_b64 exec, 1
            """)
            for k in list(range(1, len(self.names))) + [10]:
                a.e(f"s_sub_u32 s8, s{80+2*k}, s80\nv_mov_b32 v8, s8\nbuffer_store_dword v8, v3, {R_WS}, s3 offen offset:{4*k}")
            a.e(f"v_mov_b32 v8, s78\nbuffer_store_dword v8, v3, {R_WS}, s3 offen offset:44")
            a.e(f"v_mov_b32 v8, s72\nbuffer_store_dword v8, v3, {R_WS}, s3 offen offset:48")

    def build(self):
        a = self.a
        self.prologue()
        self.role_a()
        a.e("s_branch L_tail" if self.stamps else "s_endpgm")
        self.role_b()
        a.label("L_tail")
        self.tail()
        a.label("L_end")
        a.e("s_endpgm")
        hdr = open("gated_mix__ssm_conv_s4__dense_activation_relu__prompt.s.ref").read().split("; Override launch")[0]
        s = hdr + f"; @launch grid=(256,1,1) block=(512,1,1) lds={LDS_BYTES}\n"
        s += '.amdgcn_target "amdgcn-amd-amdhsa--gfx950"\n.text\n'
        s += f".globl {KNAME}\n.p2align 8\n.type {KNAME},@function\n{KNAME}:\n"
        s += a.text().replace(".p2align 3:", ".p2align 3")
        s += f""".section .rodata,"a"
.p2align 6
.amdhsa_kernel {KNAME}
  .amdhsa_next_free_vgpr 256
  .amdhsa_next_free_sgpr 102
  .amdhsa_accum_offset 256
  .amdhsa_group_segment_fixed_size 0
  .amdhsa_kernarg_size 128
  .amdhsa_user_sgpr_count 2
  .amdhsa_user_sgpr_kernarg_segment_ptr 1
  .amdhsa_system_sgpr_workgroup_id_x 1
.end_amdhsa_kernel
"""
        return s


if __name__ == "__main__":
    out = sys.argv[1]
    stamps = None
    opts = {}
    for x in sys.argv[2:]:
        if x.startswith("--stamps="):
            stamps = x.split("=")[1].split(",")
        elif "=" in x:
            opts[x.split("=")[0]] = int(x.split("=")[1])
    g = Gen(stamps=stamps, opts=opts)
    s = g.build()
    open(out, "w").write(s)
    print("instructions", sum(1 for i in g.a.ins if i.kind != "label"), "auto nops", g.a.nops, "stamps", g.names)
```

```python
import sys
from collections import deque
from emit import Asm

KNAME = "gated_mix__ssm_conv_s4__dense_activation_relu__prompt_kernel"

WS_TF = 0x1000
WS_GF = 0x5000
WS_HF = 0x40000
WS_AF = 0x60000
WS_G = 0x12000
WS_STAMP = 0x20000
WS_UT = 0x100000
WS_AT = 0x300000
WS_H = 0x500000
WS_SIZE = 0xC00000

LDS_BYTES = 163840
XPOS = [98304, 131072, 81920]
WPOS = [114688, 147456, 65536]
L_BS = 65536
BSN = 12
L_CNT = 64384
NAR = 4
NBR = 6
vA0, vB0 = 32, 96
TROW = 1056
NROW = 62
L_TAB = 0
TSPLIT = 34
L_KC = 0
KCP = 4160
L_U = 33280
UP = 4608
L_EX = 42496
XB = 46
YB = {0: 0, 1: 16, 2: 24, 3: 29, 4: 34, 5: 37, 6: 40, 7: 43}

sX, sI, sW, sEP = "s4", "s5", "s6", "s7"
P_U, P_ARE, P_AIM, P_BRE, P_BIM, P_CRE, P_CIM, P_LDT = [f"s[{16+2*i}:{17+2*i}]" for i in range(8)]
P_DSK, P_BX, P_W1, P_W2, P_GW, P_OUT, P_DBG, P_WS = [f"s[{32+2*i}:{33+2*i}]" for i in range(8)]
R_U, R_W1, R_W2, R_OUT, R_WS = "s[48:51]", "s[52:55]", "s[56:59]", "s[60:63]", "s[64:67]"
sE2 = "s[68:69]"
sH0, sH1, sHF, sUG0, sUG1, sAT, sAF, sTM0, sTM1 = "s32", "s33", "s34", "s32", "s33", "s34", "s35", "s36", "s37"
sBB = ["s36", "s37", "s38", "s39"]
sAB = ["s40", "s41", "s42", "s43"]
sBS = "s76"
sM, sN = "s30", "s31"
vKX, vKY, vKWA, vKWB, vUW, vCA, vCB, vEXD, vEXO, vUG, vKZ, vTF, vUZ, vCN = 240, 241, 244, 245, 246, 247, 248, 249, 250, 251, 252, 253, 254, 255
KRES = list(range(32, 80)) + list(range(216, 235))
vBR = 24
vAV = 12


def v(a, n=1):
    return f"v{a}" if n == 1 else f"v[{a}:{a+n-1}]"


def lines(t):
    return [x.strip() for x in t.strip().split("\n") if x.strip() and not x.strip().startswith(";")]


class Gen:
    def __init__(self, stamps=None, opts=None):
        self.a = Asm()
        self.stamps = stamps
        self.names = []
        self.o = opts or {}
        self.npoll = 0
        self.b_iss = 0
        self.b_con = 0
        self.bg = deque()
        self.lg_idle = False
        self.no_lg = False
        self.nsync = 0
        self.gpub = False
        self.skipped = set()
        self.acount = 0
        self.kc0 = 0

    def stamp(self, name):
        if self.stamps and (name == "start" or name in self.stamps):
            if name not in self.names:
                self.names.append(name)
            k = self.names.index(name)
            assert k < 10
            self.a.e(f"{'s_memrealtime' if (self.o.get('amp') or self.o.get('rt')) else 's_memtime'} s[{80+2*k}:{81+2*k}]")

    def push(self, text, tag=None):
        L = lines(text)
        k = 0
        while k < len(L):
            u = [L[k]]
            if L[k].startswith("s_cmp"):
                while k + 1 < len(L) and L[k + 1].startswith("s_cselect"):
                    k += 1
                    u.append(L[k])
            k += 1
            self.bg.append(lambda u="\n".join(u), tag=tag: self.a.e(u, tag=tag))

    def pushf(self, f):
        self.bg.append(f)

    def pushw(self, **kw):
        self.bg.append(lambda: self.a.wait(**kw))

    def drain(self, n=10**9):
        while n > 0 and self.bg:
            self.bg.popleft()()
            n -= 1

    def publish(self, soff, mask="1", voff="v3", line=False):
        a = self.a
        if self.o.get("sat", 1):
            a.e(f"s_atomic_swap {sEP}, {P_WS}, {soff}")
            return
        if line and self.o.get("fline", 1):
            a.e("v_lshlrev_b32 v8, 2, v1\ns_mov_b32 exec_hi, 0")
            a.e(f"buffer_store_dword v2, v8, {R_WS}, {soff} offen sc1", tag="flag")
            a.e("s_mov_b32 exec_hi, -1")
            return
        a.e(f"s_mov_b64 exec, {mask}")
        a.e(f"buffer_store_dword v2, {voff}, {R_WS}, {soff} offen sc1", tag="flag")
        a.e("s_mov_b64 exec, -1")

    def spoll_issue(self, soff, n):
        if self.o.get("vp", 0):
            self.a.e(f"v_min_u32 v27, 6, v1\nv_lshl_add_u32 v27, v27, 2, {soff}")
            self.a.e(f"buffer_load_dword v28, v27, {R_WS}, 0 offen sc1", tag="VP")
            return
        dst = "s16" if n == 1 else f"s[16:{15+n}]"
        self.a.e(f"s_load_dword{'' if n == 1 else 'x%d' % n} {dst}, {P_WS}, {soff} glc")
        if n == 16:
            self.a.e(f"s_load_dword s32, {P_WS}, s75 glc")

    def spoll(self, soff, n, sleep=2, issued=False):
        a = self.a
        sleep = self.o.get("psl", sleep)
        if self.o.get("vp", 0):
            a.wait(vm="VP")
            a.e(f"v_cmp_ne_u32 vcc, {sEP}, v28")
            a.e(f"s_cbranch_vccz L_pollx{self.npoll}")
            self.vpoll("v27", "v28", sleep=sleep)
            return
        k = self.npoll
        self.npoll += 1
        a.e("s_mov_b32 s3, 0")
        if not issued:
            self.spoll_issue(soff, n)
        a.label(f"L_poll{k}")
        a.e("s_waitcnt lgkmcnt(0)")
        if n == 8:
            a.e("s_mov_b32 s23, s22")
        else:
            a.e("s_mov_b32 s33, s32")
            n = 18
        for q in range(n // 2):
            a.e(f"s_xor_b64 s[{16+2*q}:{17+2*q}], s[{16+2*q}:{17+2*q}], {sE2}")
        for q in range(1, n // 2):
            a.e(f"s_or_b64 s[16:17], s[16:17], s[{16+2*q}:{17+2*q}]")
        a.e(f"s_cbranch_scc0 L_pollx{k}")
        a.e("s_add_u32 s3, s3, 1")
        a.e("s_cmp_gt_u32 s3, 40000")
        a.e(f"s_cbranch_scc1 L_pollx{k}")
        a.e(f"s_sleep {sleep}")
        self.spoll_issue(soff, min(n, 16))
        a.e(f"s_branch L_poll{k}")
        a.label(f"L_pollx{k}")

    def epoch_master(self):
        a = self.a
        a.e(f"""
        s_lshl_b32 s3, s2, 2
        s_add_u32 s3, s3, {sW}
        s_cmp_lg_u32 s3, 1023
        s_cbranch_scc1 L_nomaster
        """)
        if self.o.get("clk", 1):
            a.e("""
            s_memrealtime s[10:11]
            s_waitcnt lgkmcnt(0)
            s_max_u32 s3, s10, 1
            """)
        else:
            a.e(f"""
            s_load_dword s3, {P_WS}, 0
            s_waitcnt lgkmcnt(0)
            s_mul_i32 s3, s3, 1664525
            s_add_u32 s3, s3, 1013904223
            s_max_u32 s3, s3, 1
            """)
        a.e("v_mov_b32 v8, s3\ns_mov_b64 exec, 1")
        a.raw(f"global_store_dword v3, v8, {P_DBG} sc1")
        if not self.o.get("clk", 1):
            a.raw(f"global_store_dword v3, v8, {P_WS} sc1")
        a.e("s_mov_b64 exec, -1")
        a.label("L_nomaster")

    def epoch_issue(self):
        self.a.e(f"s_load_dword {sEP}, {P_DBG}, 0")

    def epoch_get(self, issued=False):
        a = self.a
        k = self.npoll
        self.npoll += 1
        if not issued:
            self.epoch_issue()
        a.e("s_mov_b32 s3, 0")
        a.e("s_waitcnt lgkmcnt(0)")
        a.label(f"L_ep{k}")
        a.e(f"s_cmp_lg_u32 {sEP}, 0")
        a.e(f"s_cbranch_scc1 L_epx{k}")
        a.e("s_add_u32 s3, s3, 1")
        a.e("s_cmp_gt_u32 s3, 40000")
        a.e(f"s_cbranch_scc1 L_epx{k}")
        a.e("s_sleep 2")
        a.raw(f"global_load_dword v2, v3, {P_DBG} sc1")
        a.wait(vm=0)
        a.e(f"v_readfirstlane_b32 {sEP}, v2")
        a.e("s_nop 1")
        a.e(f"s_branch L_ep{k}")
        a.label(f"L_epx{k}")
        a.e(f"s_mov_b32 s68, {sEP}\ns_mov_b32 s69, {sEP}\nv_mov_b32 v2, {sEP}")

    def vpoll(self, voff, tmp, sleep=2):
        a = self.a
        n = self.npoll
        self.npoll += 1
        a.e("s_mov_b32 s3, 0")
        a.label(f"L_poll{n}")
        a.raw(f"buffer_load_dword {tmp}, {voff}, {R_WS}, 0 offen sc1")
        a.e("s_add_u32 s3, s3, 1")
        a.wait(vm=0)
        a.e(f"v_cmp_ne_u32 vcc, {sEP}, {tmp}")
        a.e("s_cmp_gt_u32 s3, 40000")
        a.e(f"s_cbranch_scc1 L_pollx{n}")
        a.e(f"s_cbranch_vccz L_pollx{n}")
        a.e(f"s_sleep {sleep}")
        a.e(f"s_branch L_poll{n}")
        a.label(f"L_pollx{n}")

    def params_load(self):
        a = self.a
        for k, p in enumerate((P_ARE, P_AIM, P_BRE, P_BIM, P_CRE, P_CIM)):
            a.e(f"global_load_short_d16_hi v{176+k}, v24, {p}", tag="P")
        a.e(f"global_load_short_d16_hi v182, v25, {P_LDT}", tag="P")
        a.e(f"global_load_short_d16_hi v183, v25, {P_DSK}", tag="P")

    def tlb_touch(self):
        a = self.a
        if not self.o.get("tlb", 1):
            return
        a.e(f"""
        s_cmp_eq_u32 {sW}, 1
        s_cselect_b64 s[8:9], {P_W2}, {P_WS}
        s_cmp_eq_u32 {sW}, 2
        s_cselect_b64 s[8:9], {P_OUT}, s[8:9]
        s_cmp_eq_u32 {sW}, 3
        s_cselect_b64 s[8:9], {P_DBG}, s[8:9]
        s_cmp_eq_u32 {sW}, 0
        s_cselect_b32 s10, 5, 0
        s_mov_b32 s11, 21
        """)
        if self.o.get("tlb", 1) == 2:
            a.e(f"""
            s_cselect_b32 s10, 47, 27
            s_cselect_b32 s11, 18, 16
            s_cmp_eq_u32 {sW}, 3
            s_cselect_b32 s10, 0, s10
            """)
        a.e("""
        v_min_u32 v8, s10, v1
        v_lshlrev_b32 v8, s11, v8
        """)
        a.e("global_load_dword v6, v8, s[8:9] offset:128", tag="TLB")
        if self.o.get("stlb", 0):
            a.e(f"s_load_dword s60, {P_DBG}, 128")
            a.e(f"s_load_dword s61, {P_WS}, 128")

    def gate_tail(self):
        P = self.push
        for q in range(4):
            for r in range(8):
                P(f"v_dot2_f32_bf16 v{132+r}, v{64+4*r+q}, v{148+q}, v{132+r}")
        for j in range(4):
            P(f"v_permlane16_swap_b32 v{132+2*j}, v{133+2*j}")
        for j in range(4):
            P(f"v_add_f32 v{132+2*j}, v{132+2*j}, v{133+2*j}")
        for r in (8, 4, 2, 1):
            for j in range(4):
                P(f"v_add_f32_dpp v{132+2*j}, v{132+2*j}, v{132+2*j} row_ror:{r} row_mask:0xf bank_mask:0xf")
        P(f"""
        v_and_b32 v8, 3, v1
        v_cmp_eq_u32 vcc, 1, v8
        v_cndmask_b32 v132, v132, v134, vcc
        v_cmp_eq_u32 vcc, 2, v8
        v_cndmask_b32 v132, v132, v136, vcc
        v_cmp_eq_u32 vcc, 3, v8
        v_cndmask_b32 v132, v132, v138, vcc
        v_mul_f32 v132, 0xbfb8aa3b, v132
        v_exp_f32 v132, v132
        v_lshrrev_b32 v9, 5, v1
        v_lshl_add_u32 v9, v9, 2, v8
        v_add_f32 v132, 1.0, v132
        v_rcp_f32 v132, v132
        v_bfe_u32 v8, v1, 4, 1
        v_lshl_add_u32 v9, v9, 1, v8
        v_lshlrev_b32 v9, 2, v9
        s_lshl_b32 s9, s70, 6
        s_add_u32 s9, s9, {WS_G}
        """)

        def st():
            a = self.a
            a.e("s_mov_b32 exec_lo, 0x000f000f\ns_mov_b32 exec_hi, 0x000f000f")
            a.e(f"buffer_store_dword v132, v9, {R_WS}, s9 offen sc1", tag="Tst")
            a.e("s_mov_b64 exec, -1")
        self.pushf(st)

    def push_kgen(self):
        P = self.push
        E = lambda k: 80 + 2 * (k - 1)
        F = lambda c: 116 + 2 * (c - 1)
        X0 = 130
        P(f"""
        v_mul_f32 v134, 0x3fb8aa3b, v182
        v_exp_f32 v134, v134
        v_pk_mul_f32 v[138:139], v[180:181], v[178:179] op_sel_hi:[1,0]
        v_cvt_pk_bf16_f32 v134, v134, v134
        v_pk_fma_f32 v[138:139], v[180:181], v[178:179], v[138:139] op_sel:[1,1,0] op_sel_hi:[0,1,1] neg_lo:[1,0,0]
        v_and_b32 v134, 0xffff0000, v134
        v_mov_b32 v{KRES[YB[0]]}, 0x3f80
        v_mul_f32 v135, v134, v176         ; zr
        v_mul_f32 v136, v134, v177         ; zi
        v_pk_mul_f32 v[{X0}:{X0+1}], v[138:139], v[134:135] op_sel_hi:[1,0]
        v_mul_f32 v135, 0x3fb8aa3b, v135
        v_mul_f32 v136, 0.15915494, v136   ; revolutions
        v_mul_f32 v142, 0x41800000, v135
        v_mul_f32 v143, 0x41800000, v136
        v_mul_f32 v144, 0x43800000, v135
        v_mul_f32 v145, 0x43800000, v136
        v_fract_f32 v141, v136
        v_fract_f32 v143, v143
        v_fract_f32 v145, v145
        v_exp_f32 v140, v135
        v_exp_f32 v142, v142
        v_exp_f32 v144, v144
        """)
        for dst, t in ((E(1), 140), (E(16), 142), (F(1), 144)):
            P(f"v_cos_f32 v{dst}, v{t+1}\nv_sin_f32 v{dst+1}, v{t+1}")
        for dst, t in ((E(1), 140), (E(16), 142), (F(1), 144)):
            P(f"v_pk_mul_f32 {v(dst,2)}, {v(dst,2)}, {v(t,2)} op_sel_hi:[1,0]")
        src = {2: (1, 1), 3: (2, 1), 4: (2, 2), 5: (4, 1), 6: (4, 2), 7: (4, 3), 8: (4, 4), 17: (16, 1), 18: (16, 2)}
        for k in range(9, 16):
            src[k] = (8, k - 8)
        ej = [(E(k), E(src[k][0]), E(src[k][1]), YB[0] + k, False) for k in range(2, 16)]
        fsrc = {2: (1, 1), 3: (2, 1), 4: (2, 2), 5: (4, 1), 6: (4, 2), 7: (4, 3)}
        fj = [(F(c), F(fsrc[c][0]), F(fsrc[c][1]), YB[c], False) for c in range(2, 8)]
        xj = [(X0 + 2 * (k % 2), X0 + 2 * ((k - 1) % 2), E(16), XB + k, True) for k in range(1, 16)]
        pj = []
        tmp = list(range(146, 170, 2))
        ti = 0
        for c in range(1, 8):
            step = {1: 2, 2: 4, 3: 4}.get(c, 8)
            top = 15 if c == 1 else 17
            for n_, rho in enumerate(range(step, top, step)):
                pj.append((tmp[ti % len(tmp)], F(c), E(rho), YB[c] + 1 + n_, False))
                ti += 1
        others = []
        q1, q2 = list(ej), list(fj)
        while q1 or q2:
            if q1:
                others.append(q1.pop(0))
            if q2:
                others.append(q2.pop(0))
        others += pj
        order = []
        xs = list(xj)
        while others or xs:
            grp = []
            if xs:
                grp.append(xs.pop(0))
            while others and len(grp) < 4:
                j = others[0]
                if any(g[0] in (j[1], j[2]) or g[0] == j[0] for g in grp):
                    break
                grp.append(others.pop(0))
            order.append(grp)
        put = lambda reg, row, neg: P(f"v_cvt_pk_bf16_f32 v{KRES[row]}, v{reg}, {'-' if neg else ''}v{reg+1}")
        prev = [(X0, 0, 0, XB, True), (E(1), 0, 0, YB[0] + 1, False), (F(1), 0, 0, YB[1], False)]
        for gi, grp in enumerate(order):
            pk = gi < self.o.get("pkg", 99)
            for (d, x, y, row, neg) in grp:
                if pk:
                    P(f"v_pk_mul_f32 {v(d,2)}, {v(x,2)}, {v(y,2)} op_sel_hi:[1,0]")
                else:
                    P(f"v_mul_f32 v{d}, v{x}, v{y}\nv_mul_f32 v{d+1}, v{x+1}, v{y}")
            for (d, x, y, row, neg) in prev:
                put(d, row, neg)
            for (d, x, y, row, neg) in grp:
                if pk:
                    P(f"v_pk_fma_f32 {v(d,2)}, {v(x,2)}, {v(y,2)}, {v(d,2)} op_sel:[1,1,0] op_sel_hi:[0,1,1] neg_lo:[1,0,0]")
                else:
                    P(f"v_fma_f32 v{d}, -v{x+1}, v{y+1}, v{d}\nv_fmac_f32 v{d+1}, v{x}, v{y+1}")
            prev = grp
            if gi + 1 == self.o.get("pkg", 99):
                self.kc0 = len(self.bg)
        for (d, x, y, row, neg) in prev:
            put(d, row, neg)

    def tables(self):
        a = self.a
        a.e(f"s_mov_b32 m0, {sTM0}")
        for row in range(NROW):
            a.e(f"ds_write_addtid_b32 v{KRES[row]} offset:{row * TROW}", tag="TB")

    def arrive(self, vaddr, vone, off):
        a = self.a
        a.e("s_mov_b64 exec, 1")
        a.e(f"ds_add_u32 {vaddr}, {vone} offset:{off}")
        a.e("s_mov_b64 exec, -1")

    def await_(self, vaddr, off, count, sleep=0):
        a = self.a
        k = self.npoll
        self.npoll += 1
        a.e("s_mov_b32 s3, 0")
        a.label(f"L_bs{k}")
        if sleep:
            a.e(f"s_sleep {sleep}")
        a.e(f"ds_read_b32 v8, {vaddr} offset:{off}")
        a.e("s_add_u32 s3, s3, 1")
        a.wait(lg=0)
        a.e("v_readfirstlane_b32 s8, v8")
        a.e("s_cmp_gt_u32 s3, 3000000")
        a.e(f"s_cbranch_scc1 L_bsx{k}")
        a.e(f"s_cmp_lt_u32 s8, {count}")
        a.e(f"s_cbranch_scc1 L_bs{k}")
        a.label(f"L_bsx{k}")

    def bsync(self):
        self.nsync += 1
        self.a.wait(lg=0)
        self.arrive("v3", "v5", L_CNT)
        self.await_("v3", L_CNT, 4 * self.nsync)

    def push_kmfma(self):
        YR = [64, 68, 72, 76] + list(range(184, 216, 4))
        NY = len(YR)
        AH = 8
        seq = [(ks, c) for ks in range(8) for c in range(2)]
        for ks in range(8):
            self.push(f"ds_read_b128 {v(32+4*ks,4)}, v{vKX} offset:{64*ks}", tag="KX")
        yr = lambda n_: self.push(f"ds_read_b128 {v(YR[n_%NY],4)}, v{vKY+seq[n_][1]} offset:{64*seq[n_][0]}", tag=f"KY{n_}")
        for n_ in range(AH):
            yr(n_)
        for n_, (ks, c) in enumerate(seq):
            d = 216 + 4 * c
            cc = "0" if (ks == 0 and c != 0) else v(d, 4)

            def f(n_=n_, d=d, cc=cc, ks=ks):
                self.a.wait(lg=f"KY{n_}")
                self.a.e(f"v_mfma_f32_16x16x32_bf16 {v(d,4)}, {v(YR[n_%NY],4)}, {v(32+4*ks,4)}, {cc}")
            self.pushf(f)
            if n_ + AH < 16:
                yr(n_ + AH)

    def push_kexpand(self, hw):
        P = self.push
        cv = lambda dst, hi_lag, lo_lag: P(f"v_cvt_pk_bf16_f32 v{dst}, {hi_lag}, {lo_lag}")
        if hw == 0:
            for dst, src_ in ((224, 216), (225, 217), (226, 218), (227, 220), (228, 221)):
                P(f"ds_bpermute_b32 v{dst}, v{vKY+2}, v{src_}", tag="NB")
            P("""
            v_readfirstlane_b32 s8, v220       ; V(256)
            v_readfirstlane_b32 s9, v221       ; V(258)
            v_readfirstlane_b32 s10, v222      ; V(512)
            """)
            self.pushw(lg="NB")
            P("""
            v_writelane_b32 v224, s8, 63
            v_writelane_b32 v225, s8, 63
            v_writelane_b32 v226, s9, 63
            v_writelane_b32 v227, s10, 63
            v_writelane_b32 v228, s10, 63
            """)
            k0 = ["v216", "v217", "v218", "v219", "v224", "v225", "v226"]
            k1 = ["v220", "v220", "v221", "v227", "v227", "v227", "v228"]
            for si, (k, off) in enumerate(((k0, 512), (k1, 0))):
                for sg in range(4):
                    t = 32 + 8 * si + 2 * sg
                    cv(t, k[sg + 3], k[sg + 2])
                    cv(t + 1, k[sg + 1], k[sg])
                    P(f"ds_write_b64 v{vKWA}, {v(t,2)} offset:{off+sg*KCP}", tag="KW")
            P("""
            v_readfirstlane_b32 s8, v33        ; (K1 | K0<<16)
            v_readfirstlane_b32 s9, v35        ; (K2 | K1<<16)
            v_mov_b32 v48, 0
            v_mov_b32 v49, 0
            s_lshr_b32 s10, s8, 16             ; K0
            v_writelane_b32 v48, s10, 8
            v_writelane_b32 v48, s8, 16
            v_writelane_b32 v48, s9, 24
            v_writelane_b32 v49, s10, 24
            """)
            self.pushf(lambda: self.a.e(f"s_mov_b32 exec_hi, 0\nds_write_b64 v{vKZ}, v[48:49]\ns_mov_b32 exec_hi, -1", tag="KW"))
        else:
            k2 = ["v216"] * 3 + ["v217"] * 3 + ["v218"] * 5
            k3 = ["v220"] * 5 + ["v221"] * 7 + ["v222"] * 7
            t = 32
            for sg in range(4):
                for q in range(4):
                    cv(t + q, k2[sg + 7 - 2 * q], k2[sg + 6 - 2 * q])
                P(f"ds_write_b128 v{vKWA}, {v(t,4)} offset:{sg*KCP}", tag="KW")
                t += 4
                for hf in range(2):
                    for q in range(4):
                        cv(t + q, k3[sg + 15 - 8 * hf - 2 * q], k3[sg + 14 - 8 * hf - 2 * q])
                    P(f"ds_write_b128 v{vKWB}, {v(t,4)} offset:{sg*KCP+16*hf}", tag="KW")
                    t += 4

    def conv(self, fill):
        a = self.a

        def reads(st):
            A0 = 32 + 64 * (st % 2)
            B0 = 64 + 64 * (st % 2)
            L = []
            for k in range(8):
                offA = 512 * (7 - k) + 64 * (3 - st)
                offB = 512 * k + 64 * (3 - st)
                L.append((f"ds_read_b64 {v(A0+4*k,2)}, v{vCA} offset:{offA}", f"C{st}_{k}"))
                L.append((f"ds_read_b64 {v(A0+4*k+2,2)}, v{vCA} offset:{offA+8}", f"C{st}_{k}"))
                L.append((f"ds_read_b128 {v(B0+4*k,4)}, v{vCB} offset:{offB}", f"C{st}_{k}"))
            return L

        first = set()
        for c_, t_ in reads(0):
            a.e(c_, tag=t_)
        for st in range(4):
            A0 = 32 + 64 * (st % 2)
            B0 = 64 + 64 * (st % 2)
            nxt = reads(st + 1) if st < 3 else []
            pairs = sorted([(q1, m) for q1 in range(8) for m in range(8) if q1 + m <= 7], key=lambda p: (max(p), p[0] + p[1]))
            have = -1
            for n_, (q1, m) in enumerate(pairs):
                used = 0
                if max(q1, m) > have:
                    have = max(q1, m) if st == 0 else 7
                    a.wait(lg=f"C{st}_{have}")
                    used += 1
                c = q1 + m
                d = 160 + 4 * c
                cc = v(d, 4) if c in first else "0"
                first.add(c)
                a.e(f"v_mfma_f32_16x16x32_bf16 {v(d,4)}, {v(A0+4*q1,4)}, {v(B0+4*m,4)}, {cc}")
                if nxt and n_ >= 4:
                    c_, t_ = nxt.pop(0)
                    a.e(c_, tag=t_)
                    used += 1
                for f in fill.get(36 * st + n_, []):
                    f()
                self.drain(2 - used)
            assert not nxt
        self.drain()

    def conv_out(self):
        a = self.a
        a.e(f"""
        s_bitcmp1_b32 {sW}, 0
        s_nop 7
        s_cbranch_scc1 L_hw1
        """)
        for k in range(4):
            a.e(f"ds_write_b128 v{vEXD}, {v(176+4*k,4)} offset:{1024*k}", tag="EX")
        a.e("s_branch L_hwj")
        a.label("L_hw1")
        for k in range(4):
            a.raw(f"ds_write_b128 v{vEXD}, {v(160+4*k,4)} offset:{1024*k}")
        a.wait(lg=0)
        for k in range(16):
            a.e(f"v_mov_b32 v{160+k}, v{176+k}")
        a.label("L_hwj")

    def conv_out2(self):
        a = self.a
        self.bsync()
        for k in range(4):
            a.e(f"ds_read_b128 {v(176+4*k,4)}, v{vEXO} offset:{1024*k}", tag=f"EY{k}")
        for cp in range(2):
            for cl in range(2):
                k = 2 * cp + cl
                a.wait(lg=f"EY{k}")
                for q in range(4):
                    a.e(f"v_add_f32 v{160+4*k+q}, v{160+4*k+q}, v{176+4*k+q}")
                a.e(f"v_cvt_pk_bf16_f32 v{20+4*cp+2*cl}, v{160+4*k}, v{161+4*k}")
                a.e(f"v_cvt_pk_bf16_f32 v{21+4*cp+2*cl}, v{162+4*k}, v{163+4*k}")
            a.e(f"v_permlane16_swap_b32 v{20+4*cp}, v{22+4*cp}")
            a.e(f"v_permlane16_swap_b32 v{21+4*cp}, v{23+4*cp}")
            a.e(f"buffer_store_dwordx4 {v(20+4*cp,4)}, v255, {R_WS}, {'s38' if cp else sAT} offen sc1", tag="Ast")

    def prologue(self):
        a = self.a
        a.e("s_cmp_ge_u32 s2, 256\ns_cbranch_scc1 L_end")
        self.stamp("start")
        if self.stamps and not self.o.get("amp"):
            a.e("s_memrealtime s[78:79]")
        a.e(f"""
        s_lshr_b32 {sI}, s2, 3
        s_min_u32 s3, {sI}, 15
        s_lshl_b32 s3, s3, 3
        s_load_dwordx2 s[68:69], s[0:1], s3
        s_load_dwordx16 s[16:31], s[0:1], 0
        s_load_dwordx16 s[32:47], s[0:1], 64
        s_getpc_b64 s[8:9]
        L_pc:
        s_lshl_b32 s3, {sI}, 10
        v_lshl_add_u32 v6, v0, 2, s3
        v_min_u32 v6, L_end-L_pc, v6
        v_readfirstlane_b32 s14, v0
        v_and_b32 v1, 63, v0
        v_bfe_u32 v4, v0, 6, 2
        s_and_b32 {sX}, s2, 7
        s_mul_i32 s77, {sI}, 37
        s_lshr_b32 s77, s77, 8
        s_bfe_u32 {sW}, s14, 0x20006
        s_mul_i32 s13, s77, 7
        s_sub_u32 s15, {sI}, s13           ; ct
        s_and_b32 s11, {sX}, 6
        s_lshl1_add_u32 s11, s11, s77
        s_lshl_b32 s70, s11, 17
        s_and_b32 s11, {sX}, 1
        s_mul_i32 s11, s11, 7
        s_add_u32 s11, s11, s15
        s_lshl_b32 s71, s11, 8
        """)
        g = self.o.get("g1rot", 2)
        if g == 8:
            a.e("s_lshl1_add_u32 s72, s77, s15")
        elif g == 4:
            a.e("s_add_u32 s72, s77, s15\ns_lshl_b32 s72, s72, 1")
        elif g == 2:
            a.e("s_add_u32 s72, s77, s15\ns_lshl_b32 s72, s72, 2")
        if self.o.get("xrot", 0) == 1:
            a.e(f"s_add_u32 s72, s72, {sX}")
        if self.o.get("xrot", 0) == 2:
            a.e(f"s_and_b32 s11, {sX}, 1\ns_lshl1_add_u32 s72, s11, s72\ns_lshr_b32 s11, {sX}, 1\ns_add_u32 s72, s72, s11")
        a.e(f"""
        s_lshl_b32 s73, {sW}, 12           ; wave*4096
        s_mov_b32 s50, {2048*1024}
        s_mov_b32 s51, 0x00020000
        s_mov_b32 s54, {512*3584}
        s_mov_b32 s55, s51
        s_bitcmp1_b32 s14, 8
        """)
        if not self.o.get("bnear", 0):
            a.e("s_cbranch_scc1 L_roleB0")
            return
        a.e("s_cbranch_scc0 L_roleA")
        self.b_first()
        a.e("s_branch L_roleB")
        a.label("L_roleA")
        a.vm = []

    def b_first(self):
        a = self.a
        a.e(f"s_setprio {self.o.get('bprio', 3)}")
        a.e(f"""
        s_lshr_b32 s9, {sW}, 1
        s_lshl1_add_u32 s8, {sI}, s9
        s_lshl3_add_u32 s77, s8, {sX}
        s_and_b32 s9, {sW}, 1
        s_lshl1_add_u32 s8, s77, s9
        s_lshl_b32 s8, s8, 7
        v_lshl_add_u32 v24, v1, 1, s8      ; d*256 + (64*(w&1)+l)*2
        v_lshlrev_b32 v25, 1, s77
        """)
        for k in range(4):
            a.e(f"v_pk_mov_b32 v[{176+2*k}:{177+2*k}], 0, 0")
        a.e(f"ds_write_b128 v176, v[176:179] offset:{L_CNT}", tag="Z")
        a.e("s_waitcnt lgkmcnt(0)")
        self.stamp("bk")
        if self.o.get("pb", 1):
            a.e("s_barrier")
        self.params_load()
        if not self.o.get("pb", 1):
            a.e(f"s_cmp_lt_u32 {sI}, 28\ns_cbranch_scc1 L_nzb\ns_barrier")
            a.label("L_nzb")

    def dma_voffs(self):
        self.a.e(f"""
        v_lshrrev_b32 v8, 3, v1            ; l>>3
        v_lshl_add_u32 v8, v4, 5, v8       ; 32w + (l>>3)
        v_lshlrev_b32 v8, 10, v8           ; *1024
        v_lshrrev_b32 v9, 4, v1            ; l>>4
        v_and_b32 v10, 7, v1
        v_xor_b32 v10, v10, v9             ; pos ^ (l>>4)
        v_lshl_add_u32 v16, v10, 4, v8
        v_xor_b32 v10, 4, v10
        v_lshl_add_u32 v17, v10, 4, v8
        v_add_u32 v17, {8192-1024}, v17
        v_add_u32 v18, {2*(8192-1024)}, v16
        v_add_u32 v19, {2*(8192-1024)}, v17
        v_lshl_add_u32 v8, v4, 4, v9       ; 16w + (l>>4)
        v_mul_u32_u24 v8, 3584, v8
        v_and_b32 v10, 15, v1
        v_lshlrev_b32 v11, 2, v9
        v_xor_b32 v10, v10, v11
        v_lshl_add_u32 v20, v10, 4, v8
        v_add_u32 v21, {4*3584-1024}, v20
        v_xor_b32 v10, 2, v10
        v_lshl_add_u32 v8, v10, 4, v8
        v_add_u32 v22, {2*(4*3584-1024)}, v8
        v_add_u32 v23, {3*(4*3584-1024)}, v8
        """)

    def common2(self):
        self.a.e(f"""
        v_mov_b32 v3, 0
        v_lshlrev_b32 v7, 4, v1            ; lane*16
        s_mov_b32 s66, {WS_SIZE}
        s_mov_b32 s67, 0x00020000
        s_mov_b64 s[64:65], s[46:47]
        """)

    def a_prologue(self):
        a = self.a
        a.e("global_load_dword v6, v6, s[8:9]", tag="CPF")
        a.e(f"""
        s_max_u32 s3, {sI}, 15
        s_min_u32 s3, s3, 20
        s_sub_u32 s3, s3, 15
        v_lshlrev_b32 v12, 21, s3
        """)
        self.dma_voffs()
        a.e(self.dma_setup(0))
        a.e("s_waitcnt lgkmcnt(0)")
        self.stamp("karg")
        if self.o.get("fan", 1):
            a.e("global_load_dword v6, v12, s[68:69] offset:128", tag="FAN")
        a.e(f"""
        s_mov_b64 s[48:49], s[16:17]
        s_mov_b64 s[52:53], s[36:37]
        """)

    def a_prologue2(self):
        a = self.a
        a.e(f"s_setprio {self.o.get('prio', 2)}")
        self.common2()
        a.e(f"""
        s_lshl_b32 {sBS}, {sW}, 11         ; wave*2048
        s_add_u32 {sBS}, {sBS}, {L_BS}
        s_mov_b32 s58, {1792*1024}
        s_mov_b32 s59, 0x00020000
        s_mov_b32 s62, {2048*1024}
        s_mov_b32 s63, 0x00020000
        s_mov_b64 s[56:57], s[38:39]
        s_mov_b64 s[60:61], s[42:43]
        """)
        if not self.o.get("vp", 0):
            a.e(f"s_load_dword s16, {P_WS}, 128")

    def dma_setup(self, s):
        return f"""
        s_add_u32 s74, s72, {s}
        s_and_b32 s74, s74, 7
        s_mul_i32 s75, s74, {64*3584}
        s_add_u32 s75, s75, s71
        s_lshl_b32 s74, s74, 7
        s_add_u32 s74, s74, s70
        """

    def dma_ops(self, s, setup=True):
        slot = s % 3
        ops = []
        for i in range(4):
            pre = ((self.dma_setup(s) if setup else "") + f"s_add_u32 m0, s73, {XPOS[slot]}\n") if i == 0 else ""
            ops.append((pre + f"buffer_load_dwordx4 v{16+i}, {R_U}, s74 offen offset:{i*1024} lds", f"D{s}"))
        for i in range(4):
            pre = f"s_add_u32 m0, s73, {WPOS[slot]}\n" if i == 0 else ""
            ops.append((pre + f"buffer_load_dwordx4 v{20+i}, {R_W1}, s75 offen offset:{i*1024} lds", f"D{s}"))
        return ops

    def a_setup_g1(self):
        self.a.e(f"""
        v_and_b32 v8, 15, v1               ; t
        v_lshrrev_b32 v9, 4, v1            ; g
        v_lshrrev_b32 v10, 1, v8
        v_xor_b32 v10, v10, v9             ; g ^ (t>>1)
        s_lshr_b32 s8, {sW}, 1
        s_lshl_b32 s8, s8, 13              ; wm*64*128
        s_add_u32 s8, s8, {XPOS[2]}
        v_lshl_add_u32 v8, v8, 7, s8
        v_lshl_add_u32 v4, v10, 4, v8
        v_xor_b32 v5, 64, v4
        v_bfe_u32 v8, v1, 2, 2             ; r
        v_lshl_add_u32 v10, v9, 3, v8      ; 8g + r
        v_lshlrev_b32 v10, 8, v10          ; *256
        v_and_b32 v9, 1, v9
        v_lshl_or_b32 v8, v8, 1, v9        ; 2r | (g&1)
        s_and_b32 s8, {sW}, 1
        s_lshl_b32 s8, s8, 2
        v_xor_b32 v8, s8, v8               ; (4wn) ^ s
        v_lshl_add_u32 v10, v8, 5, v10
        v_and_b32 v8, 3, v1
        v_lshl_add_u32 v10, v8, 3, v10
        v_add_u32 v24, {WPOS[0]}, v10
        v_xor_b32 v25, 32, v24
        v_xor_b32 v26, 64, v24
        v_xor_b32 v27, 96, v24
        v_add_u32 v28, {WPOS[2]}, v10
        v_xor_b32 v29, 32, v28
        v_xor_b32 v30, 64, v28
        v_xor_b32 v31, 96, v28
        s_lshl2_add_u32 s8, {sX}, s77      ; 4x + rt
        s_lshr_b32 s9, {sW}, 1
        s_lshl1_add_u32 s8, s8, s9
        s_mul_i32 s8, s8, {4*28}
        s_and_b32 s10, {sW}, 1
        s_lshl1_add_u32 s10, s15, s10
        s_lshl1_add_u32 s8, s10, s8
        s_lshl_b32 s8, s8, 10
        s_add_u32 {sH0}, s8, {WS_H}
        s_and_b32 s8, {sX}, 6
        s_lshl1_add_u32 s8, s8, s77        ; 4R + rt
        s_lshl1_add_u32 s8, s8, s9         ; *2 + wm
        s_and_b32 s9, {sX}, 1
        s_lshl1_add_u32 s8, s8, s9         ; *2 + ch
        s_lshl_b32 s8, s8, 8               ; *2 groups*128B
        s_cmp_ge_u32 s10, 7
        s_cselect_b32 s9, {128-28}, 0
        s_lshl2_add_u32 s8, s10, s8
        s_add_u32 s8, s8, s9
        s_add_u32 {sHF}, s8, {WS_HF}
        """)

    def a_setup_g2(self):
        a = self.a
        a.e(f"""
        v_lshrrev_b32 v8, 3, v1
        v_lshlrev_b32 v8, 10, v8
        v_lshrrev_b32 v9, 4, v1
        v_lshlrev_b32 v9, 1, v9
        v_and_b32 v10, 7, v1
        v_xor_b32 v10, v10, v9
        v_lshl_add_u32 v10, v10, 4, v8
        v_add_u32 v11, {8192-1024}, v10
        s_cmp_ge_u32 s15, 3
        s_addc_u32 s8, s15, 0
        s_cmp_ge_u32 {sI}, 28
        s_cselect_b32 {sN}, 3, s8
        s_cselect_b32 {sM}, s15, s77       ; m
        s_mul_i32 s12, {sW}, {28*16384}
        s_lshl_b32 s10, {sN}, 7
        s_add_u32 s12, s12, s10            ; w2 base
        s_and_b32 s10, {sX}, 6
        s_lshr_b32 s11, {sW}, 1
        s_add_u32 s10, s10, s11
        s_and_b32 s11, {sX}, 1
        s_lshl1_add_u32 s10, s10, s11
        s_lshl2_add_u32 s10, s10, {sM}     ; 8xp + 4(x&1) + m
        s_mul_i32 s10, s10, {4*28}
        s_and_b32 s11, {sW}, 1
        s_mul_i32 s3, s11, 14
        s_add_u32 s10, s10, s3
        s_lshl_b32 s10, s10, 10
        s_add_u32 s13, s10, {WS_H}         ; h base
        """)
        for lam in range(4):
            a.e(f"s_xor_b32 s3, {sW}, {lam}\ns_mul_i32 s3, s3, {28*1024}\nv_add_u32 v{vAV+lam}, s3, v7")
        if self.o.get("g2rot", 1) == 2:
            a.e(f"s_add_u32 s10, {sN}, {sM}")
        else:
            a.e("s_mov_b32 s10, 0")
        for k in range(2):
            a.e(f"""
            s_add_u32 s11, s10, {k}
            s_and_b32 s11, s11, 1
            s_mul_i32 s3, s11, {14*16384}
            s_add_u32 {sBB[k]}, s12, s3
            s_mul_i32 s3, s11, {7*1024}
            s_add_u32 {sAB[k]}, s13, s3
            """)

    def a_setup_br(self):
        self.a.e(f"""
        v_lshrrev_b32 v8, 2, v1            ; row = 4g + r
        v_lshl_add_u32 v9, v8, 7, {sBS}
        v_bfe_u32 v8, v1, 3, 2             ; (row>>1)&3
        v_lshl_add_u32 v9, v8, 5, v9
        v_and_b32 v8, 3, v1
        v_lshl_add_u32 v{vBR}, v8, 3, v9
        v_xor_b32 v{vBR+1}, 32, v{vBR}
        v_xor_b32 v{vBR+2}, 64, v{vBR}
        v_xor_b32 v{vBR+3}, 96, v{vBR}
        v_add_u32 v2, 0x10000, v{vBR}
        v_xor_b32 v5, 32, v2
        v_xor_b32 v22, 64, v2
        v_xor_b32 v23, 96, v2
        """)

    def a_setup_late(self):
        self.a.e(f"""
        s_lshl2_add_u32 s12, {sN}, {sW}
        s_lshr_b32 s8, {sX}, 2
        s_lshl_b32 s8, s8, 5
        s_add_u32 s8, s8, s12
        s_lshl_b32 s8, s8, 7
        s_add_u32 s74, s8, {WS_AF}         ; a flags
        s_lshl_b32 s8, s12, 14
        s_lshr_b32 s13, {sX}, 1
        s_lshl_b32 s13, s13, 19
        s_add_u32 s8, s8, s13
        s_add_u32 s8, s8, {WS_AT}
        s_and_b32 s13, {sX}, 1
        s_lshl2_add_u32 s13, s13, {sM}
        s_lshl_b32 s13, s13, 7
        v_lshrrev_b32 v8, 3, v1            ; dl
        v_bfe_u32 v9, v1, 2, 1             ; hf
        v_and_b32 v4, 3, v1                ; jj
        v_lshl_add_u32 v16, v9, 6, s13
        v_lshl_add_u32 v16, v4, 4, v16
        v_lshlrev_b32 v17, 7, v8
        v_xor_b32 v16, v16, v17
        v_lshl_add_u32 v16, v8, 10, v16
        v_add_u32 v16, s8, v16
        v_lshl_add_u32 v4, v4, 1, v9
        v_and_b32 v9, 6, v8
        v_xor_b32 v4, v4, v9               ; ^ ((row>>1)&3)<<1
        v_add_u32 v17, {sBS}, v17
        v_lshl_add_u32 v18, v4, 4, v17
        v_add_u32 v17, {8*1024}, v16
        s_lshl2_add_u32 s10, {sX}, {sM}
        s_lshl2_add_u32 s10, s10, {sW}
        s_lshl_b32 s8, s10, 7
        s_add_u32 s72, s8, {WS_HF}         ; h flags
        s_add_u32 s75, s8, {WS_GF}
        s_lshl_b32 s8, s10, 6
        s_add_u32 s8, s8, {WS_G}
        v_and_b32 v8, 15, v1
        v_lshl_add_u32 v19, v8, 2, s8
        s_lshl_b32 s8, {sW}, 5
        v_xor_b32 v20, s8, v{vBR}
        s_lshl_b32 s8, {sW}, 11
        v_subrev_u32 v20, s8, v20
        v_bfe_u32 v9, v1, 4, 1
        v_lshlrev_b32 v21, 10, v8
        v_lshl_add_u32 v21, v9, 5, v21
        v_lshrrev_b32 v9, 5, v1
        v_lshl_add_u32 v21, v9, 4, v21
        s_lshl_b32 s70, s10, 14
        s_lshl_b32 s13, {sN}, 7
        s_add_u32 s70, s70, s13
        v_add_u32 v28, {sBS}, v7
        v_xor_b32 v29, 0x800, v28
        v_xor_b32 v30, 0x1000, v28
        v_xor_b32 v31, 0x1800, v28
        """)

    def t_job(self):
        a = self.a
        o = self.o
        a.e(f"""
        s_sub_u32 s8, {sI}, 28
        s_lshl_b32 s9, {sX}, 2
        s_add_u32 s71, s8, s9
        s_lshl_b32 s8, s71, 2
        s_add_u32 s70, s8, {sW}
        s_lshl_b32 s72, s70, 11
        s_add_u32 s72, s72, {WS_UT}
        v_lshrrev_b32 v9, 5, v1            ; octet
        v_and_b32 v8, 31, v1
        v_lshlrev_b32 v15, 4, v8
        v_lshl_add_u32 v13, v9, 13, v15
        s_lshl_b32 s8, s70, 14
        s_add_u32 s9, s8, 4096
        """)
        for blk in range(2):
            for tt in range(8):
                a.e(f"buffer_load_dwordx4 {v(32+32*blk+4*tt,4)}, v13, {R_U}, {'s8' if tt < 4 else 's9'} offen offset:{(tt%4)*1024+blk*512}", tag=f"T{blk}")
                if blk == 0 and tt == (3 if o.get("pb", 1) else 7):
                    a.e("s_barrier")
            if blk == 0:
                self.epoch_master()
                a.e("v_and_b32 v8, 1, v1\nv_lshlrev_b32 v8, 21, v8")
                a.e(f"buffer_load_dword v6, v8, {R_WS}, 0 offen offset:128", tag="TL")
        a.e(f"global_load_dwordx4 v[96:99], v15, {P_GW}", tag="GW")
        a.e(f"global_load_dwordx4 v[148:151], v15, {P_GW} offset:512", tag="GW")
        a.e("""
        s_mov_b32 s12, 0x05040100
        s_mov_b32 s13, 0x07060302
        v_bfe_u32 v8, v1, 2, 3
        s_and_b32 s8, s70, 7
        v_xor_b32 v8, s8, v8
        v_lshl_add_u32 v8, v8, 1, v9
        v_and_b32 v9, 3, v1
        v_lshl_add_u32 v8, v8, 2, v9
        v_lshlrev_b32 v14, 4, v8
        """)
        for blk in range(2):
            a.wait(vm=f"T{blk}")
            self.stamp(f"t{blk}")
            if blk == 1:
                a.e(f"global_load_dword v2, v3, {P_DBG} sc1", tag="EP")
            for c8 in range(8):
                t = 100 + 4 * c8
                for k in range(4):
                    r0 = 32 + 32 * blk + 8 * k + c8 // 2
                    a.e(f"v_perm_b32 v{t+k}, v{r0+4}, v{r0}, s{12+(c8&1)}")
                a.e(f"s_add_u32 s8, s72, {c8*262144}")
                a.e(f"buffer_store_dwordx4 {v(t,4)}, v14, {R_WS}, s8 offen offset:{blk*1024} sc1", tag="Ust")
        self.stamp("tst")
        a.wait(vm="GW")
        for q in range(4):
            for r in range(8):
                a.e(f"v_dot2_f32_bf16 v{132+r}, v{32+4*r+q}, v{96+q}, {'0' if q == 0 else 'v%d' % (132+r)}")
        self.gate_tail()
        self.drain(len(self.bg) - 1)
        a.wait(vm="EP")
        a.e(f"v_readfirstlane_b32 {sEP}, v2")
        self.epoch_get(issued=True)
        a.e(f"s_lshl_b32 s10, s71, 7\ns_add_u32 s10, s10, {WS_TF}\nv_mov_b32 v10, 1")
        a.wait(vm="Ust")
        a.e("s_mov_b64 exec, 1")
        a.e(f"ds_add_rtn_u32 v10, v3, v10 offset:{L_CNT+4}")
        a.e("s_mov_b64 exec, -1")
        a.wait(lg=0)
        a.e("v_readfirstlane_b32 s8, v10\ns_cmp_eq_u32 s8, 3\ns_cbranch_scc0 L_ntp")
        if self.o.get("sat", 1):
            self.publish("s10")
        else:
            a.e("v_lshlrev_b32 v8, 2, v1\ns_mov_b32 exec_hi, 0")
            a.raw(f"buffer_store_dword v2, v8, {R_WS}, s10 offen sc1")
            a.e("s_mov_b32 exec_hi, -1")
        a.label("L_ntp")
        self.stamp("tpub")
        self.drain()
        a.e(f"s_setprio {o.get('sprio', 0)}")
        if o.get("w2warm", 0):
            a.e(f"s_mul_i32 s9, s70, {14*1024}")
        for k in range(14 if o.get("w2warm", 0) else 0):
            a.e(f"buffer_load_dwordx4 {v(192+4*k,4)}, v7, {R_W2}, s9 offen offset:{(k%4)*1024}", tag="WW")
            if k % 4 == 3:
                a.e("s_add_u32 s9, s9, 4096")
        for k in range(o.get("bxr", 0)):
            a.e(f"s_lshl_b32 s9, s70, 14\nv_add_u32 v8, s9, v7")
            a.e(f"global_load_dwordx4 {v(192+4*k,4)}, v8, {P_BX} offset:{(k%4)*1024}" if k < 4 else f"v_add_u32 v8, {(k//4)*4096}, v8\nglobal_load_dwordx4 {v(192+4*k,4)}, v8, {P_BX} offset:{(k%4)*1024}", tag="WW")
        a.e(f"s_lshl_b32 s9, s70, 7\ns_add_u32 s9, s9, {WS_GF}")
        a.wait(vm="Tst")
        self.publish("s9", line=True)
        self.gpub = True
        steps = list(range(o.get("pfa", 28), o.get("pfb", 28)))
        if steps:
            a.e(f"""
            s_mul_i32 s8, {sW}, {28*16384}
            s_sub_u32 s9, {sI}, 28
            s_lshl_b32 s9, s9, 12
            s_add_u32 s8, s8, s9
            """)
        for n_, st in enumerate(steps):
            a.e(f"s_add_u32 s9, s8, {st*16384}")
            for k in range(4):
                a.e(f"buffer_load_dwordx4 {v(32+16*(n_%4)+4*k,4)}, v7, {R_W2}, s9 offen offset:{k*1024}", tag="WW")
        self.stamp("pfd")
        a.e(f"s_setprio {o.get('sprio2', 0)}")

    def push_b_issue(self):
        i = self.b_iss
        if i >= 28:
            return
        assert i - self.b_con < BSN
        self.b_iss += 1
        if i >= BSN and not self.no_lg:
            self.pushw(lg=f"BR{i-BSN}")
        self.push(f"""
        s_add_u32 m0, {sBS}, {(i % BSN)*8192}
        s_add_u32 s14, {sBB[i//14]}, {(i%14)*16384}
        buffer_load_dwordx4 v10, {R_W2}, s14 offen lds
        buffer_load_dwordx4 v11, {R_W2}, s14 offen offset:1024 lds
        """, tag=f"B{i}")

    def push_b_consume(self):
        i = self.b_con
        if i >= 28:
            return
        assert i < self.b_iss
        self.b_con += 1
        self.pushw(vm=f"B{i}")
        for db in range(4):
            self.push(f"ds_read_b64_tr_b16 {v(vB0+16*((i//2)%NBR)+4*db+2*(i%2),2)}, v{vBR+db if i % BSN < 8 else (2, 5, 22, 23)[db]} offset:{(i % BSN % 8)*8192}", tag=f"BR{i}")

    def g1(self):
        a = self.a

        def reads(kap):
            s, kk = divmod(kap, 2)
            slot = s % 3
            b = 32 + 32 * (kap % 2)
            L = []
            for q in range(4):
                wa, wo = (24 + q, WPOS[slot] - WPOS[0]) if slot < 2 else (28 + q, 0)
                L.append(f"ds_read_b128 {v(b+4*q,4)}, v{4+kk} offset:{XPOS[slot]-XPOS[2]+q*2048}")
                for hh in range(2):
                    L.append(f"ds_read_b64_tr_b16 {v(b+16+4*q+2*hh,2)}, v{wa} offset:{wo+kk*8192+hh*1024}")
            return L

        EA = self.o.get("ea", 0)
        pend = []

        def sync(k):
            if k < EA:
                self.arrive("v3", "v9", L_CNT + 12)
                self.await_("v3", L_CNT + 12, 4 * (k + 1))
            else:
                a.e("s_barrier")

        a.e("v_mov_b32 v9, 1")
        a.wait(vm="D0")
        sync(0)
        if not self.o.get("a2", 1):
            pend += self.dma_ops(2)
        self.stamp("g1s")
        for r in reads(0):
            a.e(r, tag="R0")
        nb = {5: self.o.get("e5", 4), 6: self.o.get("e6", 2)}
        HT = self.o.get("ht", 1)
        for kap in range(14 if HT else 16):
            s, kk = divmod(kap, 2)
            if kk == 1 and kap < 15:
                assert not pend
                a.wait(vm=f"D{s+1}" if f"D{s+1}" in a.vm else None, lg=0)
                sync(s + 1)
                if s + 1 < EA:
                    pend += self.dma_ops(s + 3)
                self.stamp(f"st{s+1}")
                for _ in range(nb.get(s, 0) if self.o.get("bearly", 1) else 0):
                    self.push_b_issue()
            else:
                a.wait(lg=f"R{kap}")
            nxt = reads(kap + 1) if kap < 15 else []
            b = 32 + 32 * (kap % 2)
            for n_ in range(16):
                tb, fa = divmod(n_, 4)
                d = 192 + 16 * tb + 4 * fa
                a.e(f"v_mfma_f32_16x16x32_bf16 {v(d,4)}, {v(b+16+4*fa,4)}, {v(b+4*tb,4)}, {'0' if kap == 0 else v(d,4)}")
                if nxt:
                    a.e(nxt.pop(0), tag=f"R{kap+1}")
                    if n_ % 3 == 2:
                        self.drain(1)
                else:
                    self.drain(1)
                if pend and n_ % 2:
                    x, t = pend.pop(0)
                    a.e(x, tag=t)
                    if not pend and t == f"D{self.o.get('wwat', 2)}":
                        self.wwa()
        self.drain()
        if HT:
            for r in reads(15):
                a.e(r, tag="R15")
            a.wait(lg="R14")
            for tb in range(4):
                for kap in (14, 15):
                    if tb == 0 and kap == 15:
                        a.wait(lg=0)
                        self.arrive("v3", "v9", L_CNT + 4)
                    b = 32 + 32 * (kap % 2)
                    for fa in range(4):
                        d = 192 + 16 * tb + 4 * fa
                        a.e(f"v_mfma_f32_16x16x32_bf16 {v(d,4)}, {v(b+16+4*fa,4)}, {v(b+4*tb,4)}, {v(d,4)}")
                        if kap == 15 or fa >= 1:
                            self.drain(3)
                self.drain()
                self.push_h(tb)
        else:
            self.arrive("v3", "v9", L_CNT + 4)
            for tb in range(4):
                self.push_h(tb)
        self.acount += 4
        self.stamp("g1e")

    def wwa(self):
        a = self.a
        a.e(f"s_lshl_b32 s8, s2, 13\ns_lshl_b32 s9, {sW}, 11\ns_add_u32 s8, s8, s9")
        a.e(f"buffer_load_dwordx4 v[96:99], v7, {R_W2}, s8 offen", tag="WA")
        a.e(f"buffer_load_dwordx4 v[100:103], v7, {R_W2}, s8 offen offset:1024", tag="WA")

    def push_h(self, tb):
        P = self.push
        if tb:
            P(f"s_add_u32 {sH0}, {sH0}, {28*1024}")
        for j in range(2):
            d = 192 + 16 * tb + 8 * j
            t = 160 + 8 * tb + 4 * j
            for q in range(4):
                P(f"v_cvt_pk_bf16_f32 v{t+q}, v{d+2*q}, v{d+2*q+1}")
            for q in range(4):
                P(f"v_pk_max_i16 v{t+q}, v{t+q}, 0")
            P(f"buffer_store_dwordx4 {v(t,4)}, v7, {R_WS}, {sH0} offen offset:{j*1024} sc1", tag="Hst")

    def h_stores(self):
        self.drain()
        self.stamp("hiss")

    def a_load(self, i):
        r = vA0 + 16 * (i % NAR)
        L = [f"s_add_u32 s15, {sAB[i//7]}, {(i%7)*1024}"]
        for tb in (3, 2, 1, 0):
            L.append(f"buffer_load_dwordx4 {v(r+4*tb,4)}, v{vAV+tb}, {R_WS}, s15 offen sc1")
        return L

    def g2(self):
        a = self.a
        o = self.o
        PRE = NAR - 1
        TAIL = o.get("tail", 2)
        vAG = vB0 + 16 * 2
        self.vAG = vAG
        apos, achk = o.get("apos", 9), o.get("achk", 11)

        def mf(i, tb, db):
            d = 192 + 16 * tb + 4 * db
            a.e(f"v_mfma_f32_16x16x32_bf16 {v(d,4)}, {v(vB0+16*(i%NBR)+4*db,4)}, {v(vA0+16*(i%NAR)+4*tb,4)}, {'0' if i == 0 else v(d,4)}")

        def rw(lam):
            for db in range(4):
                self.push(f"ds_write_b128 v28, {v(192+16*lam+4*db,4)} offset:{(2*(lam-1)+db//2)*8192+(db%2)*1024}", tag="RW")

        for i in range(14 - TAIL):
            ld = self.a_load(i + PRE) if i + PRE < 14 else []
            if i == apos:
                assert self.b_con == 28
                self.drain()
                a.wait(lg=0)
                self.spoll_issue("s74", 16)
            if i == achk:
                self.stamp("apre")
                self.spoll("s74", 16, sleep=4, issued=True)
                self.stamp("apoll")
                a.e(f"buffer_load_dwordx4 {v(vAG,4)}, v16, {R_WS}, 0 offen sc1", tag="AL")
                a.e(f"buffer_load_dwordx4 {v(vAG+4,4)}, v17, {R_WS}, 0 offen sc1", tag="AL")
                a.e(f"buffer_load_dword v{vAG+8}, v19, {R_WS}, 0 offen sc1", tag="AL")
            if a.lg.count(f"BR{2*i+1}") < 4:
                while self.b_con <= 2 * i + 1:
                    if self.b_iss <= self.b_con:
                        self.push_b_issue()
                    self.push_b_consume()
                self.drain()
            if i < apos:
                a.wait(lg=f"BR{2*i+1}")
            for _ in range(2):
                if self.b_iss < 28 and self.b_iss - self.b_con < BSN:
                    self.push_b_issue()
                if self.b_con < 28 and self.b_con // 2 - i < NBR and self.b_con < self.b_iss and (self.b_iss - self.b_con >= o.get("blag", 4) or self.b_iss == 28):
                    self.push_b_consume()
            for tb in (3, 2, 1, 0):
                a.wait(vm=f"A{i}_{tb}")
                if i == 0 and tb == 3:
                    self.stamp("g2s")
                if tb == 3:
                    self.stamp(f"q{2*i}")
                for db in range(4):
                    mf(i, tb, db)
                    if ld and db == 0:
                        if tb == 3:
                            a.e(ld[0])
                        a.e(ld[4 - tb], tag=f"A{i+PRE}_{tb}")
                    else:
                        self.drain(2)
        self.drain()
        for tb in (3, 2, 1, 0):
            n_ = 0
            for i in range(14 - TAIL, 14):
                a.wait(vm=f"A{i}_{tb}")
                for db in range(4):
                    mf(i, tb, db)
                    n_ += 1
                    if n_ >= 3 and n_ % max(1, TAIL - 1) == 0:
                        self.drain(1)
            self.drain()
            if tb:
                rw(tb)
        self.stamp("g2e")
        a.wait(vm=0)
        a.e(f"ds_write_b128 v18, {v(vAG,4)} offset:{6*8192}", tag="AW")
        a.e(f"ds_write_b128 v18, {v(vAG+4,4)} offset:{6*8192+1024}", tag="AW")

    def final(self):
        a = self.a
        vG = self.vAG + 8
        a.wait(lg=0)
        a.e("s_barrier")
        self.stamp("fbar")
        for db in range(4):
            a.e(f"ds_read_b64_tr_b16 {v(80+2*db,2)}, v20 offset:{6*8192+db*2048}", tag="AR")
        for p in range(2):
            for lam in range(1, 4):
                for db in (2 * p, 2 * p + 1):
                    a.e(f"ds_read_b128 {v(32+16*(lam-1)+4*db,4)}, v{28+lam} offset:{(2*(lam-1)+db//2)*8192+(db%2)*1024}", tag=f"RR{p}{lam}")
        a.wait(lg="AR")
        for db in range(4):
            s_, d_ = 80 + 2 * db, 224 + 4 * db
            a.e(f"v_lshlrev_b32 v{d_}, 16, v{s_}")
            a.e(f"v_and_b32 v{d_+1}, 0xffff0000, v{s_}")
            a.e(f"v_lshlrev_b32 v{d_+2}, 16, v{s_+1}")
            a.e(f"v_and_b32 v{d_+3}, 0xffff0000, v{s_+1}")
        for p in range(2):
            hs = range(4 * p, 4 * p + 4)
            for lam in range(1, 4):
                a.wait(lg=f"RR{p}{lam}")
                for h in hs:
                    a.e(f"v_pk_add_f32 {v(192+2*h,2)}, {v(192+2*h,2)}, {v(32+16*(lam-1)+2*h,2)}")
            for h in hs:
                a.e(f"v_pk_add_f32 {v(224+2*h,2)}, {v(224+2*h,2)}, {v(192+2*h,2)} neg_lo:[0,1] neg_hi:[0,1]")
            for h in hs:
                a.e(f"v_pk_fma_f32 {v(192+2*h,2)}, {v(224+2*h,2)}, {v(vG,2)}, {v(192+2*h,2)} op_sel_hi:[1,0,1]")
            for h in hs:
                a.e(f"v_cvt_pk_bf16_f32 v{240+h}, v{192+2*h}, v{193+2*h}")
            a.e(f"v_permlane16_swap_b32 v{240+4*p}, v{242+4*p}")
            a.e(f"v_permlane16_swap_b32 v{241+4*p}, v{243+4*p}")
            a.e(f"buffer_store_dwordx4 {v(240+4*p,4)}, v21, {R_OUT}, s70 offen offset:{64*p} {['', 'sc1', 'nt', 'sc0 sc1', 'sc1 nt'][self.o.get('ofl', 0)]}", tag="O")

    def role_a(self):
        a = self.a
        o = self.o
        self.a_prologue()
        a.e(f"s_cmp_ge_u32 {sI}, 28")
        a.e("s_cbranch_scc1 L_spare")
        vm0, lg0 = list(a.vm), list(a.lg)
        ops = self.dma_ops(0, False) + self.dma_ops(1) + (self.dma_ops(2) if o.get("a2", 1) else [])
        n1 = o.get("n1", 11)
        for k_, (x, t) in enumerate(ops[:n1]):
            a.e(x, tag=t)
            if k_ + 1 == o.get("pb", 1):
                a.e("s_barrier")
        self.stamp("d0iss")
        self.a_prologue2()
        self.a_setup_g1()
        self.a_setup_g2()
        for x, t in ops[n1:]:
            a.e(x, tag=t)
        if o.get("a2", 1) and o.get("wwat", 2) == 2:
            self.wwa()
        self.stamp("d2iss")
        self.g1()
        nearly = self.b_iss
        self.h_stores()
        self.a_setup_br()
        for _ in range(nearly):
            self.push_b_consume()
        self.drain()
        self.await_("v3", L_CNT + 4, self.acount)
        for _ in range(o.get("bh", 6)):
            self.push_b_issue()
        self.drain()
        self.await_("v3", L_CNT + 8, 1)
        a.e(f"s_mov_b32 {sEP}, s8\ns_mov_b32 s68, s8\ns_mov_b32 s69, s8")
        a.wait(vm="Hst")
        self.publish(sHF)
        self.stamp("hpub")
        if "pprio" in o:
            a.e(f"s_setprio {o['pprio']}")
        a.e("s_branch L_join")
        a.label("L_spare")
        vm_main, lg_main = list(a.vm), list(a.lg)
        bi = self.b_iss
        a.vm, a.lg = vm0, lg0
        self.b_iss = self.b_con = 0
        self.a_prologue2()
        self.t_job()
        self.a_setup_g2()
        self.a_setup_br()
        if o.get("c3", 1):
            a.e(f"s_lshl_b32 s8, {sM}, 15\ns_add_u32 s8, s8, {sBB[1]}\ns_add_u32 s8, s8, {6*16384}")
            for k in range(4):
                a.e(f"buffer_load_dwordx4 {v(32+4*k,4)}, v10, {R_W2}, s8 offen", tag="WW")
                a.e("s_add_u32 s8, s8, 8192")
        for _ in range(nearly):
            self.push_b_issue()
        while self.b_iss < bi or self.b_con < nearly:
            if self.b_con < nearly:
                self.push_b_consume()
            if self.b_iss < bi:
                self.push_b_issue()
        self.drain()
        a.wait(lg=0)
        a.vm, a.lg = vm_main, lg_main
        a.label("L_join")
        self.a_setup_late()
        bt = o.get("bt", 24)
        hq = o.get("hq", 3)
        while self.b_iss < bt:
            if self.b_iss == bt - hq:
                assert bt - self.b_con <= BSN
                self.pushw(lg=0)
                self.pushf(lambda: self.spoll_issue("s72", 8))
                self.no_lg = True
            if not self.no_lg and self.b_con < 2 * NBR and self.b_iss - self.b_con >= o.get("blag0", 6):
                self.push_b_consume()
            self.push_b_issue()
        self.no_lg = False
        self.drain()
        self.stamp("biss")
        self.spoll("s72", 8, sleep=3, issued=True)
        self.stamp("hpoll")
        a.e(f"s_setprio {o.get('gprio', 0)}")
        for i in range(NAR - 1):
            L = self.a_load(i)
            a.e(L[0])
            for tb in (3, 2, 1, 0):
                a.e(L[4 - tb], tag=f"A{i}_{tb}")
        while self.b_con < 2 * NBR:
            self.push_b_consume()
        self.drain()
        self.g2()
        self.final()

    def role_b(self):
        a = self.a
        o = self.o
        a.vm, a.lg = ["P"] * 8, []
        if not o.get("bnear", 0):
            a.vm = []
            a.label("L_roleB0")
            self.b_first()
        a.label("L_roleB")
        self.common2()
        a.e("s_mov_b64 s[48:49], s[16:17]")
        self.tlb_touch()
        self.dma_voffs()
        a.e(f"""
        s_mov_b64 s[52:53], s[36:37]
        s_lshl_b32 {sTM0}, {sW}, 8
        s_lshr_b32 s8, {sW}, 1             ; channel
        s_lshl_b32 s9, s8, 9
        v_and_b32 v8, 15, v1
        v_lshrrev_b32 v9, 4, v1
        v_lshl_add_u32 v10, v9, 4, s9      ; base + g*16
        s_movk_i32 s10, {TROW}
        v_add_u32 v12, {XB}, v8
        v_mad_u32_u24 v{vKX}, v12, s10, v10
        s_and_b32 s11, {sW}, 1
        s_cmp_eq_u32 s11, 0
        s_cselect_b64 vcc, -1, 0
        v_lshrrev_b32 v11, 2, v8           ; gi
        v_and_b32 v4, 3, v8                ; r
        v_min_u32 v5, 2, v4                ; min(r,2)
        v_lshrrev_b32 v13, 1, v11
        v_lshl_add_u32 v12, v11, 1, v13
        v_add3_u32 v12, v12, v5, {YB[2]}
        v_add_u32 v13, {YB[0]}, v8
        v_cndmask_b32 v12, v12, v13, vcc
        v_mad_u32_u24 v{vKY}, v12, s10, v10
        v_mad_u32_u24 v12, v11, 3, v5
        v_add_u32 v12, {YB[4]}, v12
        v_lshl_add_u32 v13, v11, 1, v4
        v_add_u32 v13, {YB[1]}, v13
        v_cmp_gt_u32 s[12:13], 2, v4
        v_cndmask_b32 v13, {YB[2]}, v13, s[12:13]
        v_cndmask_b32 v12, v12, v13, vcc
        v_mad_u32_u24 v{vKY+1}, v12, s10, v10
        v_add_u32 v12, 16, v1
        v_subrev_u32 v13, 47, v1
        v_cmp_gt_u32 s[12:13], 48, v1
        v_cndmask_b32 v12, v13, v12, s[12:13]
        v_lshlrev_b32 v{vKY+2}, 2, v12
        s_mul_i32 s9, s8, {4*KCP}
        v_lshlrev_b32 v11, 5, v8           ; 32j
        v_sub_u32 v11, s9, v11             ; base - 32j
        v_lshlrev_b32 v12, 3, v9
        v_sub_u32 v12, v11, v12
        v_add_u32 v12, {4088-512}, v12
        v_lshrrev_b32 v13, 1, v9
        v_lshlrev_b32 v13, 9, v13
        v_and_b32 v4, 1, v9
        v_lshl_add_u32 v13, v4, 4, v13     ; 512(g>>1) + 16(g&1)
        v_sub_u32 v13, v11, v13
        v_add_u32 v13, {4080-1024}, v13
        v_cndmask_b32 v{vKWA}, v13, v12, vcc
        v_lshlrev_b32 v13, 9, v9
        v_sub_u32 v13, v11, v13
        v_add_u32 v{vKWB}, {4064-2048}, v13
        s_movk_i32 s10, {KCP}
        v_lshrrev_b32 v11, 3, v1
        v_and_b32 v12, 7, v1
        v_lshlrev_b32 v12, 3, v12
        v_mad_u32_u24 v12, v11, s10, v12
        s_add_u32 s12, s9, 4096
        v_add_u32 v{vKZ}, s12, v12
        v_add_u32 v11, 1, v8
        v_and_b32 v11, 3, v11              ; sigma
        v_sub_u32 v12, 18, v8
        v_and_b32 v12, 28, v12
        v_lshl_add_u32 v12, v9, 3, v12
        v_lshlrev_b32 v12, 1, v12
        v_mad_u32_u24 v12, v11, s10, v12
        s_xor_b32 s13, s11, 1
        s_lshl_b32 s13, s13, 8             ; hw=0 (q0 0..3) -> +256 B
        s_add_u32 s12, s9, s13
        v_add_u32 v{vCA}, s12, v12
        v_lshlrev_b32 v12, 5, v8
        v_lshl_add_u32 v12, v9, 4, v12
        s_mul_i32 s12, s8, {UP}
        s_add_u32 s12, s12, {L_U}
        s_add_u32 s13, s12, s13
        v_add_u32 v{vCB}, s13, v12
        v_min_u32 v11, 59, v1
        v_lshl_add_u32 v{vUZ}, v11, 3, s12
        v_mov_b32 v5, 1
        """)
        a.e(f"""
        v_lshrrev_b32 v8, 1, v1
        v_and_b32 v9, 1, v1
        v_bfe_u32 v10, v1, 2, 3
        s_lshr_b32 s9, {sI}, 1
        v_xor_b32 v10, s9, v10
        v_lshrrev_b32 v11, 2, v1
        v_lshl_add_u32 v10, v11, 4, v10    ; line
        v_and_b32 v11, 1, v8
        v_lshl_add_u32 v10, v10, 1, v11    ; octet
        s_and_b32 s9, {sI}, 1
        v_lshl_add_u32 v10, v10, 1, s9
        v_lshl_add_u32 v10, v10, 1, v9
        v_lshlrev_b32 v{vUG}, 4, v10
        s_lshl_b32 s8, {sW}, 16            ; 64w*1024
        s_lshl_b32 s9, {sX}, 18
        s_add_u32 s8, s8, s9
        s_add_u32 {sUG0}, s8, {WS_UT}
        s_add_u32 {sUG1}, {sUG0}, {32*1024}
        s_movk_i32 s8, {UP}
        v_lshlrev_b32 v8, 4, v8
        v_mad_u32_u24 v8, v9, s8, v8
        s_lshl_b32 s8, {sW}, 10
        s_add_u32 s9, s8, {L_U + 480}
        v_add_u32 v{vUW}, s9, v8
        s_lshl_b32 s8, {sW}, 10
        s_add_u32 s8, s8, {WS_TF}
        v_and_b32 v8, 7, v1
        v_lshl_add_u32 v{vTF}, v8, 7, s8
        s_lshl_b32 s8, s77, 10
        s_lshl_b32 s10, s11, 20
        s_add_u32 s8, s8, s10
        s_add_u32 {sAT}, s8, {WS_AT}
        s_add_u32 s38, {sAT}, 0x80000
        v_bfe_u32 v8, v1, 2, 3             ; (cl, j>>2)
        v_xor_b32 v8, {sX}, v8             ; ^ (d & 7 = x)
        v_lshrrev_b32 v9, 5, v1            ; hf
        v_lshl_add_u32 v8, v8, 1, v9
        v_and_b32 v9, 3, v1
        v_lshl_add_u32 v8, v8, 2, v9
        v_lshlrev_b32 v255, 4, v8
        """)
        if o.get("asc", 1):
            a.e(f"""
            s_lshl_b32 s8, s11, 12
            s_lshr_b32 s10, s77, 4
            s_lshl_b32 s10, s10, 7
            s_add_u32 s8, s8, s10
            s_and_b32 s10, s77, 15
            s_lshl2_add_u32 s8, s10, s8
            s_add_u32 {sAF}, s8, {WS_AF}
            """)
        else:
            a.e(f"""
            s_lshl_b32 s8, s11, 16
            s_lshl_b32 s10, s77, 7
            s_add_u32 s8, s8, s10
            s_add_u32 {sAF}, s8, {WS_AF}
            """)
        if o.get("atouch", 0):
            a.e(f"buffer_load_dword v6, v3, {R_WS}, {sAF} offen sc1", tag="FT")
        a.e(f"""
        s_lshl_b32 s8, {sW}, 12
        s_add_u32 s8, s8, {L_EX}
        v_add_u32 v{vEXO}, s8, v7
        s_xor_b32 s8, {sW}, 1
        s_lshl_b32 s8, s8, 12
        s_add_u32 s8, s8, {L_EX}
        v_add_u32 v{vEXD}, s8, v7
        """)
        self.push_kgen()
        chunk = o.get("kch", 64)

        def gather():
            if o.get("noug", 0):
                return
            a.raw(f"buffer_load_dwordx4 v[176:179], v{vUG}, {R_WS}, {sUG0} offen sc1")
            a.raw(f"buffer_load_dwordx4 v[236:239], v{vUG}, {R_WS}, {sUG1} offen sc1")

        def look():
            if o.get("nolook"):
                a.e(f"global_load_dword v2, v3, {P_DBG} sc1", tag="PT")
                a.e(f"global_load_dword v9, v3, {P_DBG} sc1", tag="PT")
                return
            a.e(f"global_load_dword v2, v3, {P_DBG} sc1", tag="PT")
            a.e(f"buffer_load_dword v9, v{vTF}, {R_WS}, 0 offen sc1", tag="PT")

        def tag():
            a.wait(vm=0)
            a.e(f"v_readfirstlane_b32 {sEP}, v2")
            self.epoch_get(issued=True)
            a.e(f"ds_write_b32 v3, v2 offset:{L_CNT+8}")

        def check(lab):
            a.wait(vm=0)
            a.e(f"v_cmp_ne_u32 vcc, {sEP}, v9")
            a.e(f"s_cbranch_vccz {lab}y")
            a.raw(f"buffer_load_dword v9, v{vTF}, {R_WS}, 0 offen sc1")
            a.e(f"s_branch {lab}")
            a.label(f"{lab}y")
            a.e("s_mov_b32 s14, 0")
            gather()

        def kmf():
            a.e(f"""
            s_and_b32 s8, {sW}, 1
            s_lshl_b32 s8, s8, 6
            v_cmp_eq_u32 vcc, s8, v1
            v_mov_b32 v217, 0
            v_mov_b32 v218, 0
            v_mov_b32 v219, 0
            v_cndmask_b32 v216, 0, v183, vcc
            """)
            self.push_kmfma()
            self.drain()

        tp = o.get("tp", 6)
        tb = o.get("tb", 6)
        NB = 8
        if o.get("sphold", 1):
            a.e(f"s_cmp_lt_u32 {sI}, 28")
            a.e("s_cbranch_scc1 L_nh0")
            a.e("s_setprio 0")
            a.label("L_nh0")
        a.wait(vm="P")
        self.stamp("kgs")
        a.label(".p2align 3")
        self.drain()
        self.stamp("kge")
        if o.get("sphold", 1):
            a.e(f"s_cmp_lt_u32 {sI}, 28")
            a.e("s_cbranch_scc1 L_nh1")
            self.await_("v3", L_CNT + 4, 4, sleep=2)
            a.label("L_nh1")
        self.tables()
        self.stamp("tabd")
        a.wait(lg=0)
        self.arrive("v3", "v5", L_CNT)
        self.nsync += 1

        def ktiles():
            self.await_("v3", L_CNT, 4 * self.nsync)
            kmf()
            self.arrive("v3", "v5", L_CNT)
            self.nsync += 1
            self.stamp("kme")

        def expand():
            self.await_("v3", L_CNT, 4 * self.nsync)
            a.e(f"s_bitcmp1_b32 {sW}, 0")
            a.e("s_cbranch_scc1 L_sk1")
            self.push_kexpand(0)
            self.drain()
            a.e("s_branch L_skj")
            a.label("L_sk1")
            self.push_kexpand(1)
            self.drain()
            a.label("L_skj")
            self.stamp("kx")

        ks_, xs_, xn = o.get("ks", 7), o.get("xs", 7), o.get("xn", 4)
        a.e(f"s_setprio {o.get('bprio2', 1)}")
        for s in range(o.get('ea', 0), NB):
            a.e(f"s_cmp_lt_u32 {sI}, 28")
            a.e(f"s_cbranch_scc0 L_nl{s}")
            if f"D{s}" in a.vm:
                a.wait(vm=f"D{s}")
            a.e("s_barrier")
            ops = self.dma_ops(s + 2) if 1 <= s < 6 else []
            cut = xn if s == xs_ else 8
            for x, t in ops[:cut]:
                a.e(x, tag=t)
            a.label(f"L_nl{s}")
            if s == tp + 1:
                tag()
                check("L_c1")
                a.label("L_c1")
            if s == tp:
                look()
            if s == ks_:
                ktiles()
            if s == xs_:
                expand()
                if ops[cut:]:
                    a.e(f"s_cmp_lt_u32 {sI}, 28")
                    a.e(f"s_cbranch_scc0 L_nm{s}")
                    for x, t in ops[cut:]:
                        a.e(x, tag=t)
                    a.label(f"L_nm{s}")
        a.e(f"s_setprio {o.get('bprio3', 3)}")
        self.stamp("kw")
        a.e("s_cmp_eq_u32 s14, 0")
        a.e("s_cbranch_scc1 L_haveu")
        a.wait(vm=0)
        a.e(f"v_cmp_ne_u32 vcc, {sEP}, v9")
        a.e(f"s_cbranch_vccz L_pollx{self.npoll}")
        self.vpoll(f"v{vTF}", "v9", sleep=o.get("tsl", 2))
        gather()
        a.label("L_haveu")
        a.e("v_mov_b32 v10, 0\nv_mov_b32 v11, 0")
        a.e(f"ds_write_b64 v{vUZ}, v[10:11]", tag="Z")
        a.wait(vm=0)
        a.e(f"ds_write_b128 v{vUW}, v[176:179]", tag="UW")
        a.e(f"ds_write_b128 v{vUW}, v[236:239] offset:512", tag="UW")
        self.bsync()
        self.stamp("convs")
        a.e(f"s_setprio {self.o.get('cprio', 1)}")
        if not o.get("noconv"):
            self.conv({})
        self.stamp("conve")
        a.e(f"s_setprio {o.get('eprio', 3)}")
        self.conv_out()
        if o.get("noat"):
            a.e(f"s_mov_b32 {sAT}, {WS_SIZE}\ns_mov_b32 s38, {WS_SIZE}")
        self.conv_out2()
        self.stamp("cout")
        a.wait(vm=0)
        self.stamp("aack")
        self.publish(sAF, line=True)
        a.e("s_waitcnt lgkmcnt(0)")
        self.stamp("apub")

    def tail(self):
        a = self.a
        o = self.o
        if o.get("amp"):
            self.stamp("end")
            a.e(f"""
            s_waitcnt lgkmcnt(0)
            s_sub_u32 s8, s82, s80
            s_lshl_b32 s8, s8, 2
            s_add_u32 s8, s8, 3000
            s_cmp_lg_u32 s2, {o['amp']}
            s_cbranch_scc1 L_end
            v_readfirstlane_b32 s3, v0
            s_cmp_lg_u32 s3, {o.get('ampw', 0)*64}
            s_cbranch_scc1 L_end
            """)
            a.label("L_pad")
            a.e("""
            s_memrealtime s[98:99]
            s_waitcnt lgkmcnt(0)
            s_sub_u32 s98, s98, s80
            s_cmp_lt_u32 s98, s8
            s_cbranch_scc1 L_pad
            """)
        elif self.stamps:
            a.e("s_memrealtime s[100:101]" if o.get("rt") else "s_memtime s[100:101]")
            a.e("s_memrealtime s[72:73]")
            a.e("s_waitcnt lgkmcnt(0)")
            a.e(f"""
            v_readfirstlane_b32 s3, v0
            s_and_b32 s3, s3, 256
            s_add_u32 s3, s3, s2
            s_lshl_b32 s3, s3, 2
            s_add_u32 s3, s3, {sW}
            s_lshl_b32 s3, s3, 6
            s_add_u32 s3, s3, {WS_STAMP}
            s_mov_b64 exec, 1
            """)
            for k in list(range(1, len(self.names))) + [10]:
                a.e(f"s_sub_u32 s8, s{80+2*k}, s80\nv_mov_b32 v8, s8\nbuffer_store_dword v8, v3, {R_WS}, s3 offen offset:{4*k}")
            a.e(f"v_mov_b32 v8, s78\nbuffer_store_dword v8, v3, {R_WS}, s3 offen offset:44")
            a.e(f"v_mov_b32 v8, s72\nbuffer_store_dword v8, v3, {R_WS}, s3 offen offset:48")

    def build(self):
        a = self.a
        self.prologue()
        self.role_a()
        a.e("s_branch L_tail" if self.stamps else "s_endpgm")
        self.role_b()
        a.label("L_tail")
        self.tail()
        a.label("L_end")
        a.e("s_endpgm")
        hdr = open("gated_mix__ssm_conv_s4__dense_activation_relu__prompt.s.ref").read().split("; Override launch")[0]
        s = hdr + f"; @launch grid=(256,1,1) block=(512,1,1) lds={LDS_BYTES}\n"
        s += '.amdgcn_target "amdgcn-amd-amdhsa--gfx950"\n.text\n'
        s += f".globl {KNAME}\n.p2align 8\n.type {KNAME},@function\n{KNAME}:\n"
        s += a.text().replace(".p2align 3:", ".p2align 3")
        s += f""".section .rodata,"a"
.p2align 6
.amdhsa_kernel {KNAME}
  .amdhsa_next_free_vgpr 256
  .amdhsa_next_free_sgpr 102
  .amdhsa_accum_offset 256
  .amdhsa_group_segment_fixed_size 0
  .amdhsa_kernarg_size 128
  .amdhsa_user_sgpr_count 2
  .amdhsa_user_sgpr_kernarg_segment_ptr 1
  .amdhsa_system_sgpr_workgroup_id_x 1
.end_amdhsa_kernel
"""
        return s


if __name__ == "__main__":
    out = sys.argv[1]
    stamps = None
    opts = {}
    for x in sys.argv[2:]:
        if x.startswith("--stamps="):
            stamps = x.split("=")[1].split(",")
        elif "=" in x:
            opts[x.split("=")[0]] = int(x.split("=")[1])
    g = Gen(stamps=stamps, opts=opts)
    s = g.build()
    open(out, "w").write(s)
    print("instructions", sum(1 for i in g.a.ins if i.kind != "label"), "auto nops", g.a.nops, "stamps", g.names)
```

```python
import sys
from collections import deque
from emit import Asm

KNAME = "gated_mix__ssm_conv_s4__dense_activation_relu__prompt_kernel"

WS_TF = 0x1000
WS_GF = 0x5000
WS_HF = 0x40000
WS_AF = 0x60000
WS_G = 0x12000
WS_STAMP = 0x20000
WS_UT = 0x100000
WS_AT = 0x300000
WS_H = 0x500000
WS_SIZE = 0xC00000

LDS_BYTES = 163840
XPOS = [98304, 131072, 81920]
WPOS = [114688, 147456, 65536]
L_BS = 65536
BSN = 12
L_CNT = 64384
NAR = 4
NBR = 6
vA0, vB0 = 32, 96
TROW = 1056
NROW = 62
L_TAB = 0
TSPLIT = 34
L_KC = 0
KCP = 4160
L_U = 33280
UP = 4608
L_EX = 42496
XB = 46
YB = {0: 0, 1: 16, 2: 24, 3: 29, 4: 34, 5: 37, 6: 40, 7: 43}

sX, sI, sW, sEP = "s4", "s5", "s6", "s7"
P_U, P_ARE, P_AIM, P_BRE, P_BIM, P_CRE, P_CIM, P_LDT = [f"s[{16+2*i}:{17+2*i}]" for i in range(8)]
P_DSK, P_BX, P_W1, P_W2, P_GW, P_OUT, P_DBG, P_WS = [f"s[{32+2*i}:{33+2*i}]" for i in range(8)]
R_U, R_W1, R_W2, R_OUT, R_WS = "s[48:51]", "s[52:55]", "s[56:59]", "s[60:63]", "s[64:67]"
sE2 = "s[68:69]"
sH0, sH1, sHF, sUG0, sUG1, sAT, sAF, sTM0, sTM1 = "s32", "s33", "s34", "s32", "s33", "s34", "s35", "s36", "s37"
sBB = ["s36", "s37", "s38", "s39"]
sAB = ["s40", "s41", "s42", "s43"]
sBS = "s76"
sM, sN = "s30", "s31"
vKX, vKY, vKWA, vKWB, vUW, vCA, vCB, vEXD, vEXO, vUG, vKZ, vTF, vUZ, vCN = 240, 241, 244, 245, 246, 247, 248, 249, 250, 251, 252, 253, 254, 255
KRES = list(range(32, 80)) + list(range(216, 235))
vBR = 24
vAV = 12


def v(a, n=1):
    return f"v{a}" if n == 1 else f"v[{a}:{a+n-1}]"


def lines(t):
    return [x.strip() for x in t.strip().split("\n") if x.strip() and not x.strip().startswith(";")]


class Gen:
    def __init__(self, stamps=None, opts=None):
        self.a = Asm()
        self.stamps = stamps
        self.names = []
        self.o = opts or {}
        self.npoll = 0
        self.b_iss = 0
        self.b_con = 0
        self.bg = deque()
        self.lg_idle = False
        self.no_lg = False
        self.nsync = 0
        self.gpub = False
        self.skipped = set()
        self.acount = 0
        self.kc0 = 0

    def stamp(self, name):
        if self.stamps and (name == "start" or name in self.stamps):
            if name not in self.names:
                self.names.append(name)
            k = self.names.index(name)
            assert k < 10
            self.a.e(f"{'s_memrealtime' if (self.o.get('amp') or self.o.get('rt')) else 's_memtime'} s[{80+2*k}:{81+2*k}]")

    def push(self, text, tag=None):
        L = lines(text)
        k = 0
        while k < len(L):
            u = [L[k]]
            if L[k].startswith("s_cmp"):
                while k + 1 < len(L) and L[k + 1].startswith("s_cselect"):
                    k += 1
                    u.append(L[k])
            k += 1
            self.bg.append(lambda u="\n".join(u), tag=tag: self.a.e(u, tag=tag))

    def pushf(self, f):
        self.bg.append(f)

    def pushw(self, **kw):
        self.bg.append(lambda: self.a.wait(**kw))

    def drain(self, n=10**9):
        while n > 0 and self.bg:
            self.bg.popleft()()
            n -= 1

    def publish(self, soff, mask="1", voff="v3", line=False):
        a = self.a
        if self.o.get("sat", 1):
            a.e(f"s_atomic_swap {sEP}, {P_WS}, {soff}")
            return
        if line and self.o.get("fline", 1):
            a.e("v_lshlrev_b32 v8, 2, v1\ns_mov_b32 exec_hi, 0")
            a.e(f"buffer_store_dword v2, v8, {R_WS}, {soff} offen sc1", tag="flag")
            a.e("s_mov_b32 exec_hi, -1")
            return
        a.e(f"s_mov_b64 exec, {mask}")
        a.e(f"buffer_store_dword v2, {voff}, {R_WS}, {soff} offen sc1", tag="flag")
        a.e("s_mov_b64 exec, -1")

    def spoll_issue(self, soff, n):
        if self.o.get("vp", 0):
            self.a.e(f"v_min_u32 v27, 6, v1\nv_lshl_add_u32 v27, v27, 2, {soff}")
            self.a.e(f"buffer_load_dword v28, v27, {R_WS}, 0 offen sc1", tag="VP")
            return
        dst = "s16" if n == 1 else f"s[16:{15+n}]"
        self.a.e(f"s_load_dword{'' if n == 1 else 'x%d' % n} {dst}, {P_WS}, {soff} glc")
        if n == 16:
            self.a.e(f"s_load_dword s32, {P_WS}, s75 glc")

    def spoll(self, soff, n, sleep=2, issued=False):
        a = self.a
        sleep = self.o.get("psl", sleep)
        if self.o.get("vp", 0):
            a.wait(vm="VP")
            a.e(f"v_cmp_ne_u32 vcc, {sEP}, v28")
            a.e(f"s_cbranch_vccz L_pollx{self.npoll}")
            self.vpoll("v27", "v28", sleep=sleep)
            return
        k = self.npoll
        self.npoll += 1
        a.e("s_mov_b32 s3, 0")
        if not issued:
            self.spoll_issue(soff, n)
        a.label(f"L_poll{k}")
        a.e("s_waitcnt lgkmcnt(0)")
        if n == 8:
            a.e("s_mov_b32 s23, s22")
        else:
            a.e("s_mov_b32 s33, s32")
            n = 18
        for q in range(n // 2):
            a.e(f"s_xor_b64 s[{16+2*q}:{17+2*q}], s[{16+2*q}:{17+2*q}], {sE2}")
        for q in range(1, n // 2):
            a.e(f"s_or_b64 s[16:17], s[16:17], s[{16+2*q}:{17+2*q}]")
        a.e(f"s_cbranch_scc0 L_pollx{k}")
        a.e("s_add_u32 s3, s3, 1")
        a.e("s_cmp_gt_u32 s3, 40000")
        a.e(f"s_cbranch_scc1 L_pollx{k}")
        a.e(f"s_sleep {sleep}")
        self.spoll_issue(soff, min(n, 16))
        a.e(f"s_branch L_poll{k}")
        a.label(f"L_pollx{k}")

    def epoch_master(self):
        a = self.a
        a.e(f"""
        s_lshl_b32 s3, s2, 2
        s_add_u32 s3, s3, {sW}
        s_cmp_lg_u32 s3, 1023
        s_cbranch_scc1 L_nomaster
        """)
        if self.o.get("clk", 1):
            a.e("""
            s_memrealtime s[10:11]
            s_waitcnt lgkmcnt(0)
            s_max_u32 s3, s10, 1
            """)
        else:
            a.e(f"""
            s_load_dword s3, {P_WS}, 0
            s_waitcnt lgkmcnt(0)
            s_mul_i32 s3, s3, 1664525
            s_add_u32 s3, s3, 1013904223
            s_max_u32 s3, s3, 1
            """)
        a.e("v_mov_b32 v8, s3\ns_mov_b64 exec, 1")
        a.raw(f"global_store_dword v3, v8, {P_DBG} sc1")
        if not self.o.get("clk", 1):
            a.raw(f"global_store_dword v3, v8, {P_WS} sc1")
        a.e("s_mov_b64 exec, -1")
        a.label("L_nomaster")

    def epoch_issue(self):
        self.a.e(f"s_load_dword {sEP}, {P_DBG}, 0")

    def epoch_get(self, issued=False):
        a = self.a
        k = self.npoll
        self.npoll += 1
        if not issued:
            self.epoch_issue()
        a.e("s_mov_b32 s3, 0")
        a.e("s_waitcnt lgkmcnt(0)")
        a.label(f"L_ep{k}")
        a.e(f"s_cmp_lg_u32 {sEP}, 0")
        a.e(f"s_cbranch_scc1 L_epx{k}")
        a.e("s_add_u32 s3, s3, 1")
        a.e("s_cmp_gt_u32 s3, 40000")
        a.e(f"s_cbranch_scc1 L_epx{k}")
        a.e("s_sleep 2")
        a.raw(f"global_load_dword v2, v3, {P_DBG} sc1")
        a.wait(vm=0)
        a.e(f"v_readfirstlane_b32 {sEP}, v2")
        a.e("s_nop 1")
        a.e(f"s_branch L_ep{k}")
        a.label(f"L_epx{k}")
        a.e(f"s_mov_b32 s68, {sEP}\ns_mov_b32 s69, {sEP}\nv_mov_b32 v2, {sEP}")

    def vpoll(self, voff, tmp, sleep=2):
        a = self.a
        n = self.npoll
        self.npoll += 1
        a.e("s_mov_b32 s3, 0")
        a.label(f"L_poll{n}")
        a.raw(f"buffer_load_dword {tmp}, {voff}, {R_WS}, 0 offen sc1")
        a.e("s_add_u32 s3, s3, 1")
        a.wait(vm=0)
        a.e(f"v_cmp_ne_u32 vcc, {sEP}, {tmp}")
        a.e("s_cmp_gt_u32 s3, 40000")
        a.e(f"s_cbranch_scc1 L_pollx{n}")
        a.e(f"s_cbranch_vccz L_pollx{n}")
        a.e(f"s_sleep {sleep}")
        a.e(f"s_branch L_poll{n}")
        a.label(f"L_pollx{n}")

    def params_load(self):
        a = self.a
        for k, p in enumerate((P_ARE, P_AIM, P_BRE, P_BIM, P_CRE, P_CIM)):
            a.e(f"global_load_short_d16_hi v{176+k}, v24, {p}", tag="P")
        a.e(f"global_load_short_d16_hi v182, v25, {P_LDT}", tag="P")
        a.e(f"global_load_short_d16_hi v183, v25, {P_DSK}", tag="P")

    def tlb_touch(self):
        a = self.a
        if not self.o.get("tlb", 1):
            return
        a.e(f"""
        s_cmp_eq_u32 {sW}, 1
        s_cselect_b64 s[8:9], {P_W2}, {P_WS}
        s_cmp_eq_u32 {sW}, 2
        s_cselect_b64 s[8:9], {P_OUT}, s[8:9]
        s_cmp_eq_u32 {sW}, 3
        s_cselect_b64 s[8:9], {P_DBG}, s[8:9]
        s_cmp_eq_u32 {sW}, 0
        s_cselect_b32 s10, 5, 0
        s_mov_b32 s11, 21
        """)
        if self.o.get("tlb", 1) == 2:
            a.e(f"""
            s_cselect_b32 s10, 47, 27
            s_cselect_b32 s11, 18, 16
            s_cmp_eq_u32 {sW}, 3
            s_cselect_b32 s10, 0, s10
            """)
        a.e("""
        v_min_u32 v8, s10, v1
        v_lshlrev_b32 v8, s11, v8
        """)
        a.e("global_load_dword v6, v8, s[8:9] offset:128", tag="TLB")
        if self.o.get("stlb", 0):
            a.e(f"s_load_dword s60, {P_DBG}, 128")
            a.e(f"s_load_dword s61, {P_WS}, 128")

    def gate_tail(self):
        P = self.push
        for q in range(4):
            for r in range(8):
                P(f"v_dot2_f32_bf16 v{132+r}, v{64+4*r+q}, v{148+q}, v{132+r}")
        for j in range(4):
            P(f"v_permlane16_swap_b32 v{132+2*j}, v{133+2*j}")
        for j in range(4):
            P(f"v_add_f32 v{132+2*j}, v{132+2*j}, v{133+2*j}")
        for r in (8, 4, 2, 1):
            for j in range(4):
                P(f"v_add_f32_dpp v{132+2*j}, v{132+2*j}, v{132+2*j} row_ror:{r} row_mask:0xf bank_mask:0xf")
        P(f"""
        v_and_b32 v8, 3, v1
        v_cmp_eq_u32 vcc, 1, v8
        v_cndmask_b32 v132, v132, v134, vcc
        v_cmp_eq_u32 vcc, 2, v8
        v_cndmask_b32 v132, v132, v136, vcc
        v_cmp_eq_u32 vcc, 3, v8
        v_cndmask_b32 v132, v132, v138, vcc
        v_mul_f32 v132, 0xbfb8aa3b, v132
        v_exp_f32 v132, v132
        v_lshrrev_b32 v9, 5, v1
        v_lshl_add_u32 v9, v9, 2, v8
        v_add_f32 v132, 1.0, v132
        v_rcp_f32 v132, v132
        v_bfe_u32 v8, v1, 4, 1
        v_lshl_add_u32 v9, v9, 1, v8
        v_lshlrev_b32 v9, 2, v9
        s_lshl_b32 s9, s70, 6
        s_add_u32 s9, s9, {WS_G}
        """)

        def st():
            a = self.a
            a.e("s_mov_b32 exec_lo, 0x000f000f\ns_mov_b32 exec_hi, 0x000f000f")
            a.e(f"buffer_store_dword v132, v9, {R_WS}, s9 offen sc1", tag="Tst")
            a.e("s_mov_b64 exec, -1")
        self.pushf(st)

    def push_kgen(self):
        P = self.push
        E = lambda k: 80 + 2 * (k - 1)
        F = lambda c: 116 + 2 * (c - 1)
        X0 = 130
        P(f"""
        v_mul_f32 v134, 0x3fb8aa3b, v182
        v_exp_f32 v134, v134
        v_pk_mul_f32 v[138:139], v[180:181], v[178:179] op_sel_hi:[1,0]
        v_cvt_pk_bf16_f32 v134, v134, v134
        v_pk_fma_f32 v[138:139], v[180:181], v[178:179], v[138:139] op_sel:[1,1,0] op_sel_hi:[0,1,1] neg_lo:[1,0,0]
        v_and_b32 v134, 0xffff0000, v134
        v_mov_b32 v{KRES[YB[0]]}, 0x3f80
        v_mul_f32 v135, v134, v176         ; zr
        v_mul_f32 v136, v134, v177         ; zi
        v_pk_mul_f32 v[{X0}:{X0+1}], v[138:139], v[134:135] op_sel_hi:[1,0]
        v_mul_f32 v135, 0x3fb8aa3b, v135
        v_mul_f32 v136, 0.15915494, v136   ; revolutions
        v_mul_f32 v142, 0x41800000, v135
        v_mul_f32 v143, 0x41800000, v136
        v_mul_f32 v144, 0x43800000, v135
        v_mul_f32 v145, 0x43800000, v136
        v_fract_f32 v141, v136
        v_fract_f32 v143, v143
        v_fract_f32 v145, v145
        v_exp_f32 v140, v135
        v_exp_f32 v142, v142
        v_exp_f32 v144, v144
        """)
        for dst, t in ((E(1), 140), (E(16), 142), (F(1), 144)):
            P(f"v_cos_f32 v{dst}, v{t+1}\nv_sin_f32 v{dst+1}, v{t+1}")
        for dst, t in ((E(1), 140), (E(16), 142), (F(1), 144)):
            P(f"v_pk_mul_f32 {v(dst,2)}, {v(dst,2)}, {v(t,2)} op_sel_hi:[1,0]")
        src = {2: (1, 1), 3: (2, 1), 4: (2, 2), 5: (4, 1), 6: (4, 2), 7: (4, 3), 8: (4, 4), 17: (16, 1), 18: (16, 2)}
        for k in range(9, 16):
            src[k] = (8, k - 8)
        ej = [(E(k), E(src[k][0]), E(src[k][1]), YB[0] + k, False) for k in range(2, 16)]
        fsrc = {2: (1, 1), 3: (2, 1), 4: (2, 2), 5: (4, 1), 6: (4, 2), 7: (4, 3)}
        fj = [(F(c), F(fsrc[c][0]), F(fsrc[c][1]), YB[c], False) for c in range(2, 8)]
        xj = [(X0 + 2 * (k % 2), X0 + 2 * ((k - 1) % 2), E(16), XB + k, True) for k in range(1, 16)]
        pj = []
        tmp = list(range(146, 170, 2))
        ti = 0
        for c in range(1, 8):
            step = {1: 2, 2: 4, 3: 4}.get(c, 8)
            top = 15 if c == 1 else 17
            for n_, rho in enumerate(range(step, top, step)):
                pj.append((tmp[ti % len(tmp)], F(c), E(rho), YB[c] + 1 + n_, False))
                ti += 1
        others = []
        q1, q2 = list(ej), list(fj)
        while q1 or q2:
            if q1:
                others.append(q1.pop(0))
            if q2:
                others.append(q2.pop(0))
        others += pj
        order = []
        xs = list(xj)
        while others or xs:
            grp = []
            if xs:
                grp.append(xs.pop(0))
            while others and len(grp) < 4:
                j = others[0]
                if any(g[0] in (j[1], j[2]) or g[0] == j[0] for g in grp):
                    break
                grp.append(others.pop(0))
            order.append(grp)
        put = lambda reg, row, neg: P(f"v_cvt_pk_bf16_f32 v{KRES[row]}, v{reg}, {'-' if neg else ''}v{reg+1}")
        prev = [(X0, 0, 0, XB, True), (E(1), 0, 0, YB[0] + 1, False), (F(1), 0, 0, YB[1], False)]
        for gi, grp in enumerate(order):
            pk = gi < self.o.get("pkg", 99)
            for (d, x, y, row, neg) in grp:
                if pk:
                    P(f"v_pk_mul_f32 {v(d,2)}, {v(x,2)}, {v(y,2)} op_sel_hi:[1,0]")
                else:
                    P(f"v_mul_f32 v{d}, v{x}, v{y}\nv_mul_f32 v{d+1}, v{x+1}, v{y}")
            for (d, x, y, row, neg) in prev:
                put(d, row, neg)
            for (d, x, y, row, neg) in grp:
                if pk:
                    P(f"v_pk_fma_f32 {v(d,2)}, {v(x,2)}, {v(y,2)}, {v(d,2)} op_sel:[1,1,0] op_sel_hi:[0,1,1] neg_lo:[1,0,0]")
                else:
                    P(f"v_fma_f32 v{d}, -v{x+1}, v{y+1}, v{d}\nv_fmac_f32 v{d+1}, v{x}, v{y+1}")
            prev = grp
            if gi + 1 == self.o.get("pkg", 99):
                self.kc0 = len(self.bg)
        for (d, x, y, row, neg) in prev:
            put(d, row, neg)

    def tables(self):
        a = self.a
        a.e(f"s_mov_b32 m0, {sTM0}")
        for row in range(NROW):
            a.e(f"ds_write_addtid_b32 v{KRES[row]} offset:{row * TROW}", tag="TB")

    def arrive(self, vaddr, vone, off):
        a = self.a
        a.e("s_mov_b64 exec, 1")
        a.e(f"ds_add_u32 {vaddr}, {vone} offset:{off}")
        a.e("s_mov_b64 exec, -1")

    def await_(self, vaddr, off, count, sleep=0):
        a = self.a
        k = self.npoll
        self.npoll += 1
        a.e("s_mov_b32 s3, 0")
        a.label(f"L_bs{k}")
        if sleep:
            a.e(f"s_sleep {sleep}")
        a.e(f"ds_read_b32 v8, {vaddr} offset:{off}")
        a.e("s_add_u32 s3, s3, 1")
        a.wait(lg=0)
        a.e("v_readfirstlane_b32 s8, v8")
        a.e("s_cmp_gt_u32 s3, 3000000")
        a.e(f"s_cbranch_scc1 L_bsx{k}")
        a.e(f"s_cmp_lt_u32 s8, {count}")
        a.e(f"s_cbranch_scc1 L_bs{k}")
        a.label(f"L_bsx{k}")

    def bsync(self):
        self.nsync += 1
        self.a.wait(lg=0)
        self.arrive("v3", "v5", L_CNT)
        self.await_("v3", L_CNT, 4 * self.nsync)

    def push_kmfma(self):
        YR = [64, 68, 72, 76] + list(range(184, 216, 4))
        NY = len(YR)
        AH = 8
        seq = [(ks, c) for ks in range(8) for c in range(2)]
        for ks in range(8):
            self.push(f"ds_read_b128 {v(32+4*ks,4)}, v{vKX} offset:{64*ks}", tag="KX")
        yr = lambda n_: self.push(f"ds_read_b128 {v(YR[n_%NY],4)}, v{vKY+seq[n_][1]} offset:{64*seq[n_][0]}", tag=f"KY{n_}")
        for n_ in range(AH):
            yr(n_)
        for n_, (ks, c) in enumerate(seq):
            d = 216 + 4 * c
            cc = "0" if (ks == 0 and c != 0) else v(d, 4)

            def f(n_=n_, d=d, cc=cc, ks=ks):
                self.a.wait(lg=f"KY{n_}")
                self.a.e(f"v_mfma_f32_16x16x32_bf16 {v(d,4)}, {v(YR[n_%NY],4)}, {v(32+4*ks,4)}, {cc}")
            self.pushf(f)
            if n_ + AH < 16:
                yr(n_ + AH)

    def push_kexpand(self, hw):
        P = self.push
        cv = lambda dst, hi_lag, lo_lag: P(f"v_cvt_pk_bf16_f32 v{dst}, {hi_lag}, {lo_lag}")
        if hw == 0:
            for dst, src_ in ((224, 216), (225, 217), (226, 218), (227, 220), (228, 221)):
                P(f"ds_bpermute_b32 v{dst}, v{vKY+2}, v{src_}", tag="NB")
            P("""
            v_readfirstlane_b32 s8, v220       ; V(256)
            v_readfirstlane_b32 s9, v221       ; V(258)
            v_readfirstlane_b32 s10, v222      ; V(512)
            """)
            self.pushw(lg="NB")
            P("""
            v_writelane_b32 v224, s8, 63
            v_writelane_b32 v225, s8, 63
            v_writelane_b32 v226, s9, 63
            v_writelane_b32 v227, s10, 63
            v_writelane_b32 v228, s10, 63
            """)
            k0 = ["v216", "v217", "v218", "v219", "v224", "v225", "v226"]
            k1 = ["v220", "v220", "v221", "v227", "v227", "v227", "v228"]
            for si, (k, off) in enumerate(((k0, 512), (k1, 0))):
                for sg in range(4):
                    t = 32 + 8 * si + 2 * sg
                    cv(t, k[sg + 3], k[sg + 2])
                    cv(t + 1, k[sg + 1], k[sg])
                    P(f"ds_write_b64 v{vKWA}, {v(t,2)} offset:{off+sg*KCP}", tag="KW")
            P("""
            v_readfirstlane_b32 s8, v33        ; (K1 | K0<<16)
            v_readfirstlane_b32 s9, v35        ; (K2 | K1<<16)
            v_mov_b32 v48, 0
            v_mov_b32 v49, 0
            s_lshr_b32 s10, s8, 16             ; K0
            v_writelane_b32 v48, s10, 8
            v_writelane_b32 v48, s8, 16
            v_writelane_b32 v48, s9, 24
            v_writelane_b32 v49, s10, 24
            """)
            self.pushf(lambda: self.a.e(f"s_mov_b32 exec_hi, 0\nds_write_b64 v{vKZ}, v[48:49]\ns_mov_b32 exec_hi, -1", tag="KW"))
        else:
            k2 = ["v216"] * 3 + ["v217"] * 3 + ["v218"] * 5
            k3 = ["v220"] * 5 + ["v221"] * 7 + ["v222"] * 7
            t = 32
            for sg in range(4):
                for q in range(4):
                    cv(t + q, k2[sg + 7 - 2 * q], k2[sg + 6 - 2 * q])
                P(f"ds_write_b128 v{vKWA}, {v(t,4)} offset:{sg*KCP}", tag="KW")
                t += 4
                for hf in range(2):
                    for q in range(4):
                        cv(t + q, k3[sg + 15 - 8 * hf - 2 * q], k3[sg + 14 - 8 * hf - 2 * q])
                    P(f"ds_write_b128 v{vKWB}, {v(t,4)} offset:{sg*KCP+16*hf}", tag="KW")
                    t += 4

    def conv(self, fill):
        a = self.a

        def reads(st):
            A0 = 32 + 64 * (st % 2)
            B0 = 64 + 64 * (st % 2)
            L = []
            for k in range(8):
                offA = 512 * (7 - k) + 64 * (3 - st)
                offB = 512 * k + 64 * (3 - st)
                L.append((f"ds_read_b64 {v(A0+4*k,2)}, v{vCA} offset:{offA}", f"C{st}_{k}"))
                L.append((f"ds_read_b64 {v(A0+4*k+2,2)}, v{vCA} offset:{offA+8}", f"C{st}_{k}"))
                L.append((f"ds_read_b128 {v(B0+4*k,4)}, v{vCB} offset:{offB}", f"C{st}_{k}"))
            return L

        first = set()
        for c_, t_ in reads(0):
            a.e(c_, tag=t_)
        for st in range(4):
            A0 = 32 + 64 * (st % 2)
            B0 = 64 + 64 * (st % 2)
            nxt = reads(st + 1) if st < 3 else []
            pairs = sorted([(q1, m) for q1 in range(8) for m in range(8) if q1 + m <= 7], key=lambda p: (max(p), p[0] + p[1]))
            have = -1
            for n_, (q1, m) in enumerate(pairs):
                used = 0
                if max(q1, m) > have:
                    have = max(q1, m) if st == 0 else 7
                    a.wait(lg=f"C{st}_{have}")
                    used += 1
                c = q1 + m
                d = 160 + 4 * c
                cc = v(d, 4) if c in first else "0"
                first.add(c)
                a.e(f"v_mfma_f32_16x16x32_bf16 {v(d,4)}, {v(A0+4*q1,4)}, {v(B0+4*m,4)}, {cc}")
                if nxt and n_ >= 4:
                    c_, t_ = nxt.pop(0)
                    a.e(c_, tag=t_)
                    used += 1
                for f in fill.get(36 * st + n_, []):
                    f()
                self.drain(2 - used)
            assert not nxt
        self.drain()

    def conv_out(self):
        a = self.a
        a.e(f"""
        s_bitcmp1_b32 {sW}, 0
        s_nop 7
        s_cbranch_scc1 L_hw1
        """)
        for k in range(4):
            a.e(f"ds_write_b128 v{vEXD}, {v(176+4*k,4)} offset:{1024*k}", tag="EX")
        a.e("s_branch L_hwj")
        a.label("L_hw1")
        for k in range(4):
            a.raw(f"ds_write_b128 v{vEXD}, {v(160+4*k,4)} offset:{1024*k}")
        a.wait(lg=0)
        for k in range(16):
            a.e(f"v_mov_b32 v{160+k}, v{176+k}")
        a.label("L_hwj")

    def conv_out2(self):
        a = self.a
        self.bsync()
        for k in range(4):
            a.e(f"ds_read_b128 {v(176+4*k,4)}, v{vEXO} offset:{1024*k}", tag=f"EY{k}")
        for cp in range(2):
            for cl in range(2):
                k = 2 * cp + cl
                a.wait(lg=f"EY{k}")
                for q in range(4):
                    a.e(f"v_add_f32 v{160+4*k+q}, v{160+4*k+q}, v{176+4*k+q}")
                a.e(f"v_cvt_pk_bf16_f32 v{20+4*cp+2*cl}, v{160+4*k}, v{161+4*k}")
                a.e(f"v_cvt_pk_bf16_f32 v{21+4*cp+2*cl}, v{162+4*k}, v{163+4*k}")
            a.e(f"v_permlane16_swap_b32 v{20+4*cp}, v{22+4*cp}")
            a.e(f"v_permlane16_swap_b32 v{21+4*cp}, v{23+4*cp}")
            a.e(f"buffer_store_dwordx4 {v(20+4*cp,4)}, v255, {R_WS}, {'s38' if cp else sAT} offen sc1", tag="Ast")

    def prologue(self):
        a = self.a
        a.e("s_cmp_ge_u32 s2, 256\ns_cbranch_scc1 L_end")
        self.stamp("start")
        if self.stamps and not self.o.get("amp"):
            a.e("s_memrealtime s[78:79]")
        a.e(f"""
        s_lshr_b32 {sI}, s2, 3
        s_min_u32 s3, {sI}, 15
        s_lshl_b32 s3, s3, 3
        s_load_dwordx2 s[68:69], s[0:1], s3
        s_load_dwordx16 s[16:31], s[0:1], 0
        s_load_dwordx16 s[32:47], s[0:1], 64
        s_getpc_b64 s[8:9]
        L_pc:
        s_lshl_b32 s3, {sI}, 10
        v_lshl_add_u32 v6, v0, 2, s3
        v_min_u32 v6, L_end-L_pc, v6
        v_readfirstlane_b32 s14, v0
        v_and_b32 v1, 63, v0
        v_bfe_u32 v4, v0, 6, 2
        s_and_b32 {sX}, s2, 7
        s_mul_i32 s77, {sI}, 37
        s_lshr_b32 s77, s77, 8
        s_bfe_u32 {sW}, s14, 0x20006
        s_mul_i32 s13, s77, 7
        s_sub_u32 s15, {sI}, s13           ; ct
        s_and_b32 s11, {sX}, 6
        s_lshl1_add_u32 s11, s11, s77
        s_lshl_b32 s70, s11, 17
        s_and_b32 s11, {sX}, 1
        s_mul_i32 s11, s11, 7
        s_add_u32 s11, s11, s15
        s_lshl_b32 s71, s11, 8
        """)
        g = self.o.get("g1rot", 2)
        if g == 8:
            a.e("s_lshl1_add_u32 s72, s77, s15")
        elif g == 4:
            a.e("s_add_u32 s72, s77, s15\ns_lshl_b32 s72, s72, 1")
        elif g == 2:
            a.e("s_add_u32 s72, s77, s15\ns_lshl_b32 s72, s72, 2")
        if self.o.get("xrot", 0) == 1:
            a.e(f"s_add_u32 s72, s72, {sX}")
        if self.o.get("xrot", 0) == 2:
            a.e(f"s_and_b32 s11, {sX}, 1\ns_lshl1_add_u32 s72, s11, s72\ns_lshr_b32 s11, {sX}, 1\ns_add_u32 s72, s72, s11")
        a.e(f"""
        s_lshl_b32 s73, {sW}, 12           ; wave*4096
        s_mov_b32 s50, {2048*1024}
        s_mov_b32 s51, 0x00020000
        s_mov_b32 s54, {512*3584}
        s_mov_b32 s55, s51
        s_bitcmp1_b32 s14, 8
        """)
        if not self.o.get("bnear", 0):
            a.e("s_cbranch_scc1 L_roleB0")
            return
        a.e("s_cbranch_scc0 L_roleA")
        self.b_first()
        a.e("s_branch L_roleB")
        a.label("L_roleA")
        a.vm = []

    def b_first(self):
        a = self.a
        a.e(f"s_setprio {self.o.get('bprio', 3)}")
        a.e(f"""
        s_lshr_b32 s9, {sW}, 1
        s_lshl1_add_u32 s8, {sI}, s9
        s_lshl3_add_u32 s77, s8, {sX}
        s_and_b32 s9, {sW}, 1
        s_lshl1_add_u32 s8, s77, s9
        s_lshl_b32 s8, s8, 7
        v_lshl_add_u32 v24, v1, 1, s8      ; d*256 + (64*(w&1)+l)*2
        v_lshlrev_b32 v25, 1, s77
        """)
        for k in range(4):
            a.e(f"v_pk_mov_b32 v[{176+2*k}:{177+2*k}], 0, 0")
        a.e(f"ds_write_b128 v176, v[176:179] offset:{L_CNT}", tag="Z")
        a.e("s_waitcnt lgkmcnt(0)")
        self.stamp("bk")
        if self.o.get("pb", 1):
            a.e("s_barrier")
        self.params_load()
        if not self.o.get("pb", 1):
            a.e(f"s_cmp_lt_u32 {sI}, 28\ns_cbranch_scc1 L_nzb\ns_barrier")
            a.label("L_nzb")

    def dma_voffs(self):
        self.a.e(f"""
        v_lshrrev_b32 v8, 3, v1            ; l>>3
        v_lshl_add_u32 v8, v4, 5, v8       ; 32w + (l>>3)
        v_lshlrev_b32 v8, 10, v8           ; *1024
        v_lshrrev_b32 v9, 4, v1            ; l>>4
        v_and_b32 v10, 7, v1
        v_xor_b32 v10, v10, v9             ; pos ^ (l>>4)
        v_lshl_add_u32 v16, v10, 4, v8
        v_xor_b32 v10, 4, v10
        v_lshl_add_u32 v17, v10, 4, v8
        v_add_u32 v17, {8192-1024}, v17
        v_add_u32 v18, {2*(8192-1024)}, v16
        v_add_u32 v19, {2*(8192-1024)}, v17
        v_lshl_add_u32 v8, v4, 4, v9       ; 16w + (l>>4)
        v_mul_u32_u24 v8, 3584, v8
        v_and_b32 v10, 15, v1
        v_lshlrev_b32 v11, 2, v9
        v_xor_b32 v10, v10, v11
        v_lshl_add_u32 v20, v10, 4, v8
        v_add_u32 v21, {4*3584-1024}, v20
        v_xor_b32 v10, 2, v10
        v_lshl_add_u32 v8, v10, 4, v8
        v_add_u32 v22, {2*(4*3584-1024)}, v8
        v_add_u32 v23, {3*(4*3584-1024)}, v8
        """)

    def common2(self):
        self.a.e(f"""
        v_mov_b32 v3, 0
        v_lshlrev_b32 v7, 4, v1            ; lane*16
        s_mov_b32 s66, {WS_SIZE}
        s_mov_b32 s67, 0x00020000
        s_mov_b64 s[64:65], s[46:47]
        """)

    def a_prologue(self):
        a = self.a
        a.e("global_load_dword v6, v6, s[8:9]", tag="CPF")
        a.e(f"""
        s_max_u32 s3, {sI}, 15
        s_min_u32 s3, s3, 20
        s_sub_u32 s3, s3, 15
        v_lshlrev_b32 v12, 21, s3
        """)
        self.dma_voffs()
        a.e(self.dma_setup(0))
        a.e("s_waitcnt lgkmcnt(0)")
        self.stamp("karg")
        if self.o.get("fan", 1):
            a.e("global_load_dword v6, v12, s[68:69] offset:128", tag="FAN")
        a.e(f"""
        s_mov_b64 s[48:49], s[16:17]
        s_mov_b64 s[52:53], s[36:37]
        """)

    def a_prologue2(self):
        a = self.a
        a.e(f"s_setprio {self.o.get('prio', 2)}")
        self.common2()
        a.e(f"""
        s_lshl_b32 {sBS}, {sW}, 11         ; wave*2048
        s_add_u32 {sBS}, {sBS}, {L_BS}
        s_mov_b32 s58, {1792*1024}
        s_mov_b32 s59, 0x00020000
        s_mov_b32 s62, {2048*1024}
        s_mov_b32 s63, 0x00020000
        s_mov_b64 s[56:57], s[38:39]
        s_mov_b64 s[60:61], s[42:43]
        """)
        if not self.o.get("vp", 0):
            a.e(f"s_load_dword s16, {P_WS}, 128")

    def dma_setup(self, s):
        return f"""
        s_add_u32 s74, s72, {s}
        s_and_b32 s74, s74, 7
        s_mul_i32 s75, s74, {64*3584}
        s_add_u32 s75, s75, s71
        s_lshl_b32 s74, s74, 7
        s_add_u32 s74, s74, s70
        """

    def dma_ops(self, s, setup=True):
        slot = s % 3
        ops = []
        for i in range(4):
            pre = ((self.dma_setup(s) if setup else "") + f"s_add_u32 m0, s73, {XPOS[slot]}\n") if i == 0 else ""
            ops.append((pre + f"buffer_load_dwordx4 v{16+i}, {R_U}, s74 offen offset:{i*1024} lds", f"D{s}"))
        for i in range(4):
            pre = f"s_add_u32 m0, s73, {WPOS[slot]}\n" if i == 0 else ""
            ops.append((pre + f"buffer_load_dwordx4 v{20+i}, {R_W1}, s75 offen offset:{i*1024} lds", f"D{s}"))
        return ops

    def a_setup_g1(self):
        self.a.e(f"""
        v_and_b32 v8, 15, v1               ; t
        v_lshrrev_b32 v9, 4, v1            ; g
        v_lshrrev_b32 v10, 1, v8
        v_xor_b32 v10, v10, v9             ; g ^ (t>>1)
        s_lshr_b32 s8, {sW}, 1
        s_lshl_b32 s8, s8, 13              ; wm*64*128
        s_add_u32 s8, s8, {XPOS[2]}
        v_lshl_add_u32 v8, v8, 7, s8
        v_lshl_add_u32 v4, v10, 4, v8
        v_xor_b32 v5, 64, v4
        v_bfe_u32 v8, v1, 2, 2             ; r
        v_lshl_add_u32 v10, v9, 3, v8      ; 8g + r
        v_lshlrev_b32 v10, 8, v10          ; *256
        v_and_b32 v9, 1, v9
        v_lshl_or_b32 v8, v8, 1, v9        ; 2r | (g&1)
        s_and_b32 s8, {sW}, 1
        s_lshl_b32 s8, s8, 2
        v_xor_b32 v8, s8, v8               ; (4wn) ^ s
        v_lshl_add_u32 v10, v8, 5, v10
        v_and_b32 v8, 3, v1
        v_lshl_add_u32 v10, v8, 3, v10
        v_add_u32 v24, {WPOS[0]}, v10
        v_xor_b32 v25, 32, v24
        v_xor_b32 v26, 64, v24
        v_xor_b32 v27, 96, v24
        v_add_u32 v28, {WPOS[2]}, v10
        v_xor_b32 v29, 32, v28
        v_xor_b32 v30, 64, v28
        v_xor_b32 v31, 96, v28
        s_lshl2_add_u32 s8, {sX}, s77      ; 4x + rt
        s_lshr_b32 s9, {sW}, 1
        s_lshl1_add_u32 s8, s8, s9
        s_mul_i32 s8, s8, {4*28}
        s_and_b32 s10, {sW}, 1
        s_lshl1_add_u32 s10, s15, s10
        s_lshl1_add_u32 s8, s10, s8
        s_lshl_b32 s8, s8, 10
        s_add_u32 {sH0}, s8, {WS_H}
        s_and_b32 s8, {sX}, 6
        s_lshl1_add_u32 s8, s8, s77        ; 4R + rt
        s_lshl1_add_u32 s8, s8, s9         ; *2 + wm
        s_and_b32 s9, {sX}, 1
        s_lshl1_add_u32 s8, s8, s9         ; *2 + ch
        s_lshl_b32 s8, s8, 8               ; *2 groups*128B
        s_cmp_ge_u32 s10, 7
        s_cselect_b32 s9, {128-28}, 0
        s_lshl2_add_u32 s8, s10, s8
        s_add_u32 s8, s8, s9
        s_add_u32 {sHF}, s8, {WS_HF}
        """)

    def a_setup_g2(self):
        a = self.a
        a.e(f"""
        v_lshrrev_b32 v8, 3, v1
        v_lshlrev_b32 v8, 10, v8
        v_lshrrev_b32 v9, 4, v1
        v_lshlrev_b32 v9, 1, v9
        v_and_b32 v10, 7, v1
        v_xor_b32 v10, v10, v9
        v_lshl_add_u32 v10, v10, 4, v8
        v_add_u32 v11, {8192-1024}, v10
        s_cmp_ge_u32 s15, 3
        s_addc_u32 s8, s15, 0
        s_cmp_ge_u32 {sI}, 28
        s_cselect_b32 {sN}, 3, s8
        s_cselect_b32 {sM}, s15, s77       ; m
        s_mul_i32 s12, {sW}, {28*16384}
        s_lshl_b32 s10, {sN}, 7
        s_add_u32 s12, s12, s10            ; w2 base
        s_and_b32 s10, {sX}, 6
        s_lshr_b32 s11, {sW}, 1
        s_add_u32 s10, s10, s11
        s_and_b32 s11, {sX}, 1
        s_lshl1_add_u32 s10, s10, s11
        s_lshl2_add_u32 s10, s10, {sM}     ; 8xp + 4(x&1) + m
        s_mul_i32 s10, s10, {4*28}
        s_and_b32 s11, {sW}, 1
        s_mul_i32 s3, s11, 14
        s_add_u32 s10, s10, s3
        s_lshl_b32 s10, s10, 10
        s_add_u32 s13, s10, {WS_H}         ; h base
        """)
        for lam in range(4):
            a.e(f"s_xor_b32 s3, {sW}, {lam}\ns_mul_i32 s3, s3, {28*1024}\nv_add_u32 v{vAV+lam}, s3, v7")
        if self.o.get("g2rot", 1) == 2:
            a.e(f"s_add_u32 s10, {sN}, {sM}")
        else:
            a.e("s_mov_b32 s10, 0")
        for k in range(2):
            a.e(f"""
            s_add_u32 s11, s10, {k}
            s_and_b32 s11, s11, 1
            s_mul_i32 s3, s11, {14*16384}
            s_add_u32 {sBB[k]}, s12, s3
            s_mul_i32 s3, s11, {7*1024}
            s_add_u32 {sAB[k]}, s13, s3
            """)

    def a_setup_br(self):
        self.a.e(f"""
        v_lshrrev_b32 v8, 2, v1            ; row = 4g + r
        v_lshl_add_u32 v9, v8, 7, {sBS}
        v_bfe_u32 v8, v1, 3, 2             ; (row>>1)&3
        v_lshl_add_u32 v9, v8, 5, v9
        v_and_b32 v8, 3, v1
        v_lshl_add_u32 v{vBR}, v8, 3, v9
        v_xor_b32 v{vBR+1}, 32, v{vBR}
        v_xor_b32 v{vBR+2}, 64, v{vBR}
        v_xor_b32 v{vBR+3}, 96, v{vBR}
        v_add_u32 v2, 0x10000, v{vBR}
        v_xor_b32 v5, 32, v2
        v_xor_b32 v22, 64, v2
        v_xor_b32 v23, 96, v2
        """)

    def a_setup_late(self):
        self.a.e(f"""
        s_lshl2_add_u32 s12, {sN}, {sW}
        s_lshr_b32 s8, {sX}, 2
        s_lshl_b32 s8, s8, 5
        s_add_u32 s8, s8, s12
        s_lshl_b32 s8, s8, 7
        s_add_u32 s74, s8, {WS_AF}         ; a flags
        s_lshl_b32 s8, s12, 14
        s_lshr_b32 s13, {sX}, 1
        s_lshl_b32 s13, s13, 19
        s_add_u32 s8, s8, s13
        s_add_u32 s8, s8, {WS_AT}
        s_and_b32 s13, {sX}, 1
        s_lshl2_add_u32 s13, s13, {sM}
        s_lshl_b32 s13, s13, 7
        v_lshrrev_b32 v8, 3, v1            ; dl
        v_bfe_u32 v9, v1, 2, 1             ; hf
        v_and_b32 v4, 3, v1                ; jj
        v_lshl_add_u32 v16, v9, 6, s13
        v_lshl_add_u32 v16, v4, 4, v16
        v_lshlrev_b32 v17, 7, v8
        v_xor_b32 v16, v16, v17
        v_lshl_add_u32 v16, v8, 10, v16
        v_add_u32 v16, s8, v16
        v_lshl_add_u32 v4, v4, 1, v9
        v_and_b32 v9, 6, v8
        v_xor_b32 v4, v4, v9               ; ^ ((row>>1)&3)<<1
        v_add_u32 v17, {sBS}, v17
        v_lshl_add_u32 v18, v4, 4, v17
        v_add_u32 v17, {8*1024}, v16
        s_lshl2_add_u32 s10, {sX}, {sM}
        s_lshl2_add_u32 s10, s10, {sW}
        s_lshl_b32 s8, s10, 7
        s_add_u32 s72, s8, {WS_HF}         ; h flags
        s_add_u32 s75, s8, {WS_GF}
        s_lshl_b32 s8, s10, 6
        s_add_u32 s8, s8, {WS_G}
        v_and_b32 v8, 15, v1
        v_lshl_add_u32 v19, v8, 2, s8
        s_lshl_b32 s8, {sW}, 5
        v_xor_b32 v20, s8, v{vBR}
        s_lshl_b32 s8, {sW}, 11
        v_subrev_u32 v20, s8, v20
        v_bfe_u32 v9, v1, 4, 1
        v_lshlrev_b32 v21, 10, v8
        v_lshl_add_u32 v21, v9, 5, v21
        v_lshrrev_b32 v9, 5, v1
        v_lshl_add_u32 v21, v9, 4, v21
        s_lshl_b32 s70, s10, 14
        s_lshl_b32 s13, {sN}, 7
        s_add_u32 s70, s70, s13
        v_add_u32 v28, {sBS}, v7
        v_xor_b32 v29, 0x800, v28
        v_xor_b32 v30, 0x1000, v28
        v_xor_b32 v31, 0x1800, v28
        """)

    def t_job(self):
        a = self.a
        o = self.o
        a.e(f"""
        s_sub_u32 s8, {sI}, 28
        s_lshl_b32 s9, {sX}, 2
        s_add_u32 s71, s8, s9
        s_lshl_b32 s8, s71, 2
        s_add_u32 s70, s8, {sW}
        s_lshl_b32 s72, s70, 11
        s_add_u32 s72, s72, {WS_UT}
        v_lshrrev_b32 v9, 5, v1            ; octet
        v_and_b32 v8, 31, v1
        v_lshlrev_b32 v15, 4, v8
        v_lshl_add_u32 v13, v9, 13, v15
        s_lshl_b32 s8, s70, 14
        s_add_u32 s9, s8, 4096
        """)
        for blk in range(2):
            for tt in range(8):
                a.e(f"buffer_load_dwordx4 {v(32+32*blk+4*tt,4)}, v13, {R_U}, {'s8' if tt < 4 else 's9'} offen offset:{(tt%4)*1024+blk*512}", tag=f"T{blk}")
                if blk == 0 and tt == (3 if o.get("pb", 1) else 7):
                    a.e("s_barrier")
            if blk == 0:
                self.epoch_master()
                a.e("v_and_b32 v8, 1, v1\nv_lshlrev_b32 v8, 21, v8")
                a.e(f"buffer_load_dword v6, v8, {R_WS}, 0 offen offset:128", tag="TL")
        a.e(f"global_load_dwordx4 v[96:99], v15, {P_GW}", tag="GW")
        a.e(f"global_load_dwordx4 v[148:151], v15, {P_GW} offset:512", tag="GW")
        a.e("""
        s_mov_b32 s12, 0x05040100
        s_mov_b32 s13, 0x07060302
        v_bfe_u32 v8, v1, 2, 3
        s_and_b32 s8, s70, 7
        v_xor_b32 v8, s8, v8
        v_lshl_add_u32 v8, v8, 1, v9
        v_and_b32 v9, 3, v1
        v_lshl_add_u32 v8, v8, 2, v9
        v_lshlrev_b32 v14, 4, v8
        """)
        for blk in range(2):
            a.wait(vm=f"T{blk}")
            self.stamp(f"t{blk}")
            if blk == 1:
                a.e(f"global_load_dword v2, v3, {P_DBG} sc1", tag="EP")
            for c8 in range(8):
                t = 100 + 4 * c8
                for k in range(4):
                    r0 = 32 + 32 * blk + 8 * k + c8 // 2
                    a.e(f"v_perm_b32 v{t+k}, v{r0+4}, v{r0}, s{12+(c8&1)}")
                a.e(f"s_add_u32 s8, s72, {c8*262144}")
                a.e(f"buffer_store_dwordx4 {v(t,4)}, v14, {R_WS}, s8 offen offset:{blk*1024} sc1", tag="Ust")
        self.stamp("tst")
        a.wait(vm="GW")
        for q in range(4):
            for r in range(8):
                a.e(f"v_dot2_f32_bf16 v{132+r}, v{32+4*r+q}, v{96+q}, {'0' if q == 0 else 'v%d' % (132+r)}")
        self.gate_tail()
        self.drain(len(self.bg) - 1)
        a.wait(vm="EP")
        a.e(f"v_readfirstlane_b32 {sEP}, v2")
        self.epoch_get(issued=True)
        a.e(f"s_lshl_b32 s10, s71, 7\ns_add_u32 s10, s10, {WS_TF}\nv_mov_b32 v10, 1")
        a.wait(vm="Ust")
        a.e("s_mov_b64 exec, 1")
        a.e(f"ds_add_rtn_u32 v10, v3, v10 offset:{L_CNT+4}")
        a.e("s_mov_b64 exec, -1")
        a.wait(lg=0)
        a.e("v_readfirstlane_b32 s8, v10\ns_cmp_eq_u32 s8, 3\ns_cbranch_scc0 L_ntp")
        if self.o.get("sat", 1):
            self.publish("s10")
        else:
            a.e("v_lshlrev_b32 v8, 2, v1\ns_mov_b32 exec_hi, 0")
            a.raw(f"buffer_store_dword v2, v8, {R_WS}, s10 offen sc1")
            a.e("s_mov_b32 exec_hi, -1")
        a.label("L_ntp")
        self.stamp("tpub")
        self.drain()
        a.e(f"s_setprio {o.get('sprio', 0)}")
        if o.get("w2warm", 0):
            a.e(f"s_mul_i32 s9, s70, {14*1024}")
        for k in range(14 if o.get("w2warm", 0) else 0):
            a.e(f"buffer_load_dwordx4 {v(192+4*k,4)}, v7, {R_W2}, s9 offen offset:{(k%4)*1024}", tag="WW")
            if k % 4 == 3:
                a.e("s_add_u32 s9, s9, 4096")
        for k in range(o.get("bxr", 0)):
            a.e(f"s_lshl_b32 s9, s70, 14\nv_add_u32 v8, s9, v7")
            a.e(f"global_load_dwordx4 {v(192+4*k,4)}, v8, {P_BX} offset:{(k%4)*1024}" if k < 4 else f"v_add_u32 v8, {(k//4)*4096}, v8\nglobal_load_dwordx4 {v(192+4*k,4)}, v8, {P_BX} offset:{(k%4)*1024}", tag="WW")
        a.e(f"s_lshl_b32 s9, s70, 7\ns_add_u32 s9, s9, {WS_GF}")
        a.wait(vm="Tst")
        self.publish("s9", line=True)
        self.gpub = True
        steps = list(range(o.get("pfa", 28), o.get("pfb", 28)))
        if steps:
            a.e(f"""
            s_mul_i32 s8, {sW}, {28*16384}
            s_sub_u32 s9, {sI}, 28
            s_lshl_b32 s9, s9, 12
            s_add_u32 s8, s8, s9
            """)
        for n_, st in enumerate(steps):
            a.e(f"s_add_u32 s9, s8, {st*16384}")
            for k in range(4):
                a.e(f"buffer_load_dwordx4 {v(32+16*(n_%4)+4*k,4)}, v7, {R_W2}, s9 offen offset:{k*1024}", tag="WW")
        self.stamp("pfd")
        a.e(f"s_setprio {o.get('sprio2', 0)}")

    def push_b_issue(self):
        i = self.b_iss
        if i >= 28:
            return
        assert i - self.b_con < BSN
        self.b_iss += 1
        if i >= BSN and not self.no_lg:
            self.pushw(lg=f"BR{i-BSN}")
        self.push(f"""
        s_add_u32 m0, {sBS}, {(i % BSN)*8192}
        s_add_u32 s14, {sBB[i//14]}, {(i%14)*16384}
        buffer_load_dwordx4 v10, {R_W2}, s14 offen lds
        buffer_load_dwordx4 v11, {R_W2}, s14 offen offset:1024 lds
        """, tag=f"B{i}")

    def push_b_consume(self):
        i = self.b_con
        if i >= 28:
            return
        assert i < self.b_iss
        self.b_con += 1
        self.pushw(vm=f"B{i}")
        for db in range(4):
            self.push(f"ds_read_b64_tr_b16 {v(vB0+16*((i//2)%NBR)+4*db+2*(i%2),2)}, v{vBR+db if i % BSN < 8 else (2, 5, 22, 23)[db]} offset:{(i % BSN % 8)*8192}", tag=f"BR{i}")

    def g1(self):
        a = self.a

        def reads(kap):
            s, kk = divmod(kap, 2)
            slot = s % 3
            b = 32 + 32 * (kap % 2)
            L = []
            for q in range(4):
                wa, wo = (24 + q, WPOS[slot] - WPOS[0]) if slot < 2 else (28 + q, 0)
                L.append(f"ds_read_b128 {v(b+4*q,4)}, v{4+kk} offset:{XPOS[slot]-XPOS[2]+q*2048}")
                for hh in range(2):
                    L.append(f"ds_read_b64_tr_b16 {v(b+16+4*q+2*hh,2)}, v{wa} offset:{wo+kk*8192+hh*1024}")
            return L

        EA = self.o.get("ea", 0)
        pend = []

        def sync(k):
            if k < EA:
                self.arrive("v3", "v9", L_CNT + 12)
                self.await_("v3", L_CNT + 12, 4 * (k + 1))
            else:
                a.e("s_barrier")

        a.e("v_mov_b32 v9, 1")
        a.wait(vm="D0")
        sync(0)
        if not self.o.get("a2", 1):
            pend += self.dma_ops(2)
        self.stamp("g1s")
        for r in reads(0):
            a.e(r, tag="R0")
        nb = {5: self.o.get("e5", 4), 6: self.o.get("e6", 2)}
        HT = self.o.get("ht", 1)
        for kap in range(14 if HT else 16):
            s, kk = divmod(kap, 2)
            if kk == 1 and kap < 15:
                assert not pend
                a.wait(vm=f"D{s+1}" if f"D{s+1}" in a.vm else None, lg=0)
                sync(s + 1)
                if s + 1 < EA:
                    pend += self.dma_ops(s + 3)
                self.stamp(f"st{s+1}")
                for _ in range(nb.get(s, 0) if self.o.get("bearly", 1) else 0):
                    self.push_b_issue()
            else:
                a.wait(lg=f"R{kap}")
            nxt = reads(kap + 1) if kap < 15 else []
            b = 32 + 32 * (kap % 2)
            for n_ in range(16):
                tb, fa = divmod(n_, 4)
                d = 192 + 16 * tb + 4 * fa
                a.e(f"v_mfma_f32_16x16x32_bf16 {v(d,4)}, {v(b+16+4*fa,4)}, {v(b+4*tb,4)}, {'0' if kap == 0 else v(d,4)}")
                if nxt:
                    a.e(nxt.pop(0), tag=f"R{kap+1}")
                    if n_ % 3 == 2:
                        self.drain(1)
                else:
                    self.drain(1)
                if pend and n_ % 2:
                    x, t = pend.pop(0)
                    a.e(x, tag=t)
                    if not pend and t == f"D{self.o.get('wwat', 2)}":
                        self.wwa()
        self.drain()
        if HT:
            for r in reads(15):
                a.e(r, tag="R15")
            a.wait(lg="R14")
            for tb in range(4):
                for kap in (14, 15):
                    if tb == 0 and kap == 15:
                        a.wait(lg=0)
                        self.arrive("v3", "v9", L_CNT + 4)
                    b = 32 + 32 * (kap % 2)
                    for fa in range(4):
                        d = 192 + 16 * tb + 4 * fa
                        a.e(f"v_mfma_f32_16x16x32_bf16 {v(d,4)}, {v(b+16+4*fa,4)}, {v(b+4*tb,4)}, {v(d,4)}")
                        if kap == 15 or fa >= 1:
                            self.drain(3)
                self.drain()
                self.push_h(tb)
        else:
            self.arrive("v3", "v9", L_CNT + 4)
            for tb in range(4):
                self.push_h(tb)
        self.acount += 4
        self.stamp("g1e")

    def wwa(self):
        a = self.a
        a.e(f"s_lshl_b32 s8, s2, 13\ns_lshl_b32 s9, {sW}, 11\ns_add_u32 s8, s8, s9")
        a.e(f"buffer_load_dwordx4 v[96:99], v7, {R_W2}, s8 offen", tag="WA")
        a.e(f"buffer_load_dwordx4 v[100:103], v7, {R_W2}, s8 offen offset:1024", tag="WA")

    def push_h(self, tb):
        P = self.push
        if tb:
            P(f"s_add_u32 {sH0}, {sH0}, {28*1024}")
        for j in range(2):
            d = 192 + 16 * tb + 8 * j
            t = 160 + 8 * tb + 4 * j
            for q in range(4):
                P(f"v_cvt_pk_bf16_f32 v{t+q}, v{d+2*q}, v{d+2*q+1}")
            for q in range(4):
                P(f"v_pk_max_i16 v{t+q}, v{t+q}, 0")
            P(f"buffer_store_dwordx4 {v(t,4)}, v7, {R_WS}, {sH0} offen offset:{j*1024} sc1", tag="Hst")

    def h_stores(self):
        self.drain()
        self.stamp("hiss")

    def a_load(self, i):
        r = vA0 + 16 * (i % NAR)
        L = [f"s_add_u32 s15, {sAB[i//7]}, {(i%7)*1024}"]
        for tb in (3, 2, 1, 0):
            L.append(f"buffer_load_dwordx4 {v(r+4*tb,4)}, v{vAV+tb}, {R_WS}, s15 offen sc1")
        return L

    def g2(self):
        a = self.a
        o = self.o
        PRE = NAR - 1
        TAIL = o.get("tail", 2)
        vAG = vB0 + 16 * 2
        self.vAG = vAG
        apos, achk = o.get("apos", 9), o.get("achk", 11)

        def mf(i, tb, db):
            d = 192 + 16 * tb + 4 * db
            a.e(f"v_mfma_f32_16x16x32_bf16 {v(d,4)}, {v(vB0+16*(i%NBR)+4*db,4)}, {v(vA0+16*(i%NAR)+4*tb,4)}, {'0' if i == 0 else v(d,4)}")

        def rw(lam):
            for db in range(4):
                self.push(f"ds_write_b128 v28, {v(192+16*lam+4*db,4)} offset:{(2*(lam-1)+db//2)*8192+(db%2)*1024}", tag="RW")

        for i in range(14 - TAIL):
            ld = self.a_load(i + PRE) if i + PRE < 14 else []
            if i == apos:
                assert self.b_con == 28
                self.drain()
                a.wait(lg=0)
                self.spoll_issue("s74", 16)
            if i == achk:
                self.stamp("apre")
                self.spoll("s74", 16, sleep=4, issued=True)
                self.stamp("apoll")
                a.e(f"buffer_load_dwordx4 {v(vAG,4)}, v16, {R_WS}, 0 offen sc1", tag="AL")
                a.e(f"buffer_load_dwordx4 {v(vAG+4,4)}, v17, {R_WS}, 0 offen sc1", tag="AL")
                a.e(f"buffer_load_dword v{vAG+8}, v19, {R_WS}, 0 offen sc1", tag="AL")
            if a.lg.count(f"BR{2*i+1}") < 4:
                while self.b_con <= 2 * i + 1:
                    if self.b_iss <= self.b_con:
                        self.push_b_issue()
                    self.push_b_consume()
                self.drain()
            if i < apos:
                a.wait(lg=f"BR{2*i+1}")
            for _ in range(2):
                if self.b_iss < 28 and self.b_iss - self.b_con < BSN:
                    self.push_b_issue()
                if self.b_con < 28 and self.b_con // 2 - i < NBR and self.b_con < self.b_iss and (self.b_iss - self.b_con >= o.get("blag", 4) or self.b_iss == 28):
                    self.push_b_consume()
            for tb in (3, 2, 1, 0):
                a.wait(vm=f"A{i}_{tb}")
                if i == 0 and tb == 3:
                    self.stamp("g2s")
                if tb == 3:
                    self.stamp(f"q{2*i}")
                for db in range(4):
                    mf(i, tb, db)
                    if ld and db == 0:
                        if tb == 3:
                            a.e(ld[0])
                        a.e(ld[4 - tb], tag=f"A{i+PRE}_{tb}")
                    else:
                        self.drain(2)
        self.drain()
        for tb in (3, 2, 1, 0):
            n_ = 0
            for i in range(14 - TAIL, 14):
                a.wait(vm=f"A{i}_{tb}")
                for db in range(4):
                    mf(i, tb, db)
                    n_ += 1
                    if n_ >= 3 and n_ % max(1, TAIL - 1) == 0:
                        self.drain(1)
            self.drain()
            if tb:
                rw(tb)
        self.stamp("g2e")
        a.wait(vm=0)
        a.e(f"ds_write_b128 v18, {v(vAG,4)} offset:{6*8192}", tag="AW")
        a.e(f"ds_write_b128 v18, {v(vAG+4,4)} offset:{6*8192+1024}", tag="AW")

    def final(self):
        a = self.a
        vG = self.vAG + 8
        a.wait(lg=0)
        a.e("s_barrier")
        self.stamp("fbar")
        for db in range(4):
            a.e(f"ds_read_b64_tr_b16 {v(80+2*db,2)}, v20 offset:{6*8192+db*2048}", tag="AR")
        for p in range(2):
            for lam in range(1, 4):
                for db in (2 * p, 2 * p + 1):
                    a.e(f"ds_read_b128 {v(32+16*(lam-1)+4*db,4)}, v{28+lam} offset:{(2*(lam-1)+db//2)*8192+(db%2)*1024}", tag=f"RR{p}{lam}")
        a.wait(lg="AR")
        for db in range(4):
            s_, d_ = 80 + 2 * db, 224 + 4 * db
            a.e(f"v_lshlrev_b32 v{d_}, 16, v{s_}")
            a.e(f"v_and_b32 v{d_+1}, 0xffff0000, v{s_}")
            a.e(f"v_lshlrev_b32 v{d_+2}, 16, v{s_+1}")
            a.e(f"v_and_b32 v{d_+3}, 0xffff0000, v{s_+1}")
        for p in range(2):
            hs = range(4 * p, 4 * p + 4)
            for lam in range(1, 4):
                a.wait(lg=f"RR{p}{lam}")
                for h in hs:
                    a.e(f"v_pk_add_f32 {v(192+2*h,2)}, {v(192+2*h,2)}, {v(32+16*(lam-1)+2*h,2)}")
            for h in hs:
                a.e(f"v_pk_add_f32 {v(224+2*h,2)}, {v(224+2*h,2)}, {v(192+2*h,2)} neg_lo:[0,1] neg_hi:[0,1]")
            for h in hs:
                a.e(f"v_pk_fma_f32 {v(192+2*h,2)}, {v(224+2*h,2)}, {v(vG,2)}, {v(192+2*h,2)} op_sel_hi:[1,0,1]")
            for h in hs:
                a.e(f"v_cvt_pk_bf16_f32 v{240+h}, v{192+2*h}, v{193+2*h}")
            a.e(f"v_permlane16_swap_b32 v{240+4*p}, v{242+4*p}")
            a.e(f"v_permlane16_swap_b32 v{241+4*p}, v{243+4*p}")
            a.e(f"buffer_store_dwordx4 {v(240+4*p,4)}, v21, {R_OUT}, s70 offen offset:{64*p} {['', 'sc1', 'nt', 'sc0 sc1', 'sc1 nt'][self.o.get('ofl', 0)]}", tag="O")

    def role_a(self):
        a = self.a
        o = self.o
        self.a_prologue()
        a.e(f"s_cmp_ge_u32 {sI}, 28")
        a.e("s_cbranch_scc1 L_spare")
        vm0, lg0 = list(a.vm), list(a.lg)
        ops = self.dma_ops(0, False) + self.dma_ops(1) + (self.dma_ops(2) if o.get("a2", 1) else [])
        n1 = o.get("n1", 11)
        for k_, (x, t) in enumerate(ops[:n1]):
            a.e(x, tag=t)
            if k_ + 1 == o.get("pb", 1):
                a.e("s_barrier")
        self.stamp("d0iss")
        self.a_prologue2()
        self.a_setup_g1()
        self.a_setup_g2()
        for x, t in ops[n1:]:
            a.e(x, tag=t)
        if o.get("a2", 1) and o.get("wwat", 2) == 2:
            self.wwa()
        self.stamp("d2iss")
        self.g1()
        nearly = self.b_iss
        self.h_stores()
        self.a_setup_br()
        for _ in range(nearly):
            self.push_b_consume()
        self.drain()
        self.await_("v3", L_CNT + 4, self.acount)
        b1 = o.get("bh1", 2)
        for _ in range(b1):
            self.push_b_issue()
        self.drain()
        self.a_setup_late()
        self.await_("v3", L_CNT + 8, 1)
        a.e(f"s_mov_b32 {sEP}, s8\ns_mov_b32 s68, s8\ns_mov_b32 s69, s8")
        for _ in range(o.get("bh", 6) - b1):
            self.push_b_issue()
        self.drain()
        a.wait(vm="Hst")
        self.publish(sHF)
        self.stamp("hpub")
        if "pprio" in o:
            a.e(f"s_setprio {o['pprio']}")
        a.e("s_branch L_join")
        a.label("L_spare")
        vm_main, lg_main = list(a.vm), list(a.lg)
        bi = self.b_iss
        a.vm, a.lg = vm0, lg0
        self.b_iss = self.b_con = 0
        self.a_prologue2()
        self.t_job()
        self.a_setup_g2()
        self.a_setup_br()
        if o.get("c3", 1):
            a.e(f"s_lshl_b32 s8, {sM}, 15\ns_add_u32 s8, s8, {sBB[1]}\ns_add_u32 s8, s8, {6*16384}")
            for k in range(4):
                a.e(f"buffer_load_dwordx4 {v(32+4*k,4)}, v10, {R_W2}, s8 offen", tag="WW")
                a.e("s_add_u32 s8, s8, 8192")
        for _ in range(nearly):
            self.push_b_issue()
        while self.b_iss < bi or self.b_con < nearly:
            if self.b_con < nearly:
                self.push_b_consume()
            if self.b_iss < bi:
                self.push_b_issue()
        self.drain()
        self.a_setup_late()
        a.wait(lg=0)
        a.vm, a.lg = vm_main, lg_main
        a.label("L_join")
        bt = o.get("bt", 24)
        hq = o.get("hq", 3)
        while self.b_iss < bt:
            if self.b_iss == bt - hq:
                assert bt - self.b_con <= BSN
                self.pushw(lg=0)
                self.pushf(lambda: self.spoll_issue("s72", 8))
                self.no_lg = True
            if not self.no_lg and self.b_con < 2 * NBR and self.b_iss - self.b_con >= o.get("blag0", 6):
                self.push_b_consume()
            self.push_b_issue()
        self.no_lg = False
        self.drain()
        self.stamp("biss")
        self.spoll("s72", 8, sleep=3, issued=True)
        self.stamp("hpoll")
        a.e(f"s_setprio {o.get('gprio', 0)}")
        for i in range(NAR - 1):
            L = self.a_load(i)
            a.e(L[0])
            for tb in (3, 2, 1, 0):
                a.e(L[4 - tb], tag=f"A{i}_{tb}")
        while self.b_con < 2 * NBR:
            self.push_b_consume()
        self.drain()
        self.g2()
        self.final()

    def role_b(self):
        a = self.a
        o = self.o
        a.vm, a.lg = ["P"] * 8, []
        if not o.get("bnear", 0):
            a.vm = []
            a.label("L_roleB0")
            self.b_first()
        a.label("L_roleB")
        self.common2()
        a.e("s_mov_b64 s[48:49], s[16:17]")
        self.tlb_touch()
        self.dma_voffs()
        a.e(f"""
        s_mov_b64 s[52:53], s[36:37]
        s_lshl_b32 {sTM0}, {sW}, 8
        s_lshr_b32 s8, {sW}, 1             ; channel
        s_lshl_b32 s9, s8, 9
        v_and_b32 v8, 15, v1
        v_lshrrev_b32 v9, 4, v1
        v_lshl_add_u32 v10, v9, 4, s9      ; base + g*16
        s_movk_i32 s10, {TROW}
        v_add_u32 v12, {XB}, v8
        v_mad_u32_u24 v{vKX}, v12, s10, v10
        s_and_b32 s11, {sW}, 1
        s_cmp_eq_u32 s11, 0
        s_cselect_b64 vcc, -1, 0
        v_lshrrev_b32 v11, 2, v8           ; gi
        v_and_b32 v4, 3, v8                ; r
        v_min_u32 v5, 2, v4                ; min(r,2)
        v_lshrrev_b32 v13, 1, v11
        v_lshl_add_u32 v12, v11, 1, v13
        v_add3_u32 v12, v12, v5, {YB[2]}
        v_add_u32 v13, {YB[0]}, v8
        v_cndmask_b32 v12, v12, v13, vcc
        v_mad_u32_u24 v{vKY}, v12, s10, v10
        v_mad_u32_u24 v12, v11, 3, v5
        v_add_u32 v12, {YB[4]}, v12
        v_lshl_add_u32 v13, v11, 1, v4
        v_add_u32 v13, {YB[1]}, v13
        v_cmp_gt_u32 s[12:13], 2, v4
        v_cndmask_b32 v13, {YB[2]}, v13, s[12:13]
        v_cndmask_b32 v12, v12, v13, vcc
        v_mad_u32_u24 v{vKY+1}, v12, s10, v10
        v_add_u32 v12, 16, v1
        v_subrev_u32 v13, 47, v1
        v_cmp_gt_u32 s[12:13], 48, v1
        v_cndmask_b32 v12, v13, v12, s[12:13]
        v_lshlrev_b32 v{vKY+2}, 2, v12
        s_mul_i32 s9, s8, {4*KCP}
        v_lshlrev_b32 v11, 5, v8           ; 32j
        v_sub_u32 v11, s9, v11             ; base - 32j
        v_lshlrev_b32 v12, 3, v9
        v_sub_u32 v12, v11, v12
        v_add_u32 v12, {4088-512}, v12
        v_lshrrev_b32 v13, 1, v9
        v_lshlrev_b32 v13, 9, v13
        v_and_b32 v4, 1, v9
        v_lshl_add_u32 v13, v4, 4, v13     ; 512(g>>1) + 16(g&1)
        v_sub_u32 v13, v11, v13
        v_add_u32 v13, {4080-1024}, v13
        v_cndmask_b32 v{vKWA}, v13, v12, vcc
        v_lshlrev_b32 v13, 9, v9
        v_sub_u32 v13, v11, v13
        v_add_u32 v{vKWB}, {4064-2048}, v13
        s_movk_i32 s10, {KCP}
        v_lshrrev_b32 v11, 3, v1
        v_and_b32 v12, 7, v1
        v_lshlrev_b32 v12, 3, v12
        v_mad_u32_u24 v12, v11, s10, v12
        s_add_u32 s12, s9, 4096
        v_add_u32 v{vKZ}, s12, v12
        v_add_u32 v11, 1, v8
        v_and_b32 v11, 3, v11              ; sigma
        v_sub_u32 v12, 18, v8
        v_and_b32 v12, 28, v12
        v_lshl_add_u32 v12, v9, 3, v12
        v_lshlrev_b32 v12, 1, v12
        v_mad_u32_u24 v12, v11, s10, v12
        s_xor_b32 s13, s11, 1
        s_lshl_b32 s13, s13, 8             ; hw=0 (q0 0..3) -> +256 B
        s_add_u32 s12, s9, s13
        v_add_u32 v{vCA}, s12, v12
        v_lshlrev_b32 v12, 5, v8
        v_lshl_add_u32 v12, v9, 4, v12
        s_mul_i32 s12, s8, {UP}
        s_add_u32 s12, s12, {L_U}
        s_add_u32 s13, s12, s13
        v_add_u32 v{vCB}, s13, v12
        v_min_u32 v11, 59, v1
        v_lshl_add_u32 v{vUZ}, v11, 3, s12
        v_mov_b32 v5, 1
        """)
        a.e(f"""
        v_lshrrev_b32 v8, 1, v1
        v_and_b32 v9, 1, v1
        v_bfe_u32 v10, v1, 2, 3
        s_lshr_b32 s9, {sI}, 1
        v_xor_b32 v10, s9, v10
        v_lshrrev_b32 v11, 2, v1
        v_lshl_add_u32 v10, v11, 4, v10    ; line
        v_and_b32 v11, 1, v8
        v_lshl_add_u32 v10, v10, 1, v11    ; octet
        s_and_b32 s9, {sI}, 1
        v_lshl_add_u32 v10, v10, 1, s9
        v_lshl_add_u32 v10, v10, 1, v9
        v_lshlrev_b32 v{vUG}, 4, v10
        s_lshl_b32 s8, {sW}, 16            ; 64w*1024
        s_lshl_b32 s9, {sX}, 18
        s_add_u32 s8, s8, s9
        s_add_u32 {sUG0}, s8, {WS_UT}
        s_add_u32 {sUG1}, {sUG0}, {32*1024}
        s_movk_i32 s8, {UP}
        v_lshlrev_b32 v8, 4, v8
        v_mad_u32_u24 v8, v9, s8, v8
        s_lshl_b32 s8, {sW}, 10
        s_add_u32 s9, s8, {L_U + 480}
        v_add_u32 v{vUW}, s9, v8
        s_lshl_b32 s8, {sW}, 10
        s_add_u32 s8, s8, {WS_TF}
        v_and_b32 v8, 7, v1
        v_lshl_add_u32 v{vTF}, v8, 7, s8
        s_lshl_b32 s8, s77, 10
        s_lshl_b32 s10, s11, 20
        s_add_u32 s8, s8, s10
        s_add_u32 {sAT}, s8, {WS_AT}
        s_add_u32 s38, {sAT}, 0x80000
        v_bfe_u32 v8, v1, 2, 3             ; (cl, j>>2)
        v_xor_b32 v8, {sX}, v8             ; ^ (d & 7 = x)
        v_lshrrev_b32 v9, 5, v1            ; hf
        v_lshl_add_u32 v8, v8, 1, v9
        v_and_b32 v9, 3, v1
        v_lshl_add_u32 v8, v8, 2, v9
        v_lshlrev_b32 v255, 4, v8
        """)
        if o.get("asc", 1):
            a.e(f"""
            s_lshl_b32 s8, s11, 12
            s_lshr_b32 s10, s77, 4
            s_lshl_b32 s10, s10, 7
            s_add_u32 s8, s8, s10
            s_and_b32 s10, s77, 15
            s_lshl2_add_u32 s8, s10, s8
            s_add_u32 {sAF}, s8, {WS_AF}
            """)
        else:
            a.e(f"""
            s_lshl_b32 s8, s11, 16
            s_lshl_b32 s10, s77, 7
            s_add_u32 s8, s8, s10
            s_add_u32 {sAF}, s8, {WS_AF}
            """)
        if o.get("atouch", 0):
            a.e(f"buffer_load_dword v6, v3, {R_WS}, {sAF} offen sc1", tag="FT")
        a.e(f"""
        s_lshl_b32 s8, {sW}, 12
        s_add_u32 s8, s8, {L_EX}
        v_add_u32 v{vEXO}, s8, v7
        s_xor_b32 s8, {sW}, 1
        s_lshl_b32 s8, s8, 12
        s_add_u32 s8, s8, {L_EX}
        v_add_u32 v{vEXD}, s8, v7
        """)
        self.push_kgen()
        chunk = o.get("kch", 64)

        def gather():
            if o.get("noug", 0):
                return
            a.raw(f"buffer_load_dwordx4 v[176:179], v{vUG}, {R_WS}, {sUG0} offen sc1")
            a.raw(f"buffer_load_dwordx4 v[236:239], v{vUG}, {R_WS}, {sUG1} offen sc1")

        def look():
            if o.get("nolook"):
                a.e(f"global_load_dword v2, v3, {P_DBG} sc1", tag="PT")
                a.e(f"global_load_dword v9, v3, {P_DBG} sc1", tag="PT")
                return
            a.e(f"global_load_dword v2, v3, {P_DBG} sc1", tag="PT")
            a.e(f"buffer_load_dword v9, v{vTF}, {R_WS}, 0 offen sc1", tag="PT")

        def tag():
            a.wait(vm=0)
            a.e(f"v_readfirstlane_b32 {sEP}, v2")
            self.epoch_get(issued=True)
            a.e(f"ds_write_b32 v3, v2 offset:{L_CNT+8}")

        def check(lab):
            a.wait(vm=0)
            a.e(f"v_cmp_ne_u32 vcc, {sEP}, v9")
            a.e(f"s_cbranch_vccz {lab}y")
            a.raw(f"buffer_load_dword v9, v{vTF}, {R_WS}, 0 offen sc1")
            a.e(f"s_branch {lab}")
            a.label(f"{lab}y")
            a.e("s_mov_b32 s14, 0")
            gather()

        def kmf():
            a.e(f"""
            s_and_b32 s8, {sW}, 1
            s_lshl_b32 s8, s8, 6
            v_cmp_eq_u32 vcc, s8, v1
            v_mov_b32 v217, 0
            v_mov_b32 v218, 0
            v_mov_b32 v219, 0
            v_cndmask_b32 v216, 0, v183, vcc
            """)
            self.push_kmfma()
            self.drain()

        tp = o.get("tp", 6)
        tb = o.get("tb", 6)
        NB = 8
        if o.get("sphold", 1):
            a.e(f"s_cmp_lt_u32 {sI}, 28")
            a.e("s_cbranch_scc1 L_nh0")
            a.e("s_setprio 0")
            a.label("L_nh0")
        a.wait(vm="P")
        self.stamp("kgs")
        a.label(".p2align 3")
        self.drain()
        self.stamp("kge")
        if o.get("sphold", 1):
            a.e(f"s_cmp_lt_u32 {sI}, 28")
            a.e("s_cbranch_scc1 L_nh1")
            self.await_("v3", L_CNT + 4, 4, sleep=2)
            a.label("L_nh1")
        self.tables()
        self.stamp("tabd")
        a.wait(lg=0)
        self.arrive("v3", "v5", L_CNT)
        self.nsync += 1

        def ktiles():
            self.await_("v3", L_CNT, 4 * self.nsync)
            kmf()
            self.arrive("v3", "v5", L_CNT)
            self.nsync += 1
            self.stamp("kme")

        def expand():
            self.await_("v3", L_CNT, 4 * self.nsync)
            a.e(f"s_bitcmp1_b32 {sW}, 0")
            a.e("s_cbranch_scc1 L_sk1")
            self.push_kexpand(0)
            self.drain()
            a.e("s_branch L_skj")
            a.label("L_sk1")
            self.push_kexpand(1)
            self.drain()
            a.label("L_skj")
            self.stamp("kx")

        ks_, xs_, xn = o.get("ks", 7), o.get("xs", 7), o.get("xn", 4)
        a.e(f"s_setprio {o.get('bprio2', 1)}")
        for s in range(o.get('ea', 0), NB):
            a.e(f"s_cmp_lt_u32 {sI}, 28")
            a.e(f"s_cbranch_scc0 L_nl{s}")
            if f"D{s}" in a.vm:
                a.wait(vm=f"D{s}")
            a.e("s_barrier")
            ops = self.dma_ops(s + 2) if 1 <= s < 6 else []
            cut = xn if s == xs_ else 8
            for x, t in ops[:cut]:
                a.e(x, tag=t)
            a.label(f"L_nl{s}")
            if s == tp + 1:
                tag()
                check("L_c1")
                a.label("L_c1")
            if s == tp:
                look()
            if s == ks_:
                ktiles()
            if s == xs_:
                expand()
                if ops[cut:]:
                    a.e(f"s_cmp_lt_u32 {sI}, 28")
                    a.e(f"s_cbranch_scc0 L_nm{s}")
                    for x, t in ops[cut:]:
                        a.e(x, tag=t)
                    a.label(f"L_nm{s}")
        a.e(f"s_setprio {o.get('bprio3', 3)}")
        self.stamp("kw")
        a.e("s_cmp_eq_u32 s14, 0")
        a.e("s_cbranch_scc1 L_haveu")
        a.wait(vm=0)
        a.e(f"v_cmp_ne_u32 vcc, {sEP}, v9")
        a.e(f"s_cbranch_vccz L_pollx{self.npoll}")
        self.vpoll(f"v{vTF}", "v9", sleep=o.get("tsl", 2))
        gather()
        a.label("L_haveu")
        a.e("v_mov_b32 v10, 0\nv_mov_b32 v11, 0")
        a.e(f"ds_write_b64 v{vUZ}, v[10:11]", tag="Z")
        a.wait(vm=0)
        a.e(f"ds_write_b128 v{vUW}, v[176:179]", tag="UW")
        a.e(f"ds_write_b128 v{vUW}, v[236:239] offset:512", tag="UW")
        self.bsync()
        self.stamp("convs")
        a.e(f"s_setprio {self.o.get('cprio', 1)}")
        if not o.get("noconv"):
            self.conv({})
        self.stamp("conve")
        a.e(f"s_setprio {o.get('eprio', 3)}")
        self.conv_out()
        if o.get("noat"):
            a.e(f"s_mov_b32 {sAT}, {WS_SIZE}\ns_mov_b32 s38, {WS_SIZE}")
        self.conv_out2()
        self.stamp("cout")
        a.wait(vm=0)
        self.stamp("aack")
        self.publish(sAF, line=True)
        a.e("s_waitcnt lgkmcnt(0)")
        self.stamp("apub")

    def tail(self):
        a = self.a
        o = self.o
        if o.get("amp"):
            self.stamp("end")
            a.e(f"""
            s_waitcnt lgkmcnt(0)
            s_sub_u32 s8, s82, s80
            s_lshl_b32 s8, s8, 2
            s_add_u32 s8, s8, 3000
            s_cmp_lg_u32 s2, {o['amp']}
            s_cbranch_scc1 L_end
            v_readfirstlane_b32 s3, v0
            s_cmp_lg_u32 s3, {o.get('ampw', 0)*64}
            s_cbranch_scc1 L_end
            """)
            a.label("L_pad")
            a.e("""
            s_memrealtime s[98:99]
            s_waitcnt lgkmcnt(0)
            s_sub_u32 s98, s98, s80
            s_cmp_lt_u32 s98, s8
            s_cbranch_scc1 L_pad
            """)
        elif self.stamps:
            a.e("s_memrealtime s[100:101]" if o.get("rt") else "s_memtime s[100:101]")
            a.e("s_memrealtime s[72:73]")
            a.e("s_waitcnt lgkmcnt(0)")
            a.e(f"""
            v_readfirstlane_b32 s3, v0
            s_and_b32 s3, s3, 256
            s_add_u32 s3, s3, s2
            s_lshl_b32 s3, s3, 2
            s_add_u32 s3, s3, {sW}
            s_lshl_b32 s3, s3, 6
            s_add_u32 s3, s3, {WS_STAMP}
            s_mov_b64 exec, 1
            """)
            for k in list(range(1, len(self.names))) + [10]:
                a.e(f"s_sub_u32 s8, s{80+2*k}, s80\nv_mov_b32 v8, s8\nbuffer_store_dword v8, v3, {R_WS}, s3 offen offset:{4*k}")
            a.e(f"v_mov_b32 v8, s78\nbuffer_store_dword v8, v3, {R_WS}, s3 offen offset:44")
            a.e(f"v_mov_b32 v8, s72\nbuffer_store_dword v8, v3, {R_WS}, s3 offen offset:48")

    def build(self):
        a = self.a
        self.prologue()
        self.role_a()
        a.e("s_branch L_tail" if self.stamps else "s_endpgm")
        self.role_b()
        a.label("L_tail")
        self.tail()
        a.label("L_end")
        a.e("s_endpgm")
        hdr = open("gated_mix__ssm_conv_s4__dense_activation_relu__prompt.s.ref").read().split("; Override launch")[0]
        s = hdr + f"; @launch grid=(256,1,1) block=(512,1,1) lds={LDS_BYTES}\n"
        s += '.amdgcn_target "amdgcn-amd-amdhsa--gfx950"\n.text\n'
        s += f".globl {KNAME}\n.p2align 8\n.type {KNAME},@function\n{KNAME}:\n"
        s += a.text().replace(".p2align 3:", ".p2align 3")
        s += f""".section .rodata,"a"
.p2align 6
.amdhsa_kernel {KNAME}
  .amdhsa_next_free_vgpr 256
  .amdhsa_next_free_sgpr 102
  .amdhsa_accum_offset 256
  .amdhsa_group_segment_fixed_size 0
  .amdhsa_kernarg_size 128
  .amdhsa_user_sgpr_count 2
  .amdhsa_user_sgpr_kernarg_segment_ptr 1
  .amdhsa_system_sgpr_workgroup_id_x 1
.end_amdhsa_kernel
"""
        return s


if __name__ == "__main__":
    out = sys.argv[1]
    stamps = None
    opts = {}
    for x in sys.argv[2:]:
        if x.startswith("--stamps="):
            stamps = x.split("=")[1].split(",")
        elif "=" in x:
            opts[x.split("=")[0]] = int(x.split("=")[1])
    g = Gen(stamps=stamps, opts=opts)
    s = g.build()
    open(out, "w").write(s)
    print("instructions", sum(1 for i in g.a.ins if i.kind != "label"), "auto nops", g.a.nops, "stamps", g.names)
```
